```python
import torch

def _softmax(x, axis=-1):
    return torch.softmax(x, dim=axis)
def _gelu(x):
    return torch.nn.functional.gelu(x, approximate="tanh")
def _silu(x):
    return torch.nn.functional.silu(x)
def _sigmoid(x):
    return torch.sigmoid(x)
def _layernorm(x, axis=-1, eps=1e-5):
    m = x.mean(dim=axis, keepdim=True)
    v = x.var(dim=axis, keepdim=True, unbiased=False)
    return (x - m) / torch.sqrt(v + eps)
def _scatter_add(tgt, idx, src, axis=0):
    return tgt.clone().index_add_(axis, idx, src)
def _segment_sum(src, seg, n):
    out = torch.zeros((n,) + src.shape[1:], dtype=src.dtype)
    return out.index_add_(0, seg, src)
def _pad(x, pw):
    flat = tuple(v for pair in reversed(pw) for v in pair)
    return torch.nn.functional.pad(x, flat)

kernel_name = 'gated_mix__ssm_conv_s4d__ssm_conv_s5__prompt'

def setup_inputs():

    _w = (lambda a: (lambda t: t.to(torch.bfloat16) if t.is_floating_point() else t)(torch.as_tensor(a)))
    def _A_setup():
        Bsz, L, D, N = 1, 2048, 576, 128
        return {
            "u": _w((lambda *s: torch.randn(*s, dtype=torch.bfloat16) * 0.05)(Bsz, L, D)),
            "log_A_real": _w((lambda *s: torch.randn(*s, dtype=torch.bfloat16) * 3.2)(D, N) * 0.5),
            "A_imag": _w((lambda *s: torch.randn(*s, dtype=torch.bfloat16) * 0.05)(D, N) * 3.14),
            "C_real": _w((lambda *s: torch.randn(*s, dtype=torch.bfloat16) * 0.1)(D, N) / N ** 0.5),
            "C_imag": _w((lambda *s: torch.randn(*s, dtype=torch.bfloat16) * 0.1)(D, N) / N ** 0.5),
            "log_dt": _w((lambda *s: torch.randn(*s, dtype=torch.bfloat16) * 0.05)(D) * 0.5 - 4.0),
            "D_skip": _w((lambda *s: torch.randn(*s, dtype=torch.bfloat16) * 0.05)(D)),
        }
    _A_in = _A_setup()

    def _B_setup():
        B, S, D = 1, 2048, 576
        P = D
        Lambda_re = -0.5 * (lambda _x: torch.exp(torch.as_tensor(_x)))((lambda *s: torch.randn(*s, dtype=torch.bfloat16) * 0.2)(P))
        Lambda_im = (lambda *s: torch.randn(*s, dtype=torch.bfloat16) * 0.4)(P) * 1.0
        B_re = (lambda *s: torch.randn(*s, dtype=torch.bfloat16) * 0.2)(P, D) * (D ** -0.5)
        B_im = (lambda *s: torch.randn(*s, dtype=torch.bfloat16) * 0.2)(P, D) * (D ** -0.5)
        C_re = (lambda *s: torch.randn(*s, dtype=torch.bfloat16) * 0.2)(D, P) * (P ** -0.5)
        C_im = (lambda *s: torch.randn(*s, dtype=torch.bfloat16) * 0.2)(D, P) * (P ** -0.5)
        log_dt = (lambda *s: torch.randn(*s, dtype=torch.bfloat16) * 0.2)(P) * 0.3 - 2.0
        Dskip = (lambda *s: torch.randn(*s, dtype=torch.bfloat16) * 0.05)(D)
        return {
            "x": _w((lambda *s: torch.randn(*s, dtype=torch.bfloat16) * 0.05)(B, S, D)),
            "Lambda_re": _w(Lambda_re),
            "Lambda_im": _w(Lambda_im),
            "B_re": _w(B_re),
            "B_im": _w(B_im),
            "C_re": _w(C_re),
            "C_im": _w(C_im),
            "log_dt": _w(log_dt),
            "Dskip": _w(Dskip),
        }
    _B_in = _B_setup()

    return {
        "A_u": _A_in["u"],
        "A_log_A_real": _A_in["log_A_real"],
        "A_A_imag": _A_in["A_imag"],
        "A_C_real": _A_in["C_real"],
        "A_C_imag": _A_in["C_imag"],
        "A_log_dt": _A_in["log_dt"],
        "A_D_skip": _A_in["D_skip"],
        "B_x": _B_in["x"],
        "B_Lambda_re": _B_in["Lambda_re"],
        "B_Lambda_im": _B_in["Lambda_im"],
        "B_B_re": _B_in["B_re"],
        "B_B_im": _B_in["B_im"],
        "B_C_re": _B_in["C_re"],
        "B_C_im": _B_in["C_im"],
        "B_log_dt": _B_in["log_dt"],
        "B_Dskip": _B_in["Dskip"],
        "gate_w": _w((lambda *s: torch.randn(*s, dtype=torch.bfloat16) * 0.05)(576) * 16.0),
    }

def reference(A_u, A_log_A_real, A_A_imag, A_C_real, A_C_imag, A_log_dt, A_D_skip, B_x, B_Lambda_re, B_Lambda_im, B_B_re, B_B_im, B_C_re, B_C_im, B_log_dt, B_Dskip, gate_w):
    def _A_ref(u, log_A_real, A_imag, C_real, C_imag, log_dt, D_skip):
        L = u.shape[1]
        dt = torch.exp(log_dt)
        A = -torch.exp(log_A_real) + 1j * A_imag
        C = (C_real + 1j * C_imag) * dt[:, None]
        pos = (lambda x, dt: x.to(dt))(torch.arange(L), log_dt.dtype)
        P = torch.exp((A * dt[:, None])[:, :, None] * pos[None, None, :])
        K = 2.0 * torch.einsum("dn,dnl->dl", C, P).real
        L2 = 2 * L
        u_t = (lambda x, *d: x.permute(*d))(u, 0, 2, 1)
        Kf = (lambda x, *a, **k: torch.fft.rfft(x.float(), *a, **k))(K, L2)
        Uf = (lambda x, *a, **k: torch.fft.rfft(x.float(), *a, **k))(u_t, L2)
        y = (lambda x, *a, **k: torch.fft.irfft(x, *a, **k).to(torch.bfloat16))(Uf * Kf[None, :, :], L2)[:, :, :L]
        y = (lambda x, *d: x.permute(*d))(y, 0, 2, 1)
        return y + u * D_skip[None, None, :]

    def _B_ref(x, Lambda_re, Lambda_im, B_re, B_im, C_re, C_im, log_dt, Dskip):
        Bsz, L, H = x.shape
        Lam = Lambda_re + 1j * Lambda_im
        Bmat = B_re + 1j * B_im
        Cmat = C_re + 1j * C_im
        dt = torch.exp(log_dt)
        Lam_bar = torch.exp(dt * Lam)
        B_bar = ((Lam_bar - 1.0) / Lam)[:, None] * Bmat
        Bu = torch.einsum("bld,pd->blp", x + 0j, B_bar)
        h = torch.zeros_like(Bu[:, 0, :])
        hs = []
        for t in range(L):
            h = Lam_bar[None, :] * h + Bu[:, t, :]
            hs.append(h)
        hseq = torch.stack(hs, 1)
        y = 2.0 * torch.einsum("blp,dp->bld", hseq, Cmat).real + x * Dskip[None, None, :]
        return y

    x = A_u
    g = _sigmoid((x * gate_w).sum(-1, keepdims=True))
    a = _A_ref(x, A_log_A_real, A_A_imag, A_C_real, A_C_imag, A_log_dt, A_D_skip)
    b = _B_ref(x, B_Lambda_re, B_Lambda_im, B_B_re, B_B_im, B_C_re, B_C_im, B_log_dt, B_Dskip)
    return g * a + (1 - g) * b
```

```python
from kasm import *
from gen import *
MF = "v_mfma_f32_16x16x32_bf16"
SPIN = 200000
def partB(g):
    k = g.k
    def pk_bc(op, d, a, b, bsel, c=None, neg=False):
        if c is None:
            k(f"v_pk_mul_f32 {v(d,2)}, {v(a,2)}, {v(b,2)} op_sel:[0,{bsel}] op_sel_hi:[1,{bsel}]")
        else:
            n = " neg_lo:[1,0,0] neg_hi:[1,0,0]" if neg else ""
            k(f"v_pk_fma_f32 {v(d,2)}, {v(a,2)}, {v(b,2)}, {v(c,2)} op_sel:[0,{bsel},0] op_sel_hi:[1,{bsel},1]{n}")
    def cmac(items):
        for d, x, y, c in items: k(f"v_pk_fma_f32 {v(d,2)}, {v(x,2)}, {v(y,2)}, {v(c,2)} op_sel:[0,0,0] op_sel_hi:[0,1,1]")
        for d, x, y, c in items: k(f"v_pk_fma_f32 {v(d,2)}, {v(x,2)}, {v(y,2)}, {v(d,2)} op_sel:[1,1,0] op_sel_hi:[1,0,1] neg_lo:[1,0,0]")
    g.code_prefetch("L_B_end", g.pfB, 240)
    k(f"""
    s_and_b32 s53, s2, 7
    s_lshr_b32 s54, s2, 3
    s_and_b32 s51, s53, 1            ; th
    s_lshr_b32 s52, s54, 2           ; dj
    s_lshr_b32 s49, s53, 1
    s_lshl_b32 s49, s49, 2
    s_and_b32 s55, s54, 3
    s_add_u32 s49, s49, s55          ; i
    s_mul_i32 s50, s51, 6
    s_add_u32 s50, s50, s52          ; j
    s_lshl_b32 s53, s49, 1
    s_mul_i32 s54, s50, 3
    s_lshr_b32 s54, s54, 1
    s_add_u32 s53, s53, s54
    s_mul_hi_u32 s54, s53, 0x1C71C71D
    s_mul_i32 s54, s54, 9
    s_sub_u32 s53, s53, s54
    s_lshl_b32 s53, s53, 7
    s_mov_b32 s54, s53
    ; x voffsets
    v_lshrrev_b32 v4, 3, v1          ; rl
    v_and_b32 v5, 7, v1
    v_xor_b32 v5, v5, v3
    v_lshlrev_b32 v5, 4, v5
    v_lshrrev_b32 v6, 2, v4
    v_lshlrev_b32 v6, 3, v6
    v_and_b32 v7, 1, v4
    v_lshl_add_u32 v6, v7, 2, v6
    v_bfe_u32 v7, v4, 1, 1
    v_add_u32 v6, v6, v7
    s_lshl_b32 s55, s49, 7
    s_lshl_b32 s4, s48, 5
    s_add_u32 s55, s55, s4
    v_add_u32 v6, s55, v6
    v_mul_u32_u24 v6, 1152, v6
    v_add_u32 v8, v6, v5             ; vX0
    v_xor_b32 v9, 64, v8
    v_add_u32 v10, {2*1152-2048}, v8
    v_add_u32 v11, {18*1152-3072}, v9
    v_add_u32 v9, {16*1152-1024}, v9
    ; w voffsets
    s_mul_i32 s55, s50, 48
    s_and_b32 s4, s48, 1
    s_mul_i32 s5, s4, 24
    s_add_u32 s55, s55, s5
    v_add_u32 v6, s55, v4
    v_mul_u32_u24 v6, 1152, v6
    v_add_u32 v12, v6, v5
    s_lshl_b32 s5, s4, 6
    v_xor_b32 v12, s5, v12           ; vW0
    v_xor_b32 v13, 64, v12
    v_add_u32 v13, {9216-1024}, v13
    v_add_u32 v14, {2*9216-2048}, v12
    s_lshl_b32 s5, s4, 10
    v_lshl_add_u32 v15, v1, 4, s5
    s_lshl_b32 s6, s48, 13
    s_mul_i32 s7, s48, 3072
    s_add_u32 s7, s7, 32768
    s_add_u32 s3, s5, 69632
    s_mul_i32 s55, s50, 96
    v_lshl_add_u32 v16, v2, 1, s55
    """)
    k(f"""
    s_mov_b32 s64, s8
    s_mov_b32 s65, s9
    s_mov_b32 s66, 2359296
    s_mov_b32 s67, 0x20000
    s_cmp_lt_u32 s48, 2
    s_cselect_b32 s68, s28, s30
    s_cselect_b32 s69, s29, s31
    s_mov_b32 s70, 663552
    s_mov_b32 s71, 0x20000
    s_cselect_b32 s72, s32, s34
    s_cselect_b32 s73, s33, s35
    s_mov_b32 s74, 663552
    s_mov_b32 s75, 0x20000
    """)
    g.stamp(1)
    def dma_chunk(c):
        k(f"s_add_u32 m0, s6, {4096*(c%2)}")
        for n in range(4): k(f"buffer_load_dwordx4 v{8+n}, s[64:67], s53 offen offset:{1024*n} lds", tag=("c", c))
        k(f"s_add_u32 m0, s7, {12288*(c%3)}")
        for n in range(3): k(f"buffer_load_dwordx4 v{12+n}, s[68:71], s53 offen offset:{1024*n} lds", tag=("c", c))
        k("s_add_u32 s53, s53, 128\ns_cmp_eq_u32 s53, 1152\ns_cselect_b32 s53, 0, s53")
    PR = 20
    for c in range(3):
        k(f"global_load_ushort v{PR+c}, v16, s[36:37] offset:{32*c}\nglobal_load_ushort v{PR+3+c}, v16, s[24:25] offset:{32*c}\nglobal_load_ushort v{PR+6+c}, v16, s[26:27] offset:{32*c}")
    k("s_mov_b32 s76, s40\ns_mov_b32 s77, s41\ns_mov_b32 s78, 1152\ns_mov_b32 s79, 0x20000\ns_mov_b32 m0, s3")
    k("buffer_load_dwordx4 v15, s[76:79], 0 offen lds", tag=("c", 0))
    dma_chunk(0); dma_chunk(1)
    k("s_load_dwordx8 s[56:63], s[46:47], 0")
    k(f"""
    v_lshrrev_b32 v4, 1, v2
    v_xor_b32 v4, v4, v3
    v_lshlrev_b32 v4, 4, v4
    v_lshl_add_u32 v4, v2, 7, v4
    v_add_u32 v17, s6, v4            ; x ks0
    v_xor_b32 v18, 64, v17
    v_add_u32 v19, 32768, v4         ; w ks0
    v_xor_b32 v15, 64, v19           ; w ks1
    v_lshlrev_b32 v16, 4, v3
    v_add_u32 v16, 69632, v16
    """)
    vAX, vAW, vG, vFRAG = (17, 18), (19, 15), 16, 4
    Z, LM, L1 = 30, 36, 42
    WSr, WSi = 48, 54
    TMP = 208
    for c in range(3): k(f"v_lshlrev_b32 v{PR+c}, 16, v{PR+c}\nv_mul_f32 v{PR+c}, {fl(LOG2E)}, v{PR+c}")
    for c in range(3): k(f"v_exp_f32 v{PR+c}, v{PR+c}\nv_lshlrev_b32 v{LM+2*c}, 16, v{PR+3+c}\nv_lshlrev_b32 v{LM+2*c+1}, 16, v{PR+6+c}")
    for c in range(3): k(f"v_cvt_pk_bf16_f32 v{PR+c}, v{PR+c}, v{PR+c}")
    for c in range(3): k(f"v_and_b32 v{PR+c}, 0xffff0000, v{PR+c}")
    for c in range(3): k(f"v_mul_f32 v{Z+2*c}, v{PR+c}, v{LM+2*c}\nv_mul_f32 v{Z+2*c+1}, v{PR+c}, v{LM+2*c+1}")
    for c in range(3): k(f"v_mul_f32 v{Z+2*c}, {fl(LOG2E)}, v{Z+2*c}\nv_mul_f32 v{Z+2*c+1}, {fl(INV2PI)}, v{Z+2*c+1}")
    k("s_lshl_b32 s4, s48, 5\nv_lshl_add_u32 v20, v3, 3, s4\nv_sub_u32 v20, 120, v20\nv_cvt_f32_u32 v20, v20\nv_add_f32 v21, 4.0, v20")
    g.cpow_multi([(L1+2*c, L1+2*c+1, Z+2*c, Z+2*c+1, "1.0", TMP+2*c, TMP+2*c+1) for c in range(3)] +
                 [(WSr+2*c, WSi+2*c, Z+2*c, Z+2*c+1, "v21", TMP+6+2*c, TMP+7+2*c) for c in range(3)] +
                 [(WSr+2*c+1, WSi+2*c+1, Z+2*c, Z+2*c+1, "v20", TMP+12+2*c, TMP+13+2*c) for c in range(3)])
    k.wait_lg()
    k(f"s_mul_i32 s55, s56, {LCG_A}\ns_add_u32 s55, s55, {LCG_C}       ; tagB\ns_mov_b32 s5, s56")
    for i in range(1, 6): k(f"s_cmp_eq_u32 s52, {i}\ns_cselect_b32 s5, s{56+i}, s5")
    k(f"s_mul_i32 s56, s5, {LCG_A}\ns_add_u32 s56, s56, {LCG_C}       ; tagA")
    k(f"s_mov_b32 s76, s46\ns_mov_b32 s77, s47\ns_mov_b32 s78, {WS_SIZE}")
    g.stamp(2)
    R = [64 + 16*c for c in range(3)]; I = [72 + 16*c for c in range(3)]; GA = 112
    XF, WF = 120, 152
    def wreads(c, ks):
        base = WF + 28*ks
        for t in range(6): k(f"ds_read_b128 {v(base+4*t,4)}, v{vAW[ks]} offset:{12288*(c%3) + 2048*t}")
        k(f"ds_read_b128 {v(base+24,4)}, v5 offset:{64*ks}")
    def mfmas(c, ks):
        base = WF + 28*ks
        for t in range(7):
            for m in range(2):
                d = (R[t] if t < 3 else I[t-3] if t < 6 else GA) + 4*m
                cc = "0" if (c == 0 and ks == 0) else v(d, 4)
                k(f"{MF} {v(d,4)}, {v(XF+16*(c%2)+8*ks+4*m,4)}, {v(base+4*t,4)}, {cc}")
    for c in range(9):
        k.wait_vm(("c", c))
        for ks in range(2):
            for m in range(2): k(f"ds_read_b128 {v(XF+16*(c%2)+8*ks+4*m,4)}, v{vAX[ks]} offset:{4096*(c%2)+2048*m}", tag="x")
        k(f"v_add_u32 v5, s54, v{vG}")
        k("s_barrier")
        wreads(c, 0)
        if c + 2 < 9:
            k.wait_lg("x"); dma_chunk(c + 2)
        if c > 0 and c - 1 not in g.nodefer: mfmas(c - 1, 1)
        wreads(c, 1)
        mfmas(c, 0)
        if c in g.nodefer or c == 8: mfmas(c, 1)
        k("s_add_u32 s54, s54, 128\ns_cmp_eq_u32 s54, 1152\ns_cselect_b32 s54, 0, s54")
        k.wait_lg()
    g.stamp(3)
    for st in range(1, 4):
        for c in range(3):
            pk_bc("f", R[c]+2*st, R[c]+2*st-2, L1+2*c, 0, R[c]+2*st)
            pk_bc("f", I[c]+2*st, I[c]+2*st-2, L1+2*c, 0, I[c]+2*st)
        for c in range(3):
            pk_bc("f", R[c]+2*st, I[c]+2*st-2, L1+2*c, 1, R[c]+2*st, neg=True)
            pk_bc("f", I[c]+2*st, R[c]+2*st-2, L1+2*c, 1, I[c]+2*st)
    T = TMP
    for c in range(3):
        k(f"v_pk_mul_f32 {v(T+4*c,2)}, {v(R[c]+6,2)}, {v(WSr+2*c,2)}\nv_pk_mul_f32 {v(T+4*c+2,2)}, {v(I[c]+6,2)}, {v(WSr+2*c,2)}")
    for c in range(3):
        k(f"v_pk_fma_f32 {v(T+4*c,2)}, {v(I[c]+6,2)}, {v(WSi+2*c,2)}, {v(T+4*c,2)} neg_lo:[1,0,0] neg_hi:[1,0,0]\nv_pk_fma_f32 {v(T+4*c+2,2)}, {v(R[c]+6,2)}, {v(WSi+2*c,2)}, {v(T+4*c+2,2)}")
    X = T + 12
    for c in range(3): k(f"v_add_f32 v{X+2*c}, v{T+4*c}, v{T+4*c+1}\nv_add_f32 v{X+2*c+1}, v{T+4*c+2}, v{T+4*c+3}")
    def reduce_scatter(X, O, Y):
        prs = [(X, X+2), (X+1, X+3), (X+4, X+5)]
        for a_, b_ in prs: k(f"v_permlane32_swap_b32 v{a_}, v{b_}")
        for i, (a_, b_) in enumerate(prs): k(f"v_add_f32 v{O+i}, v{a_}, v{b_}\nv_add_f32 v{Y+i}, v{a_}, v{b_}")
        for i in range(3): k(f"v_permlane16_swap_b32 v{O+i}, v{Y+i}")
        for i in range(3): k(f"v_add_f32 v{O+i}, v{O+i}, v{Y+i}")
    O = T + 20; Y = T + 24
    k(f"v_lshrrev_b32 v6, 1, v3\nv_lshlrev_b32 v6, 8, v6\nv_lshl_add_u32 v6, v2, 4, v6\nv_add_u32 v7, s6, v6")
    reduce_scatter(X, O, Y)
    k(f"ds_write_b128 v7, {v(O,4)} offset:2048")
    k.wait_lg(); k("s_barrier")
    k("s_cmp_lg_u32 s48, 0\ns_cbranch_scc1 L_nopub")
    for w in range(4): k(f"ds_read_b128 {v(T+4*w,4)}, v6 offset:{8192*w+2048}")
    k(f"s_lshl_b32 s4, s50, 4\ns_add_u32 s4, s4, s49\ns_lshl_b32 s4, s4, 9\ns_add_u32 s4, s4, {WS_S}\nv_add_u32 v7, s4, v6\nv_mov_b32 v{O+3}, s55")
    k(f"v_pk_add_f32 {v(T,2)}, {v(T,2)}, {v(T+4,2)}\nv_add_f32 v{T+2}, v{T+2}, v{T+6}\nv_pk_add_f32 {v(T+8,2)}, {v(T+8,2)}, {v(T+12,2)}\nv_add_f32 v{T+10}, v{T+10}, v{T+14}")
    k(f"v_pk_add_f32 {v(O,2)}, {v(T,2)}, {v(T+8,2)}\nv_add_f32 v{O+2}, v{T+2}, v{T+10}")
    k("s_mov_b32 exec_lo, 0xffff\ns_mov_b32 exec_hi, 0xffff")
    k(f"global_store_dwordx4 v7, {v(O,4)}, s[46:47] sc1")
    k("s_mov_b64 exec, -1\ns_nop 1")
    k.vm = []
    k.label("L_nopub", drain=False)
    g.stamp(4)
    k(f"""
    s_mul_i32 s4, s52, 96
    s_and_b32 s5, s48, 1
    s_mul_i32 s5, s5, 48
    s_add_u32 s4, s4, s5
    v_lshrrev_b32 v8, 3, v1
    v_add_u32 v8, s4, v8
    v_mul_u32_u24 v8, 1152, v8
    v_and_b32 v9, 7, v1
    v_xor_b32 v9, v9, v3
    v_lshl_add_u32 v8, v9, 4, v8      ; vC0
    v_xor_b32 v9, 64, v8
    v_add_u32 v9, {9216-1024}, v9     ; vC1
    s_mul_i32 s57, s48, 6144
    s_add_u32 s58, s57, 57344         ; piece B
    s_add_u32 s57, s57, 32768         ; piece A
    s_lshr_b32 s4, s2, 3
    s_lshr_b32 s5, s4, 2
    s_mul_i32 s5, s5, 3
    s_lshr_b32 s5, s5, 1
    s_and_b32 s4, s4, 3
    s_lshl_b32 s4, s4, 1
    s_add_u32 s4, s4, s5
    s_mul_hi_u32 s5, s4, 0x1C71C71D
    s_mul_i32 s5, s5, 9
    s_sub_u32 s4, s4, s5              ; rot2
    s_lshl_b32 s53, s4, 7
    s_lshl_b32 s54, s4, 14
    v_add_u32 v10, s57, v{vFRAG}
    v_xor_b32 v11, 64, v10
    """)
    def c_dma(u, piece):
        for q in range(3):
            k(f"s_add_u32 m0, s{57+piece}, {2048*q}\ns_add_u32 s4, s53, {18432*q}")
            k(f"buffer_load_dwordx4 v8, s[72:75], s4 offen lds\nbuffer_load_dwordx4 v9, s[72:75], s4 offen offset:1024 lds", tag=("C", u))
        k("s_add_u32 s53, s53, 128\ns_cmp_eq_u32 s53, 1152\ns_cselect_b32 s53, 0, s53")
    CU = {0: 112, 1: 136, 2: 160, 3: 184, 4: 208, 5: 232, 6: 112, 7: 136, 8: 160}
    def c_drain(u, piece):
        for ks in range(2):
            for dt in range(3): k(f"ds_read_b128 {v(CU[u]+12*ks+4*dt,4)}, v{10+ks} offset:{24576*piece+2048*dt}", tag=("Cd", u))
    k(f"v_lshl_add_u32 v7, v3, 5, s6\ns_mov_b32 exec_lo, 0x10001\ns_mov_b32 exec_hi, 0x10001")
    for q in range(4): k(f"ds_write2_b32 v7, v{GA+2*q}, v{GA+2*q+1} offset0:{q+200} offset1:{q+204}")
    k("s_mov_b64 exec, -1")
    GOFF = 800
    c_dma(0, 0); c_dma(1, 1)
    TB = 160
    L8, SS, EE = 184, 190, 196
    TT = 232
    tb = lambda c, j: TB + 8*c + 2*j
    for c in range(3): k(f"v_mov_b32 v{tb(c,0)}, v{L1+2*c}\nv_mov_b32 v{tb(c,0)+1}, v{L1+2*c+1}")
    g.cmul_multi([(tb(c,1), L1+2*c, L1+2*c, TT+2*c) for c in range(3)])
    g.cmul_multi([(tb(c,2), tb(c,1), L1+2*c, TT+2*c) for c in range(3)] + [(tb(c,3), tb(c,1), tb(c,1), TT+6+2*c) for c in range(3)])
    g.cmul_multi([(L8+2*c, tb(c,3), tb(c,3), TT+2*c) for c in range(3)])
    for c in range(3):
        k(f"v_fma_f32 v{EE+2*c}, v{tb(c,3)}, v{R[c]+6}, v{R[c]+7}\nv_fma_f32 v{EE+2*c+1}, v{tb(c,3)}, v{I[c]+6}, v{I[c]+7}")
    for c in range(3):
        k(f"v_fma_f32 v{EE+2*c}, -v{tb(c,3)+1}, v{I[c]+6}, v{EE+2*c}\nv_fma_f32 v{EE+2*c+1}, v{tb(c,3)+1}, v{R[c]+6}, v{EE+2*c+1}")
    k(f"v_lshl_add_u32 v7, v1, 5, s6\nds_write_b128 v7, {v(EE,4)} offset:4096\nds_write_b64 v7, {v(EE+4,2)} offset:4112")
    for c in range(3):
        k(f"v_mul_f32 v{TT+c}, v{LM+2*c}, v{LM+2*c}\nv_add_f32 v{TT+4+2*c}, -1.0, v{L1+2*c}\nv_mov_b32 v{TT+5+2*c}, v{L1+2*c+1}")
    for c in range(3): k(f"v_fmac_f32 v{TT+c}, v{LM+2*c+1}, v{LM+2*c+1}")
    for c in range(3): k(f"v_rcp_f32 v{TT+c}, v{TT+c}")
    for c in range(3): k(f"v_add_f32 v{TT+c}, v{TT+c}, v{TT+c}")
    for c in range(3): k(f"v_mul_f32 v{LM+2*c}, v{LM+2*c}, v{TT+c}\nv_mul_f32 v{LM+2*c+1}, -v{LM+2*c+1}, v{TT+c}")
    g.cmul_multi([(SS+2*c, TT+4+2*c, LM+2*c, TT+10+2*c) for c in range(3)])
    k.wait_lg(); k("s_barrier")
    PO, PG = 202, 220
    k(f"v_lshl_add_u32 v7, v2, 5, s6\nv_lshlrev_b32 v6, 13, v3\nv_lshl_add_u32 v6, v2, 5, v6")
    for q in range(4): k(f"ds_read_b64 {v(PG+6*q,2)}, v6 offset:{4096+512*q}\nds_read_b64 {v(PG+6*q+2,2)}, v6 offset:{4096+512*q+8}\nds_read_b64 {v(PG+6*q+4,2)}, v6 offset:{4096+512*q+16}")
    for q in range(3): k(f"ds_read_b64 {v(PO+6*q,2)}, v7 offset:{4096+512*q}\nds_read_b64 {v(PO+6*q+2,2)}, v7 offset:{4096+512*q+8}\nds_read_b64 {v(PO+6*q+4,2)}, v7 offset:{4096+512*q+16}")
    k(f"v_lshrrev_b32 v5, 3, v0\nv_lshlrev_b32 v5, 2, v5\ns_lshl_b32 s4, s51, 14\nv_add_u32 v5, s4, v5\nds_read_b32 v12, v5 offset:{GOFF}\nds_read_b32 v13, v5 offset:{GOFF+8192}")
    L512, WH, WE, LG = 48, 54, 20, 36
    k(f"""
    s_lshl_b32 s4, s48, 5
    v_lshl_add_u32 v26, v3, 7, s4
    v_cvt_f32_u32 v26, v26
    s_sub_u32 s4, s48, 1
    v_sub_u32 v27, s4, v3
    v_cmp_le_i32 s[60:61], 0, v27
    v_max_i32 v27, 0, v27
    v_lshlrev_b32 v27, 5, v27
    v_cvt_f32_u32 v27, v27
    v_lshlrev_b32 v28, 3, v3
    v_cvt_f32_u32 v28, v28
    """)
    T2 = 244
    g.cpow_multi([(L512+2*c, L512+2*c+1, Z+2*c, Z+2*c+1, fl(512.0), T2+2*c, T2+2*c+1) for c in range(3)] +
                 [(WH+2*c, WH+2*c+1, Z+2*c, Z+2*c+1, "v26", T2+6+2*c, T2+7+2*c) for c in range(3)])
    g.cpow_multi([(WE+2*c, WE+2*c+1, Z+2*c, Z+2*c+1, "v27", T2+2*c, T2+2*c+1) for c in range(3)] +
                 [(LG+2*c, LG+2*c+1, Z+2*c, Z+2*c+1, "v28", T2+6+2*c, T2+7+2*c) for c in range(3)])
    for c in range(6): k(f"v_cndmask_b32 v{WE+c}, 0, v{WE+c}, s[60:61]")
    for q in range(1, 4): cmac([(PG+6*q+2*c, PG+6*(q-1)+2*c, L8+2*c, PG+6*q+2*c) for c in range(3)])
    LT = 30
    g.cmul_multi([(LT+2*c, PG+18+2*c, WE+2*c, T2+2*c) for c in range(3)])
    for q in range(1, 3): cmac([(PO+6*q+2*c, PO+6*(q-1)+2*c, L8+2*c, PO+6*q+2*c) for c in range(3)])
    P = EE
    for c in range(6): k(f"v_mov_b32 v{P+c}, 0")
    for q, (lo, hi) in enumerate((("0xffff0000", "0"), ("0", "0xffff"), ("0", "0xffff0000"))):
        k(f"s_mov_b32 exec_lo, {lo}\ns_mov_b32 exec_hi, {hi}")
        for c in range(6): k(f"v_mov_b32 v{P+c}, v{PO+6*q+c}")
    k("s_mov_b64 exec, -1")
    for c in range(3):
        for st in range(4):
            a, b = T2 + 4*(st % 2), T2 + 4*(st % 2) + 2
            pk_bc("m", a, R[c]+2*st, SS+2*c, 0); pk_bc("m", b, R[c]+2*st, SS+2*c, 1)
            pk_bc("f", R[c]+2*st, I[c]+2*st, SS+2*c, 1, a, neg=True); pk_bc("f", I[c]+2*st, I[c]+2*st, SS+2*c, 0, b)
    g.cmul_multi([(P+2*c, P+2*c, SS+2*c, T2+2*c) for c in range(3)] + [(LG+2*c, LG+2*c, SS+2*c, T2+6+2*c) for c in range(3)])
    CPr, CPi, MPr, MPi = 202, 208, 184, 190
    for c in range(3):
        k(f"""
        v_mov_b32 v{CPr+2*c}, v{P+2*c}
        v_mov_b32 v{CPi+2*c}, v{P+2*c+1}
        v_fma_f32 v{CPr+2*c+1}, v{tb(c,3)}, v{P+2*c}, v{R[c]+6}
        v_fma_f32 v{CPi+2*c+1}, v{tb(c,3)}, v{P+2*c+1}, v{I[c]+6}
        v_mov_b32 v{MPr+2*c}, v{LG+2*c}
        v_mov_b32 v{MPi+2*c}, v{LG+2*c+1}
        v_mul_f32 v{MPr+2*c+1}, v{tb(c,3)}, v{LG+2*c}
        v_mul_f32 v{MPi+2*c+1}, v{tb(c,3)}, v{LG+2*c+1}
        v_fma_f32 v{CPr+2*c+1}, -v{tb(c,3)+1}, v{P+2*c+1}, v{CPr+2*c+1}
        v_fma_f32 v{CPi+2*c+1}, v{tb(c,3)+1}, v{P+2*c}, v{CPi+2*c+1}
        v_fma_f32 v{MPr+2*c+1}, -v{tb(c,3)+1}, v{LG+2*c+1}, v{MPr+2*c+1}
        v_fma_f32 v{MPi+2*c+1}, v{tb(c,3)+1}, v{LG+2*c}, v{MPi+2*c+1}
        """)
    k(f"s_lshl_b32 s4, s50, 13\ns_add_u32 s4, s4, {WS_S}\nv_lshl_add_u32 v28, v2, 4, s4\ns_sub_u32 s5, s49, 1\nv_sub_u32 v29, s5, v3\nv_mov_b32 v36, s55\nv_mov_b32 v37, 0x80000000")
    for q in range(4):
        k(f"v_subrev_u32 v38, {4*q}, v29\nv_cmp_le_i32 vcc, 0, v38\nv_lshl_add_u32 v38, v38, 9, v28\nv_cndmask_b32 v{20+q}, v37, v38, vcc\nv_cndmask_b32 v{24+q}, 0, v36, vcc")
    k(f"""
    v_and_b32 v14, 1, v3
    v_lshlrev_b32 v14, 2, v14
    v_xor_b32 v14, v14, v1
    s_lshr_b32 s4, s48, 1
    s_lshl_b32 s5, s49, 1
    s_add_u32 s4, s4, s5
    s_mul_i32 s4, s4, 147456
    s_mul_i32 s5, s50, 12288
    s_add_u32 s4, s4, s5
    s_and_b32 s5, s48, 1
    s_lshl_b32 s5, s5, 11
    s_add_u32 s4, s4, s5
    s_add_u32 s59, s4, {WS_H}
    v_lshlrev_b32 v14, 4, v14
    """)
    k.raw("    s_waitcnt vmcnt(0)"); k.vm = []
    c_drain(0, 0); c_drain(1, 1)
    k.wait_lg()
    if g.b2_early: c_dma(2, 0); c_dma(3, 1)
    g.stamp(5)
    PD = 216
    k(f"s_mov_b32 s60, {SPIN}")
    k.out.append("L_pollS:")
    for q in range(4):
        k(f"buffer_load_dwordx4 {v(PD+8*q,4)}, v{20+q}, s[76:79], 0 offen sc1\nbuffer_load_dwordx4 {v(PD+8*q+4,4)}, v{20+q}, s[76:79], 0 offen offset:256 sc1")
    k("s_sub_u32 s60, s60, 1")
    k.wait_vm()
    for q in range(4): k(f"v_xor_b32 v{PD+8*q+3}, v{PD+8*q+3}, v{24+q}\nv_xor_b32 v{PD+8*q+7}, v{PD+8*q+7}, v{24+q}")
    k(f"v_or3_b32 v36, v{PD+3}, v{PD+7}, v{PD+11}\nv_or3_b32 v37, v{PD+15}, v{PD+19}, v{PD+23}\nv_or3_b32 v36, v36, v{PD+27}, v{PD+31}\nv_or_b32 v36, v36, v37")
    k("v_cmp_ne_u32 vcc, 0, v36\ns_cbranch_scc1 L_pollS_done\ns_nop 2\ns_cbranch_vccnz L_pollS")
    k.out.append("L_pollS_done:")
    g.stamp(6)
    if not g.b2_early: c_dma(2, 0); c_dma(3, 1)
    for q in range(4): k(f"v_mov_b32 v{PD+8*q+3}, v{PD+8*q+6}")
    pos = [0, 4, 2]
    for q in (2, 1, 0): cmac([(PD+8*q+pos[c], PD+8*(q+1)+pos[c], L512+2*c, PD+8*q+pos[c]) for c in range(3)])
    cmac([(LT+2*c, PD+pos[c], WH+2*c, LT+2*c) for c in range(3)])
    O, Y = 248, 252
    reduce_scatter(LT, O, Y)
    HH = 36
    dst = [(HH, HH+2), (HH+1, HH+3), (HH+4, HH+5)]
    for i, (a_, b_) in enumerate(dst): k(f"v_mov_b32 v{a_}, v{O+i}\nv_mov_b32 v{b_}, v{O+i}")
    for a_, b_ in dst: k(f"v_permlane32_swap_b32 v{a_}, v{b_}")
    for c in range(3):
        pk_bc("f", CPr+2*c, MPr+2*c, HH+2*c, 0, CPr+2*c); pk_bc("f", CPi+2*c, MPi+2*c, HH+2*c, 0, CPi+2*c)
    for c in range(3):
        pk_bc("f", CPr+2*c, MPi+2*c, HH+2*c, 1, CPr+2*c, neg=True); pk_bc("f", CPi+2*c, MPr+2*c, HH+2*c, 1, CPi+2*c)
    for c in range(3):
        for st in range(4):
            pk_bc("f", R[c]+2*st, CPr+2*c, tb(c,st), 0, R[c]+2*st); pk_bc("f", I[c]+2*st, CPi+2*c, tb(c,st), 0, I[c]+2*st)
        for st in range(4):
            pk_bc("f", R[c]+2*st, CPi+2*c, tb(c,st), 1, R[c]+2*st, neg=True); pk_bc("f", I[c]+2*st, CPr+2*c, tb(c,st), 1, I[c]+2*st)
        o = PD + 8*c
        for i, (a_, b_) in enumerate(((0, 2), (4, 6), (1, 3), (5, 7))):
            k(f"v_cvt_pk_bf16_f32 v{o+i}, v{R[c]+a_}, v{R[c]+b_}\nv_cvt_pk_bf16_f32 v{o+4+i}, -v{I[c]+a_}, -v{I[c]+b_}")
        k(f"s_add_u32 s4, s59, {4096*c}")
        k(f"buffer_store_dwordx4 {v(o,4)}, v14, s[76:79], s4 offen sc1\nbuffer_store_dwordx4 {v(o+4,4)}, v14, s[76:79], s4 offen offset:1024 sc1", tag="h")
    k.wait_vm(("C", 3))
    c_drain(2, 0); c_drain(3, 1)
    k.wait_lg()
    c_dma(4, 0); c_dma(5, 1)
    k(f"""
    s_lshl_b32 s4, s49, 2
    s_add_u32 s5, s4, s48
    s_mul_i32 s5, s5, 12
    s_add_u32 s5, s5, s50
    s_lshl_b32 s5, s5, 7
    s_add_u32 s5, s5, {WS_HF}
    v_mov_b32 v5, s5
    v_mov_b32 v6, s55
    s_lshl_b32 s5, s51, 1
    s_add_u32 s4, s4, s5
    s_mul_i32 s4, s4, {12*128}
    s_add_u32 s4, s4, {WS_HF}
    v_min_u32 v7, 23, v1
    v_lshl_add_u32 v7, v7, 7, s4
    """)
    k.wait_vm()
    k("s_mov_b64 exec, 1\nglobal_store_dword v5, v6, s[46:47] sc1\ns_mov_b64 exec, -1")
    g.stamp(7)
    c_drain(4, 0); c_drain(5, 1)
    k.wait_lg()
    c_dma(6, 1)
    k(f"""
    s_lshl_b32 s4, s49, 1
    s_add_u32 s4, s4, s51
    s_mul_i32 s4, s4, 147456
    s_add_u32 s4, s4, {WS_H}
    s_lshl_b32 s59, s48, 12
    s_add_u32 s4, s4, s59
    v_lshl_add_u32 v14, v1, 4, s4
    v_lshrrev_b32 v15, 1, v3
    v_lshlrev_b32 v15, 12, v15          ; (G>>1)*4096
    s_lshr_b32 s4, s48, 1
    s_lshl_b32 s4, s4, 10
    v_add_u32 v15, s4, v15
    v_bfe_u32 v16, v1, 1, 1             ; cc>>1
    v_lshl_add_u32 v15, v16, 8, v15
    v_and_b32 v17, 1, v3
    v_lshlrev_b32 v17, 3, v17
    v_bfe_u32 v18, v1, 2, 2             ; r
    v_add_u32 v17, v17, v18
    v_lshlrev_b32 v16, 2, v16
    v_xor_b32 v17, v17, v16
    v_lshl_add_u32 v15, v17, 4, v15
    v_and_b32 v17, 1, v1
    v_lshl_add_u32 v15, v17, 3, v15
    v_xor_b32 v16, 64, v15              ; half 1
    """)
    k("s_barrier")
    k(f"s_mov_b32 s60, {SPIN}")
    k.out.append("L_pollH:")
    k("global_load_dword v17, v7, s[46:47] sc1\ns_sub_u32 s60, s60, 1")
    k.wait_vm()
    k("v_cmp_ne_u32 vcc, s55, v17\ns_cbranch_scc1 L_pollH_done\ns_nop 2\ns_cbranch_vccnz L_pollH")
    k.out.append("L_pollH_done:")
    g.stamp(8)
    def h_dma(u):
        k(f"s_add_u32 m0, s59, {16384*(u%3)}")
        for n in range(4): k(f"buffer_load_dwordx4 v14, s[76:79], s54 offen offset:{1024*n} sc1 lds", tag=("h", u))
        k(f"s_add_u32 s54, s54, 16384\ns_cmp_eq_u32 s54, 147456\ns_cselect_b32 s54, 0, s54")
    h_dma(0); h_dma(1); h_dma(2)
    A2, HF = 64, 20
    def hreads(u, ks):
        for tt in range(4):
            off = 16384*(u % 3) + 8192*ks + 2048*(tt >> 1) + 512*(tt & 1)
            k(f"ds_read_b64_tr_b16 {v(HF+16*ks+4*tt,2)}, v15 offset:{off}\nds_read_b64_tr_b16 {v(HF+16*ks+4*tt+2,2)}, v16 offset:{off}")
    def mf2(u, ks):
        for tt in range(4):
            for dt in range(3):
                d = A2 + 16*dt + 4*tt
                cc = "0" if (u == 0 and ks == 0) else v(d, 4)
                k(f"{MF} {v(d,4)}, {v(CU[u]+12*ks+4*dt,4)}, {v(HF+16*ks+4*tt,4)}, {cc}")
    XR, DBR, AR = 52, 184, 208
    for u in range(9):
        k.wait_vm(("h", u))
        if u == 8: k.wait_vm("a")
        k("s_barrier")
        hreads(u, 0)
        if u >= 1 and u + 2 < 9: h_dma(u + 2)
        if u > 0: mf2(u - 1, 1)
        if u in (1, 3, 5):
            cu = {1: 6, 3: 7, 5: 8}[u]
            k.wait_vm(("C", cu))
            c_drain(cu, 1)
            if cu < 8:
                k.wait_lg(("Cd", cu)); c_dma(cu + 1, 1)
        if u == 2:
            k(f"""
            s_lshl_b32 s4, s49, 7
            s_lshl_b32 s5, s51, 6
            s_add_u32 s4, s4, s5
            v_lshrrev_b32 v17, 3, v0
            v_add_u32 v17, s4, v17            ; row
            v_and_b32 v18, 7, v0
            s_mul_i32 s5, s52, 192
            v_lshl_add_u32 v18, v18, 3, s5
            v_mul_u32_u24 v19, 1152, v17
            v_add_u32 v19, v19, v18
            v_add_u32 v5, {32*1152}, v19
            """)
            for jj in range(3):
                k(f"global_load_dwordx2 {v(XR+2*jj,2)}, v19, s[8:9] offset:{64*jj}\nglobal_load_dwordx2 {v(XR+6+2*jj,2)}, v5, s[8:9] offset:{64*jj}")
        if u == 5:
            for jj in range(3): k(f"global_load_dwordx2 {v(DBR+2*jj,2)}, v18, s[38:39] offset:{64*jj}")
            k(f"s_mul_i32 s4, s52, 384\ns_add_u32 s4, s4, {WS_AF}\nv_min_u32 v7, 47, v1\nv_lshl_add_u32 v7, v7, 3, s4")
            k("global_load_dwordx2 v[190:191], v7, s[46:47] sc1", tag="af")
        if u == 6:
            k.wait_vm("af")
            k("v_cmp_ne_u32 vcc, s56, v190\nv_cmp_ne_u32 s[62:63], s56, v191\ns_or_b64 vcc, vcc, s[62:63]\ns_cbranch_vccz L_pollA_done")
            save = (list(k.vm), list(k.lg))
            k(f"s_mov_b32 s60, {SPIN}")
            k.out.append("L_pollA:")
            k("global_load_dwordx2 v[190:191], v7, s[46:47] sc1\ns_sub_u32 s60, s60, 1")
            k.wait_vm()
            k("s_cbranch_scc1 L_pollA_done\nv_cmp_ne_u32 vcc, s56, v190\nv_cmp_ne_u32 s[62:63], s56, v191\ns_or_b64 vcc, vcc, s[62:63]\ns_cbranch_vccnz L_pollA")
            k.out.append("L_pollA_done:")
            k.vm, k.lg = save
            k(f"""
            s_mul_i32 s4, s52, 96
            s_mul_i32 s5, s48, 24
            s_add_u32 s4, s4, s5
            v_lshrrev_b32 v6, 3, v1
            v_add_u32 v7, s4, v6
            v_lshlrev_b32 v7, 12, v7
            s_lshl_b32 s4, s49, 1
            s_add_u32 s4, s4, s51
            s_lshl_b32 s4, s4, 7
            s_add_u32 s4, s4, {WS_A}
            v_add_u32 v7, s4, v7
            v_lshrrev_b32 v6, 5, v1
            s_mul_i32 s5, s48, 6
            v_add_u32 v6, s5, v6
            s_mul_i32 s5, s48, 3072
            s_add_u32 m0, s5, 57344
            """)
            for n in range(3):
                k(f"v_add_u32 v192, {2*n}, v6\nv_xor_b32 v192, v192, v1\nv_and_b32 v192, 7, v192\nv_lshl_add_u32 v{193+n}, v192, 4, v7")
                k(f"s_mov_b32 s4, {32768*n - 1024*n}\nbuffer_load_dwordx4 v{193+n}, s[76:79], s4 offen offset:{1024*n} sc1 lds", tag="a")
            for i in range(24): k(f"v_mov_b32 v{AR+i}, 0")
        if u == 7:
            k(f"v_mul_f32 v12, {fl(-LOG2E)}, v12\nv_mul_f32 v13, {fl(-LOG2E)}, v13\nv_exp_f32 v12, v12\nv_exp_f32 v13, v13\nv_add_f32 v12, 1.0, v12\nv_add_f32 v13, 1.0, v13\nv_rcp_f32 v12, v12\nv_rcp_f32 v13, v13")
            k("v_sub_f32 v8, 1.0, v12\nv_sub_f32 v9, 1.0, v13")
            DBF, XB = 190, 232
            for jj in range(3):
                for h in range(2): k(f"v_lshlrev_b32 v{DBF+4*jj+2*h}, 16, v{DBR+2*jj+h}\nv_and_b32 v{DBF+4*jj+2*h+1}, 0xffff0000, v{DBR+2*jj+h}")
            for ii in range(2):
                for jj in range(3):
                    for h in range(2):
                        d = XB + 12*ii + 4*jj + 2*h; s_ = XR + 6*ii + 2*jj + h
                        k(f"v_lshlrev_b32 v{d}, 16, v{s_}\nv_and_b32 v{d+1}, 0xffff0000, v{s_}\nv_pk_mul_f32 {v(d,2)}, {v(d,2)}, {v(DBF+4*jj+2*h,2)}")
                        pk_bc("m", d, d, 8, ii)
            k(f"""
            s_and_b32 s4, s48, 1
            s_lshl_b32 s4, s4, 2
            s_lshr_b32 s5, s48, 1
            s_add_u32 s4, s4, s5
            v_and_b32 v6, 7, v1
            v_xor_b32 v7, s4, v6
            v_lshlrev_b32 v7, 4, v7
            v_lshl_add_u32 v7, v6, 9, v7
            v_lshrrev_b32 v6, 3, v1
            v_lshl_add_u32 v7, v6, 1, v7
            v_add_u32 v6, 57344, v7
            v_xor_b32 v7, 32, v6
            """)
        hreads(u, 1)
        if u == 8:
            for ii in range(2):
                for jj in range(3):
                    for e in range(4): k(f"ds_read_u16_d16_hi v{AR+12*ii+4*jj+e}, v{6+ii} offset:{128*e+4096*jj}")
        mf2(u, 0)
        if u == 8:
            for ii in range(2):
                for q in range(6): pk_bc("f", XB+12*ii+2*q, AR+12*ii+2*q, 12, ii, XB+12*ii+2*q)
            mf2(u, 1)
        k.wait_lg()
    k(f"""
    v_mul_u32_u24 v6, 400, v2
    v_lshl_add_u32 v6, v3, 4, v6
    s_lshr_b32 s4, s48, 1
    s_mul_i32 s4, s4, 25600
    s_and_b32 s5, s48, 1
    s_mul_i32 s5, s5, 192
    s_add_u32 s4, s4, s5
    v_add_u32 v6, s4, v6
    v_lshrrev_b32 v7, 3, v0
    v_mul_u32_u24 v7, 400, v7
    v_and_b32 v10, 7, v0
    v_lshl_add_u32 v7, v10, 4, v7
    v_lshlrev_b32 v19, 1, v19
    v_lshlrev_b32 v5, 1, v5
    s_barrier
    """)
    for tt in range(4):
        for dt in range(3): k(f"ds_write_b128 v6, {v(A2+16*dt+4*tt,4)} offset:{6400*tt+64*dt}")
    k.wait_lg(); k("s_barrier")
    E0 = 112
    for ii in range(2):
        for jj in range(3):
            q = 3*ii + jj
            k(f"ds_read_b128 {v(E0+8*q,4)}, v7 offset:{12800*ii+128*jj}\nds_read_b128 {v(E0+8*q+4,4)}, v7 offset:{25600+12800*ii+128*jj}")
    for ii in range(2):
        for jj in range(3):
            q = 3*ii + jj
            for h in range(2):
                k(f"v_pk_add_f32 {v(E0+8*q+2*h,2)}, {v(E0+8*q+2*h,2)}, {v(E0+8*q+4+2*h,2)}")
            for h in range(2):
                pk_bc("f", E0+8*q+2*h, E0+8*q+2*h, 8, ii, XB+12*ii+4*jj+2*h)
            k(f"global_store_dwordx4 v{19 if ii == 0 else 5}, {v(E0+8*q,4)}, s[42:43] offset:{128*jj}")
    k(f"s_cmp_lg_u32 s49, 15\ns_cbranch_scc1 L_B_fin\ns_cmp_lg_u32 s51, 1\ns_cbranch_scc1 L_B_fin\ns_cmp_lg_u32 s48, 0\ns_cbranch_scc1 L_B_fin")
    k(f"s_lshl_b32 s4, s52, 2\nv_mov_b32 v6, s4\nv_mov_b32 v7, s56\ns_mov_b64 exec, 1\nglobal_store_dword v6, v7, s[46:47]\ns_mov_b64 exec, -1")
    k.out.append("L_B_fin:")
    if g.stamps:
        k.raw("    s_waitcnt vmcnt(0)"); k.vm = []
        k.raw("    s_mov_b32 s82, s84")
        g.stamp(2)
    g.dump_stamps()
    k("s_endpgm")
    k.raw("L_B_end:")
```

```python
import re
REG = re.compile(r"(?<![\w.])([vsa])(?:(\d+)|\[(\d+):(\d+)\])(?![\w])")
TRANS = ("v_exp_f32", "v_log_f32", "v_rcp_f32", "v_rsq_f32", "v_sqrt_f32", "v_sin_f32", "v_cos_f32")
NODEST_S = ("s_cmp", "s_cbranch", "s_waitcnt", "s_barrier", "s_nop", "s_branch", "s_setprio", "s_sleep", "s_endpgm", "s_bitcmp")
def regs_of(tok):
    out = set()
    for m in REG.finditer(tok):
        c = m.group(1)
        if m.group(2) is not None: out.add((c, int(m.group(2))))
        else: out.update((c, i) for i in range(int(m.group(3)), int(m.group(4)) + 1))
    if re.search(r"\bvcc\b", tok): out.add(("s", "vcc"))
    if re.search(r"\bexec\b", tok): out.add(("s", "exec"))
    if re.search(r"\bm0\b", tok): out.add(("s", "m0"))
    return out
def split_ops(s):
    ops, depth, cur = [], 0, ""
    for ch in s:
        if ch in "[(": depth += 1
        if ch in "])": depth -= 1
        if ch == "," and depth == 0: ops.append(cur.strip()); cur = ""
        else: cur += ch
    if cur.strip(): ops.append(cur.strip())
    return ops
class Inst:
    def __init__(self, text):
        self.text = text
        t = text.split(";")[0].strip()
        parts = t.split(None, 1)
        op = self.op = parts[0]
        ops = split_ops(parts[1]) if len(parts) > 1 else []
        self.ops = ops
        R = [regs_of(o) for o in ops]
        allr = set().union(*R) if R else set()
        self.defs, self.uses = set(), set()
        self.mf = None
        if op.startswith("v_mfma"):
            self.kind = "mfma"; self.defs = R[0]; self.uses = R[1] | R[2] | R[3]
            self.ab = R[1] | R[2]; self.c = R[3]
            self.passes = 8 if "32x32" in op else 4
        elif op.startswith("v_"):
            self.kind = "trans" if op.split("_e")[0] in TRANS or op in TRANS else "valu"
            nd = 1
            if re.match(r"v_(add|sub|subrev|addc|subb)_co_", op): nd = 2
            self.defs = set().union(*R[:nd]); self.uses = set().union(*R[nd:]) if len(R) > nd else set()
            if op.startswith(("v_fmac", "v_pk_fmac", "v_dot2c")) or "dpp" in op or "row_" in t or "quad_perm" in t: self.uses |= R[0]
            if op.startswith("v_permlane"): self.defs = R[0] | R[1]; self.uses = R[0] | R[1]
            if op.startswith("v_cmpx"): self.defs |= {("s", "exec")}
            if op.startswith("v_cndmask") and len(ops) == 3: self.uses |= {("s", "vcc")}
        elif op.startswith("ds_"):
            self.kind = "ds"
            if op.startswith(("ds_read", "ds_bpermute", "ds_permute", "ds_swizzle")):
                self.defs = R[0]; self.uses = set().union(*R[1:])
                if "d16" in op: self.uses |= R[0]
            else: self.uses = allr
        elif op.startswith(("buffer_", "global_")):
            self.kind = "vmem"
            self.lds = bool(re.search(r"\blds\b", t)) or "_lds_" in op
            if "load" in op and not self.lds:
                self.defs = R[0]; self.uses = set().union(*R[1:])
                if "d16" in op: self.uses |= R[0]
            else:
                self.uses = allr
                if self.lds: self.uses |= {("s", "m0")}
            self.wide_store = "store" in op and ("x3" in op or "x4" in op)
            if self.wide_store: self.data = R[0] if op.startswith("buffer_") else R[1]
        elif op.startswith(("s_load", "s_buffer_load", "s_memtime", "s_memrealtime")):
            self.kind = "smem"; self.defs = R[0]; self.uses = set().union(*R[1:]) if len(R) > 1 else set()
        elif op.startswith("s_"):
            self.kind = "salu"
            if op.startswith(NODEST_S): self.uses = allr
            else:
                self.defs = R[0]; self.uses = set().union(*R[1:]) if len(R) > 1 else set()
                if "saveexec" in op: self.defs |= {("s", "exec")}
        else:
            raise ValueError("unknown instr " + text)
    def states(self):
        if self.op == "s_nop": return int(self.ops[0], 0) + 1
        return 1
def isv(rs): return {r for r in rs if r[0] in "va"}
def iss(rs): return {r for r in rs if r[0] == "s"}
def need(p, c):
    n = 0
    pv = p.kind in ("valu", "trans")
    cv = c.kind in ("valu", "trans")
    if pv:
        dv, dsg = isv(p.defs), iss(p.defs)
        if c.kind == "mfma" and dv & c.uses: n = max(n, 2)
        if cv and dv & c.uses:
            if p.kind == "trans": n = max(n, 1)
            if c.op.startswith("v_permlane") or "dpp" in c.op or "row_" in c.text or "quad_perm" in c.text: n = max(n, 2)
            if c.op.startswith(("v_readfirstlane", "v_readlane")): n = max(n, 1)
        if p.kind == "trans" and c.kind != "salu" and dv & c.uses: n = max(n, 1)
        if dsg & c.uses:
            if cv: n = max(n, 4 if c.op.startswith(("v_readlane", "v_writelane")) else 2)
            if c.kind == "vmem": n = max(n, 5)
            if c.kind in ("salu", "smem"): n = max(n, 1)
        if ("s", "exec") in p.defs:
            if c.kind == "mfma" or c.op.startswith(("v_permlane", "v_read")): n = max(n, 4)
            if "dpp" in c.op or "row_" in c.text: n = max(n, 5)
    if p.kind == "salu" and ("s", "m0") in p.defs and c.kind == "vmem" and c.lds: n = max(n, 1)
    if p.kind == "vmem" and getattr(p, "wide_store", False) and p.data & c.defs: n = max(n, 2)
    if p.kind == "mfma":
        big = {4: 8, 8: 12}[p.passes]
        if c.kind == "mfma":
            if p.defs & c.ab: n = max(n, big)
            if p.defs & c.c and not (p.defs == c.c and p.passes == c.passes): n = max(n, big - 2)
            if p.defs & c.defs and not (p.defs == c.c): n = max(n, big - 2)
        else:
            if p.defs & (c.uses | c.defs): n = max(n, big)
            if cv and p.c & c.defs: n = max(n, p.passes - 1)
    return n
class K:
    def __init__(self):
        self.out = []
        self.hist = []
        self.vm = []
        self.lg = []
        self.smem = set()
        self.nops = 0
    def raw(self, line): self.out.append(line)
    def _push(self, ins):
        self.out.append("    " + ins.text); self.hist.append(ins)
        if len(self.hist) > 24: self.hist.pop(0)
    def _wait(self, vm=None, lg=None):
        parts = []
        if vm is not None and vm < len(self.vm):
            vm = min(vm, 63); parts.append(f"vmcnt({vm})"); self.vm = self.vm[len(self.vm) - vm:] if vm else []
        if lg is not None and (lg < len(self.lg) or (lg == 0 and self.smem)):
            if self.smem: lg = 0
            lg = min(lg, 15); parts.append(f"lgkmcnt({lg})"); self.lg = self.lg[len(self.lg) - lg:] if lg else []
            if lg == 0: self.smem = set()
        if parts: self._push(Inst("s_waitcnt " + " ".join(parts)))
    def wait_vm(self, tag=None):
        if tag is None: return self._wait(vm=0)
        idx = [i for i, e in enumerate(self.vm) if e[1] == tag]
        if idx: self._wait(vm=len(self.vm) - idx[-1] - 1)
    def wait_lg(self, tag=None):
        if tag is None: return self._wait(lg=0)
        idx = [i for i, e in enumerate(self.lg) if e[1] == tag]
        if idx: self._wait(lg=len(self.lg) - idx[-1] - 1)
    def wait_all(self): self._wait(vm=0, lg=0)
    def label(self, name, drain=True):
        if drain: self.wait_all()
        self.out.append(name + ":")
    def reset(self):
        self.hist, self.vm, self.lg, self.smem = [], [], [], set()
    def __call__(self, text, tag=None):
        for line in text.strip("\n").split("\n"):
            line = line.strip()
            if not line or line.startswith(";"): continue
            self.one(line, tag)
    def one(self, line, tag):
        ins = Inst(line)
        touched = ins.uses | ins.defs
        vm = lg = None
        for i, e in enumerate(self.vm):
            if e[0] & touched: vm = len(self.vm) - i - 1
        for i, e in enumerate(self.lg):
            if e[0] & touched:
                lg = len(self.lg) - i - 1
        if self.smem & touched: lg = 0
        self._wait(vm, lg)
        dist, pad = 0, 0
        for p in reversed(self.hist):
            pad = max(pad, need(p, ins) - dist)
            dist += p.states()
            if dist > 20: break
        while pad > 0:
            n = min(pad, 16); self._push(Inst(f"s_nop {n-1}")); pad -= n; self.nops += 1
        self._push(ins)
        if ins.kind == "vmem": self.vm.append((ins.defs, tag))
        elif ins.kind == "ds": self.lg.append((ins.defs, tag))
        elif ins.kind == "smem": self.smem |= ins.defs
        if ins.op == "s_waitcnt": raise ValueError("use wait_* helpers")
    def text(self): return "\n".join(self.out) + "\n"
def v(i, n=1): return f"v{i}" if n == 1 else f"v[{i}:{i+n-1}]"
def s(i, n=1): return f"s{i}" if n == 1 else f"s[{i}:{i+n-1}]"
```

```python
import sys, struct
sys.path.insert(0, "work")
from kasm import *
NAME = "gated_mix__ssm_conv_s4d__ssm_conv_s5__prompt_kernel"
NB, NA = 192, 144
WS_W, WS_S, WS_HF, WS_AF, WS_H, WS_A, WS_STAMP = 0, 0x1000, 0x20000, 0x40000, 0x100000, 0x600000, 0x900000
WS_SIZE = 0x1000000
LOG2E = 1.4426950408889634
INV2PI = 0.15915494309189535
def fl(x): return "0x%08x" % struct.unpack("<I", struct.pack("<f", x))[0]
LCG_A, LCG_C = 0x0019660D, 0x3C6EF35F

class Gen:
    def __init__(self, stamps=False, parts="AB"):
        self.k = K(); self.stamps = stamps; self.parts = parts; self.nst = 0
    def stamp(self, i):
        if self.stamps:
            self.k.raw(f"    s_memrealtime s[{80+2*i}:{81+2*i}]")
            self.k.smem |= {("s", 80+2*i), ("s", 81+2*i)}
            self.k.wait_lg()
    def dump_stamps(self):
        if not self.stamps: return
        k = self.k
        k.wait_all()
        k("s_mov_b64 exec, 1")
        k("s_getreg_b32 s98, hwreg(HW_REG_HW_ID)\ns_getreg_b32 s99, hwreg(HW_REG_XCC_ID)\ns_lshl_b32 s99, s99, 24\ns_and_b32 s98, s98, 0xffffff\ns_or_b32 s98, s98, s99")
        for i in range(9): k(f"v_mov_b32 v{8+i}, s{80+2*i}")
        k(f"v_mov_b32 v17, s98\nv_mov_b32 v18, 0\nv_mov_b32 v19, 0")
        k(f"s_lshl_b32 s3, s2, 2\ns_add_u32 s3, s3, s48\ns_lshl_b32 s3, s3, 6\ns_add_u32 s3, s3, {WS_STAMP}\nv_mov_b32 v4, s3")
        for i in range(3): k(f"global_store_dwordx4 v4, v[{8+4*i}:{11+4*i}], s[46:47] offset:{16*i}")
    def cmul(self, d, x, y, t):
        k = self.k
        k(f"v_pk_mul_f32 {v(t,2)}, {v(x,2)}, {v(y,2)} op_sel:[0,0] op_sel_hi:[0,1]")
        k(f"v_pk_fma_f32 {v(d,2)}, {v(x,2)}, {v(y,2)}, {v(t,2)} op_sel:[1,1,0] op_sel_hi:[1,0,1] neg_lo:[1,0,0]")
    def cmul_multi(self, items):
        k = self.k
        for d, x, y, t in items: k(f"v_pk_mul_f32 {v(t,2)}, {v(x,2)}, {v(y,2)} op_sel:[0,0] op_sel_hi:[0,1]")
        for d, x, y, t in items: k(f"v_pk_fma_f32 {v(d,2)}, {v(x,2)}, {v(y,2)}, {v(t,2)} op_sel:[1,1,0] op_sel_hi:[1,0,1] neg_lo:[1,0,0]")
    def cpow_multi(self, items):
        k = self.k
        for dre, dim, ar, ai, n, t0, t1 in items:
            k(f"v_mul_f32 v{t0}, {n}, v{ar}\nv_mul_f32 v{t1}, {n}, v{ai}")
        for dre, dim, ar, ai, n, t0, t1 in items:
            k(f"v_exp_f32 v{t0}, v{t0}\nv_fract_f32 v{t1}, v{t1}")
        for dre, dim, ar, ai, n, t0, t1 in items:
            k(f"v_cos_f32 v{dre}, v{t1}\nv_sin_f32 v{dim}, v{t1}")
        for dre, dim, ar, ai, n, t0, t1 in items:
            k(f"v_mul_f32 v{dre}, v{dre}, v{t0}\nv_mul_f32 v{dim}, v{dim}, v{t0}")
    def prologue(self):
        k = self.k
        if self.stamps: k.raw("    s_memrealtime s[80:81]")
        k(f"""
        s_load_dwordx16 s[8:23], s[0:1], 0
        s_load_dwordx16 s[24:39], s[0:1], 64
        s_load_dwordx8 s[40:47], s[0:1], 128
        s_cmp_ge_u32 s2, {NB+NA}
        s_cbranch_scc1 L_end
        v_and_b32 v1, 63, v0
        v_lshrrev_b32 v4, 6, v0
        v_and_b32 v2, 15, v0
        v_readfirstlane_b32 s48, v4
        v_lshrrev_b32 v3, 4, v1
        s_cmp_ge_u32 s2, {NB}
        s_cbranch_scc1 L_A
        """)
    def code_prefetch(self, lab_end, nkb4, dst):
        k = self.k
        k(f"s_getpc_b64 s[4:5]\nv_lshlrev_b32 v{dst}, 4, v0\nv_mov_b32 v{dst+1}, s5\nv_add_co_u32 v{dst}, vcc, s4, v{dst}\nv_addc_co_u32 v{dst+1}, vcc, 0, v{dst+1}, vcc")
        for i in range(nkb4):
            k(f"global_load_dword v{dst+2+i}, v[{dst}:{dst+1}], off")
            if i + 1 < nkb4: k(f"v_add_co_u32 v{dst}, vcc, 0x1000, v{dst}\nv_addc_co_u32 v{dst+1}, vcc, 0, v{dst+1}, vcc")
    def partA(self):
        k = self.k
        k.reset(); k.smem = {("s", i) for i in range(8, 48)}
        k.raw("L_A:")
        TBW, UB0, UW, KB0 = 8704, 34816, 4608, 53248
        self.code_prefetch("L_A_end", self.pfA, 240)
        k(f"""
        s_sub_u32 s49, s2, {NB}
        s_and_b32 s50, s49, 7
        s_lshr_b32 s49, s49, 3
        s_mul_i32 s50, s50, 18
        s_add_u32 s49, s49, s50          ; a = group
        s_lshl_b32 s50, s49, 2
        s_add_u32 s50, s50, s48          ; d
        s_lshl_b32 s51, s50, 8
        v_lshl_add_u32 v26, v1, 2, s51
        s_lshl_b32 s51, s50, 1
        v_mov_b32 v27, s51
        """)
        k.raw("    s_getpc_b64 s[4:5]\n    s_add_u32 s4, s4, band_tab@rel32@lo+4\n    s_addc_u32 s5, s5, band_tab@rel32@hi+12")
        k(f"v_lshlrev_b32 v56, 4, v1\nv_mov_b32 v57, s5\nv_add_co_u32 v56, vcc, s4, v56\nv_addc_co_u32 v57, vcc, 0, v57, vcc")
        k("""
        global_load_dword v4, v26, s[10:11]
        global_load_dword v5, v26, s[12:13]
        global_load_ushort v8, v27, s[18:19]
        global_load_dword v6, v26, s[14:15]
        global_load_dword v7, v26, s[16:17]
        global_load_ushort v9, v27, s[20:21]
        s_load_dwordx8 s[56:63], s[46:47], 0
        """)
        self.stamp(1)
        def gather():
            k(f"v_mul_u32_u24 v26, 2304, v0\ns_lshl_b32 s51, s49, 3\nv_add_u32 v26, s51, v26")
            k("s_mov_b32 s64, s8\ns_mov_b32 s65, s9\ns_mov_b32 s66, 2359296\ns_mov_b32 s67, 0x20000")
            for kk in range(4):
                k(f"s_add_u32 s{52+kk}, s49, {kk}\ns_and_b32 s{52+kk}, s{52+kk}, 3\ns_mul_i32 s51, s{52+kk}, {512*1152}")
                k(f"buffer_load_dwordx2 v[{10+4*kk}:{11+4*kk}], v26, s[64:67], s51 offen")
                k(f"buffer_load_dwordx2 v[{12+4*kk}:{13+4*kk}], v26, s[64:67], s51 offen offset:1152")
        def band_load():
            for i in range(7):
                if i == 4: k("v_add_co_u32 v56, vcc, 0x1000, v56\nv_addc_co_u32 v57, vcc, 0, v57, vcc")
                k(f"global_load_dwordx4 v[{28+4*i}:{31+4*i}], v[56:57], off offset:{1024*(i%4)}")
        band_load()
        if self.gather_early: gather()
        k(f"""
        s_mul_i32 s68, s48, {TBW}
        s_mul_i32 s69, s48, {UW}
        s_add_u32 s69, s69, {UB0}           ; U base
        s_lshl_b32 s70, s48, 12
        s_add_u32 s70, s70, {KB0}           ; K base
        v_mov_b32 v60, 0
        v_mov_b32 v61, 0
        v_mov_b32 v62, 0
        v_mov_b32 v63, 0
        v_lshl_add_u32 v58, v1, 4, s70
        v_lshl_add_u32 v59, v1, 3, s69
        ds_write_b128 v58, v[60:63]
        ds_write_b128 v58, v[60:63] offset:1024
        ds_write_b128 v58, v[60:63] offset:2048
        ds_write_b128 v58, v[60:63] offset:3072
        ds_write_b64 v59, v[60:61]
        v_lshl_add_u32 v58, v1, 3, s68
        v_mul_u32_u24 v59, 544, v2
        v_lshl_add_u32 v59, v3, 4, v59
        v_add_u32 v59, s68, v59
        v_and_b32 v60, 7, v2
        v_lshlrev_b32 v60, 2, v60
        s_mov_b32 s51, 0x43222100
        v_lshrrev_b32 v60, v60, s51
        v_and_b32 v60, 15, v60
        v_lshrrev_b32 v61, 3, v2
        v_mad_u32_u24 v60, v61, 5, v60
        v_mul_u32_u24 v60, 544, v60
        v_lshl_add_u32 v60, v3, 4, v60
        v_add_u32 v60, s68, v60
        """)
        vTW, vFR, vFR1 = 58, 59, 60
        self.stamp(6)
        AR, AI = (64, 66), (65, 67)
        k(f"""
        v_lshlrev_b32 v8, 16, v8
        v_mul_f32 v8, {fl(LOG2E)}, v8
        v_lshlrev_b32 v64, 16, v4
        v_and_b32 v66, 0xffff0000, v4
        v_exp_f32 v8, v8
        v_mul_f32 v64, {fl(LOG2E)}, v64
        v_mul_f32 v66, {fl(LOG2E)}, v66
        v_exp_f32 v64, v64
        v_exp_f32 v66, v66
        v_cvt_pk_bf16_f32 v8, v8, v8
        v_lshlrev_b32 v65, 16, v5
        v_and_b32 v67, 0xffff0000, v5
        v_cvt_pk_bf16_f32 v4, v64, v66
        v_and_b32 v8, 0xffff0000, v8        ; dt
        v_lshlrev_b32 v64, 16, v4
        v_and_b32 v66, 0xffff0000, v4
        v_mul_f32 v64, v64, v8
        v_mul_f32 v66, v66, v8
        v_mul_f32 v65, v65, v8
        v_mul_f32 v67, v67, v8
        v_mul_f32 v64, {fl(-LOG2E)}, v64
        v_mul_f32 v66, {fl(-LOG2E)}, v66
        v_mul_f32 v65, {fl(INV2PI)}, v65
        v_mul_f32 v67, {fl(INV2PI)}, v67
        """)
        self.stamp(7)
        E8, E16, E1, W = (68, 70), (72, 74), (76, 78), (80, 82)
        T = list(range(84, 104, 2))
        G = [[104 + 4*c, 106 + 4*c] for c in range(9)]
        LA, LBb = (140, 142), (144, 146)
        OUT = [148, 150, 152, 154]
        LOF = 156
        HF = 188
        DT = [220, 224, 228]
        self.oc = 0
        def entry(row, x0, x1, neg):
            o = OUT[self.oc % 4]; self.oc += 1
            n = "-" if neg else ""
            k(f"v_cvt_pk_bf16_f32 v{o}, v{x0}, {n}v{x0+1}\nv_cvt_pk_bf16_f32 v{o+1}, v{x1}, {n}v{x1+1}")
            k(f"ds_write_b64 v{vTW}, v[{o}:{o+1}] offset:{544*row}")
        self.cpow_multi([(E8[n], E8[n]+1, AR[n], AI[n], fl(8.0), T[n], T[n]+1) for n in range(2)] +
                        [(E16[n], E16[n]+1, AR[n], AI[n], fl(16.0), T[2+n], T[2+n]+1) for n in range(2)])
        k(f"v_mov_b32 v{OUT[3]}, 0x3f80\nv_mov_b32 v{OUT[3]+1}, 0x3f80\nds_write_b64 v{vTW}, v[{OUT[3]}:{OUT[3]+1}]")
        entry(1, E8[0], E8[1], True); entry(2, E16[0], E16[1], True)
        pa, pb = E8, E16
        for j in range(3, 16, 2):
            items = [(LA[n], pa[n], E16[n], T[n]) for n in range(2)]
            if j + 1 < 16: items += [(LBb[n], pb[n], E16[n], T[2+n]) for n in range(2)]
            self.cmul_multi(items)
            pa, pb = LA, LBb
            entry(j, LA[0], LA[1], True)
            if j + 1 < 16: entry(j + 1, LBb[0], LBb[1], True)
        for ks in range(8): k(f"ds_read_b128 {v(LOF+4*ks,4)}, v{vFR} offset:{64*ks}")
        self.stamp(8)
        self.cpow_multi([(E1[n], E1[n]+1, AR[n], AI[n], "1.0", T[n], T[n]+1) for n in range(2)] +
                        [(W[n], W[n]+1, AR[n], AI[n], fl(128.0), T[2+n], T[2+n]+1) for n in range(2)])
        k(f"""
        v_add_f32 v8, v8, v8
        v_lshlrev_b32 v{G[0][0]}, 16, v6
        v_lshlrev_b32 v{G[0][0]+1}, 16, v7
        v_and_b32 v{G[0][1]}, 0xffff0000, v6
        v_and_b32 v{G[0][1]+1}, 0xffff0000, v7
        v_mul_f32 v{G[0][0]}, v{G[0][0]}, v8
        v_mul_f32 v{G[0][0]+1}, v{G[0][0]+1}, v8
        v_mul_f32 v{G[0][1]}, v{G[0][1]}, v8
        v_mul_f32 v{G[0][1]+1}, v{G[0][1]+1}, v8
        """)
        self.cmul_multi([(LA[n], E1[n], E1[n], T[n]) for n in range(2)] + [(G[1][n], G[0][n], E1[n], T[2+n]) for n in range(2)]
                        + [(G[8][n], G[0][n], E8[n], T[4+n]) for n in range(2)])
        entry(0, G[0][0], G[0][1], False); entry(1, G[1][0], G[1][1], False)
        for c in range(2, 8, 2):
            self.cmul_multi([(G[c+i][n], G[c+i-2][n], LA[n], T[2*i+n]) for i in range(2) for n in range(2)])
            entry(c, G[c][0], G[c][1], False); entry(c+1, G[c+1][0], G[c+1][1], False)
        def mulW(cs, Wp=W):
            self.cmul_multi([(G[c][n], G[c][n], Wp[n], T[(2*i+n) % 10]) for i, c in enumerate(cs) for n in range(2)])
        for cs in ([0, 1, 2], [3, 4, 5], [6, 7, 8]):
            mulW(cs)
            for c in cs:
                if c < 8: entry(8 + c, G[c][0], G[c][1], False)
        def kgen(tile, addr, cinit):
            for ks in range(8): k(f"ds_read_b128 {v(HF+4*ks,4)}, v{addr} offset:{64*ks}")
            return [f"v_mfma_f32_16x16x32_bf16 {v(DT[tile],4)}, {v(HF+4*ks,4)}, {v(LOF+4*ks,4)}, {cinit if ks == 0 else v(DT[tile],4)}" for ks in range(8)]
        k(f"v_lshlrev_b32 v9, 16, v9\nv_cmp_eq_u32 vcc, 0, v1\nv_mov_b32 v{DT[0]+1}, 0\nv_mov_b32 v{DT[0]+2}, 0\nv_cndmask_b32 v{DT[0]}, 0, v9, vcc\nv_mov_b32 v{DT[0]+3}, 0")
        mf = kgen(0, vFR, v(DT[0], 4))
        ev = [0, 2, 4, 6, 8]
        mulW(ev)
        for m in mf: k(m)
        for i, c in enumerate(ev): entry(i, G[c][0], G[c][1], False)
        mulW(ev)
        for i, c in enumerate(ev): entry(5 + i, G[c][0], G[c][1], False)
        mf = kgen(1, vFR1, "0")
        self.cmul_multi([(E1[n], W[n], W[n], T[n]) for n in range(2)] + [(G[c][n], G[c][n], W[n], T[2+2*i+n]) for i, c in enumerate((4, 8)) for n in range(2)])
        for m in mf: k(m)
        entry(0, G[4][0], G[4][1], False); entry(1, G[8][0], G[8][1], False)
        for h in range(1, 4):
            if h == 3:
                self.cmul_multi([(G[4][n], G[4][n], W[n], T[n]) for n in range(2)] + [(G[7][n], G[8][n], W[n], T[2+n]) for n in range(2)])
                entry(6, G[4][0], G[4][1], False); entry(7, G[7][0], G[7][1], False)
            else:
                mulW([4, 8])
                entry(2*h, G[4][0], G[4][1], False); entry(2*h+1, G[8][0], G[8][1], False)
        for h in range(0, 8, 2):
            mulW([8, 7], E1)
            entry(8 + h, G[8][0], G[8][1], False); entry(9 + h, G[7][0], G[7][1], False)
        mf = kgen(2, vFR, "0")
        if not self.gather_early: gather()
        k(f"""
        v_lshrrev_b32 v61, 1, v3
        v_lshlrev_b32 v61, 8, v61
        v_lshl_add_u32 v61, v2, 4, v61
        v_and_b32 v62, 1, v3
        v_lshl_add_u32 v61, v62, 3, v61
        s_add_u32 s51, s70, 568
        v_sub_u32 v61, s51, v61             ; vKW
        v_mov_b32 v62, s70                  ; vKB
        """)
        for m in mf: k(m)
        for j in (0, 1):
            d = DT[j]; off = 512 if j == 0 else 0
            k(f"""
            v_cvt_pk_bf16_f32 v64, v{d+3}, v{d+2}
            v_cvt_pk_bf16_f32 v65, v{d+1}, v{d}
            v_cvt_pk_bf16_f32 v66, v{d+2}, v{d+1}
            ds_write_b64 v61, v[64:65] offset:{off}
            ds_write_b16 v61, v64 offset:{off+1214}
            ds_write_b32 v61, v66 offset:{off+1216}
            ds_write_b16_d16_hi v61, v65 offset:{off+1220}
            """.replace("v64", f"v{64+4*j}").replace("v65", f"v{65+4*j}").replace("v66", f"v{66+4*j}").replace("v[64:65]", f"v[{64+4*j}:{65+4*j}]"))
        d = DT[1]
        k(f"""
        v_cvt_pk_bf16_f32 v72, v{d+3}, v{d+3}
        s_mov_b32 exec_lo, 0
        s_mov_b32 exec_hi, 0x80000000
        ds_write_b32 v62, v72 offset:60
        ds_write_b16 v62, v72 offset:58
        ds_write_b32 v62, v72 offset:1272
        ds_write_b16 v62, v72 offset:1276
        s_mov_b64 exec, -1
        """)
        d = DT[2]
        k(f"""
        v_lshrrev_b32 v74, 1, v2
        v_and_b32 v75, 1, v2
        v_lshlrev_b32 v76, 6, v3            ; 64*g
        v_lshl_add_u32 v76, v74, 2, v76     ; 64g + 4*(lo>>1)
        v_lshlrev_b32 v77, 8, v75
        v_sub_u32 v77, v77, v76
        s_add_u32 s51, s70, {2368 + 188 - 32}
        v_add_u32 v77, s51, v77
        v_lshlrev_b32 v76, 7, v3            ; 128*g
        v_lshl_add_u32 v76, v74, 2, v76
        v_lshlrev_b32 v78, 1, v75
        v_sub_u32 v78, v78, v76
        s_add_u32 s51, s70, {2368 + 512 + 252 + 256 - 96}
        v_add_u32 v78, s51, v78
        v_cvt_pk_bf16_f32 v74, v{d}, v{d+1}
        v_cvt_pk_bf16_f32 v75, v{d+2}, v{d+3}
        s_mov_b32 exec_hi, 0
        ds_write_b32 v77, v74 offset:32
        ds_write_b32 v77, v75
        s_mov_b32 exec_hi, -1
        s_mov_b32 exec_lo, 0
        ds_write_b16 v78, v74 offset:96
        ds_write_b16_d16_hi v78, v74 offset:64
        ds_write_b16 v78, v75 offset:32
        ds_write_b16_d16_hi v78, v75
        s_mov_b32 exec_lo, -1
        """)
        self.stamp(2)
        ACC, KF, K23, ZT, ZP, UR = 56, 88, 156, 196, 220, 232
        k(f"""
        v_lshlrev_b32 v4, 3, v3
        v_sub_u32 v4, v4, v2
        v_add_u32 v4, 15, v4                ; 15 - r + 8g
        v_lshlrev_b32 v4, 1, v4
        v_and_b32 v5, 1, v2
        v_cmp_eq_u32 vcc, 0, v5
        v_mov_b32 v5, 1214
        v_add_u32 v4, s70, v4
        v_cndmask_b32 v5, 0, v5, vcc
        v_add_u32 v4, v4, v5
        v_add_u32 v5, 1024, v4              ; s=0
        v_lshlrev_b32 v6, 2, v3
        v_sub_u32 v6, v6, v2
        v_add_u32 v6, 15, v6
        s_add_u32 s51, s70, 2368
        v_lshl_add_u32 v6, v6, 2, s51       ; P base
        v_lshlrev_b32 v7, 5, v2
        v_lshl_add_u32 v7, v3, 4, v7
        s_add_u32 s51, s69, 32
        v_add_u32 v7, s51, v7
        ds_read_u16 v8, v62 offset:{2368 + 256 + 4*16 + 2}
        """)
        for s_ in range(17):
            a_, o = (5, 0) if s_ == 0 else (4, 16*(16 - s_))
            k(f"ds_read2_b32 {v(KF+4*s_,2)}, v{a_} offset0:{o} offset1:{o+1}\nds_read2_b32 {v(KF+4*s_+2,2)}, v{a_} offset0:{o+2} offset1:{o+3}")
        k2t = {}
        idx = 0
        for D_ in (2, 3, 4):
            for pr in range(2):
                k2t[(2, D_, pr)] = (K23 + 4*idx, 64*pr + 64 - 16*D_); idx += 1
        for D_ in (4, 5, 6, 7):
            k2t[(3, D_, 0)] = (K23 + 4*idx, 128 + 112 - 16*D_); idx += 1
        for r_, o in k2t.values():
            k(f"ds_read2_b32 {v(r_,2)}, v6 offset0:{o} offset1:{o+1}\nds_read2_b32 {v(r_+2,2)}, v6 offset0:{o+2} offset1:{o+3}")
        k("v_lshl_or_b32 v8, v8, 16, v8")
        for i in range(4): k(f"v_and_b32 v{52+i}, v{52+i}, v8")
        k(f"s_mov_b32 s71, 0x05040100\ns_mov_b32 s72, 0x07060302\nv_lshlrev_b32 v9, 2, v0")
        for kk in range(4):
            k(f"s_lshl_b32 s51, s{52+kk}, 10\ns_add_u32 s51, s51, {UB0+512}\nv_add_u32 v26, s51, v9")
            r0, r1 = 10 + 4*kk, 12 + 4*kk
            t = ZT + 4*kk
            k(f"""
            v_perm_b32 v{t}, v{r1}, v{r0}, s71
            v_perm_b32 v{t+1}, v{r1}, v{r0}, s72
            v_perm_b32 v{t+2}, v{r1+1}, v{r0+1}, s71
            v_perm_b32 v{t+3}, v{r1+1}, v{r0+1}, s72
            ds_write_b32 v26, v{t}
            ds_write_b32 v26, v{t+1} offset:{UW}
            ds_write_b32 v26, v{t+2} offset:{2*UW}
            ds_write_b32 v26, v{t+3} offset:{3*UW}
            """)
        k.wait_lg(); k("s_barrier")
        self.stamp(3)
        ring = [UR + 4*i for i in range(6)] + [12, 16, 20]
        loads = []
        for j in range(-7, 57):
            loads.append(("u", j))
            if j % 8 == 0 and 0 <= j // 8 <= 5: loads.append(("c", j // 8))
        reg = {}
        nl = [0]
        def issue_load():
            if nl[0] >= len(loads): return
            key = loads[nl[0]]; r_ = ring[nl[0] % len(ring)]; reg[key] = r_; nl[0] += 1
            off = 64*(key[1] + 7) if key[0] == "u" else 64*(8*key[1] + 7) - 16
            k(f"ds_read_b128 {v(r_,4)}, v7 offset:{off}")
        PD = len(ring) - 2
        for _ in range(PD): issue_load()
        first = set()
        def acc(B, a_, b_):
            c = v(ACC+4*B, 4) if B in first else "0"
            first.add(B)
            k(f"v_mfma_f32_16x16x32_bf16 {v(ACC+4*B,4)}, {v(a_,4)}, {v(b_,4)}, {c}")
        BAND = 28
        pend = []
        def tick():
            for p in pend: p[0] -= 1
            while pend and pend[0][0] <= 0:
                pend.pop(0)[1]()
        for key in loads:
            issue_load()
            r_ = reg[key]
            if key[0] == "u":
                j = key[1]
                if j % 8 == 0 and 0 <= j // 8 <= 5:
                    Bp = j // 8
                    for ph in (0, 1, 2) + ((4,) if Bp <= 3 else ()):
                        k(f"v_mfma_f32_16x16x32_bf16 {v(ZT+4*ph,4)}, {v(r_,4)}, {v(BAND+4*ph,4)}, 0")
                    if Bp <= 3: acc(Bp + 4, 52, r_)
                for B in range(8):
                    if 0 <= 8*B - j <= 16: acc(B, KF + 4*(8*B - j), r_)
                tick()
            else:
                Bp = key[1]
                for ph in (3,) + ((5,) if Bp <= 3 else ()):
                    k(f"v_mfma_f32_16x16x32_bf16 {v(ZT+4*ph,4)}, {v(r_,4)}, {v(BAND+4*ph,4)}, 0")
                def mk_cvt(pr):
                    def f():
                        for i in range(4): k(f"v_cvt_pk_bf16_f32 v{ZP+4*pr+i}, v{ZT+8*pr+i}, v{ZT+8*pr+4+i}")
                    return f
                def mk_s2(Bp, pr):
                    def f():
                        if pr < 2:
                            for D_ in (2, 3, 4):
                                if Bp + D_ <= 7: acc(Bp + D_, ZP + 4*pr, k2t[(2, D_, pr)][0])
                        else:
                            for D_ in (4, 5, 6, 7):
                                if Bp + D_ <= 7: acc(Bp + D_, ZP + 8, k2t[(3, D_, 0)][0])
                    return f
                pend += [[1, mk_cvt(0)], [3, mk_cvt(1)], [3, mk_s2(Bp, 0)]]
                if Bp <= 3: pend += [[4, mk_cvt(2)]]
                pend += [[5, mk_s2(Bp, 1)]]
                if Bp <= 3: pend += [[6, mk_s2(Bp, 2)]]
        assert not pend
        self.stamp(4)
        k(f"""
        v_and_b32 v4, 1, v3
        v_lshlrev_b32 v4, 9, v4
        v_lshrrev_b32 v5, 2, v2
        v_lshl_add_u32 v4, v5, 7, v4
        v_lshrrev_b32 v5, 1, v3
        v_lshl_add_u32 v4, v5, 6, v4
        v_and_b32 v5, 3, v2
        v_lshl_add_u32 v4, v5, 4, v4
        s_lshl_b32 s51, s50, 12
        s_add_u32 s51, s51, {WS_A}
        v_add_u32 v4, s51, v4
        """)
        for B in range(0, 8, 2):
            q = KF + 2*B
            for i in range(4): k(f"v_cvt_pk_bf16_f32 v{q+i}, v{ACC+4*B+2*i}, v{ACC+4*B+2*i+1}")
            k(f"v_permlane16_swap_b32 v{q}, v{q+2}\nv_permlane16_swap_b32 v{q+1}, v{q+3}")
            k(f"global_store_dwordx4 v4, {v(q,4)}, s[46:47] offset:{512*B} sc1")
        k(f"s_mul_hi_u32 s51, s50, {(1<<32)//96+1}\ns_mov_b32 s52, s56")
        for i in range(1, 6): k(f"s_cmp_eq_u32 s51, {i}\ns_cselect_b32 s52, s{56+i}, s52")
        k(f"s_mul_i32 s52, s52, {LCG_A}\ns_add_u32 s52, s52, {LCG_C}\ns_lshl_b32 s51, s50, 2\ns_add_u32 s51, s51, {WS_AF}\nv_mov_b32 v5, s51\nv_mov_b32 v6, s52")
        k.wait_vm()
        k("s_mov_b64 exec, 1\nglobal_store_dword v5, v6, s[46:47] sc1")
        self.stamp(5)
        self.dump_stamps()
        k("s_endpgm")
        k.raw("L_A_end:")
    def band_data(self):
        wins = [(range(3,6),16), (range(6,11),16), (range(11,14),16), (range(14,19),24), (range(5,12),16), (range(12,21),24), ((3,4),16)]
        out = []
        for ti, (w, c) in enumerate(wins):
            val = 0xFFFF if ti == 6 else 0x3F80
            for l in range(64):
                r, G = l & 15, l >> 4
                e = [val if (r + c - (8*G + i)) in w else 0 for i in range(8)]
                out.append(".long " + ", ".join("0x%08x" % (e[2*i] | (e[2*i+1] << 16)) for i in range(4)))
        return "\n".join(out)
    def build(self):
        k = self.k
        self.prologue()
        if "B" in self.parts:
            from genB import partB
            partB(self)
        else:
            k("s_endpgm")
        k.raw(".p2align 6")
        self.partA()
        k.raw("L_end:\n    s_endpgm")
        k.raw(".fill 1024, 4, 0xbf800000")
        hdr = open("gated_mix__ssm_conv_s4d__ssm_conv_s5__prompt.s.ref").read().split("; Override")[0]
        return (hdr + f"; @launch grid=({NB+NA},1,1) block=(256,1,1) lds=81920\n"
            '.amdgcn_target "amdgcn-amd-amdhsa--gfx950"\n.text\n'
            f".globl {NAME}\n.p2align 8\n.type {NAME},@function\n{NAME}:\n" + k.text() +
            '.section .rodata,"a"\n.p2align 8\nband_tab:\n' + self.band_data() + f"""
.p2align 6
.amdhsa_kernel {NAME}
  .amdhsa_next_free_vgpr 256
  .amdhsa_next_free_sgpr 102
  .amdhsa_accum_offset 256
  .amdhsa_group_segment_fixed_size 0
  .amdhsa_kernarg_size 160
  .amdhsa_user_sgpr_count 2
  .amdhsa_user_sgpr_kernarg_segment_ptr 1
  .amdhsa_system_sgpr_workgroup_id_x 1
.end_amdhsa_kernel
""")
def make(path, stamps=False, parts="AB", **opt):
    g = Gen(stamps, parts)
    g.pfA = 3; g.pfB = 5; g.gather_early = True; g.nodefer = (); g.b2_early = True
    for a_, b_ in opt.items(): setattr(g, a_, b_)
    t = g.build()
    open(path, "w").write(t)
    return g
if __name__ == "__main__":
    g = make("kd.s", stamps=True)
    g = make("k.s", stamps=False)
    print("nops", g.k.nops)
```

```python
import sys, struct
sys.path.insert(0, "work")
from kasm import *
NAME = "gated_mix__ssm_conv_s4d__ssm_conv_s5__prompt_kernel"
NB, NA = 192, 144
WS_W, WS_S, WS_HF, WS_AF, WS_H, WS_A, WS_STAMP = 0, 0x1000, 0x20000, 0x40000, 0x100000, 0x600000, 0x900000
WS_SIZE = 0x1000000
LOG2E = 1.4426950408889634
INV2PI = 0.15915494309189535
def fl(x): return "0x%08x" % struct.unpack("<I", struct.pack("<f", x))[0]
LCG_A, LCG_C = 0x0019660D, 0x3C6EF35F

class Gen:
    def __init__(self, stamps=False, parts="AB"):
        self.k = K(); self.stamps = stamps; self.parts = parts; self.nst = 0
    def stamp(self, i):
        if self.stamps:
            self.k.raw(f"    {self.clk} s[{80+2*i}:{81+2*i}]")
            self.k.smem |= {("s", 80+2*i), ("s", 81+2*i)}
            self.k.wait_lg()
    def nstamp(self, name):
        if self.stamps and name in self.bst: self.stamp(1 + self.bst.index(name))
    def dump_stamps(self):
        if not self.stamps: return
        k = self.k
        k.wait_all()
        k("s_mov_b64 exec, 1")
        k("s_getreg_b32 s98, hwreg(HW_REG_HW_ID)\ns_getreg_b32 s99, hwreg(HW_REG_XCC_ID)\ns_lshl_b32 s99, s99, 24\ns_and_b32 s98, s98, 0xffffff\ns_or_b32 s98, s98, s99")
        for i in range(9): k(f"v_mov_b32 v{8+i}, s{80+2*i}")
        k(f"v_mov_b32 v17, s98\nv_mov_b32 v18, 0\nv_mov_b32 v19, 0")
        k(f"s_lshl_b32 s3, s2, 2\ns_add_u32 s3, s3, s48\ns_lshl_b32 s3, s3, 6\ns_add_u32 s3, s3, {WS_STAMP}\nv_mov_b32 v4, s3")
        for i in range(3): k(f"global_store_dwordx4 v4, v[{8+4*i}:{11+4*i}], s[46:47] offset:{16*i}")
    def cmul(self, d, x, y, t):
        k = self.k
        k(f"v_pk_mul_f32 {v(t,2)}, {v(x,2)}, {v(y,2)} op_sel:[0,0] op_sel_hi:[0,1]")
        k(f"v_pk_fma_f32 {v(d,2)}, {v(x,2)}, {v(y,2)}, {v(t,2)} op_sel:[1,1,0] op_sel_hi:[1,0,1] neg_lo:[1,0,0]")
    def cmul_multi(self, items):
        k = self.k
        for d, x, y, t in items: k(f"v_pk_mul_f32 {v(t,2)}, {v(x,2)}, {v(y,2)} op_sel:[0,0] op_sel_hi:[0,1]")
        for d, x, y, t in items: k(f"v_pk_fma_f32 {v(d,2)}, {v(x,2)}, {v(y,2)}, {v(t,2)} op_sel:[1,1,0] op_sel_hi:[1,0,1] neg_lo:[1,0,0]")
    def cpow_multi(self, items):
        k = self.k
        for dre, dim, ar, ai, n, t0, t1 in items:
            k(f"v_mul_f32 v{t0}, {n}, v{ar}\nv_mul_f32 v{t1}, {n}, v{ai}")
        for dre, dim, ar, ai, n, t0, t1 in items:
            k(f"v_exp_f32 v{t0}, v{t0}\nv_fract_f32 v{t1}, v{t1}")
        for dre, dim, ar, ai, n, t0, t1 in items:
            k(f"v_cos_f32 v{dre}, v{t1}\nv_sin_f32 v{dim}, v{t1}")
        for dre, dim, ar, ai, n, t0, t1 in items:
            k(f"v_mul_f32 v{dre}, v{dre}, v{t0}\nv_mul_f32 v{dim}, v{dim}, v{t0}")
    def prologue(self):
        k = self.k
        if self.stamps: k.raw(f"    {self.clk} s[80:81]")
        k(f"""
        s_load_dwordx16 s[8:23], s[0:1], 0
        s_load_dwordx16 s[24:39], s[0:1], 64
        s_load_dwordx8 s[40:47], s[0:1], 128
        s_cmp_ge_u32 s2, {NB+NA}
        s_cbranch_scc1 L_end
        v_and_b32 v1, 63, v0
        v_lshrrev_b32 v4, 6, v0
        v_and_b32 v2, 15, v0
        v_readfirstlane_b32 s48, v4
        v_lshrrev_b32 v3, 4, v1
        s_sub_u32 s49, s2, {self.b0}
        s_cmp_ge_u32 s49, {NB}
        s_cbranch_scc1 L_A
        """)
    def code_prefetch(self, nlines, dst):
        k = self.k
        k(f"s_getpc_b64 s[4:5]\ns_lshr_b32 s6, s2, 3\ns_and_b32 s6, s6, 7\ns_lshl_b32 s6, s6, 5\nv_lshrrev_b32 v{dst}, 3, v0\nv_add_u32 v{dst}, s6, v{dst}\nv_min_u32 v{dst}, {nlines-1}, v{dst}\nv_lshlrev_b32 v{dst}, 7, v{dst}\nv_mov_b32 v{dst+1}, s5\nv_add_co_u32 v{dst}, vcc, s4, v{dst}\nv_addc_co_u32 v{dst+1}, vcc, 0, v{dst+1}, vcc")
        k(f"global_load_dword v{dst+2}, v[{dst}:{dst+1}], off")
    def partA(self):
        k = self.k
        k.reset(); k.smem = {("s", i) for i in range(8, 48)}
        k.raw("L_A:")
        TBW, UB0, UW, KB0 = 8704, 34816, 4608, 53248
        self.code_prefetch(self.pfA, 240)
        k(f"""
        s_sub_u32 s49, s2, {NB}
        s_cmp_lt_u32 s2, {self.b0}
        s_cselect_b32 s49, s2, s49
        s_and_b32 s50, s49, 7
        s_lshr_b32 s49, s49, 3
        s_mul_i32 s50, s50, 18
        s_add_u32 s49, s49, s50          ; a = group
        s_lshl_b32 s50, s49, 2
        s_add_u32 s50, s50, s48          ; d
        s_lshl_b32 s51, s50, 8
        v_lshl_add_u32 v26, v1, 2, s51
        s_lshl_b32 s51, s50, 1
        v_mov_b32 v27, s51
        """)
        k.raw("    s_getpc_b64 s[4:5]\n    s_add_u32 s4, s4, band_tab@rel32@lo+4\n    s_addc_u32 s5, s5, band_tab@rel32@hi+12")
        k(f"v_lshlrev_b32 v56, 4, v1\nv_mov_b32 v57, s5\nv_add_co_u32 v56, vcc, s4, v56\nv_addc_co_u32 v57, vcc, 0, v57, vcc")
        k("""
        global_load_dword v4, v26, s[10:11]
        global_load_dword v5, v26, s[12:13]
        global_load_ushort v8, v27, s[18:19]
        global_load_dword v6, v26, s[14:15]
        global_load_dword v7, v26, s[16:17]
        global_load_ushort v9, v27, s[20:21]
        s_load_dwordx8 s[56:63], s[46:47], 0
        """)
        self.stamp(1)
        def gather():
            k(f"v_mul_u32_u24 v26, 2304, v0\ns_lshl_b32 s51, s49, 3\nv_add_u32 v26, s51, v26")
            k("s_mov_b32 s64, s8\ns_mov_b32 s65, s9\ns_mov_b32 s66, 2359296\ns_mov_b32 s67, 0x20000")
            for kk in range(4):
                k(f"s_add_u32 s{52+kk}, s49, {kk}\ns_and_b32 s{52+kk}, s{52+kk}, 3\ns_mul_i32 s51, s{52+kk}, {512*1152}")
                k(f"buffer_load_dwordx2 v[{10+4*kk}:{11+4*kk}], v26, s[64:67], s51 offen")
                k(f"buffer_load_dwordx2 v[{12+4*kk}:{13+4*kk}], v26, s[64:67], s51 offen offset:1152")
        def band_load():
            for i in range(7):
                if i == 4: k("v_add_co_u32 v56, vcc, 0x1000, v56\nv_addc_co_u32 v57, vcc, 0, v57, vcc")
                k(f"global_load_dwordx4 v[{28+4*i}:{31+4*i}], v[56:57], off offset:{1024*(i%4)}")
        if self.skipA == 1: k.wait_all(); k('s_branch L_A_flag')
        band_load()
        if self.gather_early: gather()
        k(f"""
        s_mul_i32 s68, s48, {TBW}
        s_mul_i32 s69, s48, {UW}
        s_add_u32 s69, s69, {UB0}           ; U base
        s_lshl_b32 s70, s48, 12
        s_add_u32 s70, s70, {KB0}           ; K base
        v_mov_b32 v60, 0
        v_mov_b32 v61, 0
        v_mov_b32 v62, 0
        v_mov_b32 v63, 0
        v_lshl_add_u32 v58, v1, 4, s70
        v_lshl_add_u32 v59, v1, 3, s69
        ds_write_b128 v58, v[60:63]
        ds_write_b128 v58, v[60:63] offset:1024
        ds_write_b128 v58, v[60:63] offset:2048
        ds_write_b128 v58, v[60:63] offset:3072
        ds_write_b64 v59, v[60:61]
        v_lshl_add_u32 v58, v1, 3, s68
        v_mul_u32_u24 v59, 544, v2
        v_lshl_add_u32 v59, v3, 4, v59
        v_add_u32 v59, s68, v59
        v_and_b32 v60, 7, v2
        v_lshlrev_b32 v60, 2, v60
        s_mov_b32 s51, 0x43222100
        v_lshrrev_b32 v60, v60, s51
        v_and_b32 v60, 15, v60
        v_lshrrev_b32 v61, 3, v2
        v_mad_u32_u24 v60, v61, 5, v60
        v_mul_u32_u24 v60, 544, v60
        v_lshl_add_u32 v60, v3, 4, v60
        v_add_u32 v60, s68, v60
        """)
        vTW, vFR, vFR1 = 58, 59, 60
        self.stamp(6)
        AR, AI = (64, 66), (65, 67)
        k(f"""
        v_lshlrev_b32 v8, 16, v8
        v_mul_f32 v8, {fl(LOG2E)}, v8
        v_lshlrev_b32 v64, 16, v4
        v_and_b32 v66, 0xffff0000, v4
        v_exp_f32 v8, v8
        v_mul_f32 v64, {fl(LOG2E)}, v64
        v_mul_f32 v66, {fl(LOG2E)}, v66
        v_exp_f32 v64, v64
        v_exp_f32 v66, v66
        v_cvt_pk_bf16_f32 v8, v8, v8
        v_lshlrev_b32 v65, 16, v5
        v_and_b32 v67, 0xffff0000, v5
        v_cvt_pk_bf16_f32 v4, v64, v66
        v_and_b32 v8, 0xffff0000, v8        ; dt
        v_lshlrev_b32 v64, 16, v4
        v_and_b32 v66, 0xffff0000, v4
        v_mul_f32 v64, v64, v8
        v_mul_f32 v66, v66, v8
        v_mul_f32 v65, v65, v8
        v_mul_f32 v67, v67, v8
        v_mul_f32 v64, {fl(-LOG2E)}, v64
        v_mul_f32 v66, {fl(-LOG2E)}, v66
        v_mul_f32 v65, {fl(INV2PI)}, v65
        v_mul_f32 v67, {fl(INV2PI)}, v67
        """)
        self.stamp(7)
        E8, E16, E1, W = (68, 70), (72, 74), (76, 78), (80, 82)
        T = list(range(84, 104, 2))
        G = [[104 + 4*c, 106 + 4*c] for c in range(9)]
        LA, LBb = (140, 142), (144, 146)
        OUT = [148, 150, 152, 154]
        LOF = 156
        HF = 188
        DT = [220, 224, 228]
        self.oc = 0
        def entry(row, x0, x1, neg):
            o = OUT[self.oc % 4]; self.oc += 1
            n = "-" if neg else ""
            k(f"v_cvt_pk_bf16_f32 v{o}, v{x0}, {n}v{x0+1}\nv_cvt_pk_bf16_f32 v{o+1}, v{x1}, {n}v{x1+1}")
            k(f"ds_write_b64 v{vTW}, v[{o}:{o+1}] offset:{544*row}")
        self.cpow_multi([(E8[n], E8[n]+1, AR[n], AI[n], fl(8.0), T[n], T[n]+1) for n in range(2)] +
                        [(E16[n], E16[n]+1, AR[n], AI[n], fl(16.0), T[2+n], T[2+n]+1) for n in range(2)])
        k(f"v_mov_b32 v{OUT[3]}, 0x3f80\nv_mov_b32 v{OUT[3]+1}, 0x3f80\nds_write_b64 v{vTW}, v[{OUT[3]}:{OUT[3]+1}]")
        entry(1, E8[0], E8[1], True); entry(2, E16[0], E16[1], True)
        pa, pb = E8, E16
        for j in range(3, 16, 2):
            items = [(LA[n], pa[n], E16[n], T[n]) for n in range(2)]
            if j + 1 < 16: items += [(LBb[n], pb[n], E16[n], T[2+n]) for n in range(2)]
            self.cmul_multi(items)
            pa, pb = LA, LBb
            entry(j, LA[0], LA[1], True)
            if j + 1 < 16: entry(j + 1, LBb[0], LBb[1], True)
        for ks in range(8): k(f"ds_read_b128 {v(LOF+4*ks,4)}, v{vFR} offset:{64*ks}")
        self.stamp(8)
        self.cpow_multi([(E1[n], E1[n]+1, AR[n], AI[n], "1.0", T[n], T[n]+1) for n in range(2)] +
                        [(W[n], W[n]+1, AR[n], AI[n], fl(128.0), T[2+n], T[2+n]+1) for n in range(2)])
        k(f"""
        v_add_f32 v8, v8, v8
        v_lshlrev_b32 v{G[0][0]}, 16, v6
        v_lshlrev_b32 v{G[0][0]+1}, 16, v7
        v_and_b32 v{G[0][1]}, 0xffff0000, v6
        v_and_b32 v{G[0][1]+1}, 0xffff0000, v7
        v_mul_f32 v{G[0][0]}, v{G[0][0]}, v8
        v_mul_f32 v{G[0][0]+1}, v{G[0][0]+1}, v8
        v_mul_f32 v{G[0][1]}, v{G[0][1]}, v8
        v_mul_f32 v{G[0][1]+1}, v{G[0][1]+1}, v8
        """)
        self.cmul_multi([(LA[n], E1[n], E1[n], T[n]) for n in range(2)] + [(G[1][n], G[0][n], E1[n], T[2+n]) for n in range(2)]
                        + [(G[8][n], G[0][n], E8[n], T[4+n]) for n in range(2)])
        entry(0, G[0][0], G[0][1], False); entry(1, G[1][0], G[1][1], False)
        for c in range(2, 8, 2):
            self.cmul_multi([(G[c+i][n], G[c+i-2][n], LA[n], T[2*i+n]) for i in range(2) for n in range(2)])
            entry(c, G[c][0], G[c][1], False); entry(c+1, G[c+1][0], G[c+1][1], False)
        def mulW(cs, Wp=W):
            self.cmul_multi([(G[c][n], G[c][n], Wp[n], T[(2*i+n) % 10]) for i, c in enumerate(cs) for n in range(2)])
        for cs in ([0, 1, 2], [3, 4, 5], [6, 7, 8]):
            mulW(cs)
            for c in cs:
                if c < 8: entry(8 + c, G[c][0], G[c][1], False)
        def kgen(tile, addr, cinit):
            for ks in range(8): k(f"ds_read_b128 {v(HF+4*ks,4)}, v{addr} offset:{64*ks}")
            return [f"v_mfma_f32_16x16x32_bf16 {v(DT[tile],4)}, {v(HF+4*ks,4)}, {v(LOF+4*ks,4)}, {cinit if ks == 0 else v(DT[tile],4)}" for ks in range(8)]
        k(f"v_lshlrev_b32 v9, 16, v9\nv_cmp_eq_u32 vcc, 0, v1\nv_mov_b32 v{DT[0]+1}, 0\nv_mov_b32 v{DT[0]+2}, 0\nv_cndmask_b32 v{DT[0]}, 0, v9, vcc\nv_mov_b32 v{DT[0]+3}, 0")
        mf = kgen(0, vFR, v(DT[0], 4))
        ev = [0, 2, 4, 6, 8]
        mulW(ev)
        for m in mf: k(m)
        for i, c in enumerate(ev): entry(i, G[c][0], G[c][1], False)
        mulW(ev)
        for i, c in enumerate(ev): entry(5 + i, G[c][0], G[c][1], False)
        mf = kgen(1, vFR1, "0")
        self.cmul_multi([(E1[n], W[n], W[n], T[n]) for n in range(2)] + [(G[c][n], G[c][n], W[n], T[2+2*i+n]) for i, c in enumerate((4, 8)) for n in range(2)])
        for m in mf: k(m)
        entry(0, G[4][0], G[4][1], False); entry(1, G[8][0], G[8][1], False)
        for h in range(1, 4):
            if h == 3:
                self.cmul_multi([(G[4][n], G[4][n], W[n], T[n]) for n in range(2)] + [(G[7][n], G[8][n], W[n], T[2+n]) for n in range(2)])
                entry(6, G[4][0], G[4][1], False); entry(7, G[7][0], G[7][1], False)
            else:
                mulW([4, 8])
                entry(2*h, G[4][0], G[4][1], False); entry(2*h+1, G[8][0], G[8][1], False)
        for h in range(0, 8, 2):
            mulW([8, 7], E1)
            entry(8 + h, G[8][0], G[8][1], False); entry(9 + h, G[7][0], G[7][1], False)
        mf = kgen(2, vFR, "0")
        if not self.gather_early: gather()
        k(f"""
        v_lshrrev_b32 v61, 1, v3
        v_lshlrev_b32 v61, 8, v61
        v_lshl_add_u32 v61, v2, 4, v61
        v_and_b32 v62, 1, v3
        v_lshl_add_u32 v61, v62, 3, v61
        s_add_u32 s51, s70, 568
        v_sub_u32 v61, s51, v61             ; vKW
        v_mov_b32 v62, s70                  ; vKB
        """)
        for m in mf: k(m)
        for j in (0, 1):
            d = DT[j]; off = 512 if j == 0 else 0
            k(f"""
            v_cvt_pk_bf16_f32 v64, v{d+3}, v{d+2}
            v_cvt_pk_bf16_f32 v65, v{d+1}, v{d}
            v_cvt_pk_bf16_f32 v66, v{d+2}, v{d+1}
            ds_write_b64 v61, v[64:65] offset:{off}
            ds_write_b16 v61, v64 offset:{off+1214}
            ds_write_b32 v61, v66 offset:{off+1216}
            ds_write_b16_d16_hi v61, v65 offset:{off+1220}
            """.replace("v64", f"v{64+4*j}").replace("v65", f"v{65+4*j}").replace("v66", f"v{66+4*j}").replace("v[64:65]", f"v[{64+4*j}:{65+4*j}]"))
        d = DT[1]
        k(f"""
        v_cvt_pk_bf16_f32 v72, v{d+3}, v{d+3}
        s_mov_b32 exec_lo, 0
        s_mov_b32 exec_hi, 0x80000000
        ds_write_b32 v62, v72 offset:60
        ds_write_b16 v62, v72 offset:58
        ds_write_b32 v62, v72 offset:1272
        ds_write_b16 v62, v72 offset:1276
        s_mov_b64 exec, -1
        """)
        d = DT[2]
        k(f"""
        v_lshrrev_b32 v74, 1, v2
        v_and_b32 v75, 1, v2
        v_lshlrev_b32 v76, 6, v3            ; 64*g
        v_lshl_add_u32 v76, v74, 2, v76     ; 64g + 4*(lo>>1)
        v_lshlrev_b32 v77, 8, v75
        v_sub_u32 v77, v77, v76
        s_add_u32 s51, s70, {2368 + 188 - 32}
        v_add_u32 v77, s51, v77
        v_lshlrev_b32 v76, 7, v3            ; 128*g
        v_lshl_add_u32 v76, v74, 2, v76
        v_lshlrev_b32 v78, 1, v75
        v_sub_u32 v78, v78, v76
        s_add_u32 s51, s70, {2368 + 512 + 252 + 256 - 96}
        v_add_u32 v78, s51, v78
        v_cvt_pk_bf16_f32 v74, v{d}, v{d+1}
        v_cvt_pk_bf16_f32 v75, v{d+2}, v{d+3}
        s_mov_b32 exec_hi, 0
        ds_write_b32 v77, v74 offset:32
        ds_write_b32 v77, v75
        s_mov_b32 exec_hi, -1
        s_mov_b32 exec_lo, 0
        ds_write_b16 v78, v74 offset:96
        ds_write_b16_d16_hi v78, v74 offset:64
        ds_write_b16 v78, v75 offset:32
        ds_write_b16_d16_hi v78, v75
        s_mov_b32 exec_lo, -1
        """)
        self.stamp(2)
        ACC, KF, K23, ZT, ZP, UR = 56, 88, 156, 196, 220, 232
        k(f"""
        v_lshlrev_b32 v4, 3, v3
        v_sub_u32 v4, v4, v2
        v_add_u32 v4, 15, v4                ; 15 - r + 8g
        v_lshlrev_b32 v4, 1, v4
        v_and_b32 v5, 1, v2
        v_cmp_eq_u32 vcc, 0, v5
        v_mov_b32 v5, 1214
        v_add_u32 v4, s70, v4
        v_cndmask_b32 v5, 0, v5, vcc
        v_add_u32 v4, v4, v5
        v_add_u32 v5, 1024, v4              ; s=0
        v_lshlrev_b32 v6, 2, v3
        v_sub_u32 v6, v6, v2
        v_add_u32 v6, 15, v6
        s_add_u32 s51, s70, 2368
        v_lshl_add_u32 v6, v6, 2, s51       ; P base
        v_lshlrev_b32 v7, 5, v2
        v_lshl_add_u32 v7, v3, 4, v7
        s_add_u32 s51, s69, 32
        v_add_u32 v7, s51, v7
        ds_read_u16 v8, v62 offset:{2368 + 256 + 4*16 + 2}
        """)
        for s_ in range(17):
            a_, o = (5, 0) if s_ == 0 else (4, 16*(16 - s_))
            k(f"ds_read2_b32 {v(KF+4*s_,2)}, v{a_} offset0:{o} offset1:{o+1}\nds_read2_b32 {v(KF+4*s_+2,2)}, v{a_} offset0:{o+2} offset1:{o+3}")
        k2t = {}
        idx = 0
        for D_ in (2, 3, 4):
            for pr in range(2):
                k2t[(2, D_, pr)] = (K23 + 4*idx, 64*pr + 64 - 16*D_); idx += 1
        for D_ in (4, 5, 6, 7):
            k2t[(3, D_, 0)] = (K23 + 4*idx, 128 + 112 - 16*D_); idx += 1
        for r_, o in k2t.values():
            k(f"ds_read2_b32 {v(r_,2)}, v6 offset0:{o} offset1:{o+1}\nds_read2_b32 {v(r_+2,2)}, v6 offset0:{o+2} offset1:{o+3}")
        k("v_lshl_or_b32 v8, v8, 16, v8")
        for i in range(4): k(f"v_and_b32 v{52+i}, v{52+i}, v8")
        k(f"s_mov_b32 s71, 0x05040100\ns_mov_b32 s72, 0x07060302\nv_lshlrev_b32 v9, 2, v0")
        for kk in range(4):
            k(f"s_lshl_b32 s51, s{52+kk}, 10\ns_add_u32 s51, s51, {UB0+512}\nv_add_u32 v26, s51, v9")
            r0, r1 = 10 + 4*kk, 12 + 4*kk
            t = ZT + 4*kk
            k(f"""
            v_perm_b32 v{t}, v{r1}, v{r0}, s71
            v_perm_b32 v{t+1}, v{r1}, v{r0}, s72
            v_perm_b32 v{t+2}, v{r1+1}, v{r0+1}, s71
            v_perm_b32 v{t+3}, v{r1+1}, v{r0+1}, s72
            ds_write_b32 v26, v{t}
            ds_write_b32 v26, v{t+1} offset:{UW}
            ds_write_b32 v26, v{t+2} offset:{2*UW}
            ds_write_b32 v26, v{t+3} offset:{3*UW}
            """)
        k.wait_lg(); k("s_barrier")
        self.stamp(3)
        if self.skipA == 2: k.wait_all(); k('s_branch L_A_flag')
        ring = [UR + 4*i for i in range(6)] + [12, 16, 20]
        loads = []
        for j in range(-7, 57):
            loads.append(("u", j))
            if j % 8 == 0 and 0 <= j // 8 <= 5: loads.append(("c", j // 8))
        reg = {}
        nl = [0]
        def issue_load():
            if nl[0] >= len(loads): return
            key = loads[nl[0]]; r_ = ring[nl[0] % len(ring)]; reg[key] = r_; nl[0] += 1
            off = 64*(key[1] + 7) if key[0] == "u" else 64*(8*key[1] + 7) - 16
            k(f"ds_read_b128 {v(r_,4)}, v7 offset:{off}")
        PD = len(ring) - 2
        for _ in range(PD): issue_load()
        first = set()
        def acc(B, a_, b_):
            c = v(ACC+4*B, 4) if B in first else "0"
            first.add(B)
            k(f"v_mfma_f32_16x16x32_bf16 {v(ACC+4*B,4)}, {v(a_,4)}, {v(b_,4)}, {c}")
        BAND = 28
        pend = []
        def tick():
            for p in pend: p[0] -= 1
            while pend and pend[0][0] <= 0:
                pend.pop(0)[1]()
        for key in loads:
            issue_load()
            r_ = reg[key]
            if key[0] == "u":
                j = key[1]
                if j % 8 == 0 and 0 <= j // 8 <= 5:
                    Bp = j // 8
                    for ph in (0, 1, 2) + ((4,) if Bp <= 3 else ()):
                        k(f"v_mfma_f32_16x16x32_bf16 {v(ZT+4*ph,4)}, {v(r_,4)}, {v(BAND+4*ph,4)}, 0")
                    if Bp <= 3: acc(Bp + 4, 52, r_)
                for B in range(8):
                    if 0 <= 8*B - j <= 16: acc(B, KF + 4*(8*B - j), r_)
                tick()
            else:
                Bp = key[1]
                for ph in (3,) + ((5,) if Bp <= 3 else ()):
                    k(f"v_mfma_f32_16x16x32_bf16 {v(ZT+4*ph,4)}, {v(r_,4)}, {v(BAND+4*ph,4)}, 0")
                def mk_cvt(pr):
                    def f():
                        for i in range(4): k(f"v_cvt_pk_bf16_f32 v{ZP+4*pr+i}, v{ZT+8*pr+i}, v{ZT+8*pr+4+i}")
                    return f
                def mk_s2(Bp, pr):
                    def f():
                        if pr < 2:
                            for D_ in (2, 3, 4):
                                if Bp + D_ <= 7: acc(Bp + D_, ZP + 4*pr, k2t[(2, D_, pr)][0])
                        else:
                            for D_ in (4, 5, 6, 7):
                                if Bp + D_ <= 7: acc(Bp + D_, ZP + 8, k2t[(3, D_, 0)][0])
                    return f
                pend += [[1, mk_cvt(0)], [3, mk_cvt(1)], [3, mk_s2(Bp, 0)]]
                if Bp <= 3: pend += [[4, mk_cvt(2)]]
                pend += [[5, mk_s2(Bp, 1)]]
                if Bp <= 3: pend += [[6, mk_s2(Bp, 2)]]
        assert not pend
        self.stamp(4)
        k(f"""
        v_and_b32 v4, 1, v3
        v_lshlrev_b32 v4, 9, v4
        v_lshrrev_b32 v5, 2, v2
        v_lshl_add_u32 v4, v5, 7, v4
        v_lshrrev_b32 v5, 1, v3
        v_lshl_add_u32 v4, v5, 6, v4
        v_and_b32 v5, 3, v2
        v_lshl_add_u32 v4, v5, 4, v4
        s_lshl_b32 s51, s50, 12
        s_add_u32 s51, s51, {WS_A}
        v_add_u32 v4, s51, v4
        """)
        for B in range(0, 8, 2):
            q = KF + 2*B
            for i in range(4): k(f"v_cvt_pk_bf16_f32 v{q+i}, v{ACC+4*B+2*i}, v{ACC+4*B+2*i+1}")
            k(f"v_permlane16_swap_b32 v{q}, v{q+2}\nv_permlane16_swap_b32 v{q+1}, v{q+3}")
            k(f"global_store_dwordx4 v4, {v(q,4)}, s[46:47] offset:{512*B} sc1")
        k.raw('L_A_flag:')
        k(f"s_mul_hi_u32 s51, s50, {(1<<32)//96+1}\ns_mov_b32 s52, s56")
        for i in range(1, 6): k(f"s_cmp_eq_u32 s51, {i}\ns_cselect_b32 s52, s{56+i}, s52")
        k(f"s_mul_i32 s52, s52, {LCG_A}\ns_add_u32 s52, s52, {LCG_C}\ns_lshl_b32 s51, s50, 2\ns_add_u32 s51, s51, {WS_AF}\nv_mov_b32 v5, s51\nv_mov_b32 v6, s52")
        k.wait_vm()
        k("s_mov_b64 exec, 1\nglobal_store_dword v5, v6, s[46:47] sc1")
        self.stamp(5)
        self.dump_stamps()
        k("s_endpgm")
        k.raw("L_A_end:")
    def band_data(self):
        wins = [(range(3,6),16), (range(6,11),16), (range(11,14),16), (range(14,19),24), (range(5,12),16), (range(12,21),24), ((3,4),16)]
        out = []
        for ti, (w, c) in enumerate(wins):
            val = 0xFFFF if ti == 6 else 0x3F80
            for l in range(64):
                r, G = l & 15, l >> 4
                e = [val if (r + c - (8*G + i)) in w else 0 for i in range(8)]
                out.append(".long " + ", ".join("0x%08x" % (e[2*i] | (e[2*i+1] << 16)) for i in range(4)))
        return "\n".join(out)
    def build(self):
        k = self.k
        self.prologue()
        if "B" in self.parts:
            from genB import partB
            partB(self)
        else:
            k("s_endpgm")
        k.raw(".p2align 6")
        self.partA()
        k.raw("L_end:\n    s_endpgm")
        k.raw(".fill 256, 4, 0xbf800000")
        hdr = open("gated_mix__ssm_conv_s4d__ssm_conv_s5__prompt.s.ref").read().split("; Override")[0]
        if self.stamps: hdr += f"; bst start {' '.join(self.bst)}\n"
        return (hdr + f"; @launch grid=({NB+NA},1,1) block=(256,1,1) lds=81920\n"
            '.amdgcn_target "amdgcn-amd-amdhsa--gfx950"\n.text\n'
            f".globl {NAME}\n.p2align 8\n.type {NAME},@function\n{NAME}:\n" + k.text() +
            '.section .rodata,"a"\n.p2align 8\nband_tab:\n' + self.band_data() + f"""
.p2align 6
.amdhsa_kernel {NAME}
  .amdhsa_next_free_vgpr 256
  .amdhsa_next_free_sgpr 102
  .amdhsa_accum_offset 256
  .amdhsa_group_segment_fixed_size 0
  .amdhsa_kernarg_size 160
  .amdhsa_user_sgpr_count 2
  .amdhsa_user_sgpr_kernarg_segment_ptr 1
  .amdhsa_system_sgpr_workgroup_id_x 1
.end_amdhsa_kernel
""")
def make(path, stamps=False, parts="AB", **opt):
    g = Gen(stamps, parts)
    g.pfA = 80; g.pfB = 160; g.b0 = 64; g.prioB = 0; g.clk = 's_memrealtime'; g.cs_dma = (60, 260); g.b2_pre = 4; g.cpf_at = 7; g.b1_split = 6; g.a_at = 6; g.cpf = 1; g.cs_steps = list(range(2, 17)); g.lumps = [(1, 60), (2, 60), (3, 60), (4, 60), (5, 60)]; g.c01_span = 150; g.c23_split = 3; g.gather_early = True; g.nodefer = (); g.hld = 'sc1'; g.hst = 'sc1'; g.bst = ['setup','gemm1','pub','prep','Sarr','flag','Harr','end']; g.skipA = 0; g.b2_early = True
    for a_, b_ in opt.items(): setattr(g, a_, b_)
    t = g.build()
    open(path, "w").write(t)
    return g
if __name__ == "__main__":
    g = make("k.s", stamps=False)
    print("nops", g.k.nops)
```

```python
from kasm import *
from gen import *
MF = "v_mfma_f32_16x16x32_bf16"
SPIN = 200000
HBLK = 147456
def partB(g):
    k = g.k
    def run(r):
        for it in r.items: play(k, it)
    def pk_bc(e, d, a, b, bsel, c=None, neg=False):
        if c is None:
            e(f"v_pk_mul_f32 {v(d,2)}, {v(b,2)}, {v(a,2)} op_sel:[{bsel},0] op_sel_hi:[{bsel},1]")
        else:
            n = " neg_lo:[1,0,0] neg_hi:[1,0,0]" if neg else ""
            e(f"v_pk_fma_f32 {v(d,2)}, {v(b,2)}, {v(a,2)}, {v(c,2)} op_sel:[{bsel},0,0] op_sel_hi:[{bsel},1,1]{n}")
    def cmac(e, items):
        for d, x, y, c in items: e(f"v_pk_fma_f32 {v(d,2)}, {v(x,2)}, {v(y,2)}, {v(c,2)} op_sel:[0,0,0] op_sel_hi:[0,1,1]")
        for d, x, y, c in items: e(f"v_pk_fma_f32 {v(d,2)}, {v(x,2)}, {v(y,2)}, {v(d,2)} op_sel:[1,1,0] op_sel_hi:[1,0,1] neg_lo:[1,0,0]")
    T1, SPART, GW = 73728, 71680, 69632
    LOGT = T1 + 6144; HX = T1 + 6656
    g.code_prefetch(g.pfB, 252)
    if g.prioB: k(f"s_setprio {g.prioB}")
    k(f"""
    s_and_b32 s53, s2, 7
    s_lshr_b32 s54, s49, 3
    s_and_b32 s51, s53, 1            ; th
    s_lshr_b32 s52, s54, 2           ; dj
    s_lshr_b32 s49, s53, 1
    s_lshl_b32 s49, s49, 2
    s_and_b32 s62, s54, 3
    s_add_u32 s49, s49, s62          ; i
    s_mul_i32 s50, s51, 6
    s_add_u32 s50, s50, s52          ; j
    s_mul_i32 s55, s50, 96
    v_lshl_add_u32 v16, v2, 1, s55
    s_lshl_b32 s53, s49, 1
    s_mul_i32 s54, s50, 3
    s_lshr_b32 s54, s54, 1
    s_add_u32 s53, s53, s54
    s_mul_hi_u32 s54, s53, 0x1C71C71D
    s_mul_i32 s54, s54, 9
    s_sub_u32 s53, s53, s54
    s_lshl_b32 s53, s53, 7
    v_lshrrev_b32 v4, 3, v1          ; rl
    v_and_b32 v17, 7, v1
    v_xor_b32 v5, v17, v3
    v_lshlrev_b32 v5, 4, v5
    v_lshlrev_b32 v17, 2, v17
    v_lshrrev_b32 v6, 2, v4
    v_lshlrev_b32 v6, 3, v6
    v_and_b32 v7, 1, v4
    v_lshl_add_u32 v6, v7, 2, v6
    v_bfe_u32 v7, v4, 1, 1
    v_add_u32 v6, v6, v7
    s_lshl_b32 s55, s49, 7
    s_lshl_b32 s4, s48, 5
    s_add_u32 s55, s55, s4
    v_add_u32 v6, s55, v6
    v_mul_u32_u24 v6, 1152, v6
    v_add_u32 v8, v6, v5             ; vX0
    v_xor_b32 v9, 64, v8
    v_add_u32 v10, {2*1152-2048}, v8
    v_add_u32 v11, {18*1152-3072}, v9
    v_add_u32 v9, {16*1152-1024}, v9
    v_mul_u32_u24 v7, 1152, v4
    v_add_u32 v7, v7, v5
    s_mul_i32 s55, s50, 48
    s_and_b32 s4, s48, 1
    s_mul_i32 s5, s4, 24
    s_add_u32 s55, s55, s5
    s_mul_i32 s55, s55, 1152
    v_add_u32 v12, s55, v7
    s_lshl_b32 s5, s4, 6
    v_xor_b32 v12, s5, v12           ; vW0
    v_xor_b32 v13, 64, v12
    v_add_u32 v13, {9216-1024}, v13
    v_add_u32 v14, {2*9216-2048}, v12
    s_lshl_b32 s5, s4, 10
    v_lshl_add_u32 v15, v1, 4, s5
    s_lshl_b32 s6, s48, 13
    s_mul_i32 s7, s48, 3072
    s_add_u32 s7, s7, 32768
    s_add_u32 s3, s5, {GW}
    s_mov_b32 s66, 2359296
    s_mov_b32 s67, 0x20000
    s_mov_b32 s70, 663552
    s_mov_b32 s71, 0x20000
    s_mov_b32 s74, 663552
    s_mov_b32 s75, 0x20000
    s_mov_b32 s78, 1152
    s_mov_b32 s79, 0x20000
    s_cmp_lt_u32 s48, 2
    """)
    PR = 128
    for c in range(3):
        k(f"global_load_ushort v{PR+c}, v16, s[36:37] offset:{32*c}\nglobal_load_ushort v{PR+3+c}, v16, s[24:25] offset:{32*c}\nglobal_load_ushort v{PR+6+c}, v16, s[26:27] offset:{32*c}")
    k(f"""
    global_load_dword v{PR+9}, v17, s[46:47]
    s_mov_b32 s64, s8
    s_mov_b32 s65, s9
    s_cselect_b32 s68, s28, s30
    s_cselect_b32 s69, s29, s31
    s_cselect_b32 s72, s32, s34
    s_cselect_b32 s73, s33, s35
    s_mov_b32 s24, s53
    """)
    g.nstamp("karg")
    CO = 24
    def dma_x(e, c):
        e(f"s_add_u32 m0, s6, {4096*(c%2)}")
        for n in range(4): e(f"buffer_load_dwordx4 v{8+n}, s[64:67], s{CO+c} offen offset:{1024*n} lds", tag=("c", c))
    def dma_w(e, c):
        e(f"s_add_u32 m0, s7, {12288*(c%3)}")
        for n in range(3): e(f"buffer_load_dwordx4 v{12+n}, s[68:71], s{CO+c} offen offset:{1024*n} lds", tag=("c", c))
    dma_w(k, 0); dma_x(k, 0)
    k("s_mov_b32 m0, s3\ns_mov_b32 s76, s40\ns_mov_b32 s77, s41")
    k("buffer_load_dwordx4 v15, s[76:79], 0 offen lds", tag=("c", 0))
    UO = [33, 34, 35, 36, 37, 40, 41, 44, 45]
    def offsets(e, arr):
        for c in range(1, 9): e(f"s_add_u32 s{arr[c]}, s{arr[c-1]}, 128\ns_cmp_eq_u32 s{arr[c]}, 1152\ns_cselect_b32 s{arr[c]}, 0, s{arr[c]}")
    offsets(k, [CO + c for c in range(9)])
    k(f"""
    s_mul_i32 s4, s52, 96
    s_and_b32 s5, s48, 1
    s_mul_i32 s5, s5, 48
    s_add_u32 s4, s4, s5
    s_mul_i32 s4, s4, 1152
    v_add_u32 v7, s4, v7              ; vC0
    v_xor_b32 v23, 64, v7
    v_add_u32 v23, {9216-1024}, v23   ; vC1
    s_mov_b32 s76, s46
    s_mov_b32 s77, s47
    s_mov_b32 s78, {WS_SIZE}
    v_lshrrev_b32 v4, 1, v2
    v_xor_b32 v4, v4, v3
    v_lshlrev_b32 v4, 4, v4
    v_lshl_add_u32 v4, v2, 7, v4
    v_add_u32 v17, s6, v4            ; x ks0
    v_xor_b32 v18, 64, v17
    v_add_u32 v19, 32768, v4         ; w ks0
    v_xor_b32 v15, 64, v19           ; w ks1
    v_lshlrev_b32 v16, 4, v3
    v_add_u32 v16, {GW}, v16
    s_mul_i32 s57, s48, 6144
    s_add_u32 s57, s57, 32768
    s_lshl_b32 s22, s48, 12
    s_add_u32 s22, s22, 57344         ; blocks B0,B1
    v_add_u32 v24, s57, v4
    v_xor_b32 v25, 64, v24
    v_add_u32 v26, s22, v4
    v_xor_b32 v27, 64, v26
    s_mul_i32 s5, s52, 3
    s_lshr_b32 s5, s5, 1
    s_lshl_b32 s4, s62, 1
    s_add_u32 s4, s4, s5
    s_mul_hi_u32 s5, s4, 0x1C71C71D
    s_mul_i32 s5, s5, 9
    s_sub_u32 s4, s4, s5              ; rot2
    s_lshl_b32 s33, s4, 7
    s_lshr_b32 s4, s48, 1
    s_lshl_b32 s5, s49, 1
    s_add_u32 s4, s4, s5
    s_mul_i32 s4, s4, {HBLK}
    s_mul_i32 s5, s50, 12288
    s_add_u32 s4, s4, s5
    s_and_b32 s5, s48, 1
    s_lshl_b32 s5, s5, 11
    s_add_u32 s4, s4, s5
    s_add_u32 s59, s4, {WS_H}
    s_add_u32 s60, s59, 4096
    s_add_u32 s61, s59, 8192
    s_lshl_b32 s10, s50, 13
    s_add_u32 s10, s10, {WS_S}
    s_lshl_b32 s11, s49, 9
    s_add_u32 s11, s11, s10
    s_lshl_b32 s4, s49, 2
    s_add_u32 s5, s4, s48
    s_mul_i32 s5, s5, 12
    s_add_u32 s5, s5, s50
    s_lshl_b32 s5, s5, 7
    s_add_u32 s12, s5, {WS_HF}
    s_lshl_b32 s5, s51, 1
    s_add_u32 s4, s4, s5
    s_mul_i32 s4, s4, {12*128}
    s_add_u32 s13, s4, {WS_HF}
    s_lshl_b32 s4, s49, 1
    s_add_u32 s14, s4, s51
    s_mul_i32 s4, s14, {HBLK}
    s_lshl_b32 s15, s48, 12           ; 4096*w
    s_add_u32 s4, s4, s15
    s_add_u32 s16, s4, {WS_H}
    s_mul_i32 s21, s48, 1536
    s_add_u32 s21, s21, {T1}
    s_mov_b32 s54, {T1}
    s_lshl_b32 s23, s48, 9
    s_add_u32 s23, s23, {SPART}
    s_lshl_b32 s17, s48, 5
    v_lshl_add_u32 v140, v3, 3, s17
    v_sub_u32 v140, 120, v140
    v_cvt_f32_u32 v140, v140
    v_sub_f32 v138, {fl(120.0)}, v140
    s_lshl_b32 s4, s48, 2
    v_add_u32 v139, s4, v3            ; n = g + 4w
    v_lshlrev_b32 v141, 7, v139
    v_cvt_f32_u32 v141, v141
    s_sub_u32 s5, s49, 1
    v_sub_u32 v139, s5, v139
    v_cmp_le_i32 s[62:63], 0, v139
    v_lshlrev_b32 v139, 9, v139
    v_lshl_add_u32 v139, v2, 4, v139
    v_add_u32 v139, s10, v139
    v_mov_b32 v20, 0x80000000
    v_cndmask_b32 v20, v20, v139, s[62:63]
    s_sub_u32 s17, s48, 1
    v_sub_u32 v142, s17, v3
    v_cmp_le_i32 s[18:19], 0, v142
    v_max_i32 v142, 0, v142
    v_lshlrev_b32 v142, 5, v142
    v_cvt_f32_u32 v142, v142
    v_lshlrev_b32 v143, 3, v3
    v_cvt_f32_u32 v143, v143
    v_and_b32 v28, 1, v3
    v_lshlrev_b32 v28, 2, v28
    v_xor_b32 v28, v28, v1
    v_lshlrev_b32 v28, 4, v28
    """)
    offsets(k, UO)
    vAX, vAW, vG, vFRAG = (17, 18), (19, 15), 16, 4
    WE, LG, WH, WSr, WSi, MPr, MPi, TB, L8, SS, GA = 30, 36, 42, 48, 54, 60, 66, 72, 96, 102, 108
    Z, LM, LS, TM = 144, 150, 156, 162
    tb = lambda c, j: TB + 8*c + 2*j
    cs = Rec(); g.k = cs
    for c in range(3): cs(f"v_lshlrev_b32 v{PR+c}, 16, v{PR+c}\nv_mul_f32 v{PR+c}, {fl(LOG2E)}, v{PR+c}")
    for c in range(3): cs(f"v_exp_f32 v{PR+c}, v{PR+c}\nv_lshlrev_b32 v{LM+2*c}, 16, v{PR+3+c}\nv_lshlrev_b32 v{LM+2*c+1}, 16, v{PR+6+c}")
    for c in range(3): cs(f"v_cvt_pk_bf16_f32 v{PR+c}, v{PR+c}, v{PR+c}")
    for c in range(3): cs(f"v_and_b32 v{PR+c}, 0xffff0000, v{PR+c}")
    for c in range(3): cs(f"v_mul_f32 v{Z+2*c}, v{PR+c}, v{LM+2*c}\nv_mul_f32 v{Z+2*c+1}, v{PR+c}, v{LM+2*c+1}")
    for c in range(3): cs(f"v_mul_f32 v{Z+2*c}, {fl(LOG2E)}, v{Z+2*c}\nv_mul_f32 v{Z+2*c+1}, {fl(INV2PI)}, v{Z+2*c+1}")
    cp = lambda d, ex: g.cpow_multi([(d(c)[0], d(c)[1], Z+2*c, Z+2*c+1, ex, TM+2*c, TM+2*c+1) for c in range(3)])
    cp(lambda c: (tb(c,0), tb(c,0)+1), "1.0")
    cp(lambda c: (WSr+2*c+1, WSi+2*c+1), "v140")
    g.cmul_multi([(tb(c,1), tb(c,0), tb(c,0), TM+2*c) for c in range(3)])
    g.cmul_multi([(tb(c,2), tb(c,1), tb(c,0), TM+2*c) for c in range(3)])
    g.cmul_multi([(tb(c,3), tb(c,1), tb(c,1), TM+2*c) for c in range(3)])
    g.cmul_multi([(L8+2*c, tb(c,3), tb(c,3), TM+2*c) for c in range(3)])
    def mul4(dr, di, sr, si, c):
        cs(f"v_mul_f32 v{dr}, v{tb(c,3)}, v{sr}\nv_mul_f32 v{di}, v{tb(c,3)}, v{si}\nv_fma_f32 v{dr}, -v{tb(c,3)+1}, v{si}, v{dr}\nv_fma_f32 v{di}, v{tb(c,3)+1}, v{sr}, v{di}")
    for c in range(3): mul4(WSr+2*c, WSi+2*c, WSr+2*c+1, WSi+2*c+1, c)
    for c in range(3): cs(f"v_mul_f32 v{TM+6+c}, v{LM+2*c}, v{LM+2*c}\nv_add_f32 v{LG+2*c}, -1.0, v{tb(c,0)}\nv_mov_b32 v{LG+2*c+1}, v{tb(c,0)+1}")
    for c in range(3): cs(f"v_fmac_f32 v{TM+6+c}, v{LM+2*c+1}, v{LM+2*c+1}")
    for c in range(3): cs(f"v_rcp_f32 v{TM+6+c}, v{TM+6+c}")
    for c in range(3): cs(f"v_add_f32 v{TM+6+c}, v{TM+6+c}, v{TM+6+c}")
    for c in range(3): cs(f"v_mul_f32 v{LM+2*c}, v{LM+2*c}, v{TM+6+c}\nv_mul_f32 v{LM+2*c+1}, -v{LM+2*c+1}, v{TM+6+c}")
    g.cmul_multi([(SS+2*c, LG+2*c, LM+2*c, TM+2*c) for c in range(3)])
    cp(lambda c: (LS+2*c, LS+2*c+1), "v138")
    cp(lambda c: (WH+2*c, WH+2*c+1), "v141")
    cp(lambda c: (WE+2*c, WE+2*c+1), "v142")
    for c in range(6): cs(f"v_cndmask_b32 v{WE+c}, 0, v{WE+c}, s[18:19]")
    cp(lambda c: (LG+2*c, LG+2*c+1), "v143")
    for c in range(3):
        cs(f"v_mul_f32 v{MPr+2*c}, v{LS+2*c}, v{SS+2*c}\nv_mul_f32 v{MPi+2*c}, v{LS+2*c}, v{SS+2*c+1}\nv_fma_f32 v{MPr+2*c}, -v{LS+2*c+1}, v{SS+2*c+1}, v{MPr+2*c}\nv_fma_f32 v{MPi+2*c}, v{LS+2*c+1}, v{SS+2*c}, v{MPi+2*c}")
        mul4(MPr+2*c+1, MPi+2*c+1, MPr+2*c, MPi+2*c, c)
    cs(f"v_readlane_b32 s55, v{PR+9}, 0\nv_readlane_b32 s56, v{PR+9}, s52")
    cs(f"s_mul_i32 s55, s55, {LCG_A}\ns_add_u32 s55, s55, {LCG_C}\ns_mul_i32 s56, s56, {LCG_A}\ns_add_u32 s56, s56, {LCG_C}\nv_mov_b32 v142, s55\nv_cndmask_b32 v21, 0, v142, s[62:63]")
    g.k = k
    dm = Rec(); dma_w(dm, 1); dma_x(dm, 1)
    weave(k, cs.items, [(dm.items, g.cs_dma[0], g.cs_dma[1])])
    g.nstamp("setup")
    R = [128 + 16*c for c in range(3)]; I = [136 + 16*c for c in range(3)]
    WF = 200
    xf = lambda c, ks, m: (176 + 4*m) if ks == 0 else (184 + 8*(c % 2) + 4*m)
    def xreads(e, c):
        for ks in range(2):
            for m in range(2): e(f"ds_read_b128 {v(xf(c,ks,m),4)}, v{vAX[ks]} offset:{4096*(c%2)+2048*m}", tag=("x", c))
    def wreads(e, c, ks):
        base = WF + 28*ks
        if ks == 0: e(f"v_add_u32 v5, s{CO+c}, v{vG}")
        for t in range(6): e(f"ds_read_b128 {v(base+4*t,4)}, v{vAW[ks]} offset:{12288*(c%3) + 2048*t}")
        e(f"ds_read_b128 {v(base+24,4)}, v5 offset:{64*ks}")
    def mfmas(c, ks):
        e = Rec(); base = WF + 28*ks
        order = range(7) if not (c == 8 and ks == 1) else (0, 3, 1, 4, 2, 5, 6)
        for t in order:
            for m in range(2):
                d = (R[t] if t < 3 else I[t-3] if t < 6 else GA) + 4*m
                cc = "0" if (c == 0 and ks == 0) else v(d, 4)
                e(f"{MF} {v(d,4)}, {v(xf(c,ks,m),4)}, {v(base+4*t,4)}, {cc}")
        return e.items
    LOC = [(6, 4096, 17), (6, 6144, 17), (57, 0, 24), (57, 2048, 24), (57, 4096, 24), (6, 0, 17), (6, 2048, 17), (22, 0, 26), (22, 2048, 26)]
    loc = lambda n: LOC[n % 9] if n < 18 else (57, 24576 + 2048*(n % 3), 24)
    CU = {0: 224, 1: 176, 2: 200, 3: 56, 4: 80, 5: 104, 6: 224, 7: 176, 8: 200}
    def c_dma(e, ns):
        for n in ns:
            sb, off, _ = loc(n)
            e.group(f"s_add_u32 m0, s{sb}, {off}\ns_add_u32 s20, s{UO[n//3]}, {18432*(n%3)}\nbuffer_load_dwordx4 v7, s[72:75], s20 offen lds", tag=("C", n))
            e(f"buffer_load_dwordx4 v23, s[72:75], s20 offen offset:1024 lds", tag=("C", n))
    def c_drain(e, ns):
        for n in ns:
            sb, off, ar = loc(n)
            for ks in range(2): e(f"ds_read_b128 {v(CU[n//3]+12*ks+4*(n%3),4)}, v{ar+ks} offset:{off}", tag=("Cd", n))
    k.wait_vm(("c", 0)); k("s_barrier"); g.nstamp("c0")
    xreads(k, 0); wreads(k, 0, 0)
    for c in range(9):
        rd = Rec(); wreads(rd, c, 1)
        dm = Rec()
        if c == 0: dma_w(dm, 2)
        dm.wait_lg(("x", c))
        if c + 2 < 9: dma_x(dm, c + 2)
        if c == 7: c_dma(dm, [0, 1])
        if c == 8: c_dma(dm, [5, 6])
        if c == 8:
            dm(f"v_lshrrev_b32 v6, 1, v3\nv_lshlrev_b32 v6, 8, v6\nv_lshl_add_u32 v6, v2, 4, v6\nv_add_u32 v12, s23, v6\nv_add_u32 v13, s11, v6\nv_add_u32 v6, {SPART}, v6")
            dm(f"v_mul_u32_u24 v14, 24, v1\nv_add_u32 v14, s21, v14\nv_lshrrev_b32 v11, 4, v0\nv_lshlrev_b32 v11, 5, v11\nv_add_u32 v11, {LOGT}, v11")
        weave(k, mfmas(c, 0), [(rd.items, 0, 8), (dm.items, 1, 13)])
        if c < 8:
            k._wait(vm=None, lg=0) if False else None
            idx = [i for i, e in enumerate(k.vm) if e[1] == ("c", c + 1)]
            k._wait(vm=len(k.vm) - idx[-1] - 1 if idx else None, lg=0)
            k("s_barrier"); g.nstamp(f"c{c+1}")
            rd = Rec(); xreads(rd, c + 1); wreads(rd, c + 1, 0)
            dm = Rec()
            if c + 3 < 9: dma_w(dm, c + 3)
            if c == 7: c_dma(dm, [2, 3, 4])
            weave(k, mfmas(c, 1), [(rd.items, 1, 13), (dm.items, 1, 13)])
        else:
            weave(k, mfmas(c, 1), [])
    g.nstamp("gemm1")
    for st in range(1, 4):
        for c in range(3):
            pk_bc(k, R[c]+2*st, R[c]+2*st-2, tb(c,0), 0, R[c]+2*st)
            pk_bc(k, I[c]+2*st, I[c]+2*st-2, tb(c,0), 0, I[c]+2*st)
        for c in range(3):
            pk_bc(k, R[c]+2*st, I[c]+2*st-2, tb(c,0), 1, R[c]+2*st, neg=True)
            pk_bc(k, I[c]+2*st, R[c]+2*st-2, tb(c,0), 1, I[c]+2*st)
    T = 176
    for c in range(3):
        k(f"v_pk_mul_f32 {v(T+4*c,2)}, {v(R[c]+6,2)}, {v(WSr+2*c,2)}\nv_pk_mul_f32 {v(T+4*c+2,2)}, {v(I[c]+6,2)}, {v(WSr+2*c,2)}")
    for c in range(3):
        k(f"v_pk_fma_f32 {v(T+4*c,2)}, {v(I[c]+6,2)}, {v(WSi+2*c,2)}, {v(T+4*c,2)} neg_lo:[1,0,0] neg_hi:[1,0,0]\nv_pk_fma_f32 {v(T+4*c+2,2)}, {v(R[c]+6,2)}, {v(WSi+2*c,2)}, {v(T+4*c+2,2)}")
    X = T + 12
    for c in range(3): k(f"v_add_f32 v{X+2*c}, v{T+4*c}, v{T+4*c+1}\nv_add_f32 v{X+2*c+1}, v{T+4*c+2}, v{T+4*c+3}")
    def reduce_scatter(X, O, Y):
        prs = [(X, X+2), (X+1, X+3), (X+4, X+5)]
        for a_, b_ in prs: k(f"v_permlane32_swap_b32 v{a_}, v{b_}")
        for i, (a_, b_) in enumerate(prs): k(f"v_add_f32 v{O+i}, v{a_}, v{b_}\nv_add_f32 v{Y+i}, v{a_}, v{b_}")
        for i in range(3): k(f"v_permlane16_swap_b32 v{O+i}, v{Y+i}")
        for i in range(3): k(f"v_add_f32 v{O+i}, v{O+i}, v{Y+i}")
    def all_gather(O, H):
        dst = [(H, H+2), (H+1, H+3), (H+4, H+5)]
        for i, (a_, b_) in enumerate(dst): k(f"v_mov_b32 v{a_}, v{O+i}\nv_mov_b32 v{b_}, v{O+i}")
        for a_, b_ in dst: k(f"v_permlane32_swap_b32 v{a_}, v{b_}")
    O = T + 20; Y = T + 24
    reduce_scatter(X, O, Y)
    k(f"ds_write_b128 v12, {v(O,4)}")
    EE = T + 28
    for c in range(3):
        k(f"v_fma_f32 v{EE+2*c}, v{tb(c,3)}, v{R[c]+6}, v{R[c]+7}\nv_fma_f32 v{EE+2*c+1}, v{tb(c,3)}, v{I[c]+6}, v{I[c]+7}")
    for c in range(3):
        k(f"v_fma_f32 v{EE+2*c}, -v{tb(c,3)+1}, v{I[c]+6}, v{EE+2*c}\nv_fma_f32 v{EE+2*c+1}, v{tb(c,3)+1}, v{R[c]+6}, v{EE+2*c+1}")
    k.wait_lg(); k("s_cmp_lg_u32 s48, 0\ns_barrier\ns_cbranch_scc1 L_nopub")
    for w in range(4): k(f"ds_read_b128 {v(T+4*w,4)}, v6 offset:{512*w}")
    k(f"v_mov_b32 v{O+3}, s55\ns_mov_b32 exec_lo, 0xffff\ns_mov_b32 exec_hi, 0xffff")
    k(f"v_pk_add_f32 {v(T,2)}, {v(T,2)}, {v(T+4,2)}\nv_add_f32 v{T+2}, v{T+2}, v{T+6}\nv_pk_add_f32 {v(T+8,2)}, {v(T+8,2)}, {v(T+12,2)}\nv_add_f32 v{T+10}, v{T+10}, v{T+14}")
    k(f"v_pk_add_f32 {v(O,2)}, {v(T,2)}, {v(T+8,2)}\nv_add_f32 v{O+2}, v{T+2}, v{T+10}")
    k(f"global_store_dwordx4 v13, {v(O,4)}, s[46:47] sc1")
    k("s_mov_b64 exec, -1\ns_nop 1")
    k.vm.pop()
    k.label("L_nopub", drain=False)
    g.nstamp("pub")
    k(f"ds_write2_b64 v14, {v(EE,2)}, {v(EE+2,2)} offset0:0 offset1:1\nds_write_b64 v14, {v(EE+4,2)} offset:16")
    k(f"s_mov_b32 exec_lo, 0x10001\ns_mov_b32 exec_hi, 0x10001")
    for q in range(4): k(f"ds_write2_b32 v11, v{GA+2*q}, v{GA+2*q+1} offset0:{q} offset1:{q+4}")
    k("s_mov_b64 exec, -1")
    va = Rec(); T2 = 118
    for c in range(3):
        for st in range(4):
            a, b = T2 + 4*(st % 2), T2 + 4*(st % 2) + 2
            pk_bc(va, a, R[c]+2*st, SS+2*c, 0); pk_bc(va, b, R[c]+2*st, SS+2*c, 1)
            pk_bc(va, R[c]+2*st, I[c]+2*st, SS+2*c, 1, a, neg=True); pk_bc(va, I[c]+2*st, I[c]+2*st, SS+2*c, 0, b)
    va(f"v_mul_u32_u24 v8, 24, v2\nv_add_u32 v5, s21, v8\nv_mul_u32_u24 v6, 1536, v3\nv_add3_u32 v6, v6, v8, s54")
    va(f"v_lshrrev_b32 v14, 3, v0\ns_lshl_b32 s4, s51, 8\ns_add_u32 s4, s4, {LOGT}\nv_lshl_add_u32 v14, v14, 2, s4")
    idx = [i for i, e in enumerate(k.vm) if e[1] == ("C", 2)]
    k._wait(vm=len(k.vm) - idx[-1] - 1)
    c_drain(k, [0, 1, 2])
    dm = Rec(); dm.wait_lg(("Cd", 2)); c_dma(dm, [9, 10, 11])
    weave(k, va.items, [(dm.items, 12, len(va.items) - 2)])
    k.wait_lg(); k("s_barrier")
    PO, PG = 176, 194
    for q in range(4): k(f"ds_read2_b64 {v(PG+6*q,4)}, v6 offset0:{48*q} offset1:{48*q+1}\nds_read_b64 {v(PG+6*q+4,2)}, v6 offset:{384*q+16}")
    for q in range(3): k(f"ds_read2_b64 {v(PO+6*q,4)}, v5 offset0:{48*q} offset1:{48*q+1}\nds_read_b64 {v(PO+6*q+4,2)}, v5 offset:{384*q+16}")
    k(f"ds_read_b32 v12, v14\nds_read_b32 v13, v14 offset:128")
    va = Rec()
    P = 110
    for c in range(3): va(f"v_mov_b64 {v(P+2*c,2)}, 0")
    for q in range(1, 4): cmac(va, [(PG+6*q+2*c, PG+6*(q-1)+2*c, L8+2*c, PG+6*q+2*c) for c in range(3)])
    LT = WE
    g.k = va
    g.cmul_multi([(LT+2*c, PG+18+2*c, WE+2*c, T2+2*c) for c in range(3)])
    for q in range(1, 3): cmac(va, [(PO+6*q+2*c, PO+6*(q-1)+2*c, L8+2*c, PO+6*q+2*c) for c in range(3)])
    sel = "s_mov_b32 exec_hi, 0\ns_mov_b32 exec_lo, 0xffff0000\n"
    for q in range(3):
        sel += "\n".join(f"v_mov_b64 {v(P+2*c,2)}, {v(PO+6*q+2*c,2)}" for c in range(3)) + "\n"
        sel += "s_lshl_b64 exec, exec, 16\n" if q < 2 else "s_mov_b64 exec, -1"
    va.group(sel)
    g.k = k
    dm = Rec(); c_dma(dm, [7, 8])
    weave(k, va.items, [(dm.items, 0, len(va.items) - 4)])
    reduce_scatter(LT, 120, 124); all_gather(120, LT)
    va = Rec()
    cmac(va, [(P+2*c, LT+2*c, LG+2*c, P+2*c) for c in range(3)])
    CPr, CPi = WSr, WSi
    for c in range(3): va(f"v_mul_f32 v{CPr+2*c}, v{P+2*c}, v{SS+2*c}\nv_mul_f32 v{CPi+2*c}, v{P+2*c}, v{SS+2*c+1}")
    for c in range(3): va(f"v_fma_f32 v{CPr+2*c}, -v{P+2*c+1}, v{SS+2*c+1}, v{CPr+2*c}\nv_fma_f32 v{CPi+2*c}, v{P+2*c+1}, v{SS+2*c}, v{CPi+2*c}")
    for c in range(3): va(f"v_fma_f32 v{CPr+2*c+1}, v{tb(c,3)}, v{CPr+2*c}, v{R[c]+6}\nv_fma_f32 v{CPi+2*c+1}, v{tb(c,3)}, v{CPi+2*c}, v{I[c]+6}")
    for c in range(3): va(f"v_fma_f32 v{CPr+2*c+1}, -v{tb(c,3)+1}, v{CPi+2*c}, v{CPr+2*c+1}\nv_fma_f32 v{CPi+2*c+1}, v{tb(c,3)+1}, v{CPr+2*c}, v{CPi+2*c+1}")
    va(f"v_lshrrev_b32 v5, 1, v3\nv_add_u32 v8, {HX}, v8\ns_mul_i32 s4, s48, 384\nv_add_u32 v9, s4, v8\nv_lshl_add_u32 v10, v5, 2, v9\nv_lshl_add_u32 v9, v5, 3, v9")
    run(va)
    g.nstamp("valu")
    PD = 96
    def poll_issue():
        k(f"buffer_load_dwordx4 {v(PD,4)}, v20, s[76:79], 0 offen sc1\nbuffer_load_dwordx4 {v(PD+4,4)}, v20, s[76:79], 0 offen offset:256 sc1")
    def poll_check():
        k(f"v_cmp_ne_u32 vcc, v{PD+3}, v21\nv_cmp_ne_u32 s[4:5], v{PD+7}, v21\ns_or_b64 vcc, vcc, s[4:5]")
    poll_issue()
    k.raw("    s_waitcnt vmcnt(2)"); k.vm = k.vm[-2:]
    c_drain(k, [3, 4, 5, 6, 7, 8])
    k(f"v_mul_f32 v12, {fl(-LOG2E)}, v12\nv_mul_f32 v13, {fl(-LOG2E)}, v13\nv_exp_f32 v12, v12\nv_exp_f32 v13, v13\nv_add_f32 v12, 1.0, v12\nv_add_f32 v13, 1.0, v13\nv_rcp_f32 v12, v12\nv_rcp_f32 v13, v13")
    g.nstamp("prep")
    k.wait_vm(); poll_check()
    k(f"s_mov_b32 s58, {SPIN}\ns_cbranch_vccz L_pollS_done")
    k.out.append("L_pollS:")
    poll_issue()
    k("s_sub_u32 s58, s58, 1")
    k.wait_vm()
    k("s_cbranch_scc1 L_pollS_done"); poll_check()
    k("s_cbranch_vccnz L_pollS")
    k.out.append("L_pollS_done:")
    g.nstamp("Sarr")
    k(f"v_mov_b32 v{PD+3}, v{PD+6}")
    pp = [PD, PD+4, PD+2]
    g.cmul_multi([(LT+2*c, pp[c], WH+2*c, 104+2*c) for c in range(3)])
    O, Y = 120, 124
    reduce_scatter(LT, O, Y)
    k(f"ds_write_b64 v9, {v(O,2)}\nds_write_b32 v10, v{O+2} offset:16")
    dm = Rec(); c_dma(dm, [12, 13, 14, 15, 16, 17])
    n2 = g.b2_pre
    k.wait_lg(("Cd", 8))
    for it in dm.items[:n2]: play(k, it)
    k.wait_lg(); k("s_barrier")
    for w in range(4): k(f"ds_read2_b64 {v(96+6*w,4)}, v8 offset0:{48*w} offset1:{48*w+1}\nds_read_b64 {v(100+6*w,2)}, v8 offset:{384*w+16}")
    HH = LT
    for c in range(3): k(f"v_pk_add_f32 {v(96+2*c,2)}, {v(96+2*c,2)}, {v(102+2*c,2)}")
    for c in range(3): k(f"v_pk_add_f32 {v(108+2*c,2)}, {v(108+2*c,2)}, {v(114+2*c,2)}")
    for c in range(3): k(f"v_pk_add_f32 {v(HH+2*c,2)}, {v(96+2*c,2)}, {v(108+2*c,2)}")
    for c in range(3):
        pk_bc(k, CPr+2*c, MPr+2*c, HH+2*c, 0, CPr+2*c); pk_bc(k, CPi+2*c, MPi+2*c, HH+2*c, 0, CPi+2*c)
    for c in range(3):
        pk_bc(k, CPr+2*c, MPi+2*c, HH+2*c, 1, CPr+2*c, neg=True); pk_bc(k, CPi+2*c, MPr+2*c, HH+2*c, 1, CPi+2*c)
    HO = 96
    for c in range(3):
        for st in range(4): pk_bc(k, R[c]+2*st, CPr+2*c, tb(c,st), 0, R[c]+2*st)
        for st in range(4): pk_bc(k, R[c]+2*st, CPi+2*c, tb(c,st), 1, R[c]+2*st, neg=True)
        o = HO + 8*c
        for i, (a_, b_) in enumerate(((0, 2), (4, 6), (1, 3), (5, 7))): k(f"v_cvt_pk_bf16_f32 v{o+i}, v{R[c]+a_}, v{R[c]+b_}")
        k(f"buffer_store_dwordx4 {v(o,4)}, v28, s[76:79], s{59+c} offen sc1", tag="h")
        for st in range(4): pk_bc(k, I[c]+2*st, CPi+2*c, tb(c,st), 0, I[c]+2*st)
        for st in range(4): pk_bc(k, I[c]+2*st, CPr+2*c, tb(c,st), 1, I[c]+2*st)
        for i, (a_, b_) in enumerate(((0, 2), (4, 6), (1, 3), (5, 7))): k(f"v_cvt_pk_bf16_f32 v{o+4+i}, -v{I[c]+a_}, -v{I[c]+b_}")
        k(f"buffer_store_dwordx4 {v(o+4,4)}, v28, s[76:79], s{59+c} offen offset:1024 sc1", tag="h")
    g.nstamp("hst")
    dm.items = dm.items[n2:]
    va = Rec()
    va(f"""
    v_mov_b32 v30, s12
    v_mov_b32 v31, s55
    v_mov_b32 v8, v7
    v_mov_b32 v9, v23
    v_mov_b32 v10, v24
    v_mov_b32 v11, v25
    v_min_u32 v6, 23, v1
    v_lshl_add_u32 v6, v6, 7, s13
    v_lshl_add_u32 v14, v1, 4, s16
    v_lshrrev_b32 v15, 1, v3
    v_lshlrev_b32 v15, 12, v15          ; (G>>1)*4096
    s_lshr_b32 s4, s48, 1
    s_lshl_b32 s4, s4, 10
    v_add_u32 v15, s4, v15
    v_bfe_u32 v16, v1, 1, 1             ; cc>>1
    v_lshl_add_u32 v15, v16, 8, v15
    v_and_b32 v32, 1, v3
    v_lshlrev_b32 v32, 3, v32
    v_bfe_u32 v29, v1, 2, 2             ; r
    v_add_u32 v32, v32, v29
    v_lshlrev_b32 v16, 2, v16
    v_xor_b32 v32, v32, v16
    v_lshl_add_u32 v15, v32, 4, v15
    v_and_b32 v32, 1, v1
    v_lshl_add_u32 v15, v32, 3, v15
    v_xor_b32 v16, 64, v15              ; half 1
    s_lshl_b32 s4, s14, 6
    v_lshrrev_b32 v32, 3, v0
    v_add_u32 v32, s4, v32            ; row
    v_and_b32 v29, 7, v0
    s_mul_i32 s5, s52, 192
    v_lshl_add_u32 v29, v29, 3, s5
    v_mul_u32_u24 v19, 1152, v32
    v_add_u32 v19, v19, v29
    v_add_u32 v5, {32*1152}, v19
    s_mul_i32 s17, s52, 384
    s_add_u32 s17, s17, {WS_AF}
    v_min_u32 v4, 47, v1
    v_lshl_add_u32 v4, v4, 3, s17
    s_mul_i32 s18, s52, 96
    s_mul_i32 s19, s48, 24
    s_add_u32 s18, s18, s19
    s_lshl_b32 s18, s18, 12
    s_lshl_b32 s19, s14, 7
    s_add_u32 s18, s18, s19
    s_add_u32 s18, s18, {WS_A}
    s_mul_i32 s19, s48, 6
    s_mul_i32 s21, s48, 3072
    s_and_b32 s53, s48, 1
    s_mul_i32 s10, s53, 192
    s_lshl_b32 s53, s53, 2
    s_lshr_b32 s23, s48, 1
    s_add_u32 s53, s53, s23           ; a chunk
    s_mul_i32 s23, s23, 25600
    s_add_u32 s23, s23, s10
    """)
    weave(k, va.items, [(dm.items, 0, len(va.items) - 1)])
    XR = [20, 18, 248, 250, 252, 254]
    k.wait_vm()
    k("s_mov_b64 exec, 1\nglobal_store_dword v30, v31, s[46:47] sc1\ns_mov_b64 exec, -1")
    g.nstamp("flag")
    c_drain(k, range(9, 18))
    k("v_mov_b32 v22, v19\nv_mov_b32 v23, v29")
    k.wait_lg()
    k(f"s_mov_b32 s58, {SPIN}\ns_barrier")
    LOC2 = True
    def c_dma(e, ns):
        for n in ns:
            e.group(f"s_add_u32 m0, s57, {24576 + 2048*(n%3)}\ns_add_u32 s20, s{UO[n//3]}, {18432*(n%3)}\nbuffer_load_dwordx4 v8, s[72:75], s20 offen lds", tag=("C", n//3))
            e(f"buffer_load_dwordx4 v9, s[72:75], s20 offen offset:1024 lds", tag=("C", n//3))
    def c_drain(e, ns):
        for n in ns:
            for ks in range(2): e(f"ds_read_b128 {v(CU[n//3]+12*ks+4*(n%3),4)}, v{10+ks} offset:{24576 + 2048*(n%3)}")
    r = Rec(); c_dma(r, [18, 19, 20]); run(r)
    for jj in range(3):
        k(f"global_load_dwordx2 {v(XR[jj],2)}, v22, s[8:9] offset:{64*jj}\nglobal_load_dwordx2 {v(XR[3+jj],2)}, v5, s[8:9] offset:{64*jj}")
    k.out.append("L_pollH:")
    k("global_load_dword v17, v6, s[46:47] sc1\ns_sub_u32 s58, s58, 1")
    k.wait_vm()
    k("v_cmp_ne_u32 vcc, s55, v17\ns_cbranch_scc1 L_pollH_done\ns_nop 2\ns_cbranch_vccnz L_pollH")
    k.out.append("L_pollH_done:")
    g.nstamp("Harr")
    slot = lambda u: 16384*((u + 1) % 3)
    def h_dma(e, u):
        e.group(f"s_add_u32 m0, s15, {slot(u)}\ns_lshl_b32 s63, s{UO[u]}, 7")
        for n in range(4): e(f"buffer_load_dwordx4 v14, s[76:79], s63 offen offset:{1024*n} sc1 lds", tag=("h", u))
    r = Rec(); h_dma(r, 0); h_dma(r, 1); h_dma(r, 2); run(r)
    A2, HF = 128, 24
    def hreads(e, u, ks):
        for tt in range(4):
            off = slot(u) + 8192*ks + 2048*(tt >> 1) + 512*(tt & 1)
            e(f"ds_read_b64_tr_b16 {v(HF+16*ks+4*tt,2)}, v15 offset:{off}\nds_read_b64_tr_b16 {v(HF+16*ks+4*tt+2,2)}, v16 offset:{off}")
    def mf1(u, ks, tt, dt):
        d = A2 + 16*dt + 4*tt
        cc = "0" if (u == 0 and ks == 0) else v(d, 4)
        return ("i", f"{MF} {v(d,4)}, {v(CU[u]+12*ks+4*dt,4)}, {v(HF+16*ks+4*tt,4)}, {cc}", None)
    mf2 = lambda u, ks: [mf1(u, ks, tt, dt) for tt in range(4) for dt in range(3)]
    DBR, DBF, AV, AR, XB = 56, 62, 76, 80, 104
    AST = 69632; IMG = 16384
    k.wait_vm(("h", 0)); k("s_barrier"); g.nstamp("u0")
    hreads(k, 0, 0)
    for u in range(9):
        rd = Rec(); hreads(rd, u, 1)
        ex = Rec()
        if u in (1, 3, 5):
            cu = {1: 6, 3: 7, 5: 8}[u]
            ex.wait_vm(("C", cu)); c_drain(ex, range(3*cu, 3*cu+3))
        if u == 4:
            for jj in range(3): ex(f"global_load_dwordx2 {v(DBR+2*jj,2)}, v23, s[38:39] offset:{64*jj}")
            ex(f"v_lshrrev_b32 v17, 3, v1\nv_lshl_add_u32 v17, v17, 12, s18\nv_lshrrev_b32 v6, 5, v1\nv_add_u32 v6, s19, v6")
        if u == g.a_at - 1:
            ex("global_load_dwordx2 v[74:75], v4, s[46:47] sc1", tag="af")
        if u == 6:
            ex("v_sub_f32 v8, 1.0, v12\nv_sub_f32 v9, 1.0, v13")
            for jj in range(3):
                for h in range(2): ex(f"v_lshlrev_b32 v{DBF+4*jj+2*h}, 16, v{DBR+2*jj+h}\nv_and_b32 v{DBF+4*jj+2*h+1}, 0xffff0000, v{DBR+2*jj+h}")
        if u == 7:
            for ii in range(2):
                for q in range(12): ex(f"v_mul_f32 v{XB+12*ii+q}, v{XB+12*ii+q}, v{DBF+q}")
        if u < 8:
            weave(k, mf2(u, 0), [(rd.items, 0, 7), (ex.items, 1, 11)])
            idx = [i for i, e in enumerate(k.vm) if e[1] == ("h", u + 1)]
            k._wait(vm=len(k.vm) - idx[-1] - 1 if idx else None, lg=0)
            k("s_barrier"); g.nstamp(f"u{u+1}")
            rd = Rec(); hreads(rd, u + 1, 0)
            dm = Rec(); ex = Rec()
            if u + 3 < 9: h_dma(dm, u + 3)
            if u in (1, 3): c_dma(dm, {1: [21, 22, 23], 3: [24, 25, 26]}[u])
            if u == 4:
                for n in range(3): ex(f"v_add_u32 v{AV}, {2*n}, v6\nv_xor_b32 v{AV}, v{AV}, v1\nv_and_b32 v{AV}, 7, v{AV}\nv_lshl_add_u32 v{AV+1+n}, v{AV}, 4, v17")
            if u == 5:
                for i in range(24): ex(f"v_mov_b32 v{AR+i}, 0")
            if u == g.a_at:
                k.wait_vm("af")
                k("v_cmp_ne_u32 vcc, s56, v74\nv_cmp_ne_u32 s[4:5], s56, v75\ns_or_b64 vcc, vcc, s[4:5]\ns_cbranch_vccz L_pollA_done")
                save = (list(k.vm), list(k.lg))
                k(f"s_mov_b32 s58, {SPIN}")
                k.out.append("L_pollA:")
                k("global_load_dwordx2 v[74:75], v4, s[46:47] sc1\ns_sub_u32 s58, s58, 1")
                k.wait_vm()
                k("s_cbranch_scc1 L_pollA_done\nv_cmp_ne_u32 vcc, s56, v74\nv_cmp_ne_u32 s[4:5], s56, v75\ns_or_b64 vcc, vcc, s[4:5]\ns_cbranch_vccnz L_pollA")
                k.out.append("L_pollA_done:")
                k.vm, k.lg = save
                g.nstamp("Aarr")
                a_ = Rec()
                a_(f"s_add_u32 m0, s21, {AST}")
                for n in range(3):
                    a_.group(f"s_mov_b32 s4, {32768*n - 1024*n}\nbuffer_load_dwordx4 v{AV+1+n}, s[76:79], s4 offen offset:{1024*n} sc1 lds", tag="a")
                dm.items = a_.items + dm.items
            if u == 6:
                for ii in range(2):
                    for jj in range(3):
                        for h in range(2):
                            d = XB + 12*ii + 4*jj + 2*h; s_ = XR[3*ii+jj] + h
                            ex(f"v_lshlrev_b32 v{d}, 16, v{s_}\nv_and_b32 v{d+1}, 0xffff0000, v{s_}")
            if u == 7:
                ex(f"""
                v_and_b32 v17, 7, v1
                v_xor_b32 v7, s53, v17
                v_lshlrev_b32 v7, 4, v7
                v_lshl_add_u32 v7, v17, 9, v7
                v_lshrrev_b32 v6, 3, v1
                v_lshl_add_u32 v7, v6, 1, v7
                v_add_u32 v6, {AST}, v7
                v_xor_b32 v7, 32, v6
                v_mul_u32_u24 v10, 400, v2
                v_lshl_add_u32 v10, v3, 4, v10
                v_add_u32 v10, s23, v10
                v_lshrrev_b32 v11, 3, v0
                v_mul_u32_u24 v11, 400, v11
                v_lshl_add_u32 v11, v17, 4, v11
                v_lshlrev_b32 v22, 1, v22
                v_lshlrev_b32 v5, 1, v5
                """)
            weave(k, mf2(u, 1), [(rd.items, 1, 8), (dm.items, 0, 11), (ex.items, 1, 11)])
        else:
            run(rd)
            for ii in range(2):
                for q in range(12): ex(f"v_mul_f32 v{XB+12*ii+q}, v{XB+12*ii+q}, v{8+ii}")
            seq = [mf1(8, 0, tt, dt) for tt in range(2) for dt in range(3)]
            seq += [mf1(8, 1, 0, dt) for dt in range(3)] + [mf1(8, 1, 1, dt) for dt in range(3)]
            seq += [mf1(8, ks, tt, dt) for tt in (2, 3) for ks in range(2) for dt in range(3)]
            wr = Rec()
            for tt in range(4):
                for dt in range(3): wr(f"ds_write_b128 v10, {v(A2+16*dt+4*tt,4)} offset:{IMG+6400*tt+64*dt}")
            weave(k, seq, [(ex.items, 1, 11), (wr.items[:6], 12, 23)])
            for it in wr.items[6:]: play(k, it)
    g.nstamp("p2end")
    k._wait(vm=0, lg=0); k("s_barrier")
    E0 = 176
    for ii in range(2):
        for jj in range(3):
            q = 3*ii + jj
            k(f"ds_read_b128 {v(E0+8*q,4)}, v11 offset:{IMG+12800*ii+128*jj}\nds_read_b128 {v(E0+8*q+4,4)}, v11 offset:{IMG+25600+12800*ii+128*jj}")
            for e_ in range(4): k(f"ds_read_u16_d16_hi v{AR+12*ii+4*jj+e_}, v{6+ii} offset:{128*e_+4096*jj}")
    for ii in range(2):
        for jj in range(3):
            q = 3*ii + jj
            for h in range(2):
                k(f"v_pk_add_f32 {v(E0+8*q+2*h,2)}, {v(E0+8*q+2*h,2)}, {v(E0+8*q+4+2*h,2)}")
            for h in range(2):
                pk_bc(k, E0+8*q+2*h, E0+8*q+2*h, 8, ii, XB+12*ii+4*jj+2*h)
            for h in range(2):
                pk_bc(k, E0+8*q+2*h, AR+12*ii+4*jj+2*h, 12, ii, E0+8*q+2*h)
            k(f"global_store_dwordx4 v{22 if ii == 0 else 5}, {v(E0+8*q,4)}, s[42:43] offset:{128*jj}")
    k(f"s_cmp_lg_u32 s14, 31\ns_cbranch_scc1 L_B_fin\ns_cmp_lg_u32 s48, 0\ns_cbranch_scc1 L_B_fin")
    k(f"s_lshl_b32 s4, s52, 2\nv_mov_b32 v6, s4\nv_mov_b32 v7, s56\ns_mov_b64 exec, 1\nglobal_store_dword v6, v7, s[46:47]\ns_mov_b64 exec, -1")
    k.out.append("L_B_fin:")
    if g.stamps:
        g.nstamp("stiss")
        k.raw("    s_waitcnt vmcnt(0)"); k.vm = []
        g.nstamp("end")
    g.dump_stamps('B')
    k("s_endpgm")
```

```python
import re
REG = re.compile(r"(?<![\w.])([vsa])(?:(\d+)|\[(\d+):(\d+)\])(?![\w])")
TRANS = ("v_exp_f32", "v_log_f32", "v_rcp_f32", "v_rsq_f32", "v_sqrt_f32", "v_sin_f32", "v_cos_f32")
NODEST_S = ("s_cmp", "s_cbranch", "s_waitcnt", "s_barrier", "s_nop", "s_branch", "s_setprio", "s_sleep", "s_endpgm", "s_bitcmp")
def regs_of(tok):
    out = set()
    for m in REG.finditer(tok):
        c = m.group(1)
        if m.group(2) is not None: out.add((c, int(m.group(2))))
        else: out.update((c, i) for i in range(int(m.group(3)), int(m.group(4)) + 1))
    if re.search(r"\bvcc\b", tok): out.add(("s", "vcc"))
    if re.search(r"\bexec\b", tok): out.add(("s", "exec"))
    if re.search(r"\bm0\b", tok): out.add(("s", "m0"))
    return out
def split_ops(s):
    ops, depth, cur = [], 0, ""
    for ch in s:
        if ch in "[(": depth += 1
        if ch in "])": depth -= 1
        if ch == "," and depth == 0: ops.append(cur.strip()); cur = ""
        else: cur += ch
    if cur.strip(): ops.append(cur.strip())
    return ops
class Inst:
    def __init__(self, text):
        self.text = text
        t = text.split(";")[0].strip()
        parts = t.split(None, 1)
        op = self.op = parts[0]
        ops = split_ops(parts[1]) if len(parts) > 1 else []
        self.ops = ops
        R = [regs_of(o) for o in ops]
        allr = set().union(*R) if R else set()
        self.defs, self.uses = set(), set()
        self.mf = None
        if op.startswith("v_mfma"):
            self.kind = "mfma"; self.defs = R[0]; self.uses = R[1] | R[2] | R[3]
            self.ab = R[1] | R[2]; self.c = R[3]
            self.passes = 8 if "32x32" in op else 4
        elif op.startswith("v_"):
            self.kind = "trans" if op.split("_e")[0] in TRANS or op in TRANS else "valu"
            nd = 1
            if re.match(r"v_(add|sub|subrev|addc|subb)_co_", op): nd = 2
            self.defs = set().union(*R[:nd]); self.uses = set().union(*R[nd:]) if len(R) > nd else set()
            if op.startswith(("v_fmac", "v_pk_fmac", "v_dot2c")) or "dpp" in op or "row_" in t or "quad_perm" in t: self.uses |= R[0]
            if op.startswith("v_permlane"): self.defs = R[0] | R[1]; self.uses = R[0] | R[1]
            if op.startswith("v_cmpx"): self.defs |= {("s", "exec")}
            if op.startswith("v_cndmask") and len(ops) == 3: self.uses |= {("s", "vcc")}
        elif op.startswith("ds_"):
            self.kind = "ds"
            if op.startswith(("ds_read", "ds_bpermute", "ds_permute", "ds_swizzle")):
                self.defs = R[0]; self.uses = set().union(*R[1:])
                if "d16" in op: self.uses |= R[0]
            else: self.uses = allr
        elif op.startswith(("buffer_", "global_")):
            self.kind = "vmem"
            self.lds = bool(re.search(r"\blds\b", t)) or "_lds_" in op
            if "load" in op and not self.lds:
                self.defs = R[0]; self.uses = set().union(*R[1:])
                if "d16" in op: self.uses |= R[0]
            else:
                self.uses = allr
                if self.lds: self.uses |= {("s", "m0")}
            self.wide_store = "store" in op and ("x3" in op or "x4" in op)
            if self.wide_store: self.data = R[0] if op.startswith("buffer_") else R[1]
        elif op.startswith(("s_load", "s_buffer_load", "s_memtime", "s_memrealtime")):
            self.kind = "smem"; self.defs = R[0]; self.uses = set().union(*R[1:]) if len(R) > 1 else set()
        elif op.startswith("s_"):
            self.kind = "salu"
            if op.startswith(NODEST_S): self.uses = allr
            else:
                self.defs = R[0]; self.uses = set().union(*R[1:]) if len(R) > 1 else set()
                if "saveexec" in op: self.defs |= {("s", "exec")}
        else:
            raise ValueError("unknown instr " + text)
    def states(self):
        if self.op == "s_nop": return int(self.ops[0], 0) + 1
        return 1
def isv(rs): return {r for r in rs if r[0] in "va"}
def iss(rs): return {r for r in rs if r[0] == "s"}
def need(p, c):
    n = 0
    pv = p.kind in ("valu", "trans")
    cv = c.kind in ("valu", "trans")
    if pv:
        dv, dsg = isv(p.defs), iss(p.defs)
        if c.kind == "mfma" and dv & c.uses: n = max(n, 2)
        if cv and dv & c.uses:
            if p.kind == "trans": n = max(n, 1)
            if c.op.startswith("v_permlane") or "dpp" in c.op or "row_" in c.text or "quad_perm" in c.text: n = max(n, 2)
            if c.op.startswith(("v_readfirstlane", "v_readlane")): n = max(n, 1)
        if p.kind == "trans" and c.kind != "salu" and dv & c.uses: n = max(n, 1)
        if dsg & c.uses:
            if cv: n = max(n, 4 if c.op.startswith(("v_readlane", "v_writelane")) else 2)
            if c.kind == "vmem": n = max(n, 5)
            if c.kind in ("salu", "smem"): n = max(n, 1)
        if ("s", "exec") in p.defs:
            if c.kind == "mfma" or c.op.startswith(("v_permlane", "v_read")): n = max(n, 4)
            if "dpp" in c.op or "row_" in c.text: n = max(n, 5)
    if p.kind == "salu" and ("s", "m0") in p.defs and c.kind == "vmem" and c.lds: n = max(n, 1)
    if p.kind == "vmem" and getattr(p, "wide_store", False) and p.data & c.defs: n = max(n, 2)
    if p.kind == "mfma":
        big = {4: 8, 8: 12}[p.passes]
        if c.kind == "mfma":
            if p.defs & c.ab: n = max(n, big)
            if p.defs & c.c and not (p.defs == c.c and p.passes == c.passes): n = max(n, big - 2)
            if p.defs & c.defs and not (p.defs == c.c): n = max(n, big - 2)
        else:
            if p.defs & (c.uses | c.defs): n = max(n, big)
            if cv and p.c & c.defs: n = max(n, p.passes - 1)
    return n
class K:
    def __init__(self):
        self.out = []
        self.hist = []
        self.vm = []
        self.lg = []
        self.smem = set()
        self.nops = 0
    def raw(self, line): self.out.append(line)
    def _push(self, ins):
        self.out.append("    " + ins.text); self.hist.append(ins)
        if len(self.hist) > 24: self.hist.pop(0)
    def _wait(self, vm=None, lg=None):
        parts = []
        if vm is not None and vm < len(self.vm):
            vm = min(vm, 63); parts.append(f"vmcnt({vm})"); self.vm = self.vm[len(self.vm) - vm:] if vm else []
        if lg is not None and (lg < len(self.lg) or (lg == 0 and self.smem)):
            if self.smem: lg = 0
            lg = min(lg, 15); parts.append(f"lgkmcnt({lg})"); self.lg = self.lg[len(self.lg) - lg:] if lg else []
            if lg == 0: self.smem = set()
        if parts: self._push(Inst("s_waitcnt " + " ".join(parts)))
    def wait_vm(self, tag=None):
        if tag is None: return self._wait(vm=0)
        idx = [i for i, e in enumerate(self.vm) if e[1] == tag]
        if idx: self._wait(vm=len(self.vm) - idx[-1] - 1)
    def wait_lg(self, tag=None):
        if tag is None: return self._wait(lg=0)
        idx = [i for i, e in enumerate(self.lg) if e[1] == tag]
        if idx: self._wait(lg=len(self.lg) - idx[-1] - 1)
    def wait_all(self): self._wait(vm=0, lg=0)
    def label(self, name, drain=True):
        if drain: self.wait_all()
        self.out.append(name + ":")
    def reset(self):
        self.hist, self.vm, self.lg, self.smem = [], [], [], set()
    def __call__(self, text, tag=None):
        for line in text.strip("\n").split("\n"):
            line = line.strip()
            if not line or line.startswith(";"): continue
            self.one(line, tag)
    def one(self, line, tag):
        assert not (line.startswith("v_pk_") and "op_sel:[0,1" in line), "broken op_sel form"
        ins = Inst(line)
        touched = ins.uses | ins.defs
        vm = lg = None
        for i, e in enumerate(self.vm):
            if e[0] & touched: vm = len(self.vm) - i - 1
        for i, e in enumerate(self.lg):
            if e[0] & touched:
                lg = len(self.lg) - i - 1
        if self.smem & touched: lg = 0
        self._wait(vm, lg)
        dist, pad = 0, 0
        for p in reversed(self.hist):
            pad = max(pad, need(p, ins) - dist)
            dist += p.states()
            if dist > 20: break
        while pad > 0:
            n = min(pad, 16); self._push(Inst(f"s_nop {n-1}")); pad -= n; self.nops += 1
        self._push(ins)
        if ins.kind == "vmem": self.vm.append((ins.defs, tag))
        elif ins.kind == "ds": self.lg.append((ins.defs, tag))
        elif ins.kind == "smem": self.smem |= ins.defs
        if ins.op == "s_waitcnt": raise ValueError("use wait_* helpers")
    def text(self): return "\n".join(self.out) + "\n"
def v(i, n=1): return f"v{i}" if n == 1 else f"v[{i}:{i+n-1}]"
def s(i, n=1): return f"s{i}" if n == 1 else f"s[{i}:{i+n-1}]"

class Rec:
    def __init__(self): self.items = []
    def __call__(self, text, tag=None):
        for line in text.strip("\n").split("\n"):
            line = line.strip()
            if line and not line.startswith(";"): self.items.append(("i", line, tag))
    def group(self, text, tag=None):
        ls = [l.strip() for l in text.strip("\n").split("\n") if l.strip() and not l.strip().startswith(";")]
        self.items.append(("g", ls, tag))
    def wait_vm(self, tag=None): self.items.append(("wv", tag, None))
    def wait_lg(self, tag=None): self.items.append(("wl", tag, None))
def play(k, it):
    if it[0] == "i": k(it[1], it[2])
    elif it[0] == "g":
        for l in it[1]: k(l, it[2])
    elif it[0] == "raw": k.raw(it[1])
    elif it[0] == "wv": k.wait_vm(it[1])
    elif it[0] == "wl": k.wait_lg(it[1])
def weave(k, base, streams):
    slots = [[] for _ in range(len(base) + 1)]
    for items, a, b in streams:
        n = len(items)
        for i, it in enumerate(items):
            pos = a + (i * (b - a + 1)) // n if n else a
            slots[min(pos, len(base))].append(it)
    for i in range(len(base) + 1):
        for it in slots[i]: play(k, it)
        if i < len(base): play(k, base[i])
```

```python
import sys, struct
sys.path.insert(0, "work")
from kasm import *
NAME = "gated_mix__ssm_conv_s4d__ssm_conv_s5__prompt_kernel"
NB, NA = 192, 144
WS_W, WS_S, WS_HF, WS_AF, WS_H, WS_A, WS_STAMP = 0, 0x1000, 0x20000, 0x40000, 0x100000, 0x600000, 0x900000
WS_SIZE = 0x1000000
LOG2E = 1.4426950408889634
INV2PI = 0.15915494309189535
def fl(x): return "0x%08x" % struct.unpack("<I", struct.pack("<f", x))[0]
LCG_A, LCG_C = 0x0019660D, 0x3C6EF35F

class Gen:
    def __init__(self, stamps=False, parts="AB"):
        self.k = K(); self.stamps = stamps; self.parts = parts; self.nst = 0
    def stamp(self, i):
        if self.stamps:
            self.k.raw(f"    {self.clk} s[{80+2*i}:{81+2*i}]")
            self.k.smem |= {("s", 80+2*i), ("s", 81+2*i)}
            self.k.wait_lg()
    def nstamp(self, name):
        if self.stamps and name in self.bst: self.stamp(1 + self.bst.index(name))
    def dump_stamps(self, role='A'):
        if not self.stamps: return
        k = self.k
        k.wait_all()
        k("s_mov_b64 exec, 1")
        if self.dbgst:
            k.raw("    s_load_dwordx2 s[44:45], s[0:1], 144\n    s_waitcnt lgkmcnt(0)")
            k(f"s_not_b32 s3, s80\nv_mov_b32 v8, s3\nv_mov_b32 v4, 0\nglobal_atomic_umax v4, v8, s[44:45]")
            sel = [0, 1, 2, 3, 4, 5, 6, 7, 8] if role == "B" else [0, 7, 2, 3, 4, 5]
            base = 1 if role == "B" else 10
            for i, j in enumerate(sel): k(f"v_mov_b32 v{9+i}, s{80+2*j}\nglobal_atomic_umax v4, v{9+i}, s[44:45] offset:{4*(base+i)}")
            return
        k("s_getreg_b32 s98, hwreg(HW_REG_HW_ID)\ns_getreg_b32 s99, hwreg(HW_REG_XCC_ID)\ns_lshl_b32 s99, s99, 24\ns_and_b32 s98, s98, 0xffffff\ns_or_b32 s98, s98, s99")
        for i in range(9): k(f"v_mov_b32 v{8+i}, s{80+2*i}")
        k(f"v_mov_b32 v17, s98\nv_mov_b32 v18, 0\nv_mov_b32 v19, 0")
        k(f"s_lshl_b32 s3, s2, 2\ns_add_u32 s3, s3, s48\ns_lshl_b32 s3, s3, 6\ns_add_u32 s3, s3, {WS_STAMP}\nv_mov_b32 v4, s3")
        for i in range(3): k(f"global_store_dwordx4 v4, v[{8+4*i}:{11+4*i}], s[46:47] offset:{16*i}")
    def cmul(self, d, x, y, t):
        k = self.k
        k(f"v_pk_mul_f32 {v(t,2)}, {v(x,2)}, {v(y,2)} op_sel:[0,0] op_sel_hi:[0,1]")
        k(f"v_pk_fma_f32 {v(d,2)}, {v(x,2)}, {v(y,2)}, {v(t,2)} op_sel:[1,1,0] op_sel_hi:[1,0,1] neg_lo:[1,0,0]")
    def cmul_multi(self, items):
        k = self.k
        for d, x, y, t in items: k(f"v_pk_mul_f32 {v(t,2)}, {v(x,2)}, {v(y,2)} op_sel:[0,0] op_sel_hi:[0,1]")
        for d, x, y, t in items: k(f"v_pk_fma_f32 {v(d,2)}, {v(x,2)}, {v(y,2)}, {v(t,2)} op_sel:[1,1,0] op_sel_hi:[1,0,1] neg_lo:[1,0,0]")
    def cpow_multi(self, items):
        k = self.k
        for dre, dim, ar, ai, n, t0, t1 in items:
            k(f"v_mul_f32 v{t0}, {n}, v{ar}\nv_mul_f32 v{t1}, {n}, v{ai}")
        for dre, dim, ar, ai, n, t0, t1 in items:
            k(f"v_exp_f32 v{t0}, v{t0}\nv_fract_f32 v{t1}, v{t1}")
        for dre, dim, ar, ai, n, t0, t1 in items:
            k(f"v_cos_f32 v{dre}, v{t1}\nv_sin_f32 v{dim}, v{t1}")
        for dre, dim, ar, ai, n, t0, t1 in items:
            k(f"v_mul_f32 v{dre}, v{dre}, v{t0}\nv_mul_f32 v{dim}, v{dim}, v{t0}")
    def prologue(self):
        k = self.k
        if self.stamps: k.raw(f"    {self.clk} s[80:81]")
        k(f"""
        s_load_dwordx16 s[8:23], s[0:1], 0
        s_load_dwordx16 s[24:39], s[0:1], 64
        s_load_dwordx8 s[40:47], s[0:1], 128
        s_cmp_ge_u32 s2, {NB+NA}
        s_cbranch_scc1 L_end
        v_and_b32 v1, 63, v0
        v_lshrrev_b32 v4, 6, v0
        v_and_b32 v2, 15, v0
        v_readfirstlane_b32 s48, v4
        v_lshrrev_b32 v3, 4, v1
        s_sub_u32 s49, s2, {self.b0}
        s_cmp_ge_u32 s49, {NB}
        s_cbranch_scc1 L_A
        """)
    def code_prefetch(self, nlines, dst):
        k = self.k
        k(f"s_getpc_b64 s[4:5]\ns_lshr_b32 s6, s2, 3\ns_and_b32 s6, s6, 7\ns_lshl_b32 s6, s6, 5\nv_lshrrev_b32 v{dst}, 3, v0\nv_add_u32 v{dst}, s6, v{dst}\nv_min_u32 v{dst}, {nlines-1}, v{dst}\nv_lshlrev_b32 v{dst}, 7, v{dst}\nv_mov_b32 v{dst+1}, s5\nv_add_co_u32 v{dst}, vcc, s4, v{dst}\nv_addc_co_u32 v{dst+1}, vcc, 0, v{dst+1}, vcc")
        k(f"global_load_dword v{dst+2}, v[{dst}:{dst+1}], off")
    def partA(self):
        k = self.k
        k.reset(); k.smem = {("s", i) for i in range(8, 48)}
        k.raw("L_A:")
        TBW, UB0, UW, KB0 = 8704, 34816, 4608, 53248
        self.code_prefetch(self.pfA, 240)
        k(f"""
        s_sub_u32 s49, s2, {NB}
        s_cmp_lt_u32 s2, {self.b0}
        s_cselect_b32 s49, s2, s49
        s_and_b32 s50, s49, 7
        s_lshr_b32 s49, s49, 3
        s_mul_i32 s50, s50, 18
        s_add_u32 s49, s49, s50          ; a = group
        s_lshl_b32 s50, s49, 2
        s_add_u32 s50, s50, s48          ; d
        s_lshl_b32 s51, s50, 8
        v_lshl_add_u32 v26, v1, 2, s51
        s_lshl_b32 s51, s50, 1
        v_mov_b32 v27, s51
        """)
        k.raw("    s_getpc_b64 s[4:5]\n    s_add_u32 s4, s4, band_tab@rel32@lo+4\n    s_addc_u32 s5, s5, band_tab@rel32@hi+12")
        k(f"v_lshlrev_b32 v56, 4, v1\nv_mov_b32 v57, s5\nv_add_co_u32 v56, vcc, s4, v56\nv_addc_co_u32 v57, vcc, 0, v57, vcc")
        k("""
        global_load_dword v4, v26, s[10:11]
        global_load_dword v5, v26, s[12:13]
        global_load_ushort v8, v27, s[18:19]
        global_load_dword v6, v26, s[14:15]
        global_load_dword v7, v26, s[16:17]
        global_load_ushort v9, v27, s[20:21]
        s_load_dwordx8 s[56:63], s[46:47], 0
        """)
        self.stamp(1)
        def gather():
            k(f"v_mul_u32_u24 v26, 2304, v0\ns_lshl_b32 s51, s49, 3\nv_add_u32 v26, s51, v26")
            k("s_mov_b32 s64, s8\ns_mov_b32 s65, s9\ns_mov_b32 s66, 2359296\ns_mov_b32 s67, 0x20000")
            for kk in range(4):
                k(f"s_add_u32 s{52+kk}, s49, {kk}\ns_and_b32 s{52+kk}, s{52+kk}, 3\ns_mul_i32 s51, s{52+kk}, {512*1152}")
                k(f"buffer_load_dwordx2 v[{10+4*kk}:{11+4*kk}], v26, s[64:67], s51 offen")
                k(f"buffer_load_dwordx2 v[{12+4*kk}:{13+4*kk}], v26, s[64:67], s51 offen offset:1152")
        def band_load():
            for i in range(7):
                if i == 4: k("v_add_co_u32 v56, vcc, 0x1000, v56\nv_addc_co_u32 v57, vcc, 0, v57, vcc")
                k(f"global_load_dwordx4 v[{28+4*i}:{31+4*i}], v[56:57], off offset:{1024*(i%4)}")
        if self.skipA == 1: k.wait_all(); k('s_branch L_A_flag')
        band_load()
        if self.gather_early: gather()
        k(f"""
        s_mul_i32 s68, s48, {TBW}
        s_mul_i32 s69, s48, {UW}
        s_add_u32 s69, s69, {UB0}           ; U base
        s_lshl_b32 s70, s48, 12
        s_add_u32 s70, s70, {KB0}           ; K base
        v_mov_b32 v60, 0
        v_mov_b32 v61, 0
        v_mov_b32 v62, 0
        v_mov_b32 v63, 0
        v_lshl_add_u32 v58, v1, 4, s70
        v_lshl_add_u32 v59, v1, 3, s69
        ds_write_b128 v58, v[60:63]
        ds_write_b128 v58, v[60:63] offset:1024
        ds_write_b128 v58, v[60:63] offset:2048
        ds_write_b128 v58, v[60:63] offset:3072
        ds_write_b64 v59, v[60:61]
        v_lshl_add_u32 v58, v1, 3, s68
        v_mul_u32_u24 v59, 544, v2
        v_lshl_add_u32 v59, v3, 4, v59
        v_add_u32 v59, s68, v59
        v_and_b32 v60, 7, v2
        v_lshlrev_b32 v60, 2, v60
        s_mov_b32 s51, 0x43222100
        v_lshrrev_b32 v60, v60, s51
        v_and_b32 v60, 15, v60
        v_lshrrev_b32 v61, 3, v2
        v_mad_u32_u24 v60, v61, 5, v60
        v_mul_u32_u24 v60, 544, v60
        v_lshl_add_u32 v60, v3, 4, v60
        v_add_u32 v60, s68, v60
        """)
        vTW, vFR, vFR1 = 58, 59, 60
        self.stamp(6)
        AR, AI = (64, 66), (65, 67)
        k(f"""
        v_lshlrev_b32 v8, 16, v8
        v_mul_f32 v8, {fl(LOG2E)}, v8
        v_lshlrev_b32 v64, 16, v4
        v_and_b32 v66, 0xffff0000, v4
        v_exp_f32 v8, v8
        v_mul_f32 v64, {fl(LOG2E)}, v64
        v_mul_f32 v66, {fl(LOG2E)}, v66
        v_exp_f32 v64, v64
        v_exp_f32 v66, v66
        v_cvt_pk_bf16_f32 v8, v8, v8
        v_lshlrev_b32 v65, 16, v5
        v_and_b32 v67, 0xffff0000, v5
        v_cvt_pk_bf16_f32 v4, v64, v66
        v_and_b32 v8, 0xffff0000, v8        ; dt
        v_lshlrev_b32 v64, 16, v4
        v_and_b32 v66, 0xffff0000, v4
        v_mul_f32 v64, v64, v8
        v_mul_f32 v66, v66, v8
        v_mul_f32 v65, v65, v8
        v_mul_f32 v67, v67, v8
        v_mul_f32 v64, {fl(-LOG2E)}, v64
        v_mul_f32 v66, {fl(-LOG2E)}, v66
        v_mul_f32 v65, {fl(INV2PI)}, v65
        v_mul_f32 v67, {fl(INV2PI)}, v67
        """)
        self.stamp(7)
        E8, E16, E1, W = (68, 70), (72, 74), (76, 78), (80, 82)
        T = list(range(84, 104, 2))
        G = [[104 + 4*c, 106 + 4*c] for c in range(9)]
        LA, LBb = (140, 142), (144, 146)
        OUT = [148, 150, 152, 154]
        LOF = 156
        HF = 188
        DT = [220, 224, 228]
        self.oc = 0
        def entry(row, x0, x1, neg):
            o = OUT[self.oc % 4]; self.oc += 1
            n = "-" if neg else ""
            k(f"v_cvt_pk_bf16_f32 v{o}, v{x0}, {n}v{x0+1}\nv_cvt_pk_bf16_f32 v{o+1}, v{x1}, {n}v{x1+1}")
            k(f"ds_write_b64 v{vTW}, v[{o}:{o+1}] offset:{544*row}")
        self.cpow_multi([(E8[n], E8[n]+1, AR[n], AI[n], fl(8.0), T[n], T[n]+1) for n in range(2)] +
                        [(E16[n], E16[n]+1, AR[n], AI[n], fl(16.0), T[2+n], T[2+n]+1) for n in range(2)])
        k(f"v_mov_b32 v{OUT[3]}, 0x3f80\nv_mov_b32 v{OUT[3]+1}, 0x3f80\nds_write_b64 v{vTW}, v[{OUT[3]}:{OUT[3]+1}]")
        entry(1, E8[0], E8[1], True); entry(2, E16[0], E16[1], True)
        pa, pb = E8, E16
        for j in range(3, 16, 2):
            items = [(LA[n], pa[n], E16[n], T[n]) for n in range(2)]
            if j + 1 < 16: items += [(LBb[n], pb[n], E16[n], T[2+n]) for n in range(2)]
            self.cmul_multi(items)
            pa, pb = LA, LBb
            entry(j, LA[0], LA[1], True)
            if j + 1 < 16: entry(j + 1, LBb[0], LBb[1], True)
        for ks in range(8): k(f"ds_read_b128 {v(LOF+4*ks,4)}, v{vFR} offset:{64*ks}")
        self.stamp(8)
        self.cpow_multi([(E1[n], E1[n]+1, AR[n], AI[n], "1.0", T[n], T[n]+1) for n in range(2)] +
                        [(W[n], W[n]+1, AR[n], AI[n], fl(128.0), T[2+n], T[2+n]+1) for n in range(2)])
        k(f"""
        v_add_f32 v8, v8, v8
        v_lshlrev_b32 v{G[0][0]}, 16, v6
        v_lshlrev_b32 v{G[0][0]+1}, 16, v7
        v_and_b32 v{G[0][1]}, 0xffff0000, v6
        v_and_b32 v{G[0][1]+1}, 0xffff0000, v7
        v_mul_f32 v{G[0][0]}, v{G[0][0]}, v8
        v_mul_f32 v{G[0][0]+1}, v{G[0][0]+1}, v8
        v_mul_f32 v{G[0][1]}, v{G[0][1]}, v8
        v_mul_f32 v{G[0][1]+1}, v{G[0][1]+1}, v8
        """)
        self.cmul_multi([(LA[n], E1[n], E1[n], T[n]) for n in range(2)] + [(G[1][n], G[0][n], E1[n], T[2+n]) for n in range(2)]
                        + [(G[8][n], G[0][n], E8[n], T[4+n]) for n in range(2)])
        entry(0, G[0][0], G[0][1], False); entry(1, G[1][0], G[1][1], False)
        for c in range(2, 8, 2):
            self.cmul_multi([(G[c+i][n], G[c+i-2][n], LA[n], T[2*i+n]) for i in range(2) for n in range(2)])
            entry(c, G[c][0], G[c][1], False); entry(c+1, G[c+1][0], G[c+1][1], False)
        def mulW(cs, Wp=W):
            self.cmul_multi([(G[c][n], G[c][n], Wp[n], T[(2*i+n) % 10]) for i, c in enumerate(cs) for n in range(2)])
        for cs in ([0, 1, 2], [3, 4, 5], [6, 7, 8]):
            mulW(cs)
            for c in cs:
                if c < 8: entry(8 + c, G[c][0], G[c][1], False)
        def kgen(tile, addr, cinit):
            for ks in range(8): k(f"ds_read_b128 {v(HF+4*ks,4)}, v{addr} offset:{64*ks}")
            return [f"v_mfma_f32_16x16x32_bf16 {v(DT[tile],4)}, {v(HF+4*ks,4)}, {v(LOF+4*ks,4)}, {cinit if ks == 0 else v(DT[tile],4)}" for ks in range(8)]
        k(f"v_lshlrev_b32 v9, 16, v9\nv_cmp_eq_u32 vcc, 0, v1\nv_mov_b32 v{DT[0]+1}, 0\nv_mov_b32 v{DT[0]+2}, 0\nv_cndmask_b32 v{DT[0]}, 0, v9, vcc\nv_mov_b32 v{DT[0]+3}, 0")
        mf = kgen(0, vFR, v(DT[0], 4))
        ev = [0, 2, 4, 6, 8]
        mulW(ev)
        for m in mf: k(m)
        for i, c in enumerate(ev): entry(i, G[c][0], G[c][1], False)
        mulW(ev)
        for i, c in enumerate(ev): entry(5 + i, G[c][0], G[c][1], False)
        mf = kgen(1, vFR1, "0")
        self.cmul_multi([(E1[n], W[n], W[n], T[n]) for n in range(2)] + [(G[c][n], G[c][n], W[n], T[2+2*i+n]) for i, c in enumerate((4, 8)) for n in range(2)])
        for m in mf: k(m)
        entry(0, G[4][0], G[4][1], False); entry(1, G[8][0], G[8][1], False)
        for h in range(1, 4):
            if h == 3:
                self.cmul_multi([(G[4][n], G[4][n], W[n], T[n]) for n in range(2)] + [(G[7][n], G[8][n], W[n], T[2+n]) for n in range(2)])
                entry(6, G[4][0], G[4][1], False); entry(7, G[7][0], G[7][1], False)
            else:
                mulW([4, 8])
                entry(2*h, G[4][0], G[4][1], False); entry(2*h+1, G[8][0], G[8][1], False)
        for h in range(0, 8, 2):
            mulW([8, 7], E1)
            entry(8 + h, G[8][0], G[8][1], False); entry(9 + h, G[7][0], G[7][1], False)
        mf = kgen(2, vFR, "0")
        if not self.gather_early: gather()
        k(f"""
        v_lshrrev_b32 v61, 1, v3
        v_lshlrev_b32 v61, 8, v61
        v_lshl_add_u32 v61, v2, 4, v61
        v_and_b32 v62, 1, v3
        v_lshl_add_u32 v61, v62, 3, v61
        s_add_u32 s51, s70, 568
        v_sub_u32 v61, s51, v61             ; vKW
        v_mov_b32 v62, s70                  ; vKB
        """)
        for m in mf: k(m)
        for j in (0, 1):
            d = DT[j]; off = 512 if j == 0 else 0
            k(f"""
            v_cvt_pk_bf16_f32 v64, v{d+3}, v{d+2}
            v_cvt_pk_bf16_f32 v65, v{d+1}, v{d}
            v_cvt_pk_bf16_f32 v66, v{d+2}, v{d+1}
            ds_write_b64 v61, v[64:65] offset:{off}
            ds_write_b16 v61, v64 offset:{off+1214}
            ds_write_b32 v61, v66 offset:{off+1216}
            ds_write_b16_d16_hi v61, v65 offset:{off+1220}
            """.replace("v64", f"v{64+4*j}").replace("v65", f"v{65+4*j}").replace("v66", f"v{66+4*j}").replace("v[64:65]", f"v[{64+4*j}:{65+4*j}]"))
        d = DT[1]
        k(f"""
        v_cvt_pk_bf16_f32 v72, v{d+3}, v{d+3}
        s_mov_b32 exec_lo, 0
        s_mov_b32 exec_hi, 0x80000000
        ds_write_b32 v62, v72 offset:60
        ds_write_b16 v62, v72 offset:58
        ds_write_b32 v62, v72 offset:1272
        ds_write_b16 v62, v72 offset:1276
        s_mov_b64 exec, -1
        """)
        d = DT[2]
        k(f"""
        v_lshrrev_b32 v74, 1, v2
        v_and_b32 v75, 1, v2
        v_lshlrev_b32 v76, 6, v3            ; 64*g
        v_lshl_add_u32 v76, v74, 2, v76     ; 64g + 4*(lo>>1)
        v_lshlrev_b32 v77, 8, v75
        v_sub_u32 v77, v77, v76
        s_add_u32 s51, s70, {2368 + 188 - 32}
        v_add_u32 v77, s51, v77
        v_lshlrev_b32 v76, 7, v3            ; 128*g
        v_lshl_add_u32 v76, v74, 2, v76
        v_lshlrev_b32 v78, 1, v75
        v_sub_u32 v78, v78, v76
        s_add_u32 s51, s70, {2368 + 512 + 252 + 256 - 96}
        v_add_u32 v78, s51, v78
        v_cvt_pk_bf16_f32 v74, v{d}, v{d+1}
        v_cvt_pk_bf16_f32 v75, v{d+2}, v{d+3}
        s_mov_b32 exec_hi, 0
        ds_write_b32 v77, v74 offset:32
        ds_write_b32 v77, v75
        s_mov_b32 exec_hi, -1
        s_mov_b32 exec_lo, 0
        ds_write_b16 v78, v74 offset:96
        ds_write_b16_d16_hi v78, v74 offset:64
        ds_write_b16 v78, v75 offset:32
        ds_write_b16_d16_hi v78, v75
        s_mov_b32 exec_lo, -1
        """)
        self.stamp(2)
        ACC, KF, K23, ZT, ZP, UR = 56, 88, 156, 196, 220, 232
        k(f"""
        v_lshlrev_b32 v4, 3, v3
        v_sub_u32 v4, v4, v2
        v_add_u32 v4, 15, v4                ; 15 - r + 8g
        v_lshlrev_b32 v4, 1, v4
        v_and_b32 v5, 1, v2
        v_cmp_eq_u32 vcc, 0, v5
        v_mov_b32 v5, 1214
        v_add_u32 v4, s70, v4
        v_cndmask_b32 v5, 0, v5, vcc
        v_add_u32 v4, v4, v5
        v_add_u32 v5, 1024, v4              ; s=0
        v_lshlrev_b32 v6, 2, v3
        v_sub_u32 v6, v6, v2
        v_add_u32 v6, 15, v6
        s_add_u32 s51, s70, 2368
        v_lshl_add_u32 v6, v6, 2, s51       ; P base
        v_lshlrev_b32 v7, 5, v2
        v_lshl_add_u32 v7, v3, 4, v7
        s_add_u32 s51, s69, 32
        v_add_u32 v7, s51, v7
        ds_read_u16 v8, v62 offset:{2368 + 256 + 4*16 + 2}
        """)
        for s_ in range(17):
            a_, o = (5, 0) if s_ == 0 else (4, 16*(16 - s_))
            k(f"ds_read2_b32 {v(KF+4*s_,2)}, v{a_} offset0:{o} offset1:{o+1}\nds_read2_b32 {v(KF+4*s_+2,2)}, v{a_} offset0:{o+2} offset1:{o+3}")
        k2t = {}
        idx = 0
        for D_ in (2, 3, 4):
            for pr in range(2):
                k2t[(2, D_, pr)] = (K23 + 4*idx, 64*pr + 64 - 16*D_); idx += 1
        for D_ in (4, 5, 6, 7):
            k2t[(3, D_, 0)] = (K23 + 4*idx, 128 + 112 - 16*D_); idx += 1
        for r_, o in k2t.values():
            k(f"ds_read2_b32 {v(r_,2)}, v6 offset0:{o} offset1:{o+1}\nds_read2_b32 {v(r_+2,2)}, v6 offset0:{o+2} offset1:{o+3}")
        k("v_lshl_or_b32 v8, v8, 16, v8")
        for i in range(4): k(f"v_and_b32 v{52+i}, v{52+i}, v8")
        k(f"s_mov_b32 s71, 0x05040100\ns_mov_b32 s72, 0x07060302\nv_lshlrev_b32 v9, 2, v0")
        for kk in range(4):
            k(f"s_lshl_b32 s51, s{52+kk}, 10\ns_add_u32 s51, s51, {UB0+512}\nv_add_u32 v26, s51, v9")
            r0, r1 = 10 + 4*kk, 12 + 4*kk
            t = ZT + 4*kk
            k(f"""
            v_perm_b32 v{t}, v{r1}, v{r0}, s71
            v_perm_b32 v{t+1}, v{r1}, v{r0}, s72
            v_perm_b32 v{t+2}, v{r1+1}, v{r0+1}, s71
            v_perm_b32 v{t+3}, v{r1+1}, v{r0+1}, s72
            ds_write_b32 v26, v{t}
            ds_write_b32 v26, v{t+1} offset:{UW}
            ds_write_b32 v26, v{t+2} offset:{2*UW}
            ds_write_b32 v26, v{t+3} offset:{3*UW}
            """)
        k.wait_lg(); k("s_barrier")
        self.stamp(3)
        if self.skipA == 2: k.wait_all(); k('s_branch L_A_flag')
        ring = [UR + 4*i for i in range(6)] + [12, 16, 20]
        loads = []
        for j in range(-7, 57):
            loads.append(("u", j))
            if j % 8 == 0 and 0 <= j // 8 <= 5: loads.append(("c", j // 8))
        reg = {}
        nl = [0]
        def issue_load():
            if nl[0] >= len(loads): return
            key = loads[nl[0]]; r_ = ring[nl[0] % len(ring)]; reg[key] = r_; nl[0] += 1
            off = 64*(key[1] + 7) if key[0] == "u" else 64*(8*key[1] + 7) - 16
            k(f"ds_read_b128 {v(r_,4)}, v7 offset:{off}")
        PD = len(ring) - 2
        for _ in range(PD): issue_load()
        first = set()
        def acc(B, a_, b_):
            c = v(ACC+4*B, 4) if B in first else "0"
            first.add(B)
            k(f"v_mfma_f32_16x16x32_bf16 {v(ACC+4*B,4)}, {v(a_,4)}, {v(b_,4)}, {c}")
        BAND = 28
        pend = []
        def tick():
            for p in pend: p[0] -= 1
            while pend and pend[0][0] <= 0:
                pend.pop(0)[1]()
        for key in loads:
            issue_load()
            r_ = reg[key]
            if key[0] == "u":
                j = key[1]
                if j % 8 == 0 and 0 <= j // 8 <= 5:
                    Bp = j // 8
                    for ph in (0, 1, 2) + ((4,) if Bp <= 3 else ()):
                        k(f"v_mfma_f32_16x16x32_bf16 {v(ZT+4*ph,4)}, {v(r_,4)}, {v(BAND+4*ph,4)}, 0")
                    if Bp <= 3: acc(Bp + 4, 52, r_)
                for B in range(8):
                    if 0 <= 8*B - j <= 16: acc(B, KF + 4*(8*B - j), r_)
                tick()
            else:
                Bp = key[1]
                for ph in (3,) + ((5,) if Bp <= 3 else ()):
                    k(f"v_mfma_f32_16x16x32_bf16 {v(ZT+4*ph,4)}, {v(r_,4)}, {v(BAND+4*ph,4)}, 0")
                def mk_cvt(pr):
                    def f():
                        for i in range(4): k(f"v_cvt_pk_bf16_f32 v{ZP+4*pr+i}, v{ZT+8*pr+i}, v{ZT+8*pr+4+i}")
                    return f
                def mk_s2(Bp, pr):
                    def f():
                        if pr < 2:
                            for D_ in (2, 3, 4):
                                if Bp + D_ <= 7: acc(Bp + D_, ZP + 4*pr, k2t[(2, D_, pr)][0])
                        else:
                            for D_ in (4, 5, 6, 7):
                                if Bp + D_ <= 7: acc(Bp + D_, ZP + 8, k2t[(3, D_, 0)][0])
                    return f
                pend += [[1, mk_cvt(0)], [3, mk_cvt(1)], [3, mk_s2(Bp, 0)]]
                if Bp <= 3: pend += [[4, mk_cvt(2)]]
                pend += [[5, mk_s2(Bp, 1)]]
                if Bp <= 3: pend += [[6, mk_s2(Bp, 2)]]
        assert not pend
        self.stamp(4)
        k(f"""
        v_and_b32 v4, 1, v3
        v_lshlrev_b32 v4, 9, v4
        v_lshrrev_b32 v5, 2, v2
        v_lshl_add_u32 v4, v5, 7, v4
        v_lshrrev_b32 v5, 1, v3
        v_lshl_add_u32 v4, v5, 6, v4
        v_and_b32 v5, 3, v2
        v_lshl_add_u32 v4, v5, 4, v4
        s_lshl_b32 s51, s50, 12
        s_add_u32 s51, s51, {WS_A}
        v_add_u32 v4, s51, v4
        """)
        for B in range(0, 8, 2):
            q = KF + 2*B
            for i in range(4): k(f"v_cvt_pk_bf16_f32 v{q+i}, v{ACC+4*B+2*i}, v{ACC+4*B+2*i+1}")
            k(f"v_permlane16_swap_b32 v{q}, v{q+2}\nv_permlane16_swap_b32 v{q+1}, v{q+3}")
            k(f"global_store_dwordx4 v4, {v(q,4)}, s[46:47] offset:{512*B} sc1")
        k.raw('L_A_flag:')
        k(f"s_mul_hi_u32 s51, s50, {(1<<32)//96+1}\ns_mov_b32 s52, s56")
        for i in range(1, 6): k(f"s_cmp_eq_u32 s51, {i}\ns_cselect_b32 s52, s{56+i}, s52")
        k(f"s_mul_i32 s52, s52, {LCG_A}\ns_add_u32 s52, s52, {LCG_C}\ns_lshl_b32 s51, s50, 2\ns_add_u32 s51, s51, {WS_AF}\nv_mov_b32 v5, s51\nv_mov_b32 v6, s52")
        k.wait_vm()
        k("s_mov_b64 exec, 1\nglobal_store_dword v5, v6, s[46:47] sc1")
        self.stamp(5)
        self.dump_stamps()
        k("s_endpgm")
        k.raw("L_A_end:")
    def band_data(self):
        wins = [(range(3,6),16), (range(6,11),16), (range(11,14),16), (range(14,19),24), (range(5,12),16), (range(12,21),24), ((3,4),16)]
        out = []
        for ti, (w, c) in enumerate(wins):
            val = 0xFFFF if ti == 6 else 0x3F80
            for l in range(64):
                r, G = l & 15, l >> 4
                e = [val if (r + c - (8*G + i)) in w else 0 for i in range(8)]
                out.append(".long " + ", ".join("0x%08x" % (e[2*i] | (e[2*i+1] << 16)) for i in range(4)))
        return "\n".join(out)
    def build(self):
        k = self.k
        self.prologue()
        if "B" in self.parts:
            from genB import partB
            partB(self)
        else:
            k("s_endpgm")
        k.raw(".p2align 6")
        self.partA()
        k.raw("L_end:\n    s_endpgm")
        k.raw(".fill 256, 4, 0xbf800000")
        hdr = open("gated_mix__ssm_conv_s4d__ssm_conv_s5__prompt.s.ref").read().split("; Override")[0]
        if self.stamps: hdr += f"; bst start {' '.join(self.bst)}\n"
        return (hdr + f"; @launch grid=({NB+NA},1,1) block=(256,1,1) lds=81920\n"
            '.amdgcn_target "amdgcn-amd-amdhsa--gfx950"\n.text\n'
            f".globl {NAME}\n.p2align 8\n.type {NAME},@function\n{NAME}:\n" + k.text() +
            '.section .rodata,"a"\n.p2align 8\nband_tab:\n' + self.band_data() + f"""
.p2align 6
.amdhsa_kernel {NAME}
  .amdhsa_next_free_vgpr 256
  .amdhsa_next_free_sgpr 102
  .amdhsa_accum_offset 256
  .amdhsa_group_segment_fixed_size 0
  .amdhsa_kernarg_size 160
  .amdhsa_user_sgpr_count 2
  .amdhsa_user_sgpr_kernarg_segment_ptr 1
  .amdhsa_system_sgpr_workgroup_id_x 1
.end_amdhsa_kernel
""")
def make(path, stamps=False, parts="AB", **opt):
    g = Gen(stamps, parts)
    g.pfA = 80; g.pfB = 160; g.b0 = 64; g.prioB = 0; g.dbgst = 0; g.clk = 's_memrealtime'; g.cs_dma = (60, 260); g.b2_pre = 4; g.cpf_at = 7; g.b1_split = 6; g.a_at = 6; g.cpf = 1; g.cs_steps = list(range(2, 17)); g.lumps = [(1, 60), (2, 60), (3, 60), (4, 60), (5, 60)]; g.c01_span = 150; g.c23_split = 3; g.gather_early = True; g.nodefer = (); g.hld = 'sc1'; g.hst = 'sc1'; g.bst = ['setup','gemm1','pub','prep','Sarr','flag','Harr','end']; g.skipA = 0; g.b2_early = True
    for a_, b_ in opt.items(): setattr(g, a_, b_)
    t = g.build()
    open(path, "w").write(t)
    return g
if __name__ == "__main__":
    g = make("k.s", stamps=False)
    print("nops", g.k.nops)
```

```python
import sys, struct
sys.path.insert(0, "work")
from kasm import *
from align import align
NAME = "gated_mix__ssm_conv_s4d__ssm_conv_s5__prompt_kernel"
NWG = 256
WS_XI = 0x800
WS_TF, WS_UT = 0x90000, 0xA00000
WS_S, WS_HF, WS_AF, WS_G, WS_H, WS_A, WS_STAMP = 0x1000, 0x40000, 0x60000, 0x70000, 0x100000, 0x600000, 0x900000
WS_SIZE = 0x10000000
import os
_B = int(os.environ.get("WSB", "0"), 0)
WS_XI += _B; WS_TF += _B; WS_UT += _B; WS_S += _B; WS_HF += _B; WS_AF += _B; WS_G += _B; WS_H += _B; WS_A += _B
HBLK = 147456
LOG2E = 1.4426950408889634
INV2PI = 0.15915494309189535
LCG_A, LCG_C = 0x0019660D, 0x3C6EF35F
SPIN = 200000
M16, M32 = "v_mfma_f32_16x16x32_bf16", "v_mfma_f32_32x32x16_bf16"
def fl(x): return "0x%08x" % struct.unpack("<I", struct.pack("<f", x))[0]
XS, WSL, CST, EXE, EXH, AST, IMG = 0, 49152, 98304, 147456, 151552, 151552, 49152
TW, AW, AB0 = 8704, 8704, 69632
UO = [33, 34, 35, 36, 37, 40, 41, 44, 45]

def cmul_multi(e, items):
    for d, x, y, t in items: e(f"v_pk_mul_f32 {v(t,2)}, {v(x,2)}, {v(y,2)} op_sel:[0,0] op_sel_hi:[0,1]")
    for d, x, y, t in items: e(f"v_pk_fma_f32 {v(d,2)}, {v(x,2)}, {v(y,2)}, {v(t,2)} op_sel:[1,1,0] op_sel_hi:[1,0,1] neg_lo:[1,0,0]")
def cmac(e, items):
    for d, x, y, c in items: e(f"v_pk_fma_f32 {v(d,2)}, {v(x,2)}, {v(y,2)}, {v(c,2)} op_sel:[0,0,0] op_sel_hi:[0,1,1]")
    for d, x, y, c in items: e(f"v_pk_fma_f32 {v(d,2)}, {v(x,2)}, {v(y,2)}, {v(d,2)} op_sel:[1,1,0] op_sel_hi:[1,0,1] neg_lo:[1,0,0]")
def cpow_multi(e, items):
    for dre, dim, ar, ai, n, t0, t1 in items: e(f"v_mul_f32 v{t0}, {n}, v{ar}\nv_mul_f32 v{t1}, {n}, v{ai}")
    for dre, dim, ar, ai, n, t0, t1 in items: e(f"v_exp_f32 v{t0}, v{t0}\nv_fract_f32 v{t1}, v{t1}")
    for dre, dim, ar, ai, n, t0, t1 in items: e(f"v_cos_f32 v{dre}, v{t1}\nv_sin_f32 v{dim}, v{t1}")
    for dre, dim, ar, ai, n, t0, t1 in items: e(f"v_mul_f32 v{dre}, v{dre}, v{t0}\nv_mul_f32 v{dim}, v{dim}, v{t0}")
def pk_bc(e, d, a, b, bsel, c=None, neg=False):
    if c is None:
        e(f"v_pk_mul_f32 {v(d,2)}, {v(b,2)}, {v(a,2)} op_sel:[{bsel},0] op_sel_hi:[{bsel},1]")
    else:
        n = " neg_lo:[1,0,0] neg_hi:[1,0,0]" if neg else ""
        e(f"v_pk_fma_f32 {v(d,2)}, {v(b,2)}, {v(a,2)}, {v(c,2)} op_sel:[{bsel},0,0] op_sel_hi:[{bsel},1,1]{n}")
def smul(e, dr, di, ar, ai, br, bi, cr=None, ci=None):
    if cr is None: e(f"v_mul_f32 v{dr}, v{ar}, v{br}\nv_mul_f32 v{di}, v{ar}, v{bi}")
    else: e(f"v_fma_f32 v{dr}, v{ar}, v{br}, v{cr}\nv_fma_f32 v{di}, v{ar}, v{bi}, v{ci}")
    e(f"v_fma_f32 v{dr}, -v{ai}, v{bi}, v{dr}\nv_fma_f32 v{di}, v{ai}, v{br}, v{di}")
def offsets(e, arr):
    for c in range(1, 9): e(f"s_add_u32 s{arr[c]}, s{arr[c-1]}, 128\ns_cmp_eq_u32 s{arr[c]}, 1152\ns_cselect_b32 s{arr[c]}, 0, s{arr[c]}")
def mod9(e, r, t): e(f"s_mul_hi_u32 s{t}, s{r}, 0x1C71C71D\ns_mul_i32 s{t}, s{t}, 9\ns_sub_u32 s{r}, s{r}, s{t}")

class Gen:
    def __init__(self):
        self.k = K()
    def run(self, r):
        for it in r.items: play(self.k, it)
    def st(self, name):
        if self.stamps and name in self.bst:
            i = 1 + self.bst.index(name)
            self.k.raw(f"    {self.clk} s[{80+2*i}:{81+2*i}]")
            self.k.smem |= {("s", 80+2*i), ("s", 81+2*i)}
            self.k.wait_lg()
    def fin(self):
        k = self.k
        if self.stamps:
            k.raw("    s_waitcnt vmcnt(0) lgkmcnt(0)"); k.vm = []; k.lg = []
            self.st("end")
            if self.amp:
                self.namp = getattr(self, "namp", 0) + 1
                k.raw(f"""    s_cmp_eq_u32 s82, 0
    s_cbranch_scc1 L_amp_d{self.namp}
    s_sub_u32 s82, s82, s80
    s_min_u32 s82, s82, 5000
    s_mul_i32 s82, s82, {self.amp}
L_amp{self.namp}:
    s_sleep 4
    s_memrealtime s[84:85]
    s_waitcnt lgkmcnt(0)
    s_sub_u32 s84, s84, s80
    s_cmp_lt_u32 s84, s82
    s_cbranch_scc1 L_amp{self.namp}
L_amp_d{self.namp}:
    s_endpgm""")
                return
            k("s_mov_b64 exec, 1")
            for i in range(10): k(f"v_mov_b32 v{8+i}, s{80+2*i}")
            k("s_getreg_b32 s3, hwreg(HW_REG_XCC_ID)\nv_mov_b32 v18, s3\ns_getreg_b32 s3, hwreg(HW_REG_HW_ID)\nv_mov_b32 v19, s3")
            k(f"s_lshl_b32 s3, s2, 3\ns_add_u32 s3, s3, s48\ns_lshl_b32 s3, s3, 6\ns_add_u32 s3, s3, {WS_STAMP}\nv_mov_b32 v4, s3")
            for i in range(3): k(f"global_store_dwordx4 v4, v[{8+4*i}:{11+4*i}], s[46:47] offset:{16*i}")
        k("s_endpgm")
    def enter(self, label, karg=True):
        k = self.k
        k.reset()
        if karg: k.smem = {("s", i) for i in range(8, 48)}
        k.raw(".p2align 3\n" + label + ":")
    def poll(self, label, issue, check, first_done=False):
        k = self.k
        k(f"s_mov_b32 s58, {SPIN}")
        k.out.append(label + ":")
        issue(); k("s_sub_u32 s58, s58, 1"); k.wait_all()
        k(f"s_cbranch_scc1 {label}_done"); check(); k(f"s_cbranch_vccnz {label}")
        k.out.append(label + "_done:")
    def pub_xcc(self, t, lab):
        k = self.k
        k(f"s_getreg_b32 s4, hwreg(HW_REG_XCC_ID, 0, 4)\nv_mov_b32 v{t}, s55\nv_mov_b32 v{t+1}, s4\ns_cmp_lg_u32 s48, 0\ns_cbranch_scc1 {lab}")
        k(f"s_mul_i32 s4, s56, 6\ns_add_u32 s4, s4, s52\ns_lshl_b32 s4, s4, 3\ns_add_u32 s4, s4, {WS_XI}\nv_mov_b32 v{t+2}, s4\ns_mov_b64 exec, 1\nglobal_store_dwordx2 v{t+2}, v[{t}:{t+1}], s[46:47] sc1\ns_mov_b64 exec, -1")
        k.vm.pop()
        k.raw(lab + ":")
    def prologue(self):
        k = self.k
        if self.stamps:
            k.raw(f"    {self.clk} s[80:81]")
            for i in range(82, 100, 2): k.raw(f"    s_mov_b32 s{i}, 0")
        k(f"""
        s_load_dwordx16 s[8:23], s[0:1], 0
        s_load_dwordx16 s[24:39], s[0:1], 64
        s_load_dwordx8 s[40:47], s[0:1], 128
        s_cmp_ge_u32 s2, {NWG}
        s_cbranch_scc1 L_end
        v_lshrrev_b32 v4, 6, v0
        v_and_b32 v1, 63, v0
        v_readfirstlane_b32 s48, v4
        s_lshr_b32 s49, s2, 3            ; n
        s_and_b32 s50, s2, 7
        s_add_u32 s49, s49, {self.nshift}
        s_and_b32 s49, s49, 31
        v_and_b32 v2, 15, v0
        v_lshrrev_b32 v3, 4, v1
        """)
        if self.pf:
            k(f"s_getpc_b64 s[4:5]\ns_lshl_b32 s6, s49, 4\nv_lshrrev_b32 v252, 5, v0\nv_add_u32 v252, s6, v252\nv_min_u32 v252, {self.pf-1}, v252\nv_lshlrev_b32 v252, 7, v252\nv_mov_b32 v253, s5\nv_add_co_u32 v252, vcc, s4, v252\nv_addc_co_u32 v253, vcc, 0, v253, vcc\nglobal_load_dword v7, v[252:253], off")
        k(f"""
        s_mul_hi_u32 s4, s49, 0x2AAAAAAB ; n/6
        s_mul_i32 s5, s4, 6
        s_sub_u32 s52, s49, s5           ; dj
        s_and_b32 s51, s4, 1             ; th
        s_lshl_b32 s56, s50, 2
        s_add_u32 s56, s56, s4           ; tb
        s_and_b32 s5, s49, 1
        s_lshl_b32 s53, s50, 1
        s_add_u32 s53, s53, s5           ; i
        s_lshr_b32 s54, s49, 1           ; j
        s_mul_i32 s57, s52, 3
        s_lshr_b32 s57, s57, 1
        s_mul_i32 s4, s4, {self.rot2i}
        s_add_u32 s57, s57, s4
        s_mul_i32 s59, s5, {self.rot1i}
        s_mul_i32 s4, s54, {self.rot1j}
        s_add_u32 s59, s59, s4
        s_mul_i32 s4, s50, {self.rot1x}
        s_add_u32 s59, s59, s4
        """)
        mod9(k, 57, 4); mod9(k, 59, 4)
        k(f"""
        s_lshl_b32 s57, s57, 7
        s_lshl_b32 s59, s59, 7
        s_mul_i32 s60, s50, 72
        s_mul_i32 s4, s49, 6
        s_sub_u32 s4, s4, 144
        s_lshl_b32 s5, s49, 2
        s_sub_u32 s5, s5, 24
        s_cmp_ge_u32 s49, 24
        s_cselect_b32 s4, s4, s5
        s_add_u32 s60, s60, s4           ; d0 (A roles)
        s_cmp_lt_u32 s48, 4
        s_cbranch_scc1 L_LO
        """)
        self.pvm = list(k.vm)
    def band_data(self):
        wins = [(range(3,6),16), (range(6,11),16), (range(11,14),16), (range(14,19),24), (range(5,12),16), (range(12,21),24), ((3,4),16)]
        out = []
        for ti, (w, c) in enumerate(wins):
            val = 0xFFFF if ti == 6 else 0x3F80
            for l in range(64):
                r, G = l & 15, l >> 4
                e = [val if (r + c - (8*G + i)) in w else 0 for i in range(8)]
                out.append(".long " + ", ".join("0x%08x" % (e[2*i] | (e[2*i+1] << 16)) for i in range(4)))
        return "\n".join(out)
    def build(self):
        import g2a, g2b
        k = self.k
        self.prologue()
        g2b.loader1(self)
        self.enter("L_LO"); k.vm = list(self.pvm)
        k("s_cmp_ge_u32 s49, 18\ns_cbranch_scc1 L_A")
        g2b.compute1(self)
        g2b.loader2(self)
        g2a.partA(self)

        k.raw("L_end:\n    s_endpgm")
        k.raw(".fill 64, 4, 0xbf800000")
        hdr = open("gated_mix__ssm_conv_s4d__ssm_conv_s5__prompt.s.ref").read().split("; Override")[0]
        if self.stamps: hdr += f"; bst start {' '.join(self.bst)}\n"
        return (hdr + f"; @launch grid=({NWG},1,1) block=(512,1,1) lds=163840\n"
            '.amdgcn_target "amdgcn-amd-amdhsa--gfx950"\n.text\n'
            f".globl {NAME}\n.p2align 8\n.type {NAME},@function\n{NAME}:\n" + (align(k.text(), self.minrun) if self.align else k.text()) +
            '.section .rodata,"a"\n.p2align 8\nband_tab:\n' + self.band_data() + f"""
.p2align 6
.amdhsa_kernel {NAME}
  .amdhsa_next_free_vgpr 256
  .amdhsa_next_free_sgpr 102
  .amdhsa_accum_offset 256
  .amdhsa_group_segment_fixed_size 0
  .amdhsa_kernarg_size 160
  .amdhsa_user_sgpr_count 2
  .amdhsa_user_sgpr_kernarg_segment_ptr 1
  .amdhsa_system_sgpr_workgroup_id_x 1
.end_amdhsa_kernel
""")
DEF = dict(amp=0, pf_pre=1, pf_depth=1, cpf=4, hpre=1, hld='sc1', hst='', rot1i=4, rot1j=1, rot1x=0, fast=1, dbg_noC=0, p_span=(0.75, 0.95), r3pf=2, pdel=0, align=1, minrun=6, dbg_now=0, dbg_noswz=0, dbg_nomf=0, dbg_free=0, prioL=0, rd_span=(1, 3), nshift=0, nogather=0, stamps=False, clk="s_memrealtime", bst=[], pf=216, rot2i=0, wbatch=2, g_span=(0.02, 0.7), cthr=3, hdist=3, a_at=5, skipA=0)
def make(path, **opt):
    g = Gen()
    for a_, b_ in {**DEF, **opt}.items(): setattr(g, a_, b_)
    t = g.build()
    open(path, "w").write(t)
    return g
if __name__ == "__main__":
    g = make("k2.s")
    print("nops", g.k.nops)
```

```python
from g2 import *
import g2b
UK0 = 34816
def partA(self):
    k = self.k
    self.enter("L_A"); k.vm = list(self.pvm)
    k(f"""
    s_add_u32 s61, s60, s48          ; d
    s_and_b32 s5, s48, 1
    s_add_u32 s5, s5, 4
    s_cmp_ge_u32 s49, 24
    s_cselect_b32 s64, s5, s48
    s_add_u32 s65, s60, s64          ; second d
    s_lshl_b32 s62, s61, 8
    v_lshl_add_u32 v26, v1, 2, s62
    s_lshl_b32 s62, s61, 1
    v_mov_b32 v27, s62
    s_lshl_b32 s62, s65, 8
    v_lshl_add_u32 v24, v1, 2, s62
    s_lshl_b32 s62, s65, 1
    v_mov_b32 v25, s62
    v_mov_b32 v60, 0
    v_mov_b32 v61, 0
    global_load_dword v10, v26, s[10:11]
    global_load_dword v11, v26, s[12:13]
    global_load_ushort v14, v27, s[18:19]
    global_load_dword v12, v26, s[14:15]
    global_load_dword v13, v26, s[16:17]
    global_load_ushort v15, v27, s[20:21]
    global_load_dword v22, v60, s[46:47]
    """)
    self.st("karg")
    k(f"""
    s_lshl_b32 s4, s48, 3
    s_add_u32 s4, s4, {EXE}
    v_mov_b32 v4, s4
    ds_write_b64 v4, v[60:61]
    global_load_dword v16, v24, s[10:11]
    global_load_dword v17, v24, s[12:13]
    global_load_ushort v20, v25, s[18:19]
    global_load_dword v18, v24, s[14:15]
    global_load_dword v19, v24, s[16:17]
    global_load_ushort v21, v25, s[20:21]
    """)
    k.raw("    s_getpc_b64 s[4:5]\n    s_add_u32 s4, s4, band_tab@rel32@lo+4\n    s_addc_u32 s5, s5, band_tab@rel32@hi+12")
    k(f"v_lshlrev_b32 v56, 4, v1\nv_add_u32 v56, 3072, v56\nv_mov_b32 v57, s5\nv_add_co_u32 v56, vcc, s4, v56\nv_addc_co_u32 v57, vcc, 0, v57, vcc")
    k.wait_lg(); k("s_barrier")
    for i in range(7): k(f"global_load_dwordx4 v[{28+4*i}:{31+4*i}], v[56:57], off offset:{1024*i-3072}")
    k(f"""
    s_mov_b32 s76, s46
    s_mov_b32 s77, s47
    s_mov_b32 s78, {WS_SIZE}
    s_mov_b32 s79, 0x20000
    s_mul_i32 s68, s48, {TW}
    s_add_u32 s69, s68, {UK0}
    s_add_u32 s70, s69, 4608            ; K base
    s_mul_i32 s66, s64, {AW}
    s_add_u32 s66, s66, {UK0}
    s_mov_b32 m0, s68
    s_mov_b32 s71, {WS_AF + 4096}
    s_cmp_ge_u32 s49, 24
    s_cselect_b32 s63, 1, 0
    s_cmp_lt_u32 s48, 2
    s_cselect_b32 s67, 0, s63
    s_cselect_b32 s63, s63, 0
    v_mul_u32_u24 v59, 544, v2
    v_lshl_add_u32 v59, v3, 4, v59
    v_add_u32 v59, s68, v59
    v_and_b32 v58, 7, v2
    v_lshlrev_b32 v58, 2, v58
    s_mov_b32 s62, 0x43222100
    v_lshrrev_b32 v58, v58, s62
    v_and_b32 v58, 15, v58
    v_lshrrev_b32 v62, 3, v2
    v_mad_u32_u24 v58, v62, 5, v58
    v_mul_u32_u24 v58, 544, v58
    v_lshl_add_u32 v58, v3, 4, v58
    v_add_u32 v58, s68, v58
    v_lshrrev_b32 v5, 1, v3
    v_lshlrev_b32 v5, 8, v5
    v_lshl_add_u32 v5, v2, 4, v5
    v_and_b32 v6, 1, v3
    v_lshl_add_u32 v5, v6, 3, v5
    v_sub_u32 v5, 568, v5
    v_lshrrev_b32 v6, 1, v2
    v_and_b32 v8, 1, v2
    v_lshlrev_b32 v9, 6, v3
    v_lshl_add_u32 v9, v6, 2, v9
    v_lshlrev_b32 v23, 8, v8
    v_sub_u32 v23, v23, v9
    v_add_u32 v23, {2368 + 188 - 32}, v23
    v_lshlrev_b32 v9, 7, v3
    v_lshl_add_u32 v9, v6, 2, v9
    v_lshlrev_b32 v8, 1, v8
    v_sub_u32 v8, v8, v9
    v_add_u32 v8, {2368 + 512 + 252 + 256 - 96}, v8
    v_cmp_gt_u32 vcc, 2, v3
    v_cndmask_b32 v6, v8, v23, vcc
    v_readfirstlane_b32 s55, v22
    s_mul_i32 s55, s55, {LCG_A}
    s_add_u32 s55, s55, {LCG_C}
    s_cmp_ge_u32 s49, 24
    s_cbranch_scc1 L_xp2
    """)
    self.pub_xcc(244, "L_xp2")
    vFR, vFR1 = 59, 58
    pend_vm = list(k.vm)
    k.raw(".p2align 3\nL_tab:"); k.hist = []
    k(f"""
    v_mov_b32 v60, 0
    v_mov_b32 v61, 0
    v_mov_b32 v62, 0
    v_mov_b32 v63, 0
    v_lshl_add_u32 v8, v1, 4, s70
    v_lshlrev_b32 v14, 16, v14
    v_mul_f32 v14, {fl(LOG2E)}, v14
    v_lshlrev_b32 v64, 16, v10
    v_and_b32 v66, 0xffff0000, v10
    ds_write_b128 v8, v[60:63]
    ds_write_b128 v8, v[60:63] offset:1024
    ds_write_b128 v8, v[60:63] offset:2048
    ds_write_b128 v8, v[60:63] offset:3072
    v_exp_f32 v14, v14
    v_mul_f32 v64, {fl(LOG2E)}, v64
    v_mul_f32 v66, {fl(LOG2E)}, v66
    v_exp_f32 v64, v64
    v_exp_f32 v66, v66
    v_cvt_pk_bf16_f32 v14, v14, v14
    v_lshlrev_b32 v65, 16, v11
    v_and_b32 v67, 0xffff0000, v11
    v_cvt_pk_bf16_f32 v10, v64, v66
    v_and_b32 v14, 0xffff0000, v14
    v_lshlrev_b32 v64, 16, v10
    v_and_b32 v66, 0xffff0000, v10
    v_mul_f32 v64, v64, v14
    v_mul_f32 v66, v66, v14
    v_mul_f32 v65, v65, v14
    v_mul_f32 v67, v67, v14
    v_mul_f32 v64, {fl(-LOG2E)}, v64
    v_mul_f32 v66, {fl(-LOG2E)}, v66
    v_mul_f32 v65, {fl(INV2PI)}, v65
    v_mul_f32 v67, {fl(INV2PI)}, v67
    """)
    self.st("par")
    AR, AI = (64, 66), (65, 67)
    E8, E16, E1, W = (68, 70), (72, 74), (76, 78), (80, 82)
    T = list(range(84, 104, 2))
    G = [[104 + 4*c, 106 + 4*c] for c in range(9)]
    LA, LBb = (140, 142), (144, 146)
    OUT = [148, 150, 152, 154, 232, 234, 236, 238]
    LOF, HF, DT = 156, 188, [220, 224, 228]
    oc = [0]; pendw = []
    def flushw():
        for w_ in pendw: k(w_)
        pendw.clear()
    def entry(row, x0, x1, neg):
        o = OUT[oc[0] % 8]; oc[0] += 1
        n = "-" if neg else ""
        k(f"v_cvt_pk_bf16_f32 v{o}, v{x0}, {n}v{x0+1}\nv_cvt_pk_bf16_f32 v{o+1}, v{x1}, {n}v{x1+1}")
        pendw.append(f"ds_write_addtid_b32 v{o} offset:{544*row}\nds_write_addtid_b32 v{o+1} offset:{544*row+256}")
        if len(pendw) >= self.wbatch: flushw()
    cpow_multi(k, [(E8[n], E8[n]+1, AR[n], AI[n], fl(8.0), T[n], T[n]+1) for n in range(2)] +
                  [(E1[n], E1[n]+1, AR[n], AI[n], "1.0", T[2+n], T[2+n]+1) for n in range(2)] +
                  [(W[n], W[n]+1, AR[n], AI[n], fl(128.0), T[4+n], T[4+n]+1) for n in range(2)])
    cmul_multi(k, [(E16[n], E8[n], E8[n], T[n]) for n in range(2)])
    k(f"v_mov_b32 v{OUT[7]}, 0x3f80"); pendw.append(f"ds_write_addtid_b32 v{OUT[7]}\nds_write_addtid_b32 v{OUT[7]} offset:256")
    entry(1, E8[0], E8[1], True); entry(2, E16[0], E16[1], True)
    pa, pb = E8, E16
    for j in range(3, 16, 2):
        items = [(LA[n], pa[n], E16[n], T[n]) for n in range(2)]
        if j + 1 < 16: items += [(LBb[n], pb[n], E16[n], T[2+n]) for n in range(2)]
        cmul_multi(k, items)
        pa, pb = LA, LBb
        entry(j, LA[0], LA[1], True)
        if j + 1 < 16: entry(j + 1, LBb[0], LBb[1], True)
    flushw()
    for ks in range(8): k(f"ds_read_b128 {v(LOF+4*ks,4)}, v{vFR} offset:{64*ks}")
    k(f"""
    v_add_f32 v14, v14, v14
    v_lshlrev_b32 v{G[0][0]}, 16, v12
    v_lshlrev_b32 v{G[0][0]+1}, 16, v13
    v_and_b32 v{G[0][1]}, 0xffff0000, v12
    v_and_b32 v{G[0][1]+1}, 0xffff0000, v13
    """)
    pk_bc(k, G[0][0], G[0][0], 14, 0); pk_bc(k, G[0][1], G[0][1], 14, 0)
    cmul_multi(k, [(LA[n], E1[n], E1[n], T[n]) for n in range(2)] + [(G[1][n], G[0][n], E1[n], T[2+n]) for n in range(2)]
                    + [(G[8][n], G[0][n], E8[n], T[4+n]) for n in range(2)])
    entry(0, G[0][0], G[0][1], False); entry(1, G[1][0], G[1][1], False)
    for c in range(2, 8, 2):
        cmul_multi(k, [(G[c+i][n], G[c+i-2][n], LA[n], T[2*i+n]) for i in range(2) for n in range(2)])
        entry(c, G[c][0], G[c][1], False); entry(c+1, G[c+1][0], G[c+1][1], False)
    def mulW(cs, Wp=W):
        cmul_multi(k, [(G[c][n], G[c][n], Wp[n], T[(2*i+n) % 10]) for i, c in enumerate(cs) for n in range(2)])
    for cs in ([0, 1, 2], [3, 4, 5], [6, 7, 8]):
        mulW(cs)
        for c in cs:
            if c < 8: entry(8 + c, G[c][0], G[c][1], False)
    def kgen(tile, addr, cinit):
        flushw()
        for ks in range(8): k(f"ds_read_b128 {v(HF+4*ks,4)}, v{addr} offset:{64*ks}")
        return [("i", f"{M16} {v(DT[tile],4)}, {v(HF+4*ks,4)}, {v(LOF+4*ks,4)}, {cinit if ks == 0 else v(DT[tile],4)}", None) for ks in range(8)]
    k(f"v_lshlrev_b32 v15, 16, v15\nv_cmp_eq_u32 vcc, 0, v1\nv_mov_b32 v{DT[0]+1}, 0\nv_mov_b32 v{DT[0]+2}, 0\nv_cndmask_b32 v{DT[0]}, 0, v15, vcc\nv_mov_b32 v{DT[0]+3}, 0")
    def with_mf(mf, fn):
        nonlocal k
        real = k; k = Rec(); fn(); flushw(); items = k.items; k = real
        k.wait_lg()
        weave(k, mf, [(items, 1, len(mf))])
    mf = kgen(0, vFR, v(DT[0], 4))
    ev = [0, 2, 4, 6, 8]
    mulW(ev)
    with_mf(mf, lambda: [entry(i, G[c][0], G[c][1], False) for i, c in enumerate(ev)])
    mulW(ev)
    for i, c in enumerate(ev): entry(5 + i, G[c][0], G[c][1], False)
    mf = kgen(1, vFR1, "0")
    cmul_multi(k, [(E1[n], W[n], W[n], T[n]) for n in range(2)] + [(G[c][n], G[c][n], W[n], T[2+2*i+n]) for i, c in enumerate((4, 8)) for n in range(2)])
    cmul_multi(k, [(G[d_][n], G[c][n], W[n], T[2*i+n]) for i, (d_, c) in enumerate(((3, 4), (7, 8))) for n in range(2)])
    def post(j):
        d = DT[j]; off = 512 if j == 0 else 0; t = 240 + 4*j
        k(f"""
        v_cvt_pk_bf16_f32 v{t}, v{d+3}, v{d+2}
        v_cvt_pk_bf16_f32 v{t+1}, v{d+1}, v{d}
        v_cvt_pk_bf16_f32 v{t+2}, v{d+2}, v{d+1}
        ds_write_b64 v61, v[{t}:{t+1}] offset:{off}
        ds_write_b16 v61, v{t} offset:{off+1214}
        ds_write_b32 v61, v{t+2} offset:{off+1216}
        ds_write_b16_d16_hi v61, v{t+1} offset:{off+1220}
        """)
    k("v_add_u32 v61, s70, v5\nv_mov_b32 v62, s70\nv_add_u32 v63, s70, v6")
    with_mf(mf, lambda: [entry(i, G[c][0], G[c][1], False) for i, c in enumerate((4, 8, 3, 7))])
    mulW([4, 8, 3, 7], E1)
    for i, c in enumerate((4, 8, 3, 7)): entry(4 + i, G[c][0], G[c][1], False)
    for h in range(0, 8, 2):
        mulW([8, 7], E1)
        entry(8 + h, G[8][0], G[8][1], False); entry(9 + h, G[7][0], G[7][1], False)
    mf = kgen(2, vFR, "0")
    self.st("tabs")
    post(0)
    with_mf(mf, lambda: post(1))
    d = DT[1]
    k(f"""
    v_cvt_pk_bf16_f32 v72, v{d+3}, v{d+3}
    s_mov_b32 exec_lo, 0
    s_mov_b32 exec_hi, 0x80000000
    ds_write_b32 v62, v72 offset:60
    ds_write_b16 v62, v72 offset:58
    ds_write_b32 v62, v72 offset:1272
    ds_write_b16 v62, v72 offset:1276
    s_mov_b64 exec, -1
    """)
    d = DT[2]
    k(f"""
    v_cvt_pk_bf16_f32 v74, v{d}, v{d+1}
    v_cvt_pk_bf16_f32 v75, v{d+2}, v{d+3}
    s_mov_b32 exec_hi, 0
    ds_write_b32 v63, v74 offset:32
    ds_write_b32 v63, v75
    s_mov_b32 exec_hi, -1
    s_mov_b32 exec_lo, 0
    ds_write_b16 v63, v74 offset:96
    ds_write_b16_d16_hi v63, v74 offset:64
    ds_write_b16 v63, v75 offset:32
    ds_write_b16_d16_hi v63, v75
    s_mov_b32 exec_lo, -1
    """)
    k.wait_vm()
    k("s_cmp_eq_u32 s63, 0\ns_cbranch_scc1 L_tab_done\ns_cmp_eq_u32 s63, 2\ns_cbranch_scc1 L_tab_sig")
    for i in range(3): k(f"v_mov_b64 {v(10+2*i,2)}, {v(16+2*i,2)}")
    k("s_mov_b32 s63, 2\ns_add_u32 s70, s66, 4608\ns_branch L_tab")
    k.raw("L_tab_sig:")
    k("v_mov_b32 v60, 1\nds_write_b32 v4, v60 offset:4\ns_add_u32 s70, s69, 4608")
    k.raw("L_tab_done:")
    self.st("kgen")
    k(f"""
    v_lshlrev_b32 v10, 3, v3
    v_sub_u32 v10, v10, v2
    v_add_u32 v10, 15, v10
    v_lshlrev_b32 v10, 1, v10
    v_and_b32 v11, 1, v2
    v_cmp_eq_u32 vcc, 0, v11
    v_mov_b32 v11, 1214
    v_lshlrev_b32 v24, 2, v3
    v_cndmask_b32 v11, 0, v11, vcc
    v_add_u32 v10, v10, v11
    v_sub_u32 v24, v24, v2
    v_add_u32 v24, {15 + 2368//4}, v24
    v_lshlrev_b32 v24, 2, v24           ; P offset
    v_lshlrev_b32 v25, 5, v2
    v_lshl_add_u32 v25, v3, 4, v25
    v_add_u32 v25, 32, v25
    v_and_b32 v26, 1, v3
    v_lshlrev_b32 v26, 9, v26
    v_lshrrev_b32 v27, 2, v2
    v_lshl_add_u32 v26, v27, 7, v26
    v_lshrrev_b32 v27, 1, v3
    v_lshl_add_u32 v26, v27, 6, v26
    v_and_b32 v27, 3, v2
    v_lshl_add_u32 v26, v27, 4, v26
    v_and_b32 v27, 3, v1
    v_lshlrev_b32 v27, 3, v27
    v_add_u32 v27, {EXE+32}, v27
    """)
    k.raw(".p2align 3\nL_conv:"); k.hist = []; k.lg = [(set(), None)]
    ACC, KF, K23, ZT, ZP, UR, XT = 56, 88, 156, 196, 220, 232, 12
    self.poll("L_pollU", lambda: k("ds_read_b32 v11, v27"), lambda: k("v_cmp_ne_u32 vcc, 1, v11\ns_nop 1"))
    self.st("U")
    k(f"""
    v_add_u32 v5, s70, v10
    v_add_u32 v6, 1024, v5
    v_add_u32 v8, s70, v24
    v_add_u32 v7, s69, v25
    v_mov_b32 v9, s70
    s_lshl_b32 s62, s61, 12
    s_add_u32 s62, s62, {WS_A}
    """)
    def kf_read(s_):
        a_, o = (6, 0) if s_ == 0 else (5, 16*(16 - s_))
        k(f"ds_read2_b32 {v(KF+4*s_,2)}, v{a_} offset0:{o} offset1:{o+1}\nds_read2_b32 {v(KF+4*s_+2,2)}, v{a_} offset0:{o+2} offset1:{o+3}")
    k2t = {}; idx = 0
    for D_ in (2, 3, 4):
        for pr in range(2):
            k2t[(2, D_, pr)] = (K23 + 4*idx, 64*pr + 64 - 16*D_); idx += 1
    for D_ in (4, 5, 6, 7):
        k2t[(3, D_, 0)] = (K23 + 4*idx, 128 + 112 - 16*D_); idx += 1
    def k2_read(key):
        r_, o = k2t[key]
        k(f"ds_read2_b32 {v(r_,2)}, v8 offset0:{o} offset1:{o+1}\nds_read2_b32 {v(r_+2,2)}, v8 offset0:{o+2} offset1:{o+3}")
    ring = [UR + 4*i for i in range(6)] + [16, 20]
    loads = []
    for j in range(-7, 57):
        loads.append(("u", j))
        if j % 8 == 0 and 0 <= j // 8 <= 5: loads.append(("c", j // 8))
    reg = {}; nl = [0]
    kq = {j: [lambda s_=s_: kf_read(s_) for s_ in ([-j, 8 - j] + ([16] if j == 0 else []))] for j in range(-7, 1)}
    order2 = [(2,2,0), (2,3,0), (2,4,0), (2,2,1), (2,3,1), (2,4,1), (3,4,0), (3,5,0), (3,6,0), (3,7,0)]
    for i, key in enumerate(order2): kq.setdefault(1 + i // 2, []).append(lambda key=key: k2_read(key))
    kq[-3].append(lambda: k(f"ds_read_u16 v11, v9 offset:{2368 + 256 + 4*16 + 2}"))
    def issue_load():
        if nl[0] >= len(loads): return
        key = loads[nl[0]]; r_ = ring[nl[0] % len(ring)]; reg[key] = r_; nl[0] += 1
        off = 64*(key[1] + 7) if key[0] == "u" else 64*(8*key[1] + 7) - 16
        k(f"ds_read_b128 {v(r_,4)}, v7 offset:{off}")
        if key[0] == "u":
            for f in kq.get(key[1], []): f()
    PD0 = 3
    for _ in range(PD0): issue_load()
    first = set()
    def acc(B, a_, b_):
        c = v(ACC+4*B, 4) if B in first else "0"
        first.add(B)
        k(f"{M16} {v(ACC+4*B,4)}, {v(a_,4)}, {v(b_,4)}, {c}")
    BAND = 28
    pend = []
    def tick():
        for p in pend: p[0] -= 1
        while pend and min(p[0] for p in pend) <= 0:
            i = min(range(len(pend)), key=lambda i: pend[i][0]); pend.pop(i)[1]()
    def out_cvt(B):
        for i in range(4): k(f"v_cvt_pk_bf16_f32 v{ACC+4*B+i}, v{ACC+4*B+2*i}, v{ACC+4*B+2*i+1}")
    def out_st(B):
        q = ACC + 4*B
        k(f"v_permlane16_swap_b32 v{q}, v{q+2}\nv_permlane16_swap_b32 v{q+1}, v{q+3}")
        k(f"buffer_store_dwordx4 {v(q,4)}, v26, s[76:79], s62 offen offset:{512*B} sc1")
    done = 0
    for key in loads:
        issue_load(); done += 1
        if 8 < done < 8 + len(ring) - 1 - PD0: issue_load()
        r_ = reg[key]
        if key[0] == "u":
            j = key[1]
            if j == -1:
                k("v_lshl_or_b32 v11, v11, 16, v11")
                for i in range(4): k(f"v_and_b32 v{XT+i}, v{52+i}, v11")
            if j % 8 == 0 and 0 <= j // 8 <= 5:
                Bp = j // 8
                for ph in (0, 1, 2) + ((4,) if Bp <= 3 else ()):
                    k(f"{M16} {v(ZT+4*ph,4)}, {v(r_,4)}, {v(BAND+4*ph,4)}, 0")
                if Bp <= 3: acc(Bp + 4, XT, r_)
            for B in range(8):
                if 0 <= 8*B - j <= 16: acc(B, KF + 4*(8*B - j), r_)
            if j == 12:
                k("s_cmp_lg_u32 s67, 2\ns_cbranch_scc1 L_nofl\nv_mov_b32 v9, s71\nv_mov_b32 v11, s55")
                k.raw("    s_waitcnt vmcnt(0)")
                k("s_mov_b64 exec, 1\nglobal_store_dword v9, v11, s[46:47] sc1\ns_mov_b64 exec, -1"); k.vm.pop()
                k.raw("L_nofl:")
            if j in (8, 24, 40): pend += [[7, lambda B=j//8-1: out_cvt(B)], [8, lambda B=j//8-1: out_st(B)]]
            tick()
        else:
            Bp = key[1]
            for ph in (3,) + ((5,) if Bp <= 3 else ()):
                k(f"{M16} {v(ZT+4*ph,4)}, {v(r_,4)}, {v(BAND+4*ph,4)}, 0")
            def mk_cvt(pr):
                def f():
                    for i in range(4): k(f"v_cvt_pk_bf16_f32 v{ZP+4*pr+i}, v{ZT+8*pr+i}, v{ZT+8*pr+4+i}")
                return f
            def mk_s2(Bp, pr):
                def f():
                    if pr < 2:
                        for D_ in (2, 3, 4):
                            if Bp + D_ <= 7: acc(Bp + D_, ZP + 4*pr, k2t[(2, D_, pr)][0])
                    else:
                        for D_ in (4, 5, 6, 7):
                            if Bp + D_ <= 7: acc(Bp + D_, ZP + 8, k2t[(3, D_, 0)][0])
                return f
            pend += [[1, mk_cvt(0)], [3, mk_cvt(1)], [3, mk_s2(Bp, 0)]]
            if Bp <= 3: pend += [[4, mk_cvt(2)]]
            pend += [[5, mk_s2(Bp, 1)]]
            if Bp <= 3: pend += [[6, mk_s2(Bp, 2)]]
    assert not pend
    self.st("conv")
    k(f"s_lshl_b32 s4, s61, 2\ns_add_u32 s4, s4, {WS_AF}\nv_mov_b32 v6, s4\nv_mov_b32 v22, s55")
    out_cvt(6); out_st(6)
    k("s_cmp_lt_u32 s49, 24\ns_cbranch_scc1 L_A_R2")
    save = list(k.vm)
    k("s_cmp_eq_u32 s67, 1\ns_cbranch_scc0 L_A_last")
    k(f"s_mov_b32 s67, 2\ns_mov_b32 s71, s4\ns_mov_b32 s61, s65\ns_mov_b32 s69, s66\ns_add_u32 s70, s66, 4608\ns_and_b32 s4, s48, 1\ns_lshl_b32 s4, s4, 3\ns_add_u32 s4, s4, {EXE+4}\nv_mov_b32 v27, s4")
    k("s_branch L_conv")
    k.raw("L_A_last:"); k.vm = list(save)
    k.wait_vm()
    k("s_mov_b64 exec, 1\nglobal_store_dword v6, v22, s[46:47] sc1\ns_mov_b64 exec, -1")
    self.st("aend")
    self.fin()
    k.raw("L_A_R2:"); k.vm = list(save)
    k(f"v_mov_b32 v23, 1\nv_subrev_u32 v5, 32, v27\nds_write_b32 v4, v23")
    g2b.p2_setup(self)
    k.wait_vm()
    k("s_mov_b64 exec, 1\nglobal_store_dword v6, v22, s[46:47] sc1\ns_mov_b64 exec, -1")
    self.st("aend")
    k.vm = []
    g2b.p2_unpack(self)
    self.poll("L_pollD", lambda: k("ds_read_b32 v20, v5"), lambda: k("v_cmp_ne_u32 vcc, 1, v20\ns_nop 1"))
    k("s_branch L_P2")
```

```python
from g2 import *
def compute1(g):
    k = g.k
    AX, AWr = 8, 12
    k(f"""
    s_lshl_b32 s4, s54, 7
    v_lshl_add_u32 v16, v1, 1, s4
    v_lshrrev_b32 v5, 5, v1              ; hb
    v_and_b32 v4, 31, v1                 ; col
    v_lshl_add_u32 v17, v5, 4, s59
    v_mov_b32 v18, 0
    global_load_ushort v20, v16, s[36:37]
    global_load_ushort v21, v16, s[24:25]
    global_load_ushort v22, v16, s[26:27]
    global_load_dword v23, v18, s[46:47]
    """)
    GF = 96
    for ks in range(4): k(f"global_load_dwordx4 {v(GF+4*ks,4)}, v17, s[40:41] offset:{32*ks}")
    g.st("karg")
    k(f"""
    v_bfe_u32 v6, v1, 1, 3
    v_xor_b32 v6, v6, v5
    v_lshlrev_b32 v6, 4, v6
    v_lshl_add_u32 v6, v4, 7, v6
    s_lshl_b32 s4, s48, 12
    v_add_u32 v{AX}, s4, v6
    v_add_u32 v{AWr}, {WSL}, v6
    """)
    for ks in range(1, 4): k(f"v_xor_b32 v{AX+ks}, {32*ks}, v{AX}\nv_xor_b32 v{AWr+ks}, {32*ks}, v{AWr}")
    k(f"""
    s_mov_b32 s76, s46
    s_mov_b32 s77, s47
    s_mov_b32 s78, {WS_SIZE}
    s_mov_b32 s79, 0x20000
    s_lshr_b32 s4, s48, 1
    s_lshl_b32 s5, s53, 1
    s_add_u32 s4, s4, s5
    s_mov_b32 s13, s4
    s_mul_i32 s6, s4, {HBLK}
    s_lshl_b32 s5, s54, 14
    s_add_u32 s6, s6, s5
    s_and_b32 s5, s48, 1
    s_lshl_b32 s7, s5, 11
    s_add_u32 s6, s6, s7
    s_add_u32 s60, s6, {WS_H}
    s_add_u32 s61, s60, 8192
    s_mul_i32 s4, s4, 18
    s_add_u32 s4, s4, s5
    s_lshl_b32 s5, s54, 1
    s_add_u32 s4, s4, s5
    s_lshl_b32 s4, s4, 7
    s_add_u32 s12, s4, {WS_HF}
    s_lshl_b32 s10, s54, 14
    s_add_u32 s10, s10, {WS_S}
    s_lshl_b32 s11, s53, 10
    s_add_u32 s11, s11, s10
    s_mul_i32 s4, s53, 9
    s_add_u32 s4, s4, s54
    s_lshl_b32 s4, s4, 2
    s_add_u32 s4, s4, s48
    s_lshl_b32 s4, s4, 7
    s_add_u32 s4, s4, {WS_G}
    v_lshl_add_u32 v19, v5, 6, s4
    v_lshlrev_b32 v16, 4, v1             ; 16*lane
    v_add_u32 v17, s11, v16
    s_lshl_b32 s4, s48, 10
    s_add_u32 s4, s4, {EXE}
    v_add_u32 v18, s4, v16
    v_add_u32 v28, {EXE}, v16
    v_mov_b64 v[118:119], 0
    ds_write_b64 v18, v[118:119] offset:8
    ds_write_b64 v18, v[118:119] offset:4104
    v_lshrrev_b32 v29, 4, v4
    v_lshlrev_b32 v29, 12, v29
    v_lshl_add_u32 v29, v5, 9, v29
    v_lshl_add_u32 v29, v2, 4, v29
    v_xor_b32 v30, 64, v29               ; half 1
    v_cmp_eq_u32 s[18:19], 0, v5
    s_lshl_b32 s4, s48, 5
    v_cvt_f32_u32 v31, s4                ; 32w
    v_mul_f32 v32, 4.0, v31              ; 128w
    """)
    for q in range(4):
        k(f"s_sub_u32 s4, s53, s48\ns_sub_u32 s4, s4, {1+4*q}\ns_lshl_b32 s5, s4, 10\ns_add_u32 s5, s5, s10\ns_cmp_ge_i32 s4, 0\ns_cselect_b32 s5, s5, 0x80000000\ns_cselect_b32 s{24+q}, -1, 0\nv_add_u32 v{24+q}, s5, v16")
    for w in range(3): k(f"s_cmp_gt_u32 s48, {w}\ns_cselect_b64 s[{64+2*w}:{65+2*w}], -1, 0")
    Z, LM, L32, L512, WH, LW = 112, 114, 34, 36, 38, 40
    SS, WSr, WSi, MPr, MPi, TB = 42, 46, 50, 54, 58, 64
    tb = lambda p, j: TB + 16*p + 2*(j - 1)
    T = 116
    k(f"""
    v_lshlrev_b32 v20, 16, v20
    v_mul_f32 v20, {fl(LOG2E)}, v20
    v_exp_f32 v20, v20
    v_lshlrev_b32 v{LM}, 16, v21
    v_lshlrev_b32 v{LM+1}, 16, v22
    v_cvt_pk_bf16_f32 v20, v20, v20
    v_mul_f32 v21, v{LM}, v{LM}
    v_and_b32 v20, 0xffff0000, v20
    v_fmac_f32 v21, v{LM+1}, v{LM+1}
    v_mul_f32 v{Z}, v20, v{LM}
    v_mul_f32 v{Z+1}, v20, v{LM+1}
    v_rcp_f32 v21, v21
    v_mul_f32 v{Z}, {fl(LOG2E)}, v{Z}
    v_mul_f32 v{Z+1}, {fl(INV2PI)}, v{Z+1}
    v_add_f32 v21, v21, v21
    v_mul_f32 v{LM}, v{LM}, v21
    v_mul_f32 v{LM+1}, -v{LM+1}, v21
    """)
    cpow_multi(k, [(d, d+1, Z, Z+1, ex, T+2*i, T+2*i+1) for i, (d, ex) in enumerate(((tb(0,1), "1.0"), (L32, fl(32.0)), (L512, fl(512.0)), (WH, "v32"), (LW, "v31")))])
    k(f"v_add_f32 v{T}, -1.0, v{tb(0,1)}\nv_mov_b32 v{T+1}, v{tb(0,1)+1}")
    cmul_multi(k, [(SS, T, LM, T+2)])
    k(f"v_mov_b64 {v(tb(1,1),2)}, {v(tb(0,1),2)}\nv_mov_b64 {v(SS+2,2)}, {v(SS,2)}")
    k(f"v_readfirstlane_b32 s55, v23")
    for a_, b_ in ((tb(0,1), tb(1,1)), (tb(0,1)+1, tb(1,1)+1), (SS, SS+2), (SS+1, SS+3)): k(f"v_permlane32_swap_b32 v{a_}, v{b_}")
    k(f"s_mul_i32 s55, s55, {LCG_A}\ns_add_u32 s55, s55, {LCG_C}\ns_not_b32 s62, s55")
    for q in range(4): k(f"s_and_b32 s{28+q}, s{24+q}, s62\ns_and_b32 s{24+q}, s{24+q}, s55")
    cmul_multi(k, [(tb(p,2), tb(p,1), tb(p,1), T+2*p) for p in range(2)])
    cmul_multi(k, [(tb(p,2+i), tb(p,2), tb(p,i), T+4*p+2*(i-1)) for p in range(2) for i in (1, 2)])
    cmul_multi(k, [(tb(p,4+i), tb(p,4), tb(p,i), T+4*p+2*(i-1)) for p in range(2) for i in (1, 2)])
    cmul_multi(k, [(tb(p,4+i), tb(p,4), tb(p,i), T+4*p+2*(i-3)) for p in range(2) for i in (3, 4)])
    L16 = T + 8
    cmul_multi(k, [(L16+2*p, tb(p,8), tb(p,8), T+2*p) for p in range(2)])
    for p in range(2):
        k(f"""
        v_cndmask_b32 v{WSr+2*p+1}, 1.0, v{L16+2*p}, s[18:19]
        v_cndmask_b32 v{WSi+2*p+1}, 0, v{L16+2*p+1}, s[18:19]
        v_cndmask_b32 v{T+2*p}, v{L16+2*p}, 1.0, s[18:19]
        v_cndmask_b32 v{T+2*p+1}, v{L16+2*p+1}, 0, s[18:19]
        """)
    for p in range(2):
        smul(k, WSr+2*p, WSi+2*p, tb(p,8), tb(p,8)+1, WSr+2*p+1, WSi+2*p+1)
        smul(k, MPr+2*p, MPi+2*p, T+2*p, T+2*p+1, SS+2*p, SS+2*p+1)
        smul(k, MPr+2*p+1, MPi+2*p+1, tb(p,8), tb(p,8)+1, MPr+2*p, MPi+2*p)
    EO = 20
    k(f"v_mov_b32 v{EO+2}, s55\nv_mov_b32 v{EO+3}, s62")
    k.wait_vm()
    g.pub_xcc(112, "L_xp1")
    k(f"s_mul_i32 s4, s13, 48\ns_add_u32 s4, s4, {WS_XI}\nv_min_u32 v114, 5, v1\nv_lshl_add_u32 v114, v114, 3, s4")
    g.st("setup")
    R = [128, 160]; I = [144, 176]; GA = 192; FR = 208
    ACC = [R[0], R[1], I[0], I[1]]
    def reads(e, q):
        c, ks = divmod(q, 4); b = FR + 20*(q % 2)
        e(f"ds_read_b128 {v(b,4)}, v{AX+ks} offset:{16384*(c%3)}")
        for t in (0, 2, 1, 3): e(f"ds_read_b128 {v(b+4+4*t,4)}, v{AWr+ks} offset:{16384*(c%3)+4096*t}")
    def mf(q):
        e = Rec(); b = FR + 20*(q % 2)
        for t in (0, 2, 1, 3): e(f"{M32} {v(ACC[t],16)}, {v(b,4)}, {v(b+4+4*t,4)}, {'0' if q == 0 else v(ACC[t],16)}")
        if q < 4: e(f"{M32} {v(GA,16)}, {v(b,4)}, {v(GF+4*q,4)}, {'0' if q == 0 else v(GA,16)}")
        return e.items
    k.wait_lg(); k("s_barrier"); g.st("c0")
    reads(k, 0)
    for q in range(36):
        rd = Rec(); ex = Rec()
        if q % 4 == 3 and q < 35:
            k.wait_lg(); k("s_barrier"); g.st(f"c{q//4+1}")
        if q < 35: reads(rd, q + 1)
        if q == 5:
            ex.group("s_mov_b32 exec_lo, 1\ns_mov_b32 exec_hi, 1\n" + "\n".join(f"global_store_dwordx4 v19, {v(GA+4*i,4)}, s[46:47] offset:{16*i} sc1" for i in range(4)) + "\ns_mov_b64 exec, -1")
        if g.dbg_nomf and 4 < q < 35: continue
        weave(k, mf(q), [(rd.items, g.rd_span[0], g.rd_span[1]), (ex.items, 3, 3)])
    g.st("gemm1")
    for st in range(1, 8):
        for p in range(2):
            pk_bc(k, R[p]+2*st, R[p]+2*st-2, tb(p,1), 0, R[p]+2*st)
            pk_bc(k, I[p]+2*st, I[p]+2*st-2, tb(p,1), 0, I[p]+2*st)
            pk_bc(k, R[p]+2*st, I[p]+2*st-2, tb(p,1), 1, R[p]+2*st, neg=True)
            pk_bc(k, I[p]+2*st, R[p]+2*st-2, tb(p,1), 1, I[p]+2*st)
    T = 208
    for p in range(2): k(f"v_pk_mul_f32 {v(T+4*p,2)}, {v(R[p]+14,2)}, {v(WSr+2*p,2)}\nv_pk_mul_f32 {v(T+4*p+2,2)}, {v(I[p]+14,2)}, {v(WSr+2*p,2)}")
    for p in range(2): k(f"v_pk_fma_f32 {v(T+4*p,2)}, {v(I[p]+14,2)}, {v(WSi+2*p,2)}, {v(T+4*p,2)} neg_lo:[1,0,0] neg_hi:[1,0,0]\nv_pk_fma_f32 {v(T+4*p+2,2)}, {v(R[p]+14,2)}, {v(WSi+2*p,2)}, {v(T+4*p+2,2)}")
    for i in range(4): k(f"v_add_f32 v{T+2*i}, v{T+2*i}, v{T+2*i+1}")
    k(f"v_permlane32_swap_b32 v{T}, v{T+4}\nv_permlane32_swap_b32 v{T+2}, v{T+6}")
    k(f"v_add_f32 v{EO}, v{T}, v{T+4}\nv_add_f32 v{EO+1}, v{T+2}, v{T+6}")
    k(f"ds_write_b128 v18, {v(EO,4)}")
    E = 216; CW = 32
    k(f"v_mov_b64 {v(CW,2)}, 0\ns_cmp_eq_u32 s48, 0\ns_cbranch_scc1 L_cw_done")
    def chk():
        for w in range(3):
            k(f"v_cmp_ne_u64 s[{70+2*w}:{71+2*w}], {v(E+4*w+2,2)}, {v(EO+2,2)}")
        k("s_and_b64 s[72:73], s[72:73], s[66:67]\ns_and_b64 s[74:75], s[74:75], s[68:69]\ns_or_b64 vcc, s[70:71], s[72:73]\ns_or_b64 vcc, vcc, s[74:75]")
    def iss():
        for w in range(3): k(f"ds_read_b128 {v(E+4*w,4)}, v28 offset:{1024*w}")
    vm_save = list(k.vm); k.vm = []
    g.poll("L_pollE", iss, chk)
    k(f"v_mov_b64 {v(CW,2)}, {v(E,2)}\ns_cmp_eq_u32 s48, 1\ns_cbranch_scc1 L_cw_done")
    cmac(k, [(CW, E, L32, E+4)])
    k("s_cmp_eq_u32 s48, 2\ns_cbranch_scc1 L_cw_done")
    cmac(k, [(E+8, CW, L32, E+8)])
    cmac(k, [(EO, E+8, L32, EO)])
    k(f"global_store_dwordx4 v17, {v(EO,4)}, s[46:47] sc1\nv_mov_b64 {v(CW,2)}, {v(E+8,2)}\ns_nop 0")
    k.vm = vm_save
    k.label("L_cw_done", drain=False)
    g.st("pub")
    k("global_load_dwordx2 v[116:117], v114, s[46:47] sc1")
    p2_setup(g)
    for p in range(2):
        for st in range(8):
            a, b = T + 4*(st % 2), T + 4*(st % 2) + 2
            pk_bc(k, a, R[p]+2*st, SS+2*p, 0); pk_bc(k, b, R[p]+2*st, SS+2*p, 1)
            pk_bc(k, R[p]+2*st, I[p]+2*st, SS+2*p, 1, a, neg=True); pk_bc(k, I[p]+2*st, I[p]+2*st, SS+2*p, 0, b)
    CPr, CPi = WSr, WSi
    for p in range(2):
        smul(k, T+2*p, T+2*p+1, tb(p,8), tb(p,8)+1, R[p]+14, I[p]+14, R[p]+15, I[p]+15)
        k(f"v_mov_b32 v{CPr+2*p}, 0\nv_mov_b32 v{CPi+2*p}, 0")
    for p in range(2): k(f"v_permlane32_swap_b32 v{CPr+2*p}, v{T+2*p}\nv_permlane32_swap_b32 v{CPi+2*p}, v{T+2*p+1}")
    for p in range(2): smul(k, CPr+2*p+1, CPi+2*p+1, tb(p,8), tb(p,8)+1, CPr+2*p, CPi+2*p, R[p]+14, I[p]+14)
    k("v_mov_b32 v6, s12")
    k("v_cmp_ne_u64 s[72:73], v[116:117], v[112:113]")
    p2_unpack(g)
    g.st("prep")
    PD = 216
    def iss():
        for q in range(4): k(f"buffer_load_dwordx4 {v(PD+4*q,4)}, v{24+q}, s[76:79], 0 offen sc1")
    def chk():
        for q in range(4): k(f"v_xor_b32 v{PD+4*q+2}, s{24+q}, v{PD+4*q+2}\nv_xor_b32 v{PD+4*q+3}, s{28+q}, v{PD+4*q+3}")
        k(f"v_or3_b32 v{PD+2}, v{PD+2}, v{PD+3}, v{PD+6}\nv_or3_b32 v{PD+7}, v{PD+7}, v{PD+10}, v{PD+11}\nv_or3_b32 v{PD+2}, v{PD+2}, v{PD+14}, v{PD+15}\nv_or_b32 v{PD+2}, v{PD+2}, v{PD+7}\nv_cmp_ne_u32 vcc, 0, v{PD+2}\ns_nop 1")
    g.poll("L_pollS", iss, chk)
    g.st("Sarr")
    for q in (2, 1, 0): cmac(k, [(PD+4*q, PD+4*q+4, L512, PD+4*q)])
    cmul_multi(k, [(EO, PD, WH, T)])
    k(f"ds_write_b128 v18, {v(EO,4)} offset:4096")
    def iss():
        for w in range(4): k(f"ds_read_b128 {v(PD+4*w,4)}, v28 offset:{4096+1024*w}")
    def chk():
        for w in range(4): k(f"v_cmp_ne_u64 s[{64+2*w}:{65+2*w}], {v(PD+4*w+2,2)}, {v(EO+2,2)}")
        k("s_or_b64 s[64:65], s[64:65], s[66:67]\ns_or_b64 vcc, s[68:69], s[70:71]\ns_or_b64 vcc, vcc, s[64:65]")
    g.poll("L_pollX", iss, chk)
    g.st("Xarr")
    k(f"v_pk_add_f32 {v(PD,2)}, {v(PD,2)}, {v(PD+4,2)}\nv_pk_add_f32 {v(PD+8,2)}, {v(PD+8,2)}, {v(PD+12,2)}\nv_pk_add_f32 {v(PD,2)}, {v(PD,2)}, {v(PD+8,2)}")
    cmac(k, [(CW, PD, LW, CW)])
    HH = [CW, T]
    k(f"v_mov_b64 {v(T,2)}, {v(CW,2)}\nv_permlane32_swap_b32 v{CW}, v{T}\nv_permlane32_swap_b32 v{CW+1}, v{T+1}")
    for p in range(2):
        pk_bc(k, CPr+2*p, MPr+2*p, HH[p], 0, CPr+2*p); pk_bc(k, CPi+2*p, MPi+2*p, HH[p], 0, CPi+2*p)
    for p in range(2):
        pk_bc(k, CPr+2*p, MPi+2*p, HH[p], 1, CPr+2*p, neg=True); pk_bc(k, CPi+2*p, MPr+2*p, HH[p], 1, CPi+2*p)
    HO = 216
    def tail(sc):
        for p in range(2):
            for comp in range(2):
                A_, c0, c1 = (R[p], CPr, CPi) if comp == 0 else (I[p], CPi, CPr)
                for st in range(8): pk_bc(k, A_+2*st, c0+2*p, tb(p,st+1), 0, A_+2*st)
                for st in range(8): pk_bc(k, A_+2*st, c1+2*p, tb(p,st+1), 1, A_+2*st, neg=(comp == 0))
                n = "-" if comp else ""
                for half in range(2):
                    o = HO + 16*p + 8*comp + 4*half
                    for i in range(4): k(f"v_cvt_pk_bf16_f32 v{o+i}, {n}v{A_+4*i+half}, {n}v{A_+4*i+2+half}")
                    k(f"buffer_store_dwordx4 {v(o,4)}, v{29+half}, s[76:79], s{60+p} offen offset:{1024*comp+256*half} {sc}")
        g.st("hst")
        k.raw("    s_waitcnt vmcnt(0)"); k.vm = []
        k(f"s_mov_b64 exec, 1\nglobal_store_dword v6, v{EO+2}, s[46:47] {sc}\ns_mov_b64 exec, -1")
        g.st("flag")
    if g.fast:
        k("s_cmp_lg_u64 s[72:73], 0\ns_cbranch_scc1 L_slow")
        g.slow_tail = lambda: tail("sc1")
        tail(g.hst)
    else: tail("sc1")
    k.raw("L_tail_done:"); k.vm = []

XR, DBR, DBF = 216, 228, 234
XB = [96, 192]
def p2_setup(g):
    k = g.k
    k(f"""
    s_cmp_lt_u32 s48, 2
    s_cselect_b32 s16, s32, s34
    s_cselect_b32 s17, s33, s35
    s_mov_b32 s18, 663552
    s_mov_b32 s19, 0x20000
    s_mov_b32 s{UO[0]}, s57
    s_mul_i32 s4, s56, {18*128}
    s_add_u32 s4, s4, {WS_HF}
    v_min_u32 v8, 17, v1
    v_lshl_add_u32 v8, v8, 7, s4
    s_mul_i32 s4, s56, {HBLK}
    s_lshl_b32 s15, s48, 12
    s_add_u32 s4, s4, s15
    s_add_u32 s4, s4, {WS_H}
    v_lshl_add_u32 v9, v1, 4, s4
    s_lshl_b32 s4, s56, 6
    v_lshrrev_b32 v10, 3, v0             ; tl
    v_add_u32 v11, s4, v10
    v_and_b32 v12, 7, v0                 ; dl
    s_mul_i32 s5, s52, 192
    v_lshl_add_u32 v13, v12, 3, s5
    v_mul_u32_u24 v14, 1152, v11
    v_add_u32 v14, v14, v13
    v_add_u32 v15, {32*1152}, v14
    """)
    for jj in range(3):
        k(f"global_load_dwordx2 {v(XR+2*jj,2)}, v14, s[8:9] offset:{64*jj}\nglobal_load_dwordx2 {v(XR+6+2*jj,2)}, v15, s[8:9] offset:{64*jj}\nglobal_load_dwordx2 {v(DBR+2*jj,2)}, v13, s[38:39] offset:{64*jj}")
    offsets(k, UO)
    k(f"""
    s_lshr_b32 s4, s56, 1
    s_mul_i32 s4, s4, {9*512}
    s_lshl_b32 s5, s51, 8
    s_add_u32 s4, s4, s5
    s_lshr_b32 s5, s48, 1
    s_lshl_b32 s5, s5, 6
    s_add_u32 s4, s4, s5
    s_and_b32 s5, s48, 1
    s_lshl_b32 s5, s5, 2
    s_add_u32 s4, s4, s5
    s_add_u32 s4, s4, {WS_G}
    v_lshrrev_b32 v16, 3, v1
    v_lshl_add_u32 v17, v16, 3, s4       ; j=8 base - 4096
    v_lshl_add_u32 v7, v12, 9, v17
    v_add_u32 v17, 4096, v17
    s_mul_i32 s4, s52, 384
    s_add_u32 s4, s4, {WS_AF}
    v_min_u32 v19, 47, v1
    v_lshl_add_u32 v19, v19, 3, s4
    s_mul_i32 s4, s52, 96
    s_mul_i32 s5, s48, 24
    s_add_u32 s4, s4, s5
    s_lshl_b32 s4, s4, 12
    s_lshl_b32 s5, s56, 7
    s_add_u32 s4, s4, s5
    s_add_u32 s4, s4, {WS_A}
    v_lshl_add_u32 v253, v16, 12, s4
    v_lshrrev_b32 v254, 5, v1
    s_mul_i32 s5, s48, 6
    v_add_u32 v254, s5, v254
    """)
    for n in range(3): k(f"v_add_u32 v255, {2*n}, v254\nv_xor_b32 v255, v255, v1\nv_and_b32 v255, 7, v255\nv_lshl_add_u32 v{248+n}, v255, 4, v253")
    k(f"""
    s_mul_i32 s4, s52, 96
    s_and_b32 s5, s48, 1
    s_mul_i32 s5, s5, 48
    s_add_u32 s4, s4, s5
    v_add_u32 v253, s4, v16
    v_mul_u32_u24 v253, 1152, v253
    v_xor_b32 v254, v12, v3
    v_lshl_add_u32 v253, v254, 4, v253   ; vC0
    v_xor_b32 v254, 64, v253
    v_add_u32 v254, 8192, v254           ; vC1
    s_mul_i32 s22, s48, 12288
    s_add_u32 s22, s22, {CST}
    s_mul_i32 s21, s48, 3072
    s_and_b32 s4, s48, 1
    s_lshl_b32 s4, s4, 2
    s_lshr_b32 s5, s48, 1
    s_add_u32 s4, s4, s5
    v_xor_b32 v251, s4, v12
    v_lshlrev_b32 v251, 4, v251
    v_lshl_add_u32 v251, v12, 9, v251
    v_lshl_add_u32 v251, v16, 1, v251
    v_add_u32 v251, {AST}, v251
    v_xor_b32 v252, 32, v251
    v_mul_u32_u24 v10, 400, v10
    v_lshl_add_u32 v10, v12, 4, v10
    v_add_u32 v10, {IMG}, v10
    v_lshlrev_b32 v14, 1, v14
    v_lshlrev_b32 v15, 1, v15
    """)

def p2_unpack(g):
    k = g.k
    for jj in range(3):
        for h in range(2): k(f"v_lshlrev_b32 v{DBF+4*jj+2*h}, 16, v{DBR+2*jj+h}\nv_and_b32 v{DBF+4*jj+2*h+1}, 0xffff0000, v{DBR+2*jj+h}")
    for ii in range(2):
        for jj in range(3):
            for h in range(2):
                d = XB[ii] + 4*jj + 2*h; s_ = XR + 6*ii + 2*jj + h
                k(f"v_lshlrev_b32 v{d}, 16, v{s_}\nv_and_b32 v{d+1}, 0xffff0000, v{s_}")
    for ii in range(2):
        for q in range(6): k(f"v_pk_mul_f32 {v(XB[ii]+2*q,2)}, {v(XB[ii]+2*q,2)}, {v(DBF+2*q,2)}")

def loader2(g):
    k = g.k
    k.raw("L_P2:"); k.vm = []; k.lg = []
    AR, GG, OM = 64, 58, 60
    g.poll("L_pollH", lambda: k("global_load_dword v11, v8, s[46:47] sc1"), lambda: k("v_cmp_ne_u32 vcc, s55, v11\ns_nop 1"))
    g.st("Harr")
    def h_dma(u):
        k(f"s_add_u32 m0, s15, {16384*(u%6)}\ns_lshl_b32 s63, s{UO[u]}, 7")
        for n in range(4): k(f"buffer_load_dwordx4 v9, s[76:79], s63 offen offset:{1024*n} {g.hld} lds", tag=("h", u))
    for u in range(g.hdist): h_dma(u)
    for u in range(9):
        k.wait_vm(("h", u))
        if u in (5, 6): k.wait_vm(("C", u - 4))
        if u == g.a_at + 3: k.wait_vm("a")
        k("s_barrier"); g.st(f"u{u}")
        if u + g.hdist < 9: h_dma(u + g.hdist)
        if u in (1, 2):
            for n in range(18 + 3*u, 21 + 3*u):
                k(f"s_add_u32 m0, s22, {2048*(n%6)}\ns_add_u32 s20, s{UO[n//3]}, {18432*(n%3)}\nbuffer_load_dwordx4 v253, s[16:19], s20 offen lds\nbuffer_load_dwordx4 v254, s[16:19], s20 offen offset:1024 lds", tag=("C", u))
        if u == 0:
            for ii in range(2): k(f"global_load_dword v{GG+ii}, v7, s[46:47] offset:{128*ii} sc1\nglobal_load_dword v{62+ii}, v17, s[46:47] offset:{128*ii} sc1")
        if u == g.a_at - 1: k("global_load_dwordx2 v[32:33], v19, s[46:47] sc1", tag="af")
        if u == 1:
            for q in range(24): k(f"v_mov_b32 v{AR+q}, 0")
        if u == 3:
            for ctl in ("quad_perm:[1,0,3,2]", "quad_perm:[2,3,0,1]", "row_half_mirror"):
                for ii in range(2): k(f"v_add_f32_dpp v{GG+ii}, v{GG+ii}, v{GG+ii} {ctl} row_mask:0xf bank_mask:0xf")
            for ii in range(2): k(f"v_add_f32 v{GG+ii}, v{GG+ii}, v{62+ii}\nv_mul_f32 v{GG+ii}, {fl(-LOG2E)}, v{GG+ii}")
            for ii in range(2): k(f"v_exp_f32 v{GG+ii}, v{GG+ii}")
            for ii in range(2): k(f"v_add_f32 v{GG+ii}, 1.0, v{GG+ii}")
            for ii in range(2): k(f"v_rcp_f32 v{GG+ii}, v{GG+ii}")
            for ii in range(2): k(f"v_sub_f32 v{OM+ii}, 1.0, v{GG+ii}")
            for ii in range(2):
                for q in range(12): k(f"v_mul_f32 v{XB[ii]+q}, v{XB[ii]+q}, v{OM+ii}")
        if u == g.a_at:
            chk = lambda: k("v_cmp_ne_u32 vcc, s55, v32\nv_cmp_ne_u32 s[4:5], s55, v33\ns_or_b64 vcc, vcc, s[4:5]")
            k.wait_vm("af"); chk(); k("s_cbranch_vccz L_pollA_done")
            save = list(k.vm)
            g.poll("L_pollA", lambda: k("global_load_dwordx2 v[32:33], v19, s[46:47] sc1"), chk)
            k.vm = save
            g.st("Aarr")
            k(f"s_add_u32 m0, s21, {AST}")
            for n in range(3): k(f"s_mov_b32 s4, {32768*n - 1024*n}\nbuffer_load_dwordx4 v{248+n}, s[76:79], s4 offen offset:{1024*n} sc1 lds", tag="a")
        if u == g.a_at + 3:
            for ii in range(2):
                for jj in range(3):
                    for e_ in range(4): k(f"ds_read_u16_d16_hi v{AR+12*ii+4*jj+e_}, v{251+ii} offset:{128*e_+4096*jj}")
            for ii in range(2):
                for q in range(12): k(f"v_fmac_f32 v{XB[ii]+q}, v{AR+12*ii+q}, v{GG+ii}")
    k("s_barrier"); g.st("img")
    E0 = 128
    for q in range(6):
        ii, jj = divmod(q, 3)
        k(f"ds_read_b128 {v(E0+8*q,4)}, v10 offset:{12800*ii+128*jj}\nds_read_b128 {v(E0+8*q+4,4)}, v10 offset:{25600+12800*ii+128*jj}")
    for q in range(6):
        ii, jj = divmod(q, 3)
        for h in range(2): k(f"v_pk_add_f32 {v(E0+8*q+2*h,2)}, {v(E0+8*q+2*h,2)}, {v(E0+8*q+4+2*h,2)}")
        for h in range(2): pk_bc(k, E0+8*q+2*h, E0+8*q+2*h, OM, ii, XB[ii]+4*jj+2*h)
        k(f"global_store_dwordx4 v{14+ii}, {v(E0+8*q,4)}, s[42:43] offset:{128*jj}")
    g.st("stiss")
    k(f"s_cmp_lg_u32 s56, 31\ns_cbranch_scc1 L_fin2\ns_or_b32 s4, s52, s48\ns_cbranch_scc1 L_fin2")
    k(f"v_min_u32 v8, 47, v1\nv_lshlrev_b32 v8, 4, v8\nv_add_u32 v8, {WS_AF}, v8")
    def iss():
        for i in range(3): k(f"global_load_dwordx4 {v(64+4*i,4)}, v8, s[46:47] offset:{768*i} sc1")
    def chk():
        for i in range(12): k(f"v_xor_b32 v{64+i}, s55, v{64+i}")
        for i in range(1, 12): k(f"v_or_b32 v64, v64, v{64+i}")
        k("v_cmp_ne_u32 vcc, 0, v64\ns_nop 1")
    g.poll("L_pollW", iss, chk)
    k("v_mov_b32 v6, 0\nv_mov_b32 v7, s55\ns_mov_b64 exec, 1\nglobal_store_dword v6, v7, s[46:47]\ns_mov_b64 exec, -1")
    k.out.append("L_fin2:")
    g.fin()
    if g.fast:
        g.enter("L_slow", karg=False); k("s_nop 1"); g.slow_tail(); k("s_branch L_tail_done")

def loader1(g):
    k = g.k
    k(f"""
    s_sub_u32 s62, s48, 4                ; lw
    v_lshrrev_b32 v4, 3, v1              ; rl
    v_and_b32 v5, 7, v1
    {'v_xor_b32 v5, v5, v3' if not g.dbg_noswz else ''}
    v_lshlrev_b32 v5, 4, v5
    v_mul_u32_u24 v6, 1152, v4
    v_add_u32 v6, v6, v5
    s_mov_b32 s66, 2359296
    s_mov_b32 s67, 0x20000
    s_mov_b32 s70, 663552
    s_mov_b32 s71, 0x20000
    s_mov_b32 s74, {0 if g.dbg_noC else 663552}
    s_mov_b32 s75, 0x20000
    s_mul_i32 s61, s62, 12288
    s_add_u32 s61, s61, {CST}
    s_cmp_ge_u32 s49, 18
    s_cbranch_scc1 L_R2G
    v_lshrrev_b32 v8, 2, v4
    v_lshlrev_b32 v8, 4, v8
    v_and_b32 v9, 1, v4
    v_lshl_add_u32 v8, v9, 3, v8
    v_bfe_u32 v9, v4, 1, 1
    v_add_u32 v8, v8, v9
    s_lshl_b32 s4, s53, 7
    s_lshl_b32 s5, s62, 5
    s_add_u32 s4, s4, s5
    v_add_u32 v8, s4, v8
    v_mul_u32_u24 v8, 1152, v8
    v_add_u32 v8, v8, v5                 ; x n=0
    v_xor_b32 v9, 64, v8
    v_add_u32 v10, {2*(2304-1024)}, v8
    v_add_u32 v11, {3*(2304-1024)}, v9
    v_add_u32 v9, {2304-1024}, v9
    s_lshl_b32 s4, s54, 6
    s_and_b32 s5, s62, 1
    s_lshl_b32 s5, s5, 5
    s_add_u32 s4, s4, s5
    s_mul_i32 s4, s4, 1152
    v_add_u32 v12, s4, v6
    v_xor_b32 v13, 64, v12
    v_add_u32 v14, {2*8192}, v12
    v_add_u32 v15, {3*8192}, v13
    v_add_u32 v13, 8192, v13
    s_lshl_b32 s6, s62, 12
    s_cmp_lt_u32 s62, 2
    s_mov_b32 s64, s8
    s_mov_b32 s65, s9
    s_cselect_b32 s68, s28, s30
    s_cselect_b32 s69, s29, s31
    s_mov_b32 s10, s59
    """)
    CO = list(range(10, 19))
    def dma(c):
        k(f"s_add_u32 m0, s6, {WSL + 16384*(c%3)}")
        for n in range(4): k(f"buffer_load_dwordx4 v{12+n}, s[68:71], s{CO[c]} offen offset:{1024*n} lds", tag=("c", c))
        k(f"s_add_u32 m0, s6, {XS + 16384*(c%3)}")
        for n in range(4): k(f"buffer_load_dwordx4 v{8+n}, s[64:67], s{CO[c]} offen offset:{1024*n} lds", tag=("c", c))
    def csetup():
        k(f"""
        s_cmp_lt_u32 s62, 2
        s_cselect_b32 s72, s32, s34
        s_cselect_b32 s73, s33, s35
        s_mov_b32 s{UO[0]}, s57
        s_mul_i32 s4, s52, 96
        s_and_b32 s5, s62, 1
        s_mul_i32 s5, s5, 48
        s_add_u32 s4, s4, s5
        s_mul_i32 s4, s4, 1152
        v_add_u32 v6, s4, v6                 ; vC0
        v_xor_b32 v7, 64, v6
        v_add_u32 v7, 8192, v7               ; vC1
        v_lshrrev_b32 v4, 1, v2
        v_xor_b32 v4, v4, v3
        v_lshlrev_b32 v4, 4, v4
        v_lshl_add_u32 v4, v2, 7, v4
        v_add_u32 v4, s61, v4
        v_xor_b32 v5, 64, v4
        """)
        offsets(k, UO)
    CU = lambda u: 88 + 24*(u % 7)
    def c_dma(n):
        k(f"s_add_u32 m0, s61, {2048*(n%6)}\ns_add_u32 s20, s{UO[n//3]}, {18432*(n%3)}\nbuffer_load_dwordx4 v6, s[72:75], s20 offen lds\nbuffer_load_dwordx4 v7, s[72:75], s20 offen offset:1024 lds", tag=("C", n))
    def c_drain(e, n):
        for ks in range(2): e(f"ds_read_b128 {v(CU(n//3)+12*ks+4*(n%3),4)}, v{4+ks} offset:{2048*(n%6)}", tag=("Cd", n))
    g.st("karg")
    dma(0)
    offsets(k, CO)
    csetup()
    if g.prioL: k(f"s_setprio {g.prioL}")
    dma(1)
    if g.dbg_free:
        for c in range(2, 9): dma(c)
        k.wait_vm(); g.st("freedone")
    for c in range(9):
        k.wait_vm(("c", c)); k("s_barrier")
        if c + 2 < 9 and not g.dbg_free: dma(c + 2)
        if c == 7:
            for n in range(4): c_dma(n)
    k("s_branch L_CPF")
    vm_c = list(k.vm)
    g.enter("L_R2G"); k.vm = list(g.pvm)
    UK0 = 34816
    k(f"""
    s_mul_i32 s3, s62, 14
    s_add_u32 s3, s3, s49
    s_sub_u32 s3, s3, 18
    s_lshr_b32 s6, s3, 2                 ; col
    s_and_b32 s7, s3, 3
    s_lshl_b32 s4, s50, 2
    s_add_u32 s7, s7, s4                 ; tb
    v_and_b32 v8, 7, v1                  ; rg
    s_mul_i32 s4, s7, {64*1152}
    s_lshl_b32 s5, s6, 7
    s_add_u32 s4, s4, s5
    v_mul_u32_u24 v9, 9216, v8
    v_lshl_add_u32 v9, v4, 4, v9
    v_add_u32 v9, s4, v9
    v_add_u32 v11, 4608, v9
    v_mov_b32 v60, 0
    v_mov_b32 v61, 0
    s_mov_b32 s64, s8
    s_mov_b32 s65, s9
    global_load_dword v62, v60, s[46:47]
    s_cmp_ge_u32 s3, 36
    s_cbranch_scc1 L_noT1
    """)
    for i in range(8): k(f"buffer_load_dwordx4 {v(64+4*i,4)}, v{9 if i < 4 else 11}, s[64:67], 0 offen offset:{1152*(i%4)}")
    k.raw("L_noT1:")
    k(f"""
    s_lshl_b32 s4, s48, 3
    s_add_u32 s4, s4, {EXE}
    v_mov_b32 v10, s4
    ds_write_b64 v10, v[60:61]
    s_mul_i32 s10, s62, {AW}
    s_add_u32 s10, s10, {UK0}
    v_lshl_add_u32 v12, v1, 3, s10
    ds_write_b64 v12, v[60:61]
    s_and_b32 s4, s62, 1
    s_mul_i32 s11, s4, {AW}
    s_add_u32 s11, s11, {UK0 + 4*AW}
    v_lshl_add_u32 v12, v1, 3, s11
    ds_write_b64 v12, v[60:61]
    s_mov_b32 s76, s46
    s_mov_b32 s77, s47
    s_mov_b32 s78, {WS_SIZE}
    s_mov_b32 s79, 0x20000
    s_mov_b32 s68, 0x05040100
    s_mov_b32 s69, 0x07060302
    s_lshl_b32 s5, s6, 18
    s_lshl_b32 s12, s7, 7
    s_add_u32 s5, s5, s12
    s_add_u32 s5, s5, {WS_UT}
    v_lshl_add_u32 v13, v8, 4, s5
    v_lshl_add_u32 v13, v4, 15, v13
    s_lshl_b32 s5, s6, 5
    s_add_u32 s5, s5, s7
    s_lshl_b32 s5, s5, 6
    s_add_u32 s5, s5, {WS_TF}
    v_mov_b32 v14, s5
    v_lshrrev_b32 v15, 5, v1
    v_mad_u32_u24 v15, v15, 5, s60
    v_min_u32 v15, 575, v15
    v_lshrrev_b32 v15, 6, v15
    v_and_b32 v16, 31, v1
    v_lshl_add_u32 v15, v15, 5, v16
    v_lshlrev_b32 v15, 6, v15
    v_add_u32 v15, {WS_TF}, v15
    s_add_u32 s12, s60, s62
    s_lshl_b32 s12, s12, 12
    s_add_u32 s12, s12, {WS_UT}
    s_add_u32 s13, s60, s4
    s_add_u32 s13, s13, 4
    s_lshl_b32 s13, s13, 12
    s_add_u32 s13, s13, {WS_UT}
    v_lshlrev_b32 v16, 4, v1
    """)
    k.wait_lg(); k("s_barrier")
    k.raw("    s_waitcnt vmcnt(0)"); k.vm = []
    g.st("Tld")
    k(f"v_readfirstlane_b32 s55, v62\ns_mul_i32 s55, s55, {LCG_A}\ns_add_u32 s55, s55, {LCG_C}\nv_mov_b32 v17, s55\ns_cmp_ge_u32 s3, 36\ns_cbranch_scc1 L_noT2")
    for e in range(8):
        for p in range(4): k(f"v_perm_b32 v{96+4*e+p}, v{64+8*p+4+e//2}, v{64+8*p+e//2}, s{68+e%2}")
        k(f"s_mov_b32 s4, {4096*e}\nbuffer_store_dwordx4 {v(96+4*e,4)}, v13, s[76:79], s4 offen sc1")
    k.wait_vm()
    k("s_mov_b64 exec, 1\nglobal_store_dword v14, v17, s[46:47] sc1\ns_mov_b64 exec, -1"); k.vm = []
    k.raw("L_noT2:")
    g.st("Tst")
    def fetchU(lab, two):
        g.poll(lab, lambda: k("global_load_dword v18, v15, s[46:47] sc1"), lambda: k("v_cmp_ne_u32 vcc, s55, v18\ns_nop 1"))
        g.st("Tarr")
        k("s_add_u32 m0, s10, 512")
        for n in range(4): k(f"buffer_load_dwordx4 v16, s[76:79], s12 offen offset:{1024*n} sc1 lds")
        if two:
            k(f"s_cmp_ge_u32 s62, 2\ns_cbranch_scc1 {lab}_one\ns_add_u32 m0, s11, 512")
            for n in range(4): k(f"buffer_load_dwordx4 v16, s[76:79], s13 offen offset:{1024*n} sc1 lds")
            k.raw(lab + "_one:")
        k.wait_vm()
        k("v_mov_b32 v60, 1\nds_write_b32 v10, v60")
        k.wait_lg(); g.st("gath")
    k("s_cmp_lt_u32 s49, 24\ns_cbranch_scc1 L_R2C")
    k(f"""
    s_sub_u32 s4, s49, 24
    s_lshl_b32 s4, s4, 2
    s_add_u32 s4, s4, s62                ; 0..31
    s_mul_i32 s5, s4, {144*128}
    s_mul_i32 s14, s50, {4*HBLK}
    s_add_u32 s5, s5, s14
    s_add_u32 s5, s5, {WS_H}
    v_min_u32 v56, 47, v1
    v_lshl_add_u32 v56, v56, 7, s5
    s_and_b32 s5, s4, 15
    s_mul_i32 s5, s5, 36
    v_min_u32 v57, 35, v1
    v_add_u32 v57, s5, v57               ; C row
    v_mul_u32_u24 v58, 683, v57
    v_lshrrev_b32 v58, 16, v58
    v_mul_u32_u24 v58, 3, v58
    v_lshrrev_b32 v58, 1, v58
    v_mul_u32_u24 v57, 1152, v57
    s_cmp_lt_u32 s4, 16
    s_cselect_b32 s72, s32, s34
    s_cselect_b32 s73, s33, s35
    """)
    pf = Rec()
    for i in range(g.cpf):
        pf.group(f"v_add_u32 v59, {(3*g.rot2i + 8 - i) % 9}, v58\nv_subrev_u32 v62, 9, v59\nv_min_u32 v59, v59, v62\nv_lshl_add_u32 v59, v59, 7, v57\nbuffer_load_dword v{64+i}, v59, s[72:75], 0 offen")
    if g.hpre:
        for i in range(3): pf.group(f"global_load_dword v{80+i}, v56, s[46:47]\nv_add_u32 v56, {48*128}, v56")
    for it in pf.items[:g.pf_pre]: play(k, it)
    fetchU("L_pollT3", True)
    for it in pf.items[g.pf_pre:]:
        play(k, it); k._wait(vm=g.pf_depth)
    k.wait_vm(); g.st("pfdone")
    g.fin()
    k.raw("L_R2C:"); k.vm = []; k.hist = []
    csetup()
    for n in range(4): c_dma(n)
    fetchU("L_pollT2", False)
    k.vm = vm_c
    k.raw("L_CPF:")
    D = g.cthr
    drained = 0
    for n in range(4, 21):
        while drained <= n - D:
            k.wait_vm(("C", drained)); c_drain(k, drained); drained += 1
        if n >= 6: k.wait_lg(("Cd", n - 6))
        c_dma(n)
    k(f"""
    v_lshrrev_b32 v8, 1, v3
    v_lshlrev_b32 v8, 12, v8
    s_lshr_b32 s4, s62, 1
    s_lshl_b32 s5, s4, 10
    v_add_u32 v8, s5, v8
    v_bfe_u32 v9, v1, 1, 1
    v_lshl_add_u32 v8, v9, 8, v8
    v_and_b32 v10, 1, v3
    v_lshlrev_b32 v10, 3, v10
    v_bfe_u32 v11, v1, 2, 2
    v_add_u32 v10, v10, v11
    v_lshlrev_b32 v9, 2, v9
    v_xor_b32 v10, v10, v9
    v_lshl_add_u32 v8, v10, 4, v8
    v_and_b32 v10, 1, v1
    v_lshl_add_u32 v6, v10, 3, v8
    v_xor_b32 v7, 64, v6
    s_mul_i32 s4, s4, 25600
    s_and_b32 s5, s62, 1
    s_mul_i32 s5, s5, 192
    s_add_u32 s4, s4, s5
    s_add_u32 s4, s4, {IMG}
    v_mul_u32_u24 v0, 400, v2
    v_lshl_add_u32 v0, v3, 4, v0
    v_add_u32 v0, s4, v0
    v_add_u32 v2, 49152, v6
    v_add_u32 v3, 49152, v7
    """)
    while drained < 21:
        k.wait_vm(("C", drained)); c_drain(k, drained); drained += 1
    k.wait_all(); g.st("cdone")
    A2, HF = 40, 8
    def hreads(e, u, ks):
        sl = u % 6; a0 = 6 if sl < 3 else 2
        for tt in range(4):
            off = 16384*(sl % 3) + 8192*ks + 2048*(tt >> 1) + 512*(tt & 1)
            e(f"ds_read_b64_tr_b16 {v(HF+16*ks+4*tt,2)}, v{a0} offset:{off}\nds_read_b64_tr_b16 {v(HF+16*ks+4*tt+2,2)}, v{a0+1} offset:{off}")
    def mf1(u, ks, tt, dt):
        d = A2 + 16*dt + 4*tt
        cc = "0" if (u == 0 and ks == 0) else v(d, 4)
        return ("i", f"{M16} {v(d,4)}, {v(CU(u)+12*ks+4*dt,4)}, {v(HF+16*ks+4*tt,4)}, {cc}", None)
    mf2 = lambda u, ks: [mf1(u, ks, tt, dt) for tt in range(4) for dt in range(3)]
    k("s_barrier")
    hreads(k, 0, 0)
    for u in range(8):
        rd = Rec(); hreads(rd, u, 1)
        ex = Rec()
        if u in (5, 6):
            for n in range(3): c_drain(ex, 6 + 3*u + n)
        weave(k, mf2(u, 0), [(rd.items, 0, 7), (ex.items, 4, 9)])
        k.wait_lg(); k("s_barrier")
        rd = Rec(); hreads(rd, u + 1, 0)
        weave(k, mf2(u, 1), [(rd.items, 1, 8)])
    hreads(k, 8, 1)
    seq = [mf1(8, 0, tt, dt) for tt in range(2) for dt in range(3)]
    seq += [mf1(8, 1, 0, dt) for dt in range(3)] + [mf1(8, 1, 1, dt) for dt in range(3)]
    seq += [mf1(8, ks, tt, dt) for tt in (2, 3) for ks in range(2) for dt in range(3)]
    wr = Rec()
    for tt in range(4):
        for dt in range(3): wr(f"ds_write_b128 v0, {v(A2+16*dt+4*tt,4)} offset:{6400*tt+64*dt}")
    weave(k, seq, [(wr.items[:6], 15, 23)])
    for it in wr.items[6:]: play(k, it)
    k.wait_lg(); g.st("p2end"); k("s_barrier")
    g.fin()
```

```python
from g2 import *
kw = dict(rot2i=2, nshift=18, cthr=5, rot1x=1, stamps=True)
make("m1.s", bst=['stiss'], amp=3, **kw)
make("m2.s", bst=['stiss'], amp=6, **kw)
make("m3.s", bst=['c0'], amp=12, **kw)
make("m4.s", bst=['gemm1'], amp=6, **kw)
make("m5.s", bst=['aend'], amp=4, **kw)
make("m6.s", bst=['u0'], amp=4, **kw)
```

```python
from g2 import *
import g2b
UK0 = 34816
def partA(self):
    k = self.k
    self.enter("L_A"); k.vm = list(self.pvm)
    k(f"""
    s_add_u32 s61, s60, s48          ; d
    s_and_b32 s5, s48, 1
    s_add_u32 s5, s5, 4
    s_cmp_ge_u32 s49, 24
    s_cselect_b32 s64, s5, s48
    s_add_u32 s65, s60, s64          ; second d
    s_lshl_b32 s62, s61, 8
    v_lshl_add_u32 v26, v1, 2, s62
    s_lshl_b32 s62, s61, 1
    v_mov_b32 v27, s62
    s_lshl_b32 s62, s65, 8
    v_lshl_add_u32 v24, v1, 2, s62
    s_lshl_b32 s62, s65, 1
    v_mov_b32 v25, s62
    v_mov_b32 v60, 0
    v_mov_b32 v61, 0
    global_load_dword v10, v26, s[10:11]
    global_load_dword v11, v26, s[12:13]
    global_load_ushort v14, v27, s[18:19]
    global_load_dword v12, v26, s[14:15]
    global_load_dword v13, v26, s[16:17]
    global_load_ushort v15, v27, s[20:21]
    global_load_dword v22, v60, s[46:47]
    """)
    self.st("karg")
    k(f"""
    s_lshl_b32 s4, s48, 3
    s_add_u32 s4, s4, {EXE}
    v_mov_b32 v4, s4
    ds_write_b64 v4, v[60:61]
    global_load_dword v16, v24, s[10:11]
    global_load_dword v17, v24, s[12:13]
    global_load_ushort v20, v25, s[18:19]
    global_load_dword v18, v24, s[14:15]
    global_load_dword v19, v24, s[16:17]
    global_load_ushort v21, v25, s[20:21]
    """)
    k.raw("    s_getpc_b64 s[4:5]\n    s_add_u32 s4, s4, band_tab@rel32@lo+4\n    s_addc_u32 s5, s5, band_tab@rel32@hi+12")
    k(f"v_lshlrev_b32 v56, 4, v1\nv_add_u32 v56, 3072, v56\nv_mov_b32 v57, s5\nv_add_co_u32 v56, vcc, s4, v56\nv_addc_co_u32 v57, vcc, 0, v57, vcc")
    k.wait_lg(); k("s_barrier")
    for i in range(7): k(f"global_load_dwordx4 v[{28+4*i}:{31+4*i}], v[56:57], off offset:{1024*i-3072}")
    k(f"""
    s_mov_b32 s76, s46
    s_mov_b32 s77, s47
    s_mov_b32 s78, {WS_SIZE}
    s_mov_b32 s79, 0x20000
    s_mul_i32 s68, s48, {TW}
    s_add_u32 s69, s68, {UK0}
    s_add_u32 s70, s69, 4608            ; K base
    s_mul_i32 s66, s64, {AW}
    s_add_u32 s66, s66, {UK0}
    s_mov_b32 m0, s68
    s_mov_b32 s71, {WS_AF + 4096}
    s_cmp_ge_u32 s49, 24
    s_cselect_b32 s63, 1, 0
    s_cmp_lt_u32 s48, 2
    s_cselect_b32 s67, 0, s63
    s_cselect_b32 s63, s63, 0
    v_mul_u32_u24 v59, 544, v2
    v_lshl_add_u32 v59, v3, 4, v59
    v_add_u32 v59, s68, v59
    v_and_b32 v58, 7, v2
    v_lshlrev_b32 v58, 2, v58
    s_mov_b32 s62, 0x43222100
    v_lshrrev_b32 v58, v58, s62
    v_and_b32 v58, 15, v58
    v_lshrrev_b32 v62, 3, v2
    v_mad_u32_u24 v58, v62, 5, v58
    v_mul_u32_u24 v58, 544, v58
    v_lshl_add_u32 v58, v3, 4, v58
    v_add_u32 v58, s68, v58
    v_lshrrev_b32 v5, 1, v3
    v_lshlrev_b32 v5, 8, v5
    v_lshl_add_u32 v5, v2, 4, v5
    v_and_b32 v6, 1, v3
    v_lshl_add_u32 v5, v6, 3, v5
    v_sub_u32 v5, 568, v5
    v_lshrrev_b32 v6, 1, v2
    v_and_b32 v8, 1, v2
    v_lshlrev_b32 v9, 6, v3
    v_lshl_add_u32 v9, v6, 2, v9
    v_lshlrev_b32 v23, 8, v8
    v_sub_u32 v23, v23, v9
    v_add_u32 v23, {2368 + 188 - 32}, v23
    v_lshlrev_b32 v9, 7, v3
    v_lshl_add_u32 v9, v6, 2, v9
    v_lshlrev_b32 v8, 1, v8
    v_sub_u32 v8, v8, v9
    v_add_u32 v8, {2368 + 512 + 252 + 256 - 96}, v8
    v_cmp_gt_u32 vcc, 2, v3
    v_cndmask_b32 v6, v8, v23, vcc
    """)
    def tag():
        k(f"v_readfirstlane_b32 s55, v22\ns_mul_i32 s55, s55, {LCG_A}\ns_add_u32 s55, s55, {LCG_C}\ns_max_u32 s55, s55, 1\ns_cmp_ge_u32 s49, 24\ns_cbranch_scc1 L_xp2")
        self.pub_xcc(244, "L_xp2", 0)
    if self.skipA: tag()
    if self.skipA:
        k.raw("    s_waitcnt vmcnt(0)")
        k(f"s_lshl_b32 s4, s65, 2\ns_add_u32 s4, s4, {WS_AF}\nv_mov_b32 v6, s4\nv_mov_b32 v22, s55\nglobal_store_dword v6, v22, s[46:47] sc1\ns_lshl_b32 s4, s61, 2\ns_add_u32 s4, s4, {WS_AF}\nv_mov_b32 v6, s4\ns_mov_b32 s67, 0\ns_branch L_A_skip")
    vFR, vFR1 = 59, 58
    pend_vm = list(k.vm)
    k.raw(".p2align 3\nL_tab:"); k.hist = []
    k(f"""
    v_mov_b32 v60, 0
    v_mov_b32 v61, 0
    v_mov_b32 v62, 0
    v_mov_b32 v63, 0
    v_lshl_add_u32 v8, v1, 4, s70
    v_lshlrev_b32 v14, 16, v14
    v_mul_f32 v14, {fl(LOG2E)}, v14
    v_lshlrev_b32 v64, 16, v10
    v_and_b32 v66, 0xffff0000, v10
    ds_write_b128 v8, v[60:63]
    ds_write_b128 v8, v[60:63] offset:1024
    ds_write_b128 v8, v[60:63] offset:2048
    ds_write_b128 v8, v[60:63] offset:3072
    v_exp_f32 v14, v14
    v_mul_f32 v64, {fl(LOG2E)}, v64
    v_mul_f32 v66, {fl(LOG2E)}, v66
    v_exp_f32 v64, v64
    v_exp_f32 v66, v66
    v_cvt_pk_bf16_f32 v14, v14, v14
    v_lshlrev_b32 v65, 16, v11
    v_and_b32 v67, 0xffff0000, v11
    v_cvt_pk_bf16_f32 v10, v64, v66
    v_and_b32 v14, 0xffff0000, v14
    v_lshlrev_b32 v64, 16, v10
    v_and_b32 v66, 0xffff0000, v10
    v_mul_f32 v64, v64, v14
    v_mul_f32 v66, v66, v14
    v_mul_f32 v65, v65, v14
    v_mul_f32 v67, v67, v14
    v_mul_f32 v64, {fl(-LOG2E)}, v64
    v_mul_f32 v66, {fl(-LOG2E)}, v66
    v_mul_f32 v65, {fl(INV2PI)}, v65
    v_mul_f32 v67, {fl(INV2PI)}, v67
    """)
    self.st("par")
    AR, AI = (64, 66), (65, 67)
    E8, E16, E1, W = (68, 70), (72, 74), (76, 78), (80, 82)
    T = list(range(84, 104, 2))
    G = [[104 + 4*c, 106 + 4*c] for c in range(9)]
    LA, LBb = (140, 142), (144, 146)
    OUT = [148, 150, 152, 154, 232, 234, 236, 238]
    LOF, HF, DT = 156, 188, [220, 224, 228]
    oc = [0]; pendw = []
    def flushw():
        for w_ in pendw: k(w_)
        pendw.clear()
    def entry(row, x0, x1, neg):
        o = OUT[oc[0] % 8]; oc[0] += 1
        n = "-" if neg else ""
        k(f"v_cvt_pk_bf16_f32 v{o}, v{x0}, {n}v{x0+1}\nv_cvt_pk_bf16_f32 v{o+1}, v{x1}, {n}v{x1+1}")
        pendw.append(f"ds_write_addtid_b32 v{o} offset:{544*row}\nds_write_addtid_b32 v{o+1} offset:{544*row+256}")
        if len(pendw) >= self.wbatch: flushw()
    cpow_multi(k, [(E8[n], E8[n]+1, AR[n], AI[n], fl(8.0), T[n], T[n]+1) for n in range(2)] +
                  [(E1[n], E1[n]+1, AR[n], AI[n], "1.0", T[2+n], T[2+n]+1) for n in range(2)] +
                  [(W[n], W[n]+1, AR[n], AI[n], fl(128.0), T[4+n], T[4+n]+1) for n in range(2)])
    cmul_multi(k, [(E16[n], E8[n], E8[n], T[n]) for n in range(2)])
    k(f"v_mov_b32 v{OUT[7]}, 0x3f80"); pendw.append(f"ds_write_addtid_b32 v{OUT[7]}\nds_write_addtid_b32 v{OUT[7]} offset:256")
    entry(1, E8[0], E8[1], True); entry(2, E16[0], E16[1], True)
    pa, pb = E8, E16
    for j in range(3, 16, 2):
        items = [(LA[n], pa[n], E16[n], T[n]) for n in range(2)]
        if j + 1 < 16: items += [(LBb[n], pb[n], E16[n], T[2+n]) for n in range(2)]
        cmul_multi(k, items)
        pa, pb = LA, LBb
        entry(j, LA[0], LA[1], True)
        if j + 1 < 16: entry(j + 1, LBb[0], LBb[1], True)
    flushw()
    for ks in range(8): k(f"ds_read_b128 {v(LOF+4*ks,4)}, v{vFR} offset:{64*ks}")
    k(f"""
    v_add_f32 v14, v14, v14
    v_lshlrev_b32 v{G[0][0]}, 16, v12
    v_lshlrev_b32 v{G[0][0]+1}, 16, v13
    v_and_b32 v{G[0][1]}, 0xffff0000, v12
    v_and_b32 v{G[0][1]+1}, 0xffff0000, v13
    """)
    pk_bc(k, G[0][0], G[0][0], 14, 0); pk_bc(k, G[0][1], G[0][1], 14, 0)
    cmul_multi(k, [(LA[n], E1[n], E1[n], T[n]) for n in range(2)] + [(G[1][n], G[0][n], E1[n], T[2+n]) for n in range(2)]
                    + [(G[8][n], G[0][n], E8[n], T[4+n]) for n in range(2)])
    entry(0, G[0][0], G[0][1], False); entry(1, G[1][0], G[1][1], False)
    for c in range(2, 8, 2):
        cmul_multi(k, [(G[c+i][n], G[c+i-2][n], LA[n], T[2*i+n]) for i in range(2) for n in range(2)])
        entry(c, G[c][0], G[c][1], False); entry(c+1, G[c+1][0], G[c+1][1], False)
    def mulW(cs, Wp=W):
        cmul_multi(k, [(G[c][n], G[c][n], Wp[n], T[(2*i+n) % 10]) for i, c in enumerate(cs) for n in range(2)])
    for cs in ([0, 1, 2], [3, 4, 5], [6, 7, 8]):
        mulW(cs)
        for c in cs:
            if c < 8: entry(8 + c, G[c][0], G[c][1], False)
    def kgen(tile, addr, cinit):
        flushw()
        for ks in range(8): k(f"ds_read_b128 {v(HF+4*ks,4)}, v{addr} offset:{64*ks}")
        return [("i", f"{M16} {v(DT[tile],4)}, {v(HF+4*ks,4)}, {v(LOF+4*ks,4)}, {cinit if ks == 0 else v(DT[tile],4)}", None) for ks in range(8)]
    k(f"v_lshlrev_b32 v15, 16, v15\nv_cmp_eq_u32 vcc, 0, v1\nv_mov_b32 v{DT[0]+1}, 0\nv_mov_b32 v{DT[0]+2}, 0\nv_cndmask_b32 v{DT[0]}, 0, v15, vcc\nv_mov_b32 v{DT[0]+3}, 0")
    def with_mf(mf, fn):
        nonlocal k
        real = k; k = Rec(); fn(); flushw(); items = k.items; k = real
        k.wait_lg()
        weave(k, mf, [(items, 1, len(mf))])
    mf = kgen(0, vFR, v(DT[0], 4))
    ev = [0, 2, 4, 6, 8]
    mulW(ev)
    with_mf(mf, lambda: [entry(i, G[c][0], G[c][1], False) for i, c in enumerate(ev)])
    mulW(ev)
    for i, c in enumerate(ev): entry(5 + i, G[c][0], G[c][1], False)
    mf = kgen(1, vFR1, "0")
    cmul_multi(k, [(E1[n], W[n], W[n], T[n]) for n in range(2)] + [(G[c][n], G[c][n], W[n], T[2+2*i+n]) for i, c in enumerate((4, 8)) for n in range(2)])
    cmul_multi(k, [(G[d_][n], G[c][n], W[n], T[2*i+n]) for i, (d_, c) in enumerate(((3, 4), (7, 8))) for n in range(2)])
    def post(j):
        d = DT[j]; off = 512 if j == 0 else 0; t = 240 + 4*j
        k(f"""
        v_cvt_pk_bf16_f32 v{t}, v{d+3}, v{d+2}
        v_cvt_pk_bf16_f32 v{t+1}, v{d+1}, v{d}
        v_cvt_pk_bf16_f32 v{t+2}, v{d+2}, v{d+1}
        ds_write_b64 v61, v[{t}:{t+1}] offset:{off}
        ds_write_b16 v61, v{t} offset:{off+1214}
        ds_write_b32 v61, v{t+2} offset:{off+1216}
        ds_write_b16_d16_hi v61, v{t+1} offset:{off+1220}
        """)
    k("v_add_u32 v61, s70, v5\nv_mov_b32 v62, s70\nv_add_u32 v63, s70, v6")
    with_mf(mf, lambda: [entry(i, G[c][0], G[c][1], False) for i, c in enumerate((4, 8, 3, 7))])
    mulW([4, 8, 3, 7], E1)
    for i, c in enumerate((4, 8, 3, 7)): entry(4 + i, G[c][0], G[c][1], False)
    for h in range(0, 8, 2):
        mulW([8, 7], E1)
        entry(8 + h, G[8][0], G[8][1], False); entry(9 + h, G[7][0], G[7][1], False)
    mf = kgen(2, vFR, "0")
    self.st("tabs")
    post(0)
    with_mf(mf, lambda: post(1))
    d = DT[1]
    k(f"""
    v_cvt_pk_bf16_f32 v72, v{d+3}, v{d+3}
    s_mov_b32 exec_lo, 0
    s_mov_b32 exec_hi, 0x80000000
    ds_write_b32 v62, v72 offset:60
    ds_write_b16 v62, v72 offset:58
    ds_write_b32 v62, v72 offset:1272
    ds_write_b16 v62, v72 offset:1276
    s_mov_b64 exec, -1
    """)
    d = DT[2]
    k(f"""
    v_cvt_pk_bf16_f32 v74, v{d}, v{d+1}
    v_cvt_pk_bf16_f32 v75, v{d+2}, v{d+3}
    s_mov_b32 exec_hi, 0
    ds_write_b32 v63, v74 offset:32
    ds_write_b32 v63, v75
    s_mov_b32 exec_hi, -1
    s_mov_b32 exec_lo, 0
    ds_write_b16 v63, v74 offset:96
    ds_write_b16_d16_hi v63, v74 offset:64
    ds_write_b16 v63, v75 offset:32
    ds_write_b16_d16_hi v63, v75
    s_mov_b32 exec_lo, -1
    """)
    k.wait_vm()
    k("s_cmp_eq_u32 s63, 0\ns_cbranch_scc1 L_tab_done\ns_cmp_eq_u32 s63, 2\ns_cbranch_scc1 L_tab_sig")
    for i in range(3): k(f"v_mov_b64 {v(10+2*i,2)}, {v(16+2*i,2)}")
    k("s_mov_b32 s63, 2\ns_add_u32 s70, s66, 4608\ns_branch L_tab")
    k.raw("L_tab_sig:")
    k(f"v_mov_b32 v60, {256 if self.gather else 1}\nds_write_b32 v4, v60 offset:4\ns_add_u32 s70, s69, 4608")
    k.raw("L_tab_done:")
    self.st("kgen")
    if not self.skipA: tag()
    k(f"""
    v_lshlrev_b32 v10, 3, v3
    v_sub_u32 v10, v10, v2
    v_add_u32 v10, 15, v10
    v_lshlrev_b32 v10, 1, v10
    v_and_b32 v11, 1, v2
    v_cmp_eq_u32 vcc, 0, v11
    v_mov_b32 v11, 1214
    v_lshlrev_b32 v24, 2, v3
    v_cndmask_b32 v11, 0, v11, vcc
    v_add_u32 v10, v10, v11
    v_sub_u32 v24, v24, v2
    v_add_u32 v24, {15 + 2368//4}, v24
    v_lshlrev_b32 v24, 2, v24           ; P offset
    v_lshlrev_b32 v25, 5, v2
    v_lshl_add_u32 v25, v3, 4, v25
    v_add_u32 v25, 32, v25
    v_and_b32 v26, 1, v3
    v_lshlrev_b32 v26, 9, v26
    v_lshrrev_b32 v27, 2, v2
    v_lshl_add_u32 v26, v27, 7, v26
    v_lshrrev_b32 v27, 1, v3
    v_lshl_add_u32 v26, v27, 6, v26
    v_and_b32 v27, 3, v2
    v_lshl_add_u32 v26, v27, 4, v26
    v_mov_b32 v27, {EXE+56}
    """)
    k.raw(".p2align 3\nL_conv:"); k.hist = []; k.lg = [(set(), None)]
    ACC, KF, K23, ZT, ZP, UR, XT = 56, 88, 156, 196, 220, 232, 12
    self.poll("L_pollU", lambda: k("ds_read_b32 v11, v27"), lambda: k(f"v_cmp_ne_u32 vcc, {256 if self.gather else 1}, v11\ns_nop 1"))
    self.st("U")
    k(f"""
    v_add_u32 v5, s70, v10
    v_add_u32 v6, 1024, v5
    v_add_u32 v8, s70, v24
    v_add_u32 v7, s69, v25
    v_mov_b32 v9, s70
    s_lshl_b32 s62, s61, 12
    s_add_u32 s62, s62, {WS_A}
    """)
    fq = []
    made = set()
    def fill(text, key=None):
        ls = text.split("\n")
        for i, l in enumerate(ls): fq.append((l, key if i == len(ls) - 1 else None))
    def pop():
        l, key = fq.pop(0)
        if callable(l): l()
        else: k(l)
        if key is not None: made.add(key)
    def mf(text, needs, nf=2):
        for key in needs:
            while key not in made: pop()
        n0 = len(k.out)
        k(text)
        extra = len(k.out) - n0 - 1
        for _ in range(nf):
            if fq: pop()
    def kf_read(s_):
        a_, o = (6, 0) if s_ == 0 else (5, 16*(16 - s_))
        fill(f"ds_read2_b32 {v(KF+4*s_,2)}, v{a_} offset0:{o} offset1:{o+1}\nds_read2_b32 {v(KF+4*s_+2,2)}, v{a_} offset0:{o+2} offset1:{o+3}", ("kf", s_))
    k2t = {}; idx = 0
    for D_ in (2, 3, 4):
        for pr in range(2):
            k2t[(2, D_, pr)] = (K23 + 4*idx, 64*pr + 64 - 16*D_); idx += 1
    for D_ in (4, 5, 6, 7):
        k2t[(3, D_, 0)] = (K23 + 4*idx, 128 + 112 - 16*D_); idx += 1
    def k2_read(key):
        r_, o = k2t[key]
        fill(f"ds_read2_b32 {v(r_,2)}, v8 offset0:{o} offset1:{o+1}\nds_read2_b32 {v(r_+2,2)}, v8 offset0:{o+2} offset1:{o+3}", key)
    ring = [UR + 4*i for i in range(6)] + [16, 20]
    loads = [("z", 0), ("c", 0)]
    for j in range(-7, 57):
        loads.append(("u", j))
        if j % 8 == 0 and 1 <= j // 8 <= 5: loads.append(("c", j // 8))
    reg = {}; nl = [0]
    kq = {("u", j): [lambda s_=s_: kf_read(s_) for s_ in ([-j, 8 - j] + ([16] if j == 0 else []))] for j in range(-7, 1)}
    order2 = [(2,2,0), (2,3,0), (2,4,0), (2,2,1), (2,3,1), (2,4,1), (3,4,0), (3,5,0), (3,6,0), (3,7,0)]
    for i, key in enumerate(order2): kq.setdefault(("u", 1 + i // 2), []).append(lambda key=key: k2_read(key))
    kq[("u", -5)].append(lambda: fill(f"ds_read_u16 v11, v9 offset:{2368 + 256 + 4*16 + 2}"))
    kq[("u", -1)].append(lambda: fill("v_lshl_or_b32 v11, v11, 16, v11\n" + "\n".join(f"v_and_b32 v{XT+i}, v{52+i}, v11" for i in range(4)), "xt"))
    def issue_load():
        if nl[0] >= len(loads): return
        key = loads[nl[0]]; r_ = ring[nl[0] % len(ring)]; reg[key] = r_; nl[0] += 1
        off = 64*(key[1] + 7) if key[0] == "u" else 64*7 if key[0] == "z" else 64*(8*key[1] + 7) - 16
        if nl[0] > PD0: fq.insert(0, (f"ds_read_b128 {v(r_,4)}, v7 offset:{off}", key))
        else: fill(f"ds_read_b128 {v(r_,4)}, v7 offset:{off}", key)
        for f in kq.get(key, []): f()
    PD0 = self.cpd
    for _ in range(PD0): issue_load()
    for _ in range(self.cpre_pop): pop()
    first = set()
    def acc(B, a_, b_, needs):
        c = v(ACC+4*B, 4) if B in first else "0"
        first.add(B)
        mf(f"{M16} {v(ACC+4*B,4)}, {v(a_,4)}, {v(b_,4)}, {c}", needs)
    BAND = 28
    pend = []
    def tick():
        for p in pend: p[0] -= 1
        while pend and min(p[0] for p in pend) <= 0:
            i = min(range(len(pend)), key=lambda i: pend[i][0]); pend.pop(i)[1]()
    def out_txt(B):
        q = ACC + 4*B
        return ("\n".join(f"v_cvt_pk_bf16_f32 v{q+i}, v{q+2*i}, v{q+2*i+1}" for i in range(4)),
                f"v_permlane16_swap_b32 v{q}, v{q+2}\nv_permlane16_swap_b32 v{q+1}, v{q+3}", f"buffer_store_dwordx4 {v(q,4)}, v26, s[76:79], s62 offen offset:{512*B} sc1")
    def flag1():
        k("s_cmp_lg_u32 s67, 2\ns_cbranch_scc1 L_nofl\nv_mov_b32 v9, s71\nv_mov_b32 v11, s55")
        k.raw("    s_waitcnt vmcnt(0)")
        k("s_mov_b64 exec, 1\nglobal_store_dword v9, v11, s[46:47] sc1\ns_mov_b64 exec, -1"); k.vm.pop()
        k.raw("L_nofl:")
    late = []
    for key in loads:
        issue_load()
        r_ = reg[key]
        if key[0] in "uz":
            j = key[1]
            if key[0] == "z" or (j % 8 == 0 and 1 <= j // 8 <= 5):
                Bp = j // 8
                for ph in (0, 1, 2) + ((4,) if Bp <= 3 else ()):
                    mf(f"{M16} {v(ZT+4*ph,4)}, {v(r_,4)}, {v(BAND+4*ph,4)}, 0", [key] + ([("s2", Bp-1)] if Bp else []))
            if key[0] == "z": continue
            if j % 8 == 0 and 0 <= j // 8 <= 3: acc(j // 8 + 4, XT, r_, [key, "xt"])
            for B in range(8):
                if 0 <= 8*B - j <= 16: acc(B, KF + 4*(8*B - j), r_, [key, ("kf", 8*B - j)])
            if j == 12: fq.append((flag1, None))
            if j in (8, 24, 40):
                t_ = out_txt(j//8 - 1)
                pend += [[8, lambda t_=t_: fill(t_[0])], [10, lambda t_=t_: fill(t_[1])]]
                if self.ast: pend += [[11, lambda t_=t_: fill(t_[2])]]
                else: late.append(t_[2])
            tick()
        else:
            Bp = key[1]
            for ph in (3,) + ((5,) if Bp <= 3 else ()):
                mf(f"{M16} {v(ZT+4*ph,4)}, {v(r_,4)}, {v(BAND+4*ph,4)}, 0", [key])
            def mk_cvt(Bp, pr):
                return lambda: fill("\n".join(f"v_cvt_pk_bf16_f32 v{ZP+4*pr+i}, v{ZT+8*pr+i}, v{ZT+8*pr+4+i}" for i in range(4)), ("zp", Bp, pr))
            def mk_s2(Bp, pr, last):
                def f():
                    seg, Ds = (2, (2, 3, 4)) if pr < 2 else (3, (4, 5, 6, 7))
                    for D_ in Ds:
                        kk_ = (seg, D_, pr % 2)
                        if Bp + D_ <= 7: acc(Bp + D_, ZP + 4*pr, k2t[kk_][0], [("zp", Bp, pr), kk_])
                    if last: made.add(("s2", Bp))
                return f
            d0 = 9 if Bp == 0 else 0
            pend += [[1 + d0 - d0//3, mk_cvt(Bp, 0)], [2 + d0 - d0//3, mk_cvt(Bp, 1)], [4 + d0, mk_s2(Bp, 0, False)]]
            if Bp <= 3: pend += [[3 + d0 - d0//3, mk_cvt(Bp, 2)]]
            pend += [[5 + d0, mk_s2(Bp, 1, Bp > 3)]]
            if Bp <= 3: pend += [[6 + d0, mk_s2(Bp, 2, True)]]
    assert not pend
    while fq: pop()
    for t_ in late: k(t_)
    self.st("conv")
    k(f"s_lshl_b32 s4, s61, 2\ns_add_u32 s4, s4, {WS_AF}\nv_mov_b32 v6, s4\nv_mov_b32 v22, s55")
    for t_ in out_txt(6): k(t_)
    k.raw("L_A_skip:")
    k("s_cmp_lt_u32 s49, 24\ns_cbranch_scc1 L_A_R2")
    save = list(k.vm)
    k("s_cmp_eq_u32 s67, 1\ns_cbranch_scc0 L_A_last")
    k(f"s_mov_b32 s67, 2\ns_mov_b32 s71, s4\ns_mov_b32 s61, s65\ns_mov_b32 s69, s66\ns_add_u32 s70, s66, 4608\ns_and_b32 s4, s48, 1\ns_lshl_b32 s4, s4, 3\ns_add_u32 s4, s4, {EXE+4}\nv_mov_b32 v27, s4")
    k("s_branch L_conv")
    k.raw("L_A_last:"); k.vm = list(save)
    k.wait_vm()
    k("s_mov_b64 exec, 1\nglobal_store_dword v6, v22, s[46:47] sc1\ns_mov_b64 exec, -1")
    self.st("aend")
    self.fin()
    k.raw("L_A_R2:"); k.vm = list(save)
    k(f"v_mov_b32 v23, 1\nv_and_b32 v5, 3, v1\nv_lshlrev_b32 v5, 3, v5\nv_add_u32 v5, {EXE}, v5\nds_write_b32 v4, v23")
    g2b.p2_min(self); g2b.p2_setup(self); g2b.p2_loads(self)
    k.wait_vm()
    k("s_mov_b64 exec, 1\nglobal_store_dword v6, v22, s[46:47] sc1\ns_mov_b64 exec, -1")
    self.st("aend")
    k.vm = []
    k("s_nop 0"); g2b.p2_unpack(self); g2b.p2_zero(self)
    self.poll("L_pollD", lambda: k("ds_read_b32 v26, v5"), lambda: k("v_cmp_ne_u32 vcc, 1, v26\ns_nop 1"))
    k("s_branch L_P2")
```

```python
from g2 import *
GXL = 157696
def compute1(g):
    k = g.k
    AX, AWr = 8, 12
    GP = g.gpos
    k(f"""
    s_lshl_b32 s4, s54, 7
    v_lshl_add_u32 v16, v1, 1, s4
    v_lshrrev_b32 v5, 5, v1              ; hb
    v_and_b32 v4, 31, v1                 ; col
    s_add_u32 s4, s59, {128*GP}
    s_sub_u32 s5, s4, 1152
    s_min_u32 s4, s4, s5
    v_lshl_add_u32 v17, v5, 4, s4
    global_load_ushort v20, v16, s[36:37]
    global_load_ushort v21, v16, s[24:25]
    global_load_ushort v22, v16, s[26:27]
    s_load_dword s55, s[46:47], 0
    """)
    GF = 64
    if g.prioC: k(f"s_setprio {g.prioC}")
    for ks in range(4): k(f"global_load_dwordx4 {v(GF+4*ks,4)}, v17, s[40:41] offset:{32*ks}")
    g.st("karg")
    k(f"""
    v_bfe_u32 v6, v1, 1, 3
    v_xor_b32 v6, v6, v5
    v_lshlrev_b32 v6, 4, v6
    v_lshl_add_u32 v6, v4, 7, v6
    s_lshl_b32 s4, s48, 12
    v_add_u32 v{AX}, s4, v6
    v_add_u32 v{AWr}, {WSL}, v6
    """)
    for ks in range(1, 4): k(f"v_xor_b32 v{AX+ks}, {32*ks}, v{AX}\nv_xor_b32 v{AWr+ks}, {32*ks}, v{AWr}")
    k(f"""
    s_mov_b32 s76, s46
    s_mov_b32 s77, s47
    s_mov_b32 s78, {WS_SIZE}
    s_mov_b32 s79, 0x20000
    s_lshr_b32 s4, s48, 1
    s_lshl_b32 s5, s53, 1
    s_add_u32 s4, s4, s5
    s_lshl_b32 s13, s4, 10
    s_add_u32 s13, s13, {WS_XI}
    s_mul_i32 s6, s4, {HBLK}
    s_lshl_b32 s5, s54, 14
    s_add_u32 s6, s6, s5
    s_and_b32 s5, s48, 1
    s_lshl_b32 s7, s5, 11
    s_add_u32 s6, s6, s7
    s_add_u32 s60, s6, {WS_H}
    s_add_u32 s61, s60, 8192
    s_mul_i32 s4, s4, 18
    s_add_u32 s4, s4, s5
    s_lshl_b32 s5, s54, 1
    s_add_u32 s4, s4, s5
    s_lshl_b32 s4, s4, 7
    s_add_u32 s4, s4, {WS_HF}
    v_mov_b32 v6, s4
    s_lshl_b32 s10, s54, 14
    s_add_u32 s10, s10, {WS_S}
    s_lshl_b32 s11, s53, 10
    s_add_u32 s11, s11, s10
    s_lshl_b32 s4, s48, 7
    s_add_u32 s4, s4, {GXL}
    v_lshl_add_u32 v19, v5, 6, s4
    v_lshlrev_b32 v16, 4, v1             ; 16*lane
    v_add_u32 v17, s11, v16
    s_lshl_b32 s4, s48, 10
    s_add_u32 s4, s4, {EXE}
    v_add_u32 v18, s4, v16
    v_add_u32 v28, {EXE}, v16
    v_mov_b64 v[126:127], 0
    ds_write_b64 v18, v[126:127] offset:8
    ds_write_b64 v18, v[126:127] offset:4104
    v_lshrrev_b32 v29, 4, v4
    v_lshlrev_b32 v29, 12, v29
    v_lshl_add_u32 v29, v5, 9, v29
    v_lshl_add_u32 v29, v2, 4, v29
    v_xor_b32 v30, 64, v29               ; half 1
    v_cmp_eq_u32 s[64:65], 0, v5
    s_lshl_b32 s4, s48, 5
    v_cvt_f32_u32 v31, s4                ; 32w
    v_mul_f32 v32, 4.0, v31              ; 128w
    """)
    for q in range(4):
        k(f"s_sub_u32 s4, s53, s48\ns_sub_u32 s4, s4, {1+4*q}\ns_lshl_b32 s5, s4, 10\ns_add_u32 s5, s5, s10\ns_cmp_ge_i32 s4, 0\ns_cselect_b32 s5, s5, 0x80000000\ns_cselect_b32 s{24+q}, -1, 0\nv_add_u32 v{24+q}, s5, v16")
    p2_min(g); p2_setup(g)
    EO = 120
    k(f"s_mul_i32 s55, s55, {LCG_A}\ns_add_u32 s55, s55, {LCG_C}\ns_max_u32 s55, s55, 1\ns_not_b32 s62, s55\nv_mov_b32 v{EO+2}, s55\nv_mov_b32 v{EO+3}, s62\ns_mov_b32 s6, s55")
    for q in range(4): k(f"s_and_b32 s{28+q}, s{24+q}, s62\ns_and_b32 s{24+q}, s{24+q}, s55")
    k(f"s_getreg_b32 s4, hwreg(HW_REG_XCC_ID, 0, 4)\nv_mov_b32 v116, s55\nv_mov_b32 v117, s4\ns_lshl_b32 s4, s56, 3\ns_add_u32 s4, s4, s52\ns_lshl_b32 s4, s4, 7\ns_add_u32 s4, s4, {WS_XI}\nv_mov_b32 v119, s4")
    k("v_min_u32 v118, 5, v1\nv_lshl_add_u32 v118, v118, 7, s13")
    k(f"s_mul_i32 s4, s53, 9\ns_add_u32 s4, s4, s54\ns_lshl_b32 s4, s4, 9\ns_lshl_b32 s5, s48, 7\ns_add_u32 s4, s4, s5\ns_add_u32 s4, s4, {WS_G}\ns_add_u32 s5, s5, {GXL}")
    k("v_and_b32 v106, 7, v1\nv_lshl_add_u32 v107, v106, 4, s5\nv_lshl_add_u32 v106, v106, 4, s4")
    Z, LM, L32, L512, WH, LW = 112, 114, 34, 36, 38, 40
    SS, WSr, WSi, MPr, MPi, TB = 42, 46, 50, 54, 58, 64
    tb = lambda p, j: TB + 16*p + 2*(j - 1)
    T = 192
    cs = Rec()
    cs(f"""
    v_lshlrev_b32 v20, 16, v20
    v_mul_f32 v20, {fl(LOG2E)}, v20
    v_exp_f32 v20, v20
    v_lshlrev_b32 v{LM}, 16, v21
    v_lshlrev_b32 v{LM+1}, 16, v22
    v_cvt_pk_bf16_f32 v20, v20, v20
    v_mul_f32 v21, v{LM}, v{LM}
    v_and_b32 v20, 0xffff0000, v20
    v_fmac_f32 v21, v{LM+1}, v{LM+1}
    v_mul_f32 v{Z}, v20, v{LM}
    v_mul_f32 v{Z+1}, v20, v{LM+1}
    v_rcp_f32 v21, v21
    v_mul_f32 v{Z}, {fl(LOG2E)}, v{Z}
    v_mul_f32 v{Z+1}, {fl(INV2PI)}, v{Z+1}
    v_add_f32 v21, v21, v21
    v_mul_f32 v{LM}, v{LM}, v21
    v_mul_f32 v{LM+1}, -v{LM+1}, v21
    """)
    cpow_multi(cs, [(d, d+1, Z, Z+1, ex, T+2*i, T+2*i+1) for i, (d, ex) in enumerate(((tb(0,1), "1.0"), (L32, fl(32.0)), (L512, fl(512.0))))])
    cpow_multi(cs, [(d, d+1, Z, Z+1, ex, T+2*i, T+2*i+1) for i, (d, ex) in enumerate(((WH, "v32"), (LW, "v31")))])
    cs(f"v_add_f32 v{T}, -1.0, v{tb(0,1)}")
    smul(cs, SS, SS+1, T, tb(0,1)+1, LM, LM+1)
    cs(f"v_mov_b32 v{tb(1,1)}, v{tb(0,1)}\nv_mov_b32 v{tb(1,1)+1}, v{tb(0,1)+1}\nv_mov_b32 v{SS+2}, v{SS}\nv_mov_b32 v{SS+3}, v{SS+1}")
    for a_, b_ in ((tb(0,1), tb(1,1)), (tb(0,1)+1, tb(1,1)+1), (SS, SS+2), (SS+1, SS+3)): cs(f"v_permlane32_swap_b32 v{a_}, v{b_}")
    sm = lambda d, x, y: smul(cs, d, d+1, x, x+1, y, y+1)
    for j, (x, y) in {2: (1, 1), 3: (2, 1), 4: (2, 2), 5: (4, 1), 6: (4, 2), 7: (4, 3), 8: (4, 4)}.items():
        for p in range(2): sm(tb(p,j), tb(p,x), tb(p,y))
    L16 = T + 4
    for p in range(2): sm(L16+2*p, tb(p,8), tb(p,8))
    for p in range(2):
        cs(f"""
        v_cndmask_b32 v{WSr+2*p+1}, 1.0, v{L16+2*p}, s[64:65]
        v_cndmask_b32 v{WSi+2*p+1}, 0, v{L16+2*p+1}, s[64:65]
        v_cndmask_b32 v{T+2*p}, v{L16+2*p}, 1.0, s[64:65]
        v_cndmask_b32 v{T+2*p+1}, v{L16+2*p+1}, 0, s[64:65]
        """)
    for p in range(2):
        smul(cs, WSr+2*p, WSi+2*p, tb(p,8), tb(p,8)+1, WSr+2*p+1, WSi+2*p+1)
        smul(cs, MPr+2*p, MPi+2*p, T+2*p, T+2*p+1, SS+2*p, SS+2*p+1)
        smul(cs, MPr+2*p+1, MPi+2*p+1, tb(p,8), tb(p,8)+1, MPr+2*p, MPi+2*p)
    CW = 32
    cs(f"v_mov_b32 v{CW}, 0\nv_mov_b32 v{CW+1}, 0")
    g.st("setup")
    R = [128, 160]; I = [144, 176]; GA = 80; FR = 208
    ACC = [R[0], R[1], I[0], I[1]]
    def reads(e, q):
        c, ks = divmod(q, 4); b = FR + 20*(q % 2)
        e(f"ds_read_b128 {v(b,4)}, v{AX+ks} offset:{16384*(c%3)}")
        for t in (0, 2, 1, 3): e(f"ds_read_b128 {v(b+4+4*t,4)}, v{AWr+ks} offset:{16384*(c%3)+4096*t}")
    def mf(q):
        e = Rec(); b = FR + 20*(q % 2)
        for t in (0, 2, 1, 3): e(f"{M32} {v(ACC[t],16)}, {v(b,4)}, {v(b+4+4*t,4)}, {'0' if q == 0 else v(ACC[t],16)}")
        if q // 4 == GP: e(f"{M32} {v(GA,16)}, {v(b,4)}, {v(GF+4*(q%4),4)}, {'0' if q % 4 == 0 else v(GA,16)}")
        return e.items
    k.wait_lg(); k("s_barrier"); g.st("c0")
    reads(k, 0)
    q0, q1 = g.cs_span
    per = -(-len(cs.items) // (q1 - q0))
    for q in range(36):
        rd = Rec(); ex = Rec()
        if q % 4 == 3 and q < (31 if g.nob8 else 35):
            k.wait_lg(); k("s_barrier"); g.st(f"c{q//4+1}")
        if q < 35: reads(rd, q + 1)
        if q == 4*GP + 5:
            ex.group("s_mov_b32 exec_lo, 1\ns_mov_b32 exec_hi, 1\n" + "\n".join(f"ds_write_b128 v19, {v(GA+4*i,4)} offset:{16*i}" for i in range(4)) + "\ns_mov_b64 exec, -1")
        if q == g.xq:
            ex.items.append(("raw", "    s_cmp_lg_u32 s48, 0\n    s_cbranch_scc1 L_xp1\n    s_mov_b64 exec, 1\n    global_store_dwordx2 v119, v[116:117], s[46:47] sc1\n    s_mov_b64 exec, -1\nL_xp1:", None))
        if q == 4*GP + 8: ex("ds_read_b128 v[108:111], v107")
        cp = cs.items[(q-q0)*per:(q-q0+1)*per] if q0 <= q < q1 else []
        weave(k, mf(q), [(rd.items, 1, 3), (ex.items, 4, 4), (cp, 1, 4)])
    g.st("gemm1")
    for st in range(1, 8):
        for p in range(2):
            pk_bc(k, R[p]+2*st, R[p]+2*st-2, tb(p,1), 0, R[p]+2*st)
            pk_bc(k, I[p]+2*st, I[p]+2*st-2, tb(p,1), 0, I[p]+2*st)
            pk_bc(k, R[p]+2*st, I[p]+2*st-2, tb(p,1), 1, R[p]+2*st, neg=True)
            pk_bc(k, I[p]+2*st, R[p]+2*st-2, tb(p,1), 1, I[p]+2*st)
    T = 208
    for p in range(2): k(f"v_pk_mul_f32 {v(T+4*p,2)}, {v(R[p]+14,2)}, {v(WSr+2*p,2)}\nv_pk_mul_f32 {v(T+4*p+2,2)}, {v(I[p]+14,2)}, {v(WSr+2*p,2)}")
    for p in range(2): k(f"v_pk_fma_f32 {v(T+4*p,2)}, {v(I[p]+14,2)}, {v(WSi+2*p,2)}, {v(T+4*p,2)} neg_lo:[1,0,0] neg_hi:[1,0,0]\nv_pk_fma_f32 {v(T+4*p+2,2)}, {v(R[p]+14,2)}, {v(WSi+2*p,2)}, {v(T+4*p+2,2)}")
    for i in range(4): k(f"v_add_f32 v{T+2*i}, v{T+2*i}, v{T+2*i+1}")
    k(f"v_permlane32_swap_b32 v{T}, v{T+4}\nv_permlane32_swap_b32 v{T+2}, v{T+6}")
    k(f"v_add_f32 v{EO}, v{T}, v{T+4}\nv_add_f32 v{EO+1}, v{T+2}, v{T+6}")
    g.st("p1")
    k(f"ds_write_b128 v18, {v(EO,4)}")
    sc = Rec()
    for p in range(2):
        for st in range(8):
            a, b = T + 4*(st % 2), T + 4*(st % 2) + 2
            pk_bc(sc, a, R[p]+2*st, SS+2*p, 0); pk_bc(sc, b, R[p]+2*st, SS+2*p, 1)
            pk_bc(sc, R[p]+2*st, I[p]+2*st, SS+2*p, 1, a, neg=True); pk_bc(sc, I[p]+2*st, I[p]+2*st, SS+2*p, 0, b)
    for it in sc.items[:g.e_gap]: play(k, it)
    E = 216
    def issE():
        for w in range(3): k(f"ds_read_b128 {v(E+4*w,4)}, v28 offset:{1024*w}")
    def chkE():
        k(f"v_and_b32 v{E+3}, v{E+2}, v{E+6}\nv_and_b32 v{E+3}, v{E+3}, v{E+10}\nv_cmp_ne_u32 vcc, s55, v{E+3}\ns_nop 0")
    k("s_cmp_lg_u32 s48, 3\ns_cbranch_scc1 L_nopub")
    k.vm = []
    g.poll("L_pollE3", issE, chkE)
    g.st("Earr")
    cmac(k, [(E+4, E, L32, E+4)])
    cmac(k, [(CW, E+4, L32, E+8)])
    cmac(k, [(EO, CW, L32, EO)])
    k(f"global_store_dwordx4 v17, {v(EO,4)}, s[46:47] sc1"); k.vm = []
    g.st("pub")
    k.raw("L_nopub:"); k.lg = [(set(), None)]
    p2_loads(g)
    k("global_load_dwordx2 v[124:125], v118, s[46:47] sc1")
    k("s_mov_b64 exec, 0xff\nglobal_store_dwordx4 v106, v[108:111], s[46:47] sc1\ns_mov_b64 exec, -1")
    for it in sc.items[g.e_gap:]: play(k, it)
    CPr, CPi = WSr, WSi
    for p in range(2):
        smul(k, T+2*p, T+2*p+1, tb(p,8), tb(p,8)+1, R[p]+14, I[p]+14, R[p]+15, I[p]+15)
        k(f"v_mov_b32 v{CPr+2*p}, 0\nv_mov_b32 v{CPi+2*p}, 0")
    for p in range(2): k(f"v_permlane32_swap_b32 v{CPr+2*p}, v{T+2*p}\nv_permlane32_swap_b32 v{CPi+2*p}, v{T+2*p+1}")
    for p in range(2): smul(k, CPr+2*p+1, CPi+2*p+1, tb(p,8), tb(p,8)+1, CPr+2*p, CPi+2*p, R[p]+14, I[p]+14)
    g.st("scale")
    PD = 232
    def issS():
        for q in range(4): k(f"buffer_load_dwordx4 {v(PD+4*q,4)}, v{24+q}, s[76:79], 0 offen sc1")
    def chkS():
        for q in range(4): k(f"v_xor_b32 v{PD+4*q+2}, s{24+q}, v{PD+4*q+2}\nv_xor_b32 v{PD+4*q+3}, s{28+q}, v{PD+4*q+3}")
        k(f"v_or3_b32 v{PD+2}, v{PD+2}, v{PD+3}, v{PD+6}\nv_or3_b32 v{PD+7}, v{PD+7}, v{PD+10}, v{PD+11}\nv_or3_b32 v{PD+2}, v{PD+2}, v{PD+14}, v{PD+15}\nv_or_b32 v{PD+2}, v{PD+2}, v{PD+7}\nv_cmp_ne_u32 vcc, 0, v{PD+2}\ns_nop 0")
    k("s_add_u32 s4, s48, 1\ns_bitcmp0_b32 s4, 1\ns_cbranch_scc1 L_cw_done")
    vms = list(k.vm); k.vm = []
    g.poll("L_pollE", issE, chkE)
    k(f"v_mov_b64 {v(CW,2)}, {v(E,2)}\ns_cmp_eq_u32 s48, 1\ns_cbranch_scc1 L_cw_done")
    cmac(k, [(CW, E, L32, E+4)])
    k.raw("L_cw_done:"); k.vm = vms
    p2_unpack(g)
    g.st("prep")
    k.vm = [(set(), None)]
    g.poll("L_pollS", issS, chkS)
    g.st("Sarr")
    for q in (2, 1, 0): cmac(k, [(PD+4*q, PD+4*q+4, L512, PD+4*q)])
    cmul_multi(k, [(EO, PD, WH, T)])
    k(f"ds_write_b128 v18, {v(EO,4)} offset:4096")
    k("v_cmp_ne_u64 s[72:73], v[124:125], v[116:117]")
    def iss():
        for w in range(4): k(f"ds_read_b128 {v(PD+4*w,4)}, v28 offset:{4096+1024*w}")
    def chk():
        k(f"v_and_b32 v{PD+3}, v{PD+2}, v{PD+6}\nv_and_b32 v{PD+7}, v{PD+10}, v{PD+14}\nv_pk_add_f32 {v(PD,2)}, {v(PD,2)}, {v(PD+4,2)}\nv_and_b32 v{PD+3}, v{PD+3}, v{PD+7}\nv_cmp_ne_u32 vcc, s55, v{PD+3}\nv_pk_add_f32 {v(PD+8,2)}, {v(PD+8,2)}, {v(PD+12,2)}")
    g.poll("L_pollX", iss, chk)
    g.st("Xarr")
    k(f"v_pk_add_f32 {v(PD,2)}, {v(PD,2)}, {v(PD+8,2)}")
    cmac(k, [(CW, PD, LW, CW)])
    HH = [CW, T]
    k(f"v_mov_b64 {v(T,2)}, {v(CW,2)}\ns_cmp_lg_u64 s[72:73], 0\nv_permlane32_swap_b32 v{CW}, v{T}\nv_permlane32_swap_b32 v{CW+1}, v{T+1}")
    for p in range(2):
        pk_bc(k, CPr+2*p, MPr+2*p, HH[p], 0, CPr+2*p); pk_bc(k, CPi+2*p, MPi+2*p, HH[p], 0, CPi+2*p)
    for p in range(2):
        pk_bc(k, CPr+2*p, MPi+2*p, HH[p], 1, CPr+2*p, neg=True); pk_bc(k, CPi+2*p, MPr+2*p, HH[p], 1, CPi+2*p)
    HO = 216
    def tail(sc):
        for p in range(2):
            for comp in range(2):
                A_, c0, c1 = (R[p], CPr, CPi) if comp == 0 else (I[p], CPi, CPr)
                for st in range(8): pk_bc(k, A_+2*st, c0+2*p, tb(p,st+1), 0, A_+2*st)
                for st in range(8): pk_bc(k, A_+2*st, c1+2*p, tb(p,st+1), 1, A_+2*st, neg=(comp == 0))
                n = "-" if comp else ""
                for half in range(2):
                    o = HO + 16*p + 8*comp + 4*half
                    for i in range(4): k(f"v_cvt_pk_bf16_f32 v{o+i}, {n}v{A_+4*i+half}, {n}v{A_+4*i+2+half}")
                    k(f"buffer_store_dwordx4 {v(o,4)}, v{29+half}, s[76:79], s{60+p} offen offset:{1024*comp+256*half} {sc}")
        g.st("hst")
        p2_zero(g)
        k("s_mov_b64 exec, 1")
        k.raw("    s_waitcnt vmcnt(0)"); k.vm = []
        k(f"global_store_dword v6, v{EO+2}, s[46:47] {sc}\ns_mov_b64 exec, -1")
        g.st("flag")
    if g.fast:
        k("s_cbranch_scc1 L_slow")
        g.slow_tail = lambda: tail("sc1")
        tail(g.hst)
    else: tail("sc1")
    k.raw("L_tail_done:"); k.vm = []

XR, DBR, DBF = 232, [204, 206, 244], 216
XB = list(range(192, 204)) + list(range(8, 16)) + list(range(20, 24))
AR = 32
def p2_loads(g):
    k = g.k
    for jj in range(3):
        k(f"global_load_dwordx2 {v(XR+2*jj,2)}, v100, s[8:9] offset:{64*jj}\nglobal_load_dwordx2 {v(XR+6+2*jj,2)}, v101, s[8:9] offset:{64*jj}\nglobal_load_dwordx2 {v(DBR[jj],2)}, v99, s[38:39] offset:{64*jj}")
    k("v_lshlrev_b32 v100, 1, v100\nv_lshlrev_b32 v101, 1, v101")
def p2_unpack(g):
    k = g.k
    for jj in range(3):
        for h in range(2): k(f"v_lshlrev_b32 v{DBF+4*jj+2*h}, 16, v{DBR[jj]+h}\nv_and_b32 v{DBF+4*jj+2*h+1}, 0xffff0000, v{DBR[jj]+h}")
    for q in range(12): k(f"v_lshlrev_b32 v{XB[2*q]}, 16, v{XR+q}\nv_and_b32 v{XB[2*q+1]}, 0xffff0000, v{XR+q}")
    for q in range(12): k(f"v_pk_mul_f32 {v(XB[2*q],2)}, {v(XB[2*q],2)}, {v(DBF+2*(q%6),2)}")
def p2_zero(g):
    for q in range(12): g.k(f"v_mov_b64 {v(AR+2*q,2)}, 0")
def p2_min(g):
    k = g.k
    k(f"""
    s_cmp_lt_u32 s48, 2
    s_cselect_b32 s16, s32, s34
    s_cselect_b32 s17, s33, s35
    s_mov_b32 s18, 663552
    s_mov_b32 s19, 0x20000
    s_mov_b32 s{UO[0]}, s57
    s_mul_i32 s4, s56, {18*128}
    s_add_u32 s4, s4, {WS_HF}
    v_min_u32 v62, 17, v1
    v_lshl_add_u32 v62, v62, 7, s4
    s_mul_i32 s4, s56, {HBLK}
    s_lshl_b32 s15, s48, 12
    s_add_u32 s4, s4, s15
    s_add_u32 s4, s4, {WS_H}
    v_lshl_add_u32 v63, v1, 4, s4
    """)
    offsets(k, UO)
def p2_setup(g):
    k = g.k
    k(f"""
    s_lshl_b32 s4, s56, 6
    v_lshrrev_b32 v96, 3, v0             ; tl
    v_add_u32 v97, s4, v96
    v_and_b32 v98, 7, v0                 ; dl
    s_mul_i32 s5, s52, 192
    v_lshl_add_u32 v99, v98, 3, s5
    v_mul_u32_u24 v100, 1152, v97
    v_add_u32 v100, v100, v99
    v_add_u32 v101, {32*1152}, v100
    """)
    k(f"""
    s_lshr_b32 s4, s56, 1
    s_mul_i32 s4, s4, {9*512}
    s_lshl_b32 s5, s51, 8
    s_add_u32 s4, s4, s5
    s_lshr_b32 s5, s48, 1
    s_lshl_b32 s5, s5, 6
    s_add_u32 s4, s4, s5
    s_and_b32 s5, s48, 1
    s_lshl_b32 s5, s5, 2
    s_add_u32 s4, s4, s5
    s_add_u32 s4, s4, {WS_G}
    v_lshrrev_b32 v102, 3, v1
    v_lshl_add_u32 v103, v102, 3, s4       ; j=8 base - 4096
    v_lshl_add_u32 v104, v98, 9, v103
    v_add_u32 v103, 4096, v103
    s_mul_i32 s4, s52, 384
    s_add_u32 s4, s4, {WS_AF}
    v_min_u32 v105, 47, v1
    v_lshl_add_u32 v105, v105, 3, s4
    s_mul_i32 s4, s52, 96
    s_mul_i32 s5, s48, 24
    s_add_u32 s4, s4, s5
    s_lshl_b32 s4, s4, 12
    s_lshl_b32 s5, s56, 7
    s_add_u32 s4, s4, s5
    s_add_u32 s4, s4, {WS_A}
    v_lshl_add_u32 v253, v102, 12, s4
    v_lshrrev_b32 v254, 5, v1
    s_mul_i32 s5, s48, 6
    v_add_u32 v254, s5, v254
    """)
    for n in range(3): k(f"v_add_u32 v255, {2*n}, v254\nv_xor_b32 v255, v255, v1\nv_and_b32 v255, 7, v255\nv_lshl_add_u32 v{248+n}, v255, 4, v253")
    k(f"""
    s_mul_i32 s4, s52, 96
    s_and_b32 s5, s48, 1
    s_mul_i32 s5, s5, 48
    s_add_u32 s4, s4, s5
    v_add_u32 v253, s4, v102
    v_mul_u32_u24 v253, 1152, v253
    v_xor_b32 v254, v98, v3
    v_lshl_add_u32 v253, v254, 4, v253   ; vC0
    v_xor_b32 v254, 64, v253
    v_add_u32 v254, 8192, v254           ; vC1
    s_mul_i32 s22, s48, 12288
    s_add_u32 s22, s22, {CST}
    s_mul_i32 s21, s48, 3072
    s_and_b32 s4, s48, 1
    s_lshl_b32 s4, s4, 2
    s_lshr_b32 s5, s48, 1
    s_add_u32 s4, s4, s5
    v_xor_b32 v251, s4, v98
    v_lshlrev_b32 v251, 4, v251
    v_lshl_add_u32 v251, v98, 9, v251
    v_lshl_add_u32 v251, v102, 1, v251
    v_add_u32 v251, {AST}, v251
    v_xor_b32 v252, 32, v251
    v_mul_u32_u24 v96, 400, v96
    v_lshl_add_u32 v96, v98, 4, v96
    v_add_u32 v96, {IMG}, v96
    """)

def loader2(g):
    k = g.k
    k.raw("L_P2:"); k.vm = []; k.lg = []
    GG, OM = 58, 60
    g.poll("L_pollH", lambda: k("global_load_dword v97, v62, s[46:47] sc1"), lambda: k("v_cmp_ne_u32 vcc, s55, v97\ns_nop 1"))
    g.st("Harr")
    def h_dma(u):
        k(f"s_add_u32 m0, s15, {16384*(u%6)}\ns_lshl_b32 s63, s{UO[u]}, 7")
        for n in range(4): k(f"buffer_load_dwordx4 v63, s[76:79], s63 offen offset:{1024*n} {g.hld} lds", tag=("h", u))
    def c_blk(n):
        k(f"s_add_u32 m0, s22, {2048*(n%6)}\ns_add_u32 s20, s{UO[n//3]}, {18432*(n%3)}\nbuffer_load_dwordx4 v253, s[16:19], s20 offen lds\nbuffer_load_dwordx4 v254, s[16:19], s20 offen offset:1024 lds", tag="C")
    def bar(u, *tags):
        for t in tags: k.wait_vm(t)
        k("s_barrier"); g.st(f"u{u}")
    cb = list(range(g.cmf, 27))
    h_dma(0); h_dma(1)
    bar(0, ("h", 0)); h_dma(2)
    bar(1, ("h", 1)); h_dma(3)
    bar(2, ("h", 2)); h_dma(4); h_dma(5)
    bar(3, ("h", 4))
    for ii in range(2): k(f"global_load_dword v{GG+ii}, v104, s[46:47] offset:{128*ii} sc1\nglobal_load_dword v{56+ii}, v103, s[46:47] offset:{128*ii} sc1")
    h_dma(6)
    for n in cb[:3]: c_blk(n)
    k("global_load_dwordx2 v[24:25], v105, s[46:47] sc1", tag="af")
    h_dma(7)
    bar(5, ("h", 6), "C")
    chk = lambda: k("v_cmp_ne_u32 vcc, s55, v24\nv_cmp_ne_u32 s[4:5], s55, v25\ns_or_b64 vcc, vcc, s[4:5]")
    h_dma(8)
    for n in cb[3:]: c_blk(n)
    def a_fetch(lab):
        k.wait_vm("af"); chk(); k(f"s_cbranch_vccz {lab}_done")
        save = list(k.vm)
        g.poll(lab, lambda: k("global_load_dwordx2 v[24:25], v105, s[46:47] sc1"), chk)
        k.vm = save
        g.st("Aarr")
        k(f"s_add_u32 m0, s21, {AST}")
        for n in range(3): k(f"s_mov_b32 s4, {32768*n - 1024*n}\nbuffer_load_dwordx4 v{248+n}, s[76:79], s4 offen offset:{1024*n} sc1 lds", tag="a")
    if not g.a_late: a_fetch("L_pollA")
    for ctl in ("quad_perm:[1,0,3,2]", "quad_perm:[2,3,0,1]", "row_half_mirror"):
        for ii in range(2): k(f"v_add_f32_dpp v{GG+ii}, v{GG+ii}, v{GG+ii} {ctl} row_mask:0xf bank_mask:0xf")
    for ii in range(2): k(f"v_add_f32 v{GG+ii}, v{GG+ii}, v{56+ii}\nv_mul_f32 v{GG+ii}, {fl(-LOG2E)}, v{GG+ii}")
    for ii in range(2): k(f"v_exp_f32 v{GG+ii}, v{GG+ii}")
    for ii in range(2): k(f"v_add_f32 v{GG+ii}, 1.0, v{GG+ii}")
    for ii in range(2): k(f"v_rcp_f32 v{GG+ii}, v{GG+ii}")
    for ii in range(2): k(f"v_sub_f32 v{OM+ii}, 1.0, v{GG+ii}")
    for q in range(24): k(f"v_mul_f32 v{XB[q]}, v{XB[q]}, v{OM+q//12}")
    bar(7, ("h", 8), "C")
    if g.a_late: a_fetch("L_pollA")
    bar(8, "a")
    for q in range(24): k(f"ds_read_u16_d16_hi v{AR+q}, v{251+q//12} offset:{128*(q%4)+4096*((q%12)//4)}")
    for q in range(24): k(f"v_fmac_f32 v{XB[q]}, v{AR+q}, v{GG+q//12}")
    E0 = 128
    for ii in range(2):
        k("s_barrier"); g.st(f"img{ii}")
        for jj in range(3):
            q = 3*ii + jj
            k(f"ds_read_b128 {v(E0+8*q,4)}, v96 offset:{12800*ii+128*jj}\nds_read_b128 {v(E0+8*q+4,4)}, v96 offset:{25600+12800*ii+128*jj}")
        for jj in range(3):
            q = 3*ii + jj
            if ii == 0:
                for e_ in range(4): k(f"v_add_f32 v{E0+8*q+e_}, v{E0+8*q+e_}, v{E0+8*q+4+e_}")
                for e_ in range(4): k(f"v_fma_f32 v{E0+8*q+e_}, v{E0+8*q+e_}, v{OM}, v{XB[4*jj+e_]}")
            else:
                for h in range(2): k(f"v_pk_add_f32 {v(E0+8*q+2*h,2)}, {v(E0+8*q+2*h,2)}, {v(E0+8*q+4+2*h,2)}")
                for h in range(2): pk_bc(k, E0+8*q+2*h, E0+8*q+2*h, OM, ii, XB[12+4*jj+2*h])
            k(f"global_store_dwordx4 v{100+ii}, {v(E0+8*q,4)}, s[42:43] offset:{128*jj} {g.ost}")
    g.st("stiss")
    k(f"s_cmp_lg_u32 s56, {99 if g.dbg_now2 else 31}\ns_cbranch_scc1 L_fin2\ns_or_b32 s4, s52, s48\ns_cbranch_scc1 L_fin2")
    k(f"v_min_u32 v8, 47, v1\nv_lshlrev_b32 v8, 4, v8\nv_add_u32 v8, {WS_AF}, v8")
    def iss():
        for i in range(3): k(f"global_load_dwordx4 {v(64+4*i,4)}, v8, s[46:47] offset:{768*i} sc1")
    def chk():
        for i in range(12): k(f"v_xor_b32 v{64+i}, s55, v{64+i}")
        for i in range(1, 12): k(f"v_or_b32 v64, v64, v{64+i}")
        k("v_cmp_ne_u32 vcc, 0, v64\ns_nop 1")
    g.poll("L_pollW", iss, chk)
    k("v_mov_b32 v6, 0\nv_mov_b32 v7, s55\ns_mov_b64 exec, 1\nglobal_store_dword v6, v7, s[46:47]\ns_mov_b64 exec, -1")
    k.out.append("L_fin2:")
    g.fin()
    if g.fast:
        g.enter("L_slow", karg=False); k("s_nop 1"); g.slow_tail(); k("s_branch L_tail_done")

def loader1(g):
    k = g.k
    k(f"""
    s_sub_u32 s62, s48, 4                ; lw
    v_lshrrev_b32 v4, 3, v1              ; rl
    v_and_b32 v5, 7, v1
    {'v_xor_b32 v5, v5, v3' if not g.dbg_noswz else ''}
    v_lshlrev_b32 v5, 4, v5
    v_mul_u32_u24 v6, 1152, v4
    v_add_u32 v6, v6, v5
    s_mov_b32 s66, 2359296
    s_mov_b32 s67, 0x20000
    s_mov_b32 s70, 663552
    s_mov_b32 s71, 0x20000
    s_mov_b32 s74, {0 if g.dbg_noC else 663552}
    s_mov_b32 s75, 0x20000
    s_mul_i32 s61, s62, 12288
    s_add_u32 s61, s61, {CST}
    s_cmp_ge_u32 s49, 18
    s_cbranch_scc1 L_R2G
    v_lshrrev_b32 v8, 2, v4
    v_lshlrev_b32 v8, 4, v8
    v_and_b32 v9, 1, v4
    v_lshl_add_u32 v8, v9, 3, v8
    v_bfe_u32 v9, v4, 1, 1
    v_add_u32 v8, v8, v9
    s_lshl_b32 s4, s53, 7
    s_lshl_b32 s5, s62, 5
    s_add_u32 s4, s4, s5
    v_add_u32 v8, s4, v8
    v_mul_u32_u24 v8, 1152, v8
    v_add_u32 v8, v8, v5                 ; x n=0
    v_xor_b32 v9, 64, v8
    v_add_u32 v10, {2*(2304-1024)}, v8
    v_add_u32 v11, {3*(2304-1024)}, v9
    v_add_u32 v9, {2304-1024}, v9
    s_lshl_b32 s4, s54, 6
    s_and_b32 s5, s62, 1
    s_lshl_b32 s5, s5, 5
    s_add_u32 s4, s4, s5
    s_mul_i32 s4, s4, 1152
    v_add_u32 v12, s4, v6
    v_xor_b32 v13, 64, v12
    v_add_u32 v14, {2*8192}, v12
    v_add_u32 v15, {3*8192}, v13
    v_add_u32 v13, 8192, v13
    s_lshl_b32 s6, s62, 12
    s_cmp_lt_u32 s62, 2
    s_mov_b32 s64, s8
    s_mov_b32 s65, s9
    s_cselect_b32 s68, s28, s30
    s_cselect_b32 s69, s29, s31
    s_mov_b32 s10, s59
    """)
    CO = list(range(10, 19))
    def dma(c, parts="wx"):
        if "w" in parts:
            k(f"s_add_u32 m0, s6, {WSL + 16384*(c%3)}")
            for n in range(4): k(f"buffer_load_dwordx4 v{12+n}, s[68:71], s{CO[c]} offen offset:{1024*n} lds", tag=("c", c))
        if "x" in parts:
            k(f"s_add_u32 m0, s6, {XS + 16384*(c%3)}")
            for n in range(4): k(f"buffer_load_dwordx4 v{8+n}, s[64:67], s{CO[c]} offen offset:{1024*n} lds", tag=("c", c))
    def csetup():
        k(f"""
        s_cmp_lt_u32 s62, 2
        s_cselect_b32 s72, s32, s34
        s_cselect_b32 s73, s33, s35
        s_mov_b32 s{UO[0]}, s57
        s_mul_i32 s4, s52, 96
        s_and_b32 s5, s62, 1
        s_mul_i32 s5, s5, 48
        s_add_u32 s4, s4, s5
        s_mul_i32 s4, s4, 1152
        v_add_u32 v6, s4, v6                 ; vC0
        v_xor_b32 v7, 64, v6
        v_add_u32 v7, 8192, v7               ; vC1
        v_lshrrev_b32 v4, 1, v2
        v_xor_b32 v4, v4, v3
        v_lshlrev_b32 v4, 4, v4
        v_lshl_add_u32 v4, v2, 7, v4
        v_add_u32 v4, s61, v4
        v_xor_b32 v5, 64, v4
        """)
        offsets(k, UO)
    CU = lambda u: 88 + 24*(u % 7)
    def c_dma(n):
        k(f"s_add_u32 m0, s61, {2048*(n%6)}\ns_add_u32 s20, s{UO[n//3]}, {18432*(n%3)}\nbuffer_load_dwordx4 v6, s[72:75], s20 offen lds\nbuffer_load_dwordx4 v7, s[72:75], s20 offen offset:1024 lds", tag=("C", n))
    def c_drain(e, n):
        for ks in range(2): e(f"ds_read_b128 {v(CU(n//3)+12*ks+4*(n%3),4)}, v{4+ks} offset:{2048*(n%6)}", tag=("Cd", n))
    def cstream(n0, depth):
        drained = 0
        for n in range(n0, g.cmf):
            D = depth(n)
            while drained <= n - D and drained < 21:
                k.wait_vm(("C", drained)); c_drain(k, drained); drained += 1
            if drained >= 21: k.wait_vm(("C", n - D))
            if n >= 6: k.wait_lg(("Cd", n - 6))
            c_dma(n)
        while drained < 21:
            k.wait_vm(("C", drained)); c_drain(k, drained); drained += 1
        k.wait_vm()
    g.st("karg")
    dma(0)
    offsets(k, CO)
    csetup()
    if g.prioL: k(f"s_setprio {g.prioL}")
    dma(1, g.first)
    for c in range(9):
        if g.nob8 and c == 8: break
        k.wait_vm(("c", 8 if (g.nob8 and c == 7) else c)); g.st(f"l{c}"); k("s_barrier")
        if c == 0: dma(1, [p for p in "wx" if p not in g.first])
        if c + 2 < 9: dma(c + 2)
        if c == (6 if g.nob8 else 7):
            for n in range(g.cpre): c_dma(n)
    cstream(g.cpre, lambda n: 5 if n < g.cfast else g.cthr)
    k("s_branch L_CPF")
    vm_c = list(k.vm)
    g.enter("L_R2G"); k.vm = list(g.pvm)
    UK0 = 34816
    k(f"""
    s_mul_i32 s3, s62, 14
    s_add_u32 s3, s3, s49
    s_sub_u32 s3, s3, 18
    s_lshr_b32 s6, s3, 2                 ; col
    s_and_b32 s7, s3, 3
    s_lshl_b32 s4, s50, 2
    s_add_u32 s7, s7, s4                 ; tb
    v_and_b32 v8, 7, v1                  ; rg
    s_mul_i32 s4, s7, {64*1152}
    s_lshl_b32 s5, s6, 7
    s_add_u32 s4, s4, s5
    v_mul_u32_u24 v9, 9216, v8
    v_lshl_add_u32 v9, v4, 4, v9
    v_add_u32 v9, s4, v9
    v_add_u32 v11, 4608, v9
    v_mov_b32 v60, 0
    v_mov_b32 v61, 0
    s_mov_b32 s64, s8
    s_mov_b32 s65, s9
    global_load_dword v62, v60, s[46:47]
    s_cmp_ge_u32 s3, {0 if g.gather else 36}
    s_cbranch_scc1 L_noT1
    """)
    for i in range(8): k(f"buffer_load_dwordx4 {v(64+4*i,4)}, v{9 if i < 4 else 11}, s[64:67], 0 offen offset:{1152*(i%4)}")
    k.raw("L_noT1:")
    if g.bpf:
        k(f"""
        s_cmp_lt_u32 s3, 28
        s_cselect_b32 s68, s28, s30
        s_cselect_b32 s69, s29, s31
        s_cselect_b32 s4, 0, 28
        s_sub_u32 s4, s3, s4
        s_mul_i32 s4, s4, 21
        v_mul_u32_u24 v20, 3121, v1
        v_lshrrev_b32 v20, 16, v20           ; lane/21
        v_mul_u32_u24 v21, 21, v20
        v_sub_u32 v21, v1, v21
        v_add_u32 v21, s4, v21
        v_lshrrev_b32 v22, 6, v21            ; j
        v_mul_u32_u24 v22, {g.rot1j}, v22
        s_mul_i32 s4, s50, {g.rot1x}
        v_add_u32 v22, s4, v22
        v_lshlrev_b32 v20, 2, v20
        v_mul_u32_u24 v21, 1152, v21
        """)
        for i, pat in enumerate(g.bpf):
            k(f"s_mov_b32 s4, {pat}\nv_bfe_u32 v23, s4, v20, 4\nv_add_u32 v23, v23, v22\nv_mul_u32_u24 v24, 7282, v23\nv_lshrrev_b32 v24, 16, v24\nv_mul_u32_u24 v24, 9, v24\nv_sub_u32 v23, v23, v24\nv_lshl_add_u32 v23, v23, 7, v21\nbuffer_load_dword v{26+i}, v23, s[68:71], 0 offen")
    g.st("bpfi")
    if g.dbg_bw: k.raw("    s_waitcnt vmcnt(0)"); g.st("bpfd")
    k(f"""
    s_lshl_b32 s4, s48, 3
    s_add_u32 s4, s4, {EXE}
    v_mov_b32 v10, s4
    ds_write_b64 v10, v[60:61]
    s_mul_i32 s10, s62, {AW}
    s_add_u32 s10, s10, {UK0}
    v_lshl_add_u32 v12, v1, 3, s10
    ds_write_b64 v12, v[60:61]
    s_and_b32 s4, s62, 1
    s_mul_i32 s11, s4, {AW}
    s_add_u32 s11, s11, {UK0 + 4*AW}
    v_lshl_add_u32 v12, v1, 3, s11
    ds_write_b64 v12, v[60:61]
    s_mov_b32 s76, s46
    s_mov_b32 s77, s47
    s_mov_b32 s78, {WS_SIZE}
    s_mov_b32 s79, 0x20000
    s_mov_b32 s22, 0x05040100
    s_mov_b32 s23, 0x07060302
    s_lshl_b32 s5, s6, 18
    s_lshl_b32 s12, s7, 7
    s_add_u32 s5, s5, s12
    s_add_u32 s5, s5, {WS_UT}
    v_lshl_add_u32 v13, v8, 4, s5
    v_lshl_add_u32 v13, v4, 15, v13
    s_lshl_b32 s5, s6, 5
    s_add_u32 s5, s5, s7
    s_lshl_b32 s5, s5, {g.tfs}
    s_add_u32 s5, s5, {WS_TF}
    v_mov_b32 v14, s5
    v_lshrrev_b32 v15, 5, v1
    v_mad_u32_u24 v15, v15, 5, s60
    v_min_u32 v15, 575, v15
    v_lshrrev_b32 v15, 6, v15
    v_and_b32 v16, 31, v1
    v_lshl_add_u32 v15, v15, 5, v16
    v_lshlrev_b32 v15, {g.tfs}, v15
    v_add_u32 v15, {WS_TF}, v15
    s_lshl_b32 s12, s60, 12
    s_add_u32 s12, s12, {WS_UT}
    v_lshlrev_b32 v16, 4, v1
    """)
    k.wait_lg(); k("s_barrier")
    k.raw(f"    s_waitcnt vmcnt({len(g.bpf)})"); k.vm = k.vm[len(k.vm)-len(g.bpf):] if g.bpf else []
    g.st("Tld")
    k(f"v_readfirstlane_b32 s55, v62\ns_mul_i32 s55, s55, {LCG_A}\ns_add_u32 s55, s55, {LCG_C}\ns_max_u32 s55, s55, 1\nv_mov_b32 v17, s55\ns_cmp_ge_u32 s3, {0 if g.gather else 36}\ns_cbranch_scc1 L_noT2")
    for e in range(8):
        for p in range(4): k(f"v_perm_b32 v{96+4*e+p}, v{64+8*p+4+e//2}, v{64+8*p+e//2}, s{22+e%2}")
        k(f"s_mov_b32 s4, {4096*e}\nbuffer_store_dwordx4 {v(96+4*e,4)}, v13, s[76:79], s4 offen sc1")
    k.wait_vm()
    k("s_mov_b64 exec, 1\nglobal_store_dword v14, v17, s[46:47] sc1\ns_mov_b64 exec, -1"); k.vm = [(set(("v", 26+i) for i in range(4)), None)]
    k.raw("L_noT2:")
    g.st("Tst")
    if g.gather:
        k(f"""
        s_lshl_b32 s4, s60, 1
        v_and_b32 v8, 255, v0
        v_mul_u32_u24 v9, 2304, v8
        v_add_u32 v9, s4, v9
        v_lshlrev_b32 v8, 2, v8
        s_mov_b32 s4, 0x01000504
        s_bitcmp1_b32 s49, 0
        s_cselect_b32 s22, s4, s22
        s_cselect_b32 s6, 1152, 0
        s_add_u32 s23, s22, 0x02020202
        s_xor_b32 s7, s6, 1152
        s_lshr_b32 s3, s49, 1
        s_mov_b32 s66, {0 if g.nogather else 2359296}
        """)
        for kk in range(4):
            k(f"s_add_u32 s{24+kk}, s3, {kk}\ns_and_b32 s{24+kk}, s{24+kk}, 3\ns_mul_i32 s4, s{24+kk}, {512*1152}\ns_add_u32 s5, s4, s7\ns_add_u32 s4, s4, s6")
            k(f"buffer_load_dwordx3 v[{96+8*kk}:{98+8*kk}], v9, s[64:67], s4 offen\nbuffer_load_dwordx3 v[{100+8*kk}:{102+8*kk}], v9, s[64:67], s5 offen")
    save = list(k.vm)
    def fetchU(lab, nch):
        if g.gather:
            for kk in range(4):
                r0, r1, t = 96 + 8*kk, 100 + 8*kk, 44 + 6*(kk % 2)
                k(f"s_lshl_b32 s4, s{24+kk}, 10\ns_add_u32 s4, s4, {UK0+512}\nv_add_u32 v11, s4, v8")
                for i in range(3): k(f"v_perm_b32 v{t+2*i}, v{r1+i}, v{r0+i}, s22\nv_perm_b32 v{t+2*i+1}, v{r1+i}, v{r0+i}, s23")
                for c in range(nch): k(f"ds_write_b32 v11, v{t+c} offset:{AW*c}")
            k(f"v_mov_b32 v60, 1\nv_mov_b32 v61, {EXE+56}\nds_add_u32 v61, v60")
            k.wait_lg(); g.st("gath")
            return
        k(f"s_cmp_lg_u32 s62, 3\ns_cbranch_scc1 {lab}_skip")
        g.poll(lab, lambda: k(f"s_sleep {g.tsleep}\nglobal_load_dword v18, v15, s[46:47] sc1"), lambda: k("v_cmp_ne_u32 vcc, s55, v18\ns_nop 1"))
        g.st("Tarr")
        for c in range(nch):
            k(f"s_mov_b32 m0, {UK0 + AW*c + 512}\ns_add_u32 s4, s12, {4096*c}")
            for n in range(4): k(f"buffer_load_dwordx4 v16, s[76:79], s4 offen offset:{1024*n} sc1 lds")
        k.wait_vm()
        k("v_mov_b32 v60, 1\nds_write_b32 v10, v60")
        k.wait_lg(); g.st("gath")
        k.raw(lab + "_skip:")
        if g.uwait:
            k(f"v_mov_b32 v19, {EXE+56}")
            g.poll(lab + "w", lambda: k("s_sleep 2\nds_read_b32 v18, v19"), lambda: k("v_cmp_ne_u32 vcc, 1, v18\ns_nop 1"))
    k("s_cmp_lt_u32 s49, 24\ns_cbranch_scc1 L_R2C")
    k(f"""
    s_sub_u32 s4, s49, 24
    s_lshl_b32 s4, s4, 2
    s_add_u32 s4, s4, s62                ; 0..31
    s_mul_i32 s5, s4, {144*128}
    s_mul_i32 s14, s50, {4*HBLK}
    s_add_u32 s5, s5, s14
    s_add_u32 s5, s5, {WS_H}
    v_min_u32 v56, 47, v1
    v_lshl_add_u32 v56, v56, 7, s5
    s_and_b32 s5, s4, 15
    s_mul_i32 s5, s5, 36
    v_min_u32 v57, 35, v1
    v_add_u32 v57, s5, v57               ; C row
    v_mul_u32_u24 v58, 683, v57
    v_lshrrev_b32 v58, 16, v58
    v_mul_u32_u24 v58, 3, v58
    v_lshrrev_b32 v58, 1, v58
    v_mul_u32_u24 v57, 1152, v57
    s_cmp_lt_u32 s4, 16
    s_cselect_b32 s72, s32, s34
    s_cselect_b32 s73, s33, s35
    """)
    pf = Rec()
    for i in range(g.cpf):
        pf.group(f"v_add_u32 v59, {(3*g.rot2i + 8 - i) % 9}, v58\nv_subrev_u32 v62, 9, v59\nv_min_u32 v59, v59, v62\nv_lshl_add_u32 v59, v59, 7, v57\nbuffer_load_dword v{64+i}, v59, s[72:75], 0 offen")
    if g.hpre:
        for i in range(3): pf.group(f"global_load_dword v{80+i}, v56, s[46:47]\nv_add_u32 v56, {48*128}, v56")
    if g.pf_pre:
        k("s_cmp_ge_u32 s62, 2\ns_cbranch_scc1 L_nopre")
        k(f"s_sub_u32 s4, s49, 24\ns_lshl_b32 s4, s4, 1\ns_add_u32 s4, s4, s62\ns_mul_i32 s5, s4, {288*128}\ns_add_u32 s5, s5, s14\ns_add_u32 s5, s5, {WS_H}\nv_lshl_add_u32 v63, v1, 7, s5")
        for i in range(g.pf_pre): k(f"global_load_dword v{90+i}, v63, s[46:47]\nv_add_u32 v63, {64*128}, v63")
        k.raw("L_nopre:")
    fetchU("L_pollT3", 6)
    for it in pf.items:
        play(k, it); k._wait(vm=g.pf_depth)
    k.wait_vm(); g.st("pfdone")
    g.fin()
    k.raw("L_R2C:"); k.vm = save; k.hist = []
    csetup()
    fetchU("L_pollT2", 4)
    k.vm = []
    cstream(0, lambda n: g.cthr2)
    k.raw("L_CPF:"); k.vm = []; k.lg = [(set(), None)]
    k(f"""
    v_lshrrev_b32 v8, 1, v3
    v_lshlrev_b32 v8, 12, v8
    s_lshr_b32 s4, s62, 1
    s_lshl_b32 s5, s4, 10
    v_add_u32 v8, s5, v8
    v_bfe_u32 v9, v1, 1, 1
    v_lshl_add_u32 v8, v9, 8, v8
    v_and_b32 v10, 1, v3
    v_lshlrev_b32 v10, 3, v10
    v_bfe_u32 v11, v1, 2, 2
    v_add_u32 v10, v10, v11
    v_lshlrev_b32 v9, 2, v9
    v_xor_b32 v10, v10, v9
    v_lshl_add_u32 v8, v10, 4, v8
    v_and_b32 v10, 1, v1
    v_lshl_add_u32 v6, v10, 3, v8
    v_xor_b32 v7, 64, v6
    s_mul_i32 s4, s4, 25600
    s_and_b32 s5, s62, 1
    s_mul_i32 s5, s5, 192
    s_add_u32 s4, s4, s5
    s_add_u32 s4, s4, {IMG}
    v_mul_u32_u24 v0, 400, v2
    v_lshl_add_u32 v0, v3, 4, v0
    v_add_u32 v0, s4, v0
    v_add_u32 v2, 49152, v6
    v_add_u32 v3, 49152, v7
    """)
    k.wait_all(); g.st("cdone")
    A2, HF = 40, 8
    def hreads(e, u, ks):
        sl = u % 6; a0 = 6 if sl < 3 else 2
        for tt in range(4):
            off = 16384*(sl % 3) + 8192*ks + 2048*(tt >> 1) + 512*(tt & 1)
            e(f"ds_read_b64_tr_b16 {v(HF+16*ks+4*tt,2)}, v{a0} offset:{off}\nds_read_b64_tr_b16 {v(HF+16*ks+4*tt+2,2)}, v{a0+1} offset:{off}")
    def mf1(u, ks, tt, dt):
        d = A2 + 16*dt + 4*tt
        cc = "0" if (u == 0 and ks == 0) else v(d, 4)
        return ("i", f"{M16} {v(d,4)}, {v(CU(u)+12*ks+4*dt,4)}, {v(HF+16*ks+4*tt,4)}, {cc}", None)
    mf2 = lambda u, ks: [mf1(u, ks, tt, dt) for tt in range(4) for dt in range(3)]
    k("s_barrier")
    hreads(k, 0, 0)
    tail = [[(7,0,tt),(7,1,tt),(8,0,tt),(8,1,tt)] for tt in range(4)]
    def treads(e, st):
        for i, (u, ks, tt) in enumerate(tail[st]):
            off = 16384*(u % 6) + 8192*ks + 2048*(tt >> 1) + 512*(tt & 1); b_ = HF + 16*(st % 2) + 4*i
            e(f"ds_read_b64_tr_b16 {v(b_,2)}, v6 offset:{off}\nds_read_b64_tr_b16 {v(b_+2,2)}, v7 offset:{off}")
    def tmf(st):
        return [("i", f"{M16} {v(A2+16*dt+4*tt,4)}, {v(CU(u)+12*ks+4*dt,4)}, {v(HF+16*(st%2)+4*i,4)}, {v(A2+16*dt+4*tt,4)}", None) for i, (u, ks, tt) in enumerate(tail[st]) for dt in range(3)]
    def wr(tts):
        e = Rec()
        for tt in tts:
            for dt in range(3): e(f"ds_write_b128 v0, {v(A2+16*dt+4*tt,4)} offset:{6400*tt+64*dt}")
        return e.items
    early = g.cmf == 27
    for u in range(7):
        rd = Rec(); hreads(rd, u, 1)
        ex = Rec()
        if u == (2 if early else 5):
            for n in range(21, 24): c_drain(ex, n)
        if early and u == 3:
            for n in range(24, 27): c_drain(ex, n)
        weave(k, mf2(u, 0), [(rd.items, 0, 7), (ex.items, 4, 9)])
        if u + 1 in (1, 2, 3, 5, 7): k.wait_lg(); k("s_barrier")
        rd = Rec(); ex = Rec()
        if u < 6: hreads(rd, u + 1, 0)
        else:
            treads(rd, 0)
            if not early:
                for n in range(24, 27): c_drain(ex, n)
        weave(k, mf2(u, 1), [(rd.items, 1, 8), (ex.items, 5, 10)])
    for st in range(4):
        rd = Rec()
        if st < 3: treads(rd, st + 1)
        w_ = wr([st - 1]) if st else []
        m_ = tmf(st)
        if st == g.abar: k("s_barrier")
        if st == 3:
            for it in m_[:2]: play(k, it)
            k.wait_lg(); k("s_barrier"); m_ = m_[2:]
        weave(k, m_, [(rd.items, 0, 4), (w_, 3 if st < 3 else 2, len(m_) - 1)])
    for it in wr([3]): play(k, it)
    k.wait_lg(); g.st("p2end"); k("s_barrier")
    g.fin()
```

```python
import sys, struct
sys.path.insert(0, "work")
from kasm import *
from align import align
NAME = "gated_mix__ssm_conv_s4d__ssm_conv_s5__prompt_kernel"
NWG = 256
WS_XI = 0xA0000
WS_TF, WS_UT = 0x90000, 0xA00000
WS_S, WS_HF, WS_AF, WS_G, WS_H, WS_A, WS_STAMP = 0x1000, 0x40000, 0x60000, 0x70000, 0x100000, 0x600000, 0x900000
WS_SIZE = 0x10000000
import os
_B = int(os.environ.get("WSB", "0"), 0)
WS_XI += _B; WS_TF += _B; WS_UT += _B; WS_S += _B; WS_HF += _B; WS_AF += _B; WS_G += _B; WS_H += _B; WS_A += _B
HBLK = 147456
LOG2E = 1.4426950408889634
INV2PI = 0.15915494309189535
LCG_A, LCG_C = 0x0019660D, 0x3C6EF35F
SPIN = 200000
M16, M32 = "v_mfma_f32_16x16x32_bf16", "v_mfma_f32_32x32x16_bf16"
def fl(x): return "0x%08x" % struct.unpack("<I", struct.pack("<f", x))[0]
XS, WSL, CST, EXE, EXH, AST, IMG = 0, 49152, 100352, 149504, 153600, 151552, 49152
TW, AW, AB0 = 8704, 8704, 69632
UO = [33, 34, 35, 36, 37, 40, 41, 44, 45]

def cmul_multi(e, items):
    for d, x, y, t in items: e(f"v_pk_mul_f32 {v(t,2)}, {v(x,2)}, {v(y,2)} op_sel:[0,0] op_sel_hi:[0,1]")
    for d, x, y, t in items: e(f"v_pk_fma_f32 {v(d,2)}, {v(x,2)}, {v(y,2)}, {v(t,2)} op_sel:[1,1,0] op_sel_hi:[1,0,1] neg_lo:[1,0,0]")
def cmac(e, items):
    for d, x, y, c in items: e(f"v_pk_fma_f32 {v(d,2)}, {v(x,2)}, {v(y,2)}, {v(c,2)} op_sel:[0,0,0] op_sel_hi:[0,1,1]")
    for d, x, y, c in items: e(f"v_pk_fma_f32 {v(d,2)}, {v(x,2)}, {v(y,2)}, {v(d,2)} op_sel:[1,1,0] op_sel_hi:[1,0,1] neg_lo:[1,0,0]")
def cpow_multi(e, items):
    for dre, dim, ar, ai, n, t0, t1 in items: e(f"v_mul_f32 v{t0}, {n}, v{ar}\nv_mul_f32 v{t1}, {n}, v{ai}")
    for dre, dim, ar, ai, n, t0, t1 in items: e(f"v_exp_f32 v{t0}, v{t0}\nv_fract_f32 v{t1}, v{t1}")
    for dre, dim, ar, ai, n, t0, t1 in items: e(f"v_cos_f32 v{dre}, v{t1}\nv_sin_f32 v{dim}, v{t1}")
    for dre, dim, ar, ai, n, t0, t1 in items: e(f"v_mul_f32 v{dre}, v{dre}, v{t0}\nv_mul_f32 v{dim}, v{dim}, v{t0}")
def pk_bc(e, d, a, b, bsel, c=None, neg=False):
    if c is None:
        e(f"v_pk_mul_f32 {v(d,2)}, {v(b,2)}, {v(a,2)} op_sel:[{bsel},0] op_sel_hi:[{bsel},1]")
    else:
        n = " neg_lo:[1,0,0] neg_hi:[1,0,0]" if neg else ""
        e(f"v_pk_fma_f32 {v(d,2)}, {v(b,2)}, {v(a,2)}, {v(c,2)} op_sel:[{bsel},0,0] op_sel_hi:[{bsel},1,1]{n}")
def smul(e, dr, di, ar, ai, br, bi, cr=None, ci=None):
    if cr is None: e(f"v_mul_f32 v{dr}, v{ar}, v{br}\nv_mul_f32 v{di}, v{ar}, v{bi}")
    else: e(f"v_fma_f32 v{dr}, v{ar}, v{br}, v{cr}\nv_fma_f32 v{di}, v{ar}, v{bi}, v{ci}")
    e(f"v_fma_f32 v{dr}, -v{ai}, v{bi}, v{dr}\nv_fma_f32 v{di}, v{ai}, v{br}, v{di}")
def offsets(e, arr):
    for c in range(1, 9): e(f"s_add_u32 s{arr[c]}, s{arr[c-1]}, 128\ns_cmp_eq_u32 s{arr[c]}, 1152\ns_cselect_b32 s{arr[c]}, 0, s{arr[c]}")
def mod9(e, r, t): e(f"s_mul_hi_u32 s{t}, s{r}, 0x1C71C71D\ns_mul_i32 s{t}, s{t}, 9\ns_sub_u32 s{r}, s{r}, s{t}")

class Gen:
    def __init__(self):
        self.k = K()
    def run(self, r):
        for it in r.items: play(self.k, it)
    def st(self, name):
        if self.stamps and name in self.bst:
            i = 1 + self.bst.index(name)
            self.k.raw(f"    {self.clk} s[{80+2*i}:{81+2*i}]")
            self.k.smem |= {("s", 80+2*i), ("s", 81+2*i)}
            self.k.wait_lg()
    def fin(self):
        k = self.k
        if self.stamps:
            k.raw("    s_waitcnt vmcnt(0) lgkmcnt(0)"); k.vm = []; k.lg = []
            self.st("end")
            if self.amp:
                self.namp = getattr(self, "namp", 0) + 1
                k.raw(f"""    s_cmp_eq_u32 s82, 0
    s_cbranch_scc1 L_amp_d{self.namp}
    s_sub_u32 s82, s82, s80
    s_min_u32 s82, s82, 5000
    {'s_mul_i32 s82, s82, %d' % self.amp if self.amp < 100 else 's_mov_b32 s82, %d' % self.amp}
L_amp{self.namp}:
    s_sleep 1
    s_memrealtime s[84:85]
    s_waitcnt lgkmcnt(0)
    s_sub_u32 s84, s84, s80
    s_cmp_lt_u32 s84, s82
    s_cbranch_scc1 L_amp{self.namp}
L_amp_d{self.namp}:
    s_endpgm""")
                return
            k("s_mov_b64 exec, 1")
            for i in range(10): k(f"v_mov_b32 v{8+i}, s{80+2*i}")
            k("s_getreg_b32 s3, hwreg(HW_REG_XCC_ID)\nv_mov_b32 v18, s3\ns_getreg_b32 s3, hwreg(HW_REG_HW_ID)\nv_mov_b32 v19, s3")
            k(f"s_lshl_b32 s3, s2, 3\ns_add_u32 s3, s3, s48\ns_lshl_b32 s3, s3, 6\ns_add_u32 s3, s3, {WS_STAMP}\nv_mov_b32 v4, s3")
            for i in range(3): k(f"global_store_dwordx4 v4, v[{8+4*i}:{11+4*i}], s[46:47] offset:{16*i}")
        k("s_endpgm")
    def enter(self, label, karg=True):
        k = self.k
        k.reset()
        if karg: k.smem = {("s", i) for i in range(8, 48)}
        k.raw(".p2align 3\n" + label + ":")
    def poll(self, label, issue, check, first_done=False):
        k = self.k
        k(f"s_mov_b32 s58, {SPIN}")
        k.out.append(label + ":")
        issue(); k("s_sub_u32 s58, s58, 1"); k.wait_all()
        k(f"s_cbranch_scc1 {label}_done"); check(); k(f"s_cbranch_vccnz {label}")
        k.out.append(label + "_done:")
    def pub_xcc(self, t, lab, wv):
        k = self.k
        k(f"s_getreg_b32 s4, hwreg(HW_REG_XCC_ID, 0, 4)\nv_mov_b32 v{t}, s55\nv_mov_b32 v{t+1}, s4")
        if wv is not None: k(f"s_cmp_lg_u32 s48, {wv}\ns_cbranch_scc1 {lab}")
        k(f"s_lshl_b32 s4, s56, 3\ns_add_u32 s4, s4, s52\ns_lshl_b32 s4, s4, 7\ns_add_u32 s4, s4, {WS_XI}\nv_mov_b32 v{t+2}, s4\ns_mov_b64 exec, 1\nglobal_store_dwordx2 v{t+2}, v[{t}:{t+1}], s[46:47] sc1\ns_mov_b64 exec, -1")
        if wv is not None: k.vm.pop()
        k.raw(lab + ":")
    def prologue(self):
        k = self.k
        if self.stamps:
            k.raw(f"    {self.clk} s[80:81]")
            for i in range(82, 100, 2): k.raw(f"    s_mov_b32 s{i}, 0")
        k(f"""
        s_load_dwordx16 s[8:23], s[0:1], 0
        s_load_dwordx16 s[24:39], s[0:1], 64
        s_load_dwordx8 s[40:47], s[0:1], 128
        s_cmp_ge_u32 s2, {NWG}
        s_cbranch_scc1 L_end
        v_lshrrev_b32 v4, 6, v0
        v_and_b32 v1, 63, v0
        v_readfirstlane_b32 s48, v4
        s_lshr_b32 s49, s2, 3            ; n
        s_and_b32 s50, s2, 7
        s_add_u32 s49, s49, {self.nshift}
        s_and_b32 s49, s49, 31
        v_and_b32 v2, 15, v0
        v_lshrrev_b32 v3, 4, v1
        """)
        if self.pf:
            k(f"s_getpc_b64 s[4:5]\ns_lshl_b32 s6, s49, 4\nv_lshrrev_b32 v252, 5, v0\nv_add_u32 v252, s6, v252\nv_min_u32 v252, (L_end - {NAME})/128, v252\nv_lshlrev_b32 v252, 7, v252\nv_mov_b32 v253, s5\nv_add_co_u32 v252, vcc, s4, v252\nv_addc_co_u32 v253, vcc, 0, v253, vcc\nglobal_load_dword v7, v[252:253], off")
        k(f"""
        s_mul_hi_u32 s4, s49, 0x2AAAAAAB ; n/6
        s_mul_i32 s5, s4, 6
        s_sub_u32 s52, s49, s5           ; dj
        s_and_b32 s51, s4, 1             ; th
        s_lshl_b32 s56, s50, 2
        s_add_u32 s56, s56, s4           ; tb
        s_and_b32 s5, s49, 1
        s_lshl_b32 s53, s50, 1
        s_add_u32 s53, s53, s5           ; i
        s_lshr_b32 s54, s49, 1           ; j
        s_mul_i32 s57, s52, 3
        s_lshr_b32 s57, s57, 1
        s_mul_i32 s4, s4, {self.rot2i}
        s_add_u32 s57, s57, s4
        s_mul_i32 s59, s5, {self.rot1i}
        s_mul_i32 s4, s54, {self.rot1j}
        s_add_u32 s59, s59, s4
        s_mul_i32 s4, s50, {self.rot1x}
        s_add_u32 s59, s59, s4
        """)
        mod9(k, 57, 4); mod9(k, 59, 4)
        k(f"""
        s_lshl_b32 s57, s57, 7
        s_lshl_b32 s59, s59, 7
        s_mul_i32 s60, s50, 72
        s_mul_i32 s4, s49, 6
        s_sub_u32 s4, s4, 144
        s_lshl_b32 s5, s49, 2
        s_sub_u32 s5, s5, 24
        s_cmp_ge_u32 s49, 24
        s_cselect_b32 s4, s4, s5
        s_add_u32 s60, s60, s4           ; d0 (A roles)
        s_cmp_lt_u32 s48, 4
        s_cbranch_scc1 L_LO
        """)
        self.pvm = list(k.vm)
    def band_data(self):
        wins = [(range(3,6),16), (range(6,11),16), (range(11,14),16), (range(14,19),24), (range(5,12),16), (range(12,21),24), ((3,4),16)]
        out = []
        for ti, (w, c) in enumerate(wins):
            val = 0xFFFF if ti == 6 else 0x3F80
            for l in range(64):
                r, G = l & 15, l >> 4
                e = [val if (r + c - (8*G + i)) in w else 0 for i in range(8)]
                out.append(".long " + ", ".join("0x%08x" % (e[2*i] | (e[2*i+1] << 16)) for i in range(4)))
        return "\n".join(out)
    def build(self):
        import g2a, g2b
        k = self.k
        self.prologue()
        g2b.loader1(self)
        self.enter("L_LO"); k.vm = list(self.pvm)
        k("s_cmp_ge_u32 s49, 18\ns_cbranch_scc1 L_A")
        g2b.compute1(self)
        g2b.loader2(self)
        g2a.partA(self)

        k.raw("L_end:\n    s_endpgm")
        k.raw(".fill 64, 4, 0xbf800000")
        hdr = open("gated_mix__ssm_conv_s4d__ssm_conv_s5__prompt.s.ref").read().split("; Override")[0]
        if self.stamps: hdr += f"; bst start {' '.join(self.bst)}\n"
        return (hdr + f"; @launch grid=({NWG},1,1) block=(512,1,1) lds=163840\n"
            '.amdgcn_target "amdgcn-amd-amdhsa--gfx950"\n.text\n'
            f".globl {NAME}\n.p2align 8\n.type {NAME},@function\n{NAME}:\n" + (align(k.text(), self.minrun) if self.align else k.text()) +
            '.section .rodata,"a"\n.p2align 8\nband_tab:\n' + self.band_data() + f"""
.p2align 6
.amdhsa_kernel {NAME}
  .amdhsa_next_free_vgpr 256
  .amdhsa_next_free_sgpr 102
  .amdhsa_accum_offset 256
  .amdhsa_group_segment_fixed_size 0
  .amdhsa_kernarg_size 160
  .amdhsa_user_sgpr_count 2
  .amdhsa_user_sgpr_kernarg_segment_ptr 1
  .amdhsa_system_sgpr_workgroup_id_x 1
.end_amdhsa_kernel
""")
DEF = dict(ost='', dbg_now2=0, cpd=5, cpre_pop=12, ast=1, uwait=1, xq=13, tfs=5, abar=1, a_late=0, dbg_bw=0, nob8=1, cpre=2, cfast=9, cthr2=5, prioC=0, spre=0, gpos=1, cs_span=(10, 35), e_gap=12, cmf=24, a_lat=2, first='wx', gather=0, bpf=[], tsleep=2, amp=0, pf_pre=0, pf_depth=1, cpf=4, hpre=1, hld='sc1', hst='', rot1i=4, rot1j=1, rot1x=1, fast=1, dbg_noC=0, p_span=(0.75, 0.95), r3pf=2, pdel=0, align=1, minrun=6, dbg_now=0, dbg_noswz=0, dbg_nomf=0, dbg_free=0, prioL=0, rd_span=(1, 3), nshift=18, nogather=0, stamps=False, clk="s_memrealtime", bst=[], pf=216, rot2i=2, wbatch=2, g_span=(0.02, 0.7), cthr=2, hdist=3, a_at=5, skipA=0)
def make(path, **opt):
    g = Gen()
    for a_, b_ in {**DEF, **opt}.items(): setattr(g, a_, b_)
    t = g.build()
    open(path, "w").write(t)
    return g
if __name__ == "__main__":
    g = make("k2.s")
    print("nops", g.k.nops)
```

```python
from g2 import *
make("t1.s")
make("t2.s", stamps=True, bst=['stiss'], amp=3)
make("t3.s", stamps=True, bst=['stiss'], amp=6)
make("t4.s", ost='nt')
make("t5.s", ost='sc1')
make("t6.s", ost='sc0 sc1 nt')
```

```python
from g2 import *
make("t1.s", stamps=True, bst=['stiss'], amp=3)
make("t2.s", stamps=True, bst=['stiss'], amp=6)
make("t3.s", stamps=True, bst=['stiss'], amp=3, ost='sc1', fast=0)
make("t4.s", stamps=True, bst=['stiss'], amp=6, ost='sc1', fast=0)
make("t5.s", stamps=True, bst=['stiss'], amp=3, ost='sc1')
make("t6.s", stamps=True, bst=['stiss'], amp=6, ost='sc1')
```

```python
from g2 import *
make("t1.s", stamps=True, bst=['stiss'], amp=3000)
make("t2.s", stamps=True, bst=['stiss'], amp=3000, ost='sc1', fast=0)
make("t3.s", stamps=True, bst=['stiss'], amp=3000, ost='sc1')
make("t4.s", stamps=True, bst=['stiss'], amp=1500)
make("t5.s", stamps=True, bst=['stiss'], amp=1500, ost='sc1')
make("t6.s")
```

```python
import sys, struct
sys.path.insert(0, "work")
from kasm import *
from align import align
NAME = "gated_mix__ssm_conv_s4d__ssm_conv_s5__prompt_kernel"
NWG = 256
WS_XI = 0xA0000
WS_TF, WS_UT = 0x90000, 0xA00000
WS_S, WS_HF, WS_AF, WS_G, WS_H, WS_A, WS_STAMP = 0x1000, 0x40000, 0x60000, 0x70000, 0x100000, 0x600000, 0x900000
WS_SIZE = 0x10000000
import os
_B = int(os.environ.get("WSB", "0"), 0)
WS_XI += _B; WS_TF += _B; WS_UT += _B; WS_S += _B; WS_HF += _B; WS_AF += _B; WS_G += _B; WS_H += _B; WS_A += _B
HBLK = 147456
LOG2E = 1.4426950408889634
INV2PI = 0.15915494309189535
LCG_A, LCG_C = 0x0019660D, 0x3C6EF35F
SPIN = 200000
M16, M32 = "v_mfma_f32_16x16x32_bf16", "v_mfma_f32_32x32x16_bf16"
def fl(x): return "0x%08x" % struct.unpack("<I", struct.pack("<f", x))[0]
XS, WSL, CST, EXE, EXH, AST, IMG = 0, 49152, 100352, 149504, 153600, 151552, 49152
TW, AW, AB0 = 8704, 8704, 69632
UO = [33, 34, 35, 36, 37, 40, 41, 44, 45]

def cmul_multi(e, items):
    for d, x, y, t in items: e(f"v_pk_mul_f32 {v(t,2)}, {v(x,2)}, {v(y,2)} op_sel:[0,0] op_sel_hi:[0,1]")
    for d, x, y, t in items: e(f"v_pk_fma_f32 {v(d,2)}, {v(x,2)}, {v(y,2)}, {v(t,2)} op_sel:[1,1,0] op_sel_hi:[1,0,1] neg_lo:[1,0,0]")
def cmac(e, items):
    for d, x, y, c in items: e(f"v_pk_fma_f32 {v(d,2)}, {v(x,2)}, {v(y,2)}, {v(c,2)} op_sel:[0,0,0] op_sel_hi:[0,1,1]")
    for d, x, y, c in items: e(f"v_pk_fma_f32 {v(d,2)}, {v(x,2)}, {v(y,2)}, {v(d,2)} op_sel:[1,1,0] op_sel_hi:[1,0,1] neg_lo:[1,0,0]")
def cpow_multi(e, items):
    for dre, dim, ar, ai, n, t0, t1 in items: e(f"v_mul_f32 v{t0}, {n}, v{ar}\nv_mul_f32 v{t1}, {n}, v{ai}")
    for dre, dim, ar, ai, n, t0, t1 in items: e(f"v_exp_f32 v{t0}, v{t0}\nv_fract_f32 v{t1}, v{t1}")
    for dre, dim, ar, ai, n, t0, t1 in items: e(f"v_cos_f32 v{dre}, v{t1}\nv_sin_f32 v{dim}, v{t1}")
    for dre, dim, ar, ai, n, t0, t1 in items: e(f"v_mul_f32 v{dre}, v{dre}, v{t0}\nv_mul_f32 v{dim}, v{dim}, v{t0}")
def pk_bc(e, d, a, b, bsel, c=None, neg=False):
    if c is None:
        e(f"v_pk_mul_f32 {v(d,2)}, {v(b,2)}, {v(a,2)} op_sel:[{bsel},0] op_sel_hi:[{bsel},1]")
    else:
        n = " neg_lo:[1,0,0] neg_hi:[1,0,0]" if neg else ""
        e(f"v_pk_fma_f32 {v(d,2)}, {v(b,2)}, {v(a,2)}, {v(c,2)} op_sel:[{bsel},0,0] op_sel_hi:[{bsel},1,1]{n}")
def smul(e, dr, di, ar, ai, br, bi, cr=None, ci=None):
    if cr is None: e(f"v_mul_f32 v{dr}, v{ar}, v{br}\nv_mul_f32 v{di}, v{ar}, v{bi}")
    else: e(f"v_fma_f32 v{dr}, v{ar}, v{br}, v{cr}\nv_fma_f32 v{di}, v{ar}, v{bi}, v{ci}")
    e(f"v_fma_f32 v{dr}, -v{ai}, v{bi}, v{dr}\nv_fma_f32 v{di}, v{ai}, v{br}, v{di}")
def offsets(e, arr):
    for c in range(1, 9): e(f"s_add_u32 s{arr[c]}, s{arr[c-1]}, 128\ns_cmp_eq_u32 s{arr[c]}, 1152\ns_cselect_b32 s{arr[c]}, 0, s{arr[c]}")
def mod9(e, r, t): e(f"s_mul_hi_u32 s{t}, s{r}, 0x1C71C71D\ns_mul_i32 s{t}, s{t}, 9\ns_sub_u32 s{r}, s{r}, s{t}")

class Gen:
    def __init__(self):
        self.k = K()
    def run(self, r):
        for it in r.items: play(self.k, it)
    def st(self, name):
        if self.stamps and name in self.bst:
            i = 1 + self.bst.index(name)
            self.k.raw(f"    {self.clk} s[{80+2*i}:{81+2*i}]")
            self.k.smem |= {("s", 80+2*i), ("s", 81+2*i)}
            self.k.wait_lg()
    def fin(self):
        k = self.k
        if self.stamps:
            k.raw("    s_waitcnt vmcnt(0) lgkmcnt(0)"); k.vm = []; k.lg = []
            self.st("end")
            if self.amp:
                self.namp = getattr(self, "namp", 0) + 1
                k.raw(f"""    s_cmp_eq_u32 s82, 0
    s_cbranch_scc1 L_amp_d{self.namp}
    s_sub_u32 s82, s82, s80
    s_min_u32 s82, s82, 5000
    {'s_mul_i32 s82, s82, %d' % self.amp if self.amp < 100 else 's_mov_b32 s82, %d' % self.amp}
L_amp{self.namp}:
    s_sleep 1
    s_memrealtime s[84:85]
    s_waitcnt lgkmcnt(0)
    s_sub_u32 s84, s84, s80
    s_cmp_lt_u32 s84, s82
    s_cbranch_scc1 L_amp{self.namp}
L_amp_d{self.namp}:
    s_endpgm""")
                return
            k("s_mov_b64 exec, 1")
            for i in range(10): k(f"v_mov_b32 v{8+i}, s{80+2*i}")
            k("s_getreg_b32 s3, hwreg(HW_REG_XCC_ID)\nv_mov_b32 v18, s3\ns_getreg_b32 s3, hwreg(HW_REG_HW_ID)\nv_mov_b32 v19, s3")
            k(f"s_lshl_b32 s3, s2, 3\ns_add_u32 s3, s3, s48\ns_lshl_b32 s3, s3, 6\ns_add_u32 s3, s3, {WS_STAMP}\nv_mov_b32 v4, s3")
            for i in range(3): k(f"global_store_dwordx4 v4, v[{8+4*i}:{11+4*i}], s[46:47] offset:{16*i}")
        k("s_endpgm")
    def enter(self, label, karg=True):
        k = self.k
        k.reset()
        if karg: k.smem = {("s", i) for i in range(8, 48)}
        k.raw(".p2align 3\n" + label + ":")
    def poll(self, label, issue, check, first_done=False):
        k = self.k
        k(f"s_mov_b32 s58, {SPIN}")
        k.out.append(label + ":")
        issue(); k("s_sub_u32 s58, s58, 1"); k.wait_all()
        k(f"s_cbranch_scc1 {label}_done"); check(); k(f"s_cbranch_vccnz {label}")
        k.out.append(label + "_done:")
    def pub_xcc(self, t, lab, wv):
        k = self.k
        k(f"s_getreg_b32 s4, hwreg(HW_REG_XCC_ID, 0, 4)\nv_mov_b32 v{t}, s55\nv_mov_b32 v{t+1}, s4")
        if wv is not None: k(f"s_cmp_lg_u32 s48, {wv}\ns_cbranch_scc1 {lab}")
        k(f"s_lshl_b32 s4, s56, 3\ns_add_u32 s4, s4, s52\ns_lshl_b32 s4, s4, 7\ns_add_u32 s4, s4, {WS_XI}\nv_mov_b32 v{t+2}, s4\ns_mov_b64 exec, 1\nglobal_store_dwordx2 v{t+2}, v[{t}:{t+1}], s[46:47] sc1\ns_mov_b64 exec, -1")
        if wv is not None: k.vm.pop()
        k.raw(lab + ":")
    def prologue(self):
        k = self.k
        if self.stamps:
            k.raw(f"    {self.clk} s[80:81]")
            for i in range(82, 100, 2): k.raw(f"    s_mov_b32 s{i}, 0")
        k(f"""
        s_load_dwordx16 s[8:23], s[0:1], 0
        s_load_dwordx16 s[24:39], s[0:1], 64
        s_load_dwordx8 s[40:47], s[0:1], 128
        s_cmp_ge_u32 s2, {NWG}
        s_cbranch_scc1 L_end
        v_lshrrev_b32 v4, 6, v0
        s_lshr_b32 s6, s2, 3
        v_readfirstlane_b32 s48, v4
        s_add_u32 s49, s6, {self.nshift}
        s_and_b32 s49, s49, 31           ; n
        s_and_b32 s50, s2, 7
        """)
        k(f"s_getpc_b64 s[4:5]\ns_lshl_b32 s6, s6, 4\nv_lshrrev_b32 v252, 5, v0\nv_add_u32 v252, s6, v252\nv_min_u32 v252, (L_end - {NAME})/128, v252\nv_lshlrev_b32 v252, 7, v252\nv_mov_b32 v253, s5\nv_add_co_u32 v252, vcc, s4, v252\nv_and_b32 v1, 63, v0\nv_and_b32 v2, 15, v0\nv_addc_co_u32 v253, vcc, 0, v253, vcc\nv_lshrrev_b32 v3, 4, v1\nglobal_load_dword v7, v[252:253], off")
        k(f"""
        s_cmp_ge_u32 s49, 18
        s_cbranch_scc0 L_r1
        s_mul_i32 s60, s50, 72
        s_mul_i32 s4, s49, 6
        s_lshl_b32 s5, s49, 2
        s_sub_u32 s4, s4, 144
        s_sub_u32 s5, s5, 24
        s_cmp_ge_u32 s49, 24
        s_cselect_b32 s4, s4, s5
        s_add_u32 s60, s60, s4           ; d0 (A roles)
        s_cmp_lt_u32 s48, 4
        s_cbranch_scc1 L_A
        s_branch L_R2G
        """)
        k.raw("L_r1:")
        k(f"""
        s_and_b32 s5, s49, 1
        s_lshl_b32 s53, s50, 1
        s_lshr_b32 s54, s49, 1           ; j
        s_add_u32 s53, s53, s5           ; i
        s_mul_i32 s59, s5, {self.rot1i}
        s_mul_i32 s4, s50, {self.rot1x}
        s_add_u32 s59, s59, s54
        s_add_u32 s59, s59, s4
        """)
        mod9(k, 59, 4)
        k("s_lshl_b32 s59, s59, 7\ns_cmp_lt_u32 s48, 4\ns_cbranch_scc1 L_LO")
        self.pvm = list(k.vm)
    def ids2(self):
        k = self.k
        k(f"""
        s_mul_hi_u32 s4, s49, 0x2AAAAAAB ; n/6
        s_mul_i32 s5, s4, 6
        s_sub_u32 s52, s49, s5           ; dj
        s_and_b32 s51, s4, 1             ; th
        s_lshl_b32 s56, s50, 2
        s_add_u32 s56, s56, s4           ; tb
        s_mul_i32 s57, s52, 3
        s_lshr_b32 s57, s57, 1
        s_mul_i32 s4, s4, {self.rot2i}
        s_add_u32 s57, s57, s4
        """)
        mod9(k, 57, 4)
        k("s_lshl_b32 s57, s57, 7")
    def band_data(self):
        wins = [(range(3,6),16), (range(6,11),16), (range(11,14),16), (range(14,19),24), (range(5,12),16), (range(12,21),24), ((3,4),16)]
        out = []
        for ti, (w, c) in enumerate(wins):
            val = 0xFFFF if ti == 6 else 0x3F80
            for l in range(64):
                r, G = l & 15, l >> 4
                e = [val if (r + c - (8*G + i)) in w else 0 for i in range(8)]
                out.append(".long " + ", ".join("0x%08x" % (e[2*i] | (e[2*i+1] << 16)) for i in range(4)))
        return "\n".join(out)
    def build(self):
        import g2a, g2b
        k = self.k
        self.prologue()
        g2b.loader1(self)
        self.enter("L_LO"); k.vm = list(self.pvm)
        g2b.compute1(self)
        g2b.loader2(self)
        g2a.partA(self)

        k.raw("L_end:\n    s_endpgm")
        k.raw(".fill 64, 4, 0xbf800000")
        hdr = open("gated_mix__ssm_conv_s4d__ssm_conv_s5__prompt.s.ref").read().split("; Override")[0]
        if self.stamps: hdr += f"; bst start {' '.join(self.bst)}\n"
        return (hdr + f"; @launch grid=({NWG},1,1) block=(512,1,1) lds=163840\n"
            '.amdgcn_target "amdgcn-amd-amdhsa--gfx950"\n.text\n'
            f".globl {NAME}\n.p2align 8\n.type {NAME},@function\n{NAME}:\n" + (align(k.text(), self.minrun) if self.align else k.text()) +
            '.section .rodata,"a"\n.p2align 8\nband_tab:\n' + self.band_data() + f"""
.p2align 6
.amdhsa_kernel {NAME}
  .amdhsa_next_free_vgpr 256
  .amdhsa_next_free_sgpr 102
  .amdhsa_accum_offset 256
  .amdhsa_group_segment_fixed_size 0
  .amdhsa_kernarg_size 160
  .amdhsa_user_sgpr_count 2
  .amdhsa_user_sgpr_kernarg_segment_ptr 1
  .amdhsa_system_sgpr_workgroup_id_x 1
.end_amdhsa_kernel
""")
DEF = dict(hout=1, wb=0, ost='', dbg_now2=0, cpd=5, cpre_pop=12, ast=1, uwait=1, xq=13, tfs=5, abar=1, a_late=0, dbg_bw=0, nob8=1, cpre=2, cfast=9, cthr2=5, prioC=0, spre=0, gpos=1, cs_span=(10, 35), e_gap=12, cmf=24, a_lat=2, first='wx', gather=0, bpf=[], tsleep=2, amp=0, pf_pre=0, pf_depth=1, cpf=4, hpre=1, hld='sc1', hst='', rot1i=4, rot1j=1, rot1x=1, fast=1, dbg_noC=0, p_span=(0.75, 0.95), r3pf=2, pdel=0, align=1, minrun=6, dbg_now=0, dbg_noswz=0, dbg_nomf=0, dbg_free=0, prioL=0, rd_span=(1, 3), nshift=18, nogather=0, stamps=False, clk="s_memrealtime", bst=[], pf=216, rot2i=2, wbatch=2, g_span=(0.02, 0.7), cthr=2, hdist=3, a_at=5, skipA=0)
def make(path, **opt):
    g = Gen()
    for a_, b_ in {**DEF, **opt}.items(): setattr(g, a_, b_)
    t = g.build()
    open(path, "w").write(t)
    return g
if __name__ == "__main__":
    g = make("k2.s")
    print("nops", g.k.nops)
```

```python
from g2 import *
import g2b
UK0 = 34816
def partA(self):
    k = self.k
    self.enter("L_A"); k.vm = list(self.pvm)
    k(f"""
    s_add_u32 s61, s60, s48          ; d
    s_and_b32 s5, s48, 1
    s_add_u32 s5, s5, 4
    s_cmp_ge_u32 s49, 24
    s_cselect_b32 s64, s5, s48
    s_add_u32 s65, s60, s64          ; second d
    s_lshl_b32 s62, s61, 8
    v_lshl_add_u32 v26, v1, 2, s62
    s_lshl_b32 s62, s61, 1
    v_mov_b32 v27, s62
    s_lshl_b32 s62, s65, 8
    v_lshl_add_u32 v24, v1, 2, s62
    s_lshl_b32 s62, s65, 1
    v_mov_b32 v25, s62
    v_mov_b32 v60, 0
    v_mov_b32 v61, 0
    global_load_dword v10, v26, s[10:11]
    global_load_dword v11, v26, s[12:13]
    global_load_ushort v14, v27, s[18:19]
    global_load_dword v12, v26, s[14:15]
    global_load_dword v13, v26, s[16:17]
    global_load_ushort v15, v27, s[20:21]
    global_load_dword v22, v60, s[46:47]
    """)
    self.st("karg")
    k(f"""
    s_lshl_b32 s4, s48, 3
    s_add_u32 s4, s4, {EXE}
    v_mov_b32 v4, s4
    ds_write_b64 v4, v[60:61]
    """)
    k.raw("    s_getpc_b64 s[4:5]\n    s_add_u32 s4, s4, band_tab@rel32@lo+4\n    s_addc_u32 s5, s5, band_tab@rel32@hi+12")
    k(f"v_lshlrev_b32 v56, 4, v1\nv_add_u32 v56, 3072, v56\nv_mov_b32 v57, s5\nv_add_co_u32 v56, vcc, s4, v56\nv_addc_co_u32 v57, vcc, 0, v57, vcc")
    k.wait_lg(); k("s_barrier")
    self.ids2()
    k(f"""
    s_mov_b32 s76, s46
    s_mov_b32 s77, s47
    s_mov_b32 s78, {WS_SIZE}
    s_mov_b32 s79, 0x20000
    s_mul_i32 s68, s48, {TW}
    s_add_u32 s69, s68, {UK0}
    s_add_u32 s70, s69, 4608            ; K base
    s_mul_i32 s66, s64, {AW}
    s_add_u32 s66, s66, {UK0}
    s_mov_b32 m0, s68
    s_mov_b32 s71, {WS_AF + 4096}
    s_cmp_ge_u32 s49, 24
    s_cselect_b32 s63, 1, 0
    s_cmp_lt_u32 s48, 2
    s_cselect_b32 s67, 0, s63
    s_cselect_b32 s63, s63, 0
    v_mul_u32_u24 v59, 544, v2
    v_lshl_add_u32 v59, v3, 4, v59
    v_add_u32 v59, s68, v59
    v_and_b32 v58, 7, v2
    v_lshlrev_b32 v58, 2, v58
    s_mov_b32 s62, 0x43222100
    v_lshrrev_b32 v58, v58, s62
    v_and_b32 v58, 15, v58
    v_lshrrev_b32 v62, 3, v2
    v_mad_u32_u24 v58, v62, 5, v58
    v_mul_u32_u24 v58, 544, v58
    v_lshl_add_u32 v58, v3, 4, v58
    v_add_u32 v58, s68, v58
    v_lshrrev_b32 v5, 1, v3
    v_lshlrev_b32 v5, 8, v5
    v_lshl_add_u32 v5, v2, 4, v5
    v_and_b32 v6, 1, v3
    v_lshl_add_u32 v5, v6, 3, v5
    v_sub_u32 v5, 568, v5
    v_lshrrev_b32 v6, 1, v2
    v_and_b32 v8, 1, v2
    v_lshlrev_b32 v9, 6, v3
    v_lshl_add_u32 v9, v6, 2, v9
    v_lshlrev_b32 v23, 8, v8
    v_sub_u32 v23, v23, v9
    v_add_u32 v23, {2368 + 188 - 32}, v23
    v_lshlrev_b32 v9, 7, v3
    v_lshl_add_u32 v9, v6, 2, v9
    v_lshlrev_b32 v8, 1, v8
    v_sub_u32 v8, v8, v9
    v_add_u32 v8, {2368 + 512 + 252 + 256 - 96}, v8
    v_cmp_gt_u32 vcc, 2, v3
    v_cndmask_b32 v6, v8, v23, vcc
    """)
    def tag():
        k(f"v_readfirstlane_b32 s55, v22\ns_mul_i32 s55, s55, {LCG_A}\ns_add_u32 s55, s55, {LCG_C}\ns_max_u32 s55, s55, 1\ns_cmp_ge_u32 s49, 24\ns_cbranch_scc1 L_xp2")
        self.pub_xcc(244, "L_xp2", 0)
    if self.skipA: tag()
    if self.skipA:
        k.raw("    s_waitcnt vmcnt(0)")
        k(f"s_lshl_b32 s4, s65, 2\ns_add_u32 s4, s4, {WS_AF}\nv_mov_b32 v6, s4\nv_mov_b32 v22, s55\nglobal_store_dword v6, v22, s[46:47] sc1\ns_lshl_b32 s4, s61, 2\ns_add_u32 s4, s4, {WS_AF}\nv_mov_b32 v6, s4\ns_mov_b32 s67, 0\ns_branch L_A_skip")
    vFR, vFR1 = 59, 58
    pend_vm = list(k.vm)
    k.raw(".p2align 3\nL_tab:"); k.hist = []
    k(f"""
    v_mov_b32 v60, 0
    v_mov_b32 v61, 0
    v_mov_b32 v62, 0
    v_mov_b32 v63, 0
    v_lshl_add_u32 v8, v1, 4, s70
    v_lshlrev_b32 v14, 16, v14
    v_mul_f32 v14, {fl(LOG2E)}, v14
    v_lshlrev_b32 v64, 16, v10
    v_and_b32 v66, 0xffff0000, v10
    ds_write_b128 v8, v[60:63]
    ds_write_b128 v8, v[60:63] offset:1024
    ds_write_b128 v8, v[60:63] offset:2048
    ds_write_b128 v8, v[60:63] offset:3072
    v_exp_f32 v14, v14
    v_mul_f32 v64, {fl(LOG2E)}, v64
    v_mul_f32 v66, {fl(LOG2E)}, v66
    v_exp_f32 v64, v64
    v_exp_f32 v66, v66
    v_cvt_pk_bf16_f32 v14, v14, v14
    v_lshlrev_b32 v65, 16, v11
    v_and_b32 v67, 0xffff0000, v11
    v_cvt_pk_bf16_f32 v10, v64, v66
    v_and_b32 v14, 0xffff0000, v14
    v_lshlrev_b32 v64, 16, v10
    v_and_b32 v66, 0xffff0000, v10
    v_mul_f32 v64, v64, v14
    v_mul_f32 v66, v66, v14
    v_mul_f32 v65, v65, v14
    v_mul_f32 v67, v67, v14
    v_mul_f32 v64, {fl(-LOG2E)}, v64
    v_mul_f32 v66, {fl(-LOG2E)}, v66
    v_mul_f32 v65, {fl(INV2PI)}, v65
    v_mul_f32 v67, {fl(INV2PI)}, v67
    """)
    self.st("par")
    AR, AI = (64, 66), (65, 67)
    E8, E16, E1, W = (68, 70), (72, 74), (76, 78), (80, 82)
    T = list(range(84, 104, 2))
    G = [[104 + 4*c, 106 + 4*c] for c in range(9)]
    LA, LBb = (140, 142), (144, 146)
    OUT = [148, 150, 152, 154, 232, 234, 236, 238]
    LOF, HF, DT = 156, 188, [220, 224, 228]
    oc = [0]; pendw = []
    def flushw():
        for w_ in pendw: k(w_)
        pendw.clear()
    def entry(row, x0, x1, neg):
        o = OUT[oc[0] % 8]; oc[0] += 1
        n = "-" if neg else ""
        k(f"v_cvt_pk_bf16_f32 v{o}, v{x0}, {n}v{x0+1}\nv_cvt_pk_bf16_f32 v{o+1}, v{x1}, {n}v{x1+1}")
        pendw.append(f"ds_write_addtid_b32 v{o} offset:{544*row}\nds_write_addtid_b32 v{o+1} offset:{544*row+256}")
        if len(pendw) >= self.wbatch: flushw()
    cpow_multi(k, [(E8[n], E8[n]+1, AR[n], AI[n], fl(8.0), T[n], T[n]+1) for n in range(2)] +
                  [(E1[n], E1[n]+1, AR[n], AI[n], "1.0", T[2+n], T[2+n]+1) for n in range(2)] +
                  [(W[n], W[n]+1, AR[n], AI[n], fl(128.0), T[4+n], T[4+n]+1) for n in range(2)])
    cmul_multi(k, [(E16[n], E8[n], E8[n], T[n]) for n in range(2)])
    k(f"v_mov_b32 v{OUT[7]}, 0x3f80"); pendw.append(f"ds_write_addtid_b32 v{OUT[7]}\nds_write_addtid_b32 v{OUT[7]} offset:256")
    entry(1, E8[0], E8[1], True); entry(2, E16[0], E16[1], True)
    pa, pb = E8, E16
    for j in range(3, 16, 2):
        items = [(LA[n], pa[n], E16[n], T[n]) for n in range(2)]
        if j + 1 < 16: items += [(LBb[n], pb[n], E16[n], T[2+n]) for n in range(2)]
        cmul_multi(k, items)
        pa, pb = LA, LBb
        entry(j, LA[0], LA[1], True)
        if j + 1 < 16: entry(j + 1, LBb[0], LBb[1], True)
    flushw()
    for ks in range(8): k(f"ds_read_b128 {v(LOF+4*ks,4)}, v{vFR} offset:{64*ks}")
    k(f"""
    v_add_f32 v14, v14, v14
    v_lshlrev_b32 v{G[0][0]}, 16, v12
    v_lshlrev_b32 v{G[0][0]+1}, 16, v13
    v_and_b32 v{G[0][1]}, 0xffff0000, v12
    v_and_b32 v{G[0][1]+1}, 0xffff0000, v13
    """)
    pk_bc(k, G[0][0], G[0][0], 14, 0); pk_bc(k, G[0][1], G[0][1], 14, 0)
    cmul_multi(k, [(LA[n], E1[n], E1[n], T[n]) for n in range(2)] + [(G[1][n], G[0][n], E1[n], T[2+n]) for n in range(2)]
                    + [(G[8][n], G[0][n], E8[n], T[4+n]) for n in range(2)])
    entry(0, G[0][0], G[0][1], False); entry(1, G[1][0], G[1][1], False)
    for c in range(2, 8, 2):
        cmul_multi(k, [(G[c+i][n], G[c+i-2][n], LA[n], T[2*i+n]) for i in range(2) for n in range(2)])
        entry(c, G[c][0], G[c][1], False); entry(c+1, G[c+1][0], G[c+1][1], False)
    def mulW(cs, Wp=W):
        cmul_multi(k, [(G[c][n], G[c][n], Wp[n], T[(2*i+n) % 10]) for i, c in enumerate(cs) for n in range(2)])
    for cs in ([0, 1, 2], [3, 4, 5], [6, 7, 8]):
        mulW(cs)
        for c in cs:
            if c < 8: entry(8 + c, G[c][0], G[c][1], False)
    def kgen(tile, addr, cinit):
        flushw()
        for ks in range(8): k(f"ds_read_b128 {v(HF+4*ks,4)}, v{addr} offset:{64*ks}")
        return [("i", f"{M16} {v(DT[tile],4)}, {v(HF+4*ks,4)}, {v(LOF+4*ks,4)}, {cinit if ks == 0 else v(DT[tile],4)}", None) for ks in range(8)]
    k(f"v_lshlrev_b32 v15, 16, v15\nv_cmp_eq_u32 vcc, 0, v1\nv_mov_b32 v{DT[0]+1}, 0\nv_mov_b32 v{DT[0]+2}, 0\nv_cndmask_b32 v{DT[0]}, 0, v15, vcc\nv_mov_b32 v{DT[0]+3}, 0")
    def with_mf(mf, fn):
        nonlocal k
        real = k; k = Rec(); fn(); flushw(); items = k.items; k = real
        k.wait_lg()
        weave(k, mf, [(items, 1, len(mf))])
    k.wait_vm()
    k("s_cmp_eq_u32 s63, 2\ns_cbranch_scc1 L_nob")
    k("""    global_load_dword v16, v24, s[10:11]
    global_load_dword v17, v24, s[12:13]
    global_load_ushort v20, v25, s[18:19]
    global_load_dword v18, v24, s[14:15]
    global_load_dword v19, v24, s[16:17]
    global_load_ushort v21, v25, s[20:21]
""")
    for i in range(7): k(f"global_load_dwordx4 v[{28+4*i}:{31+4*i}], v[56:57], off offset:{1024*i-3072}")
    k.raw("L_nob:")
    mf = kgen(0, vFR, v(DT[0], 4))
    ev = [0, 2, 4, 6, 8]
    mulW(ev)
    with_mf(mf, lambda: [entry(i, G[c][0], G[c][1], False) for i, c in enumerate(ev)])
    mulW(ev)
    for i, c in enumerate(ev): entry(5 + i, G[c][0], G[c][1], False)
    mf = kgen(1, vFR1, "0")
    cmul_multi(k, [(E1[n], W[n], W[n], T[n]) for n in range(2)] + [(G[c][n], G[c][n], W[n], T[2+2*i+n]) for i, c in enumerate((4, 8)) for n in range(2)])
    cmul_multi(k, [(G[d_][n], G[c][n], W[n], T[2*i+n]) for i, (d_, c) in enumerate(((3, 4), (7, 8))) for n in range(2)])
    def post(j):
        d = DT[j]; off = 512 if j == 0 else 0; t = 240 + 4*j
        k(f"""
        v_cvt_pk_bf16_f32 v{t}, v{d+3}, v{d+2}
        v_cvt_pk_bf16_f32 v{t+1}, v{d+1}, v{d}
        v_cvt_pk_bf16_f32 v{t+2}, v{d+2}, v{d+1}
        ds_write_b64 v61, v[{t}:{t+1}] offset:{off}
        ds_write_b16 v61, v{t} offset:{off+1214}
        ds_write_b32 v61, v{t+2} offset:{off+1216}
        ds_write_b16_d16_hi v61, v{t+1} offset:{off+1220}
        """)
    k("v_add_u32 v61, s70, v5\nv_mov_b32 v62, s70\nv_add_u32 v63, s70, v6")
    with_mf(mf, lambda: [entry(i, G[c][0], G[c][1], False) for i, c in enumerate((4, 8, 3, 7))])
    mulW([4, 8, 3, 7], E1)
    for i, c in enumerate((4, 8, 3, 7)): entry(4 + i, G[c][0], G[c][1], False)
    for h in range(0, 8, 2):
        mulW([8, 7], E1)
        entry(8 + h, G[8][0], G[8][1], False); entry(9 + h, G[7][0], G[7][1], False)
    mf = kgen(2, vFR, "0")
    self.st("tabs")
    post(0)
    with_mf(mf, lambda: post(1))
    d = DT[1]
    k(f"""
    v_cvt_pk_bf16_f32 v72, v{d+3}, v{d+3}
    s_mov_b32 exec_lo, 0
    s_mov_b32 exec_hi, 0x80000000
    ds_write_b32 v62, v72 offset:60
    ds_write_b16 v62, v72 offset:58
    ds_write_b32 v62, v72 offset:1272
    ds_write_b16 v62, v72 offset:1276
    s_mov_b64 exec, -1
    """)
    d = DT[2]
    k(f"""
    v_cvt_pk_bf16_f32 v74, v{d}, v{d+1}
    v_cvt_pk_bf16_f32 v75, v{d+2}, v{d+3}
    s_mov_b32 exec_hi, 0
    ds_write_b32 v63, v74 offset:32
    ds_write_b32 v63, v75
    s_mov_b32 exec_hi, -1
    s_mov_b32 exec_lo, 0
    ds_write_b16 v63, v74 offset:96
    ds_write_b16_d16_hi v63, v74 offset:64
    ds_write_b16 v63, v75 offset:32
    ds_write_b16_d16_hi v63, v75
    s_mov_b32 exec_lo, -1
    """)
    k.wait_vm()
    k("s_cmp_eq_u32 s63, 0\ns_cbranch_scc1 L_tab_done\ns_cmp_eq_u32 s63, 2\ns_cbranch_scc1 L_tab_sig")
    for i in range(3): k(f"v_mov_b64 {v(10+2*i,2)}, {v(16+2*i,2)}")
    k("s_mov_b32 s63, 2\ns_add_u32 s70, s66, 4608\ns_branch L_tab")
    k.raw("L_tab_sig:")
    k(f"v_mov_b32 v60, 1\nds_write_b32 v4, v60 offset:4\ns_add_u32 s70, s69, 4608")
    k.raw("L_tab_done:")
    self.st("kgen")
    if not self.skipA: tag()
    k(f"""
    v_lshlrev_b32 v10, 3, v3
    v_sub_u32 v10, v10, v2
    v_add_u32 v10, 15, v10
    v_lshlrev_b32 v10, 1, v10
    v_and_b32 v11, 1, v2
    v_cmp_eq_u32 vcc, 0, v11
    v_mov_b32 v11, 1214
    v_lshlrev_b32 v24, 2, v3
    v_cndmask_b32 v11, 0, v11, vcc
    v_add_u32 v10, v10, v11
    v_sub_u32 v24, v24, v2
    v_add_u32 v24, {15 + 2368//4}, v24
    v_lshlrev_b32 v24, 2, v24           ; P offset
    v_lshlrev_b32 v25, 5, v2
    v_lshl_add_u32 v25, v3, 4, v25
    v_add_u32 v25, 32, v25
    v_and_b32 v26, 1, v3
    v_lshlrev_b32 v26, 9, v26
    v_lshrrev_b32 v27, 2, v2
    v_lshl_add_u32 v26, v27, 7, v26
    v_lshrrev_b32 v27, 1, v3
    v_lshl_add_u32 v26, v27, 6, v26
    v_and_b32 v27, 3, v2
    v_lshl_add_u32 v26, v27, 4, v26
    v_mov_b32 v27, {EXE+56}
    """)
    k.raw(".p2align 3\nL_conv:"); k.hist = []; k.lg = [(set(), None)]
    ACC, KF, K23, ZT, ZP, UR, XT = 56, 88, 156, 196, 220, 232, 12
    self.poll("L_pollU", lambda: k("ds_read_b32 v11, v27"), lambda: k(f"v_cmp_ne_u32 vcc, 1, v11\ns_nop 1"))
    self.st("U")
    k(f"""
    v_add_u32 v5, s70, v10
    v_add_u32 v6, 1024, v5
    v_add_u32 v8, s70, v24
    v_add_u32 v7, s69, v25
    v_mov_b32 v9, s70
    s_lshl_b32 s62, s61, 12
    s_add_u32 s62, s62, {WS_A}
    """)
    fq = []
    made = set()
    def fill(text, key=None):
        ls = text.split("\n")
        for i, l in enumerate(ls): fq.append((l, key if i == len(ls) - 1 else None))
    def pop():
        l, key = fq.pop(0)
        if callable(l): l()
        else: k(l)
        if key is not None: made.add(key)
    def mf(text, needs, nf=2):
        for key in needs:
            while key not in made: pop()
        n0 = len(k.out)
        k(text)
        extra = len(k.out) - n0 - 1
        for _ in range(nf):
            if fq: pop()
    def kf_read(s_):
        a_, o = (6, 0) if s_ == 0 else (5, 16*(16 - s_))
        fill(f"ds_read2_b32 {v(KF+4*s_,2)}, v{a_} offset0:{o} offset1:{o+1}\nds_read2_b32 {v(KF+4*s_+2,2)}, v{a_} offset0:{o+2} offset1:{o+3}", ("kf", s_))
    k2t = {}; idx = 0
    for D_ in (2, 3, 4):
        for pr in range(2):
            k2t[(2, D_, pr)] = (K23 + 4*idx, 64*pr + 64 - 16*D_); idx += 1
    for D_ in (4, 5, 6, 7):
        k2t[(3, D_, 0)] = (K23 + 4*idx, 128 + 112 - 16*D_); idx += 1
    def k2_read(key):
        r_, o = k2t[key]
        fill(f"ds_read2_b32 {v(r_,2)}, v8 offset0:{o} offset1:{o+1}\nds_read2_b32 {v(r_+2,2)}, v8 offset0:{o+2} offset1:{o+3}", key)
    ring = [UR + 4*i for i in range(6)] + [16, 20]
    loads = [("z", 0), ("c", 0)]
    for j in range(-7, 57):
        loads.append(("u", j))
        if j % 8 == 0 and 1 <= j // 8 <= 5: loads.append(("c", j // 8))
    reg = {}; nl = [0]
    kq = {("u", j): [lambda s_=s_: kf_read(s_) for s_ in ([-j, 8 - j] + ([16] if j == 0 else []))] for j in range(-7, 1)}
    order2 = [(2,2,0), (2,3,0), (2,4,0), (2,2,1), (2,3,1), (2,4,1), (3,4,0), (3,5,0), (3,6,0), (3,7,0)]
    for i, key in enumerate(order2): kq.setdefault(("u", 1 + i // 2), []).append(lambda key=key: k2_read(key))
    kq[("u", -5)].append(lambda: fill(f"ds_read_u16 v11, v9 offset:{2368 + 256 + 4*16 + 2}"))
    kq[("u", -1)].append(lambda: fill("v_lshl_or_b32 v11, v11, 16, v11\n" + "\n".join(f"v_and_b32 v{XT+i}, v{52+i}, v11" for i in range(4)), "xt"))
    def issue_load():
        if nl[0] >= len(loads): return
        key = loads[nl[0]]; r_ = ring[nl[0] % len(ring)]; reg[key] = r_; nl[0] += 1
        off = 64*(key[1] + 7) if key[0] == "u" else 64*7 if key[0] == "z" else 64*(8*key[1] + 7) - 16
        if nl[0] > PD0: fq.insert(0, (f"ds_read_b128 {v(r_,4)}, v7 offset:{off}", key))
        else: fill(f"ds_read_b128 {v(r_,4)}, v7 offset:{off}", key)
        for f in kq.get(key, []): f()
    PD0 = self.cpd
    for _ in range(PD0): issue_load()
    for _ in range(self.cpre_pop): pop()
    first = set()
    def acc(B, a_, b_, needs):
        c = v(ACC+4*B, 4) if B in first else "0"
        first.add(B)
        mf(f"{M16} {v(ACC+4*B,4)}, {v(a_,4)}, {v(b_,4)}, {c}", needs)
    BAND = 28
    pend = []
    def tick():
        for p in pend: p[0] -= 1
        while pend and min(p[0] for p in pend) <= 0:
            i = min(range(len(pend)), key=lambda i: pend[i][0]); pend.pop(i)[1]()
    def out_txt(B):
        q = ACC + 4*B
        return ("\n".join(f"v_cvt_pk_bf16_f32 v{q+i}, v{q+2*i}, v{q+2*i+1}" for i in range(4)),
                f"v_permlane16_swap_b32 v{q}, v{q+2}\nv_permlane16_swap_b32 v{q+1}, v{q+3}", f"buffer_store_dwordx4 {v(q,4)}, v26, s[76:79], s62 offen offset:{512*B} sc1")
    def flag1():
        k("s_cmp_lg_u32 s67, 2\ns_cbranch_scc1 L_nofl\nv_mov_b32 v9, s71\nv_mov_b32 v11, s55")
        k.raw("    s_waitcnt vmcnt(0)")
        k("s_mov_b64 exec, 1\nglobal_store_dword v9, v11, s[46:47] sc1\ns_mov_b64 exec, -1"); k.vm.pop()
        k.raw("L_nofl:")
    late = []
    for key in loads:
        issue_load()
        r_ = reg[key]
        if key[0] in "uz":
            j = key[1]
            if key[0] == "z" or (j % 8 == 0 and 1 <= j // 8 <= 5):
                Bp = j // 8
                for ph in (0, 1, 2) + ((4,) if Bp <= 3 else ()):
                    mf(f"{M16} {v(ZT+4*ph,4)}, {v(r_,4)}, {v(BAND+4*ph,4)}, 0", [key] + ([("s2", Bp-1)] if Bp else []))
            if key[0] == "z": continue
            if j % 8 == 0 and 0 <= j // 8 <= 3: acc(j // 8 + 4, XT, r_, [key, "xt"])
            for B in range(8):
                if 0 <= 8*B - j <= 16: acc(B, KF + 4*(8*B - j), r_, [key, ("kf", 8*B - j)])
            if j in (8, 24, 40):
                t_ = out_txt(j//8 - 1)
                pend += [[8, lambda t_=t_: fill(t_[0])], [10, lambda t_=t_: fill(t_[1])]]
                if self.ast: pend += [[11, lambda t_=t_: fill(t_[2])]]
                else: late.append(t_[2])
            tick()
        else:
            Bp = key[1]
            for ph in (3,) + ((5,) if Bp <= 3 else ()):
                mf(f"{M16} {v(ZT+4*ph,4)}, {v(r_,4)}, {v(BAND+4*ph,4)}, 0", [key])
            def mk_cvt(Bp, pr):
                return lambda: fill("\n".join(f"v_cvt_pk_bf16_f32 v{ZP+4*pr+i}, v{ZT+8*pr+i}, v{ZT+8*pr+4+i}" for i in range(4)), ("zp", Bp, pr))
            def mk_s2(Bp, pr, last):
                def f():
                    seg, Ds = (2, (2, 3, 4)) if pr < 2 else (3, (4, 5, 6, 7))
                    for D_ in Ds:
                        kk_ = (seg, D_, pr % 2)
                        if Bp + D_ <= 7: acc(Bp + D_, ZP + 4*pr, k2t[kk_][0], [("zp", Bp, pr), kk_])
                    if last: made.add(("s2", Bp))
                return f
            d0 = 9 if Bp == 0 else 0
            pend += [[1 + d0 - d0//3, mk_cvt(Bp, 0)], [2 + d0 - d0//3, mk_cvt(Bp, 1)], [4 + d0, mk_s2(Bp, 0, False)]]
            if Bp <= 3: pend += [[3 + d0 - d0//3, mk_cvt(Bp, 2)]]
            pend += [[5 + d0, mk_s2(Bp, 1, Bp > 3)]]
            if Bp <= 3: pend += [[6 + d0, mk_s2(Bp, 2, True)]]
    assert not pend
    while fq: pop()
    for t_ in late: k(t_)
    self.st("conv")
    k(f"s_lshl_b32 s4, s61, 2\ns_add_u32 s4, s4, {WS_AF}\nv_mov_b32 v6, s4\nv_mov_b32 v22, s55")
    for t_ in out_txt(6): k(t_)
    k.raw("L_A_skip:")
    k("s_cmp_lt_u32 s49, 24\ns_cbranch_scc1 L_A_R2")
    save = list(k.vm)
    k("s_cmp_eq_u32 s67, 1\ns_cbranch_scc0 L_A_last")
    k(f"s_mov_b32 s67, 2\ns_mov_b32 s71, s4\ns_mov_b32 s61, s65\ns_mov_b32 s69, s66\ns_add_u32 s70, s66, 4608\ns_and_b32 s4, s48, 1\ns_lshl_b32 s4, s4, 3\ns_add_u32 s4, s4, {EXE+4}\nv_mov_b32 v27, s4")
    k("s_branch L_conv")
    k.raw("L_A_last:"); k.vm = list(save)
    k("v_mov_b32 v9, s71\ns_mov_b64 exec, 1")
    k.wait_vm()
    k("global_store_dword v6, v22, s[46:47] sc1\ns_cmp_lg_u32 s67, 2\ns_cbranch_scc1 L_A_one\nglobal_store_dword v9, v22, s[46:47] sc1")
    k.raw("L_A_one:")
    k("s_mov_b64 exec, -1")
    self.st("aend")
    self.fin()
    k.raw("L_A_R2:"); k.vm = list(save)
    k(f"v_mov_b32 v23, 1\nv_and_b32 v5, 3, v1\nv_lshlrev_b32 v5, 3, v5\nv_add_u32 v5, {EXE}, v5\nds_write_b32 v4, v23")
    g2b.p2_min(self); g2b.p2_setup(self); g2b.p2_loads(self)
    k.wait_vm()
    k("s_mov_b64 exec, 1\nglobal_store_dword v6, v22, s[46:47] sc1\ns_mov_b64 exec, -1")
    self.st("aend")
    k.vm = []
    k("s_nop 0"); g2b.p2_unpack(self); g2b.p2_zero(self)
    self.poll("L_pollD", lambda: k("ds_read_b32 v26, v5"), lambda: k("v_cmp_ne_u32 vcc, 1, v26\ns_nop 1"))
    k("s_branch L_P2")
```

```python
from g2 import *
ASY = EXE + 1024
GXL = 157696
def compute1(g):
    k = g.k
    AX, AWr = 8, 12
    GP = g.gpos
    k(f"""
    s_lshl_b32 s4, s54, 7
    v_lshl_add_u32 v16, v1, 1, s4
    v_lshrrev_b32 v5, 5, v1              ; hb
    v_and_b32 v4, 31, v1                 ; col
    s_add_u32 s4, s59, {128*GP}
    s_sub_u32 s5, s4, 1152
    s_min_u32 s4, s4, s5
    v_lshl_add_u32 v17, v5, 4, s4
    global_load_ushort v20, v16, s[36:37]
    global_load_ushort v21, v16, s[24:25]
    global_load_ushort v22, v16, s[26:27]
    s_load_dword s55, s[46:47], 0
    """)
    GF = 64
    if g.prioC: k(f"s_setprio {g.prioC}")
    for ks in range(4): k(f"global_load_dwordx4 {v(GF+4*ks,4)}, v17, s[40:41] offset:{32*ks}")
    g.st("karg")
    g.ids2()
    k(f"""
    v_bfe_u32 v6, v1, 1, 3
    v_xor_b32 v6, v6, v5
    v_lshlrev_b32 v6, 4, v6
    v_lshl_add_u32 v6, v4, 7, v6
    s_lshl_b32 s4, s48, 12
    v_add_u32 v{AX}, s4, v6
    v_add_u32 v{AWr}, {WSL}, v6
    """)
    for ks in range(1, 4): k(f"v_xor_b32 v{AX+ks}, {32*ks}, v{AX}\nv_xor_b32 v{AWr+ks}, {32*ks}, v{AWr}")
    k(f"""
    s_mov_b32 s76, s46
    s_mov_b32 s77, s47
    s_mov_b32 s78, {WS_SIZE}
    s_mov_b32 s79, 0x20000
    s_lshr_b32 s4, s48, 1
    s_lshl_b32 s5, s53, 1
    s_add_u32 s4, s4, s5
    s_lshl_b32 s13, s4, 10
    s_add_u32 s13, s13, {WS_XI}
    s_mul_i32 s6, s4, {HBLK}
    s_lshl_b32 s5, s54, 14
    s_add_u32 s6, s6, s5
    s_and_b32 s5, s48, 1
    s_lshl_b32 s7, s5, 11
    s_add_u32 s6, s6, s7
    s_add_u32 s60, s6, {0 if g.hout else WS_H}
    s_add_u32 s61, s60, 8192
    s_mul_i32 s4, s4, 18
    s_add_u32 s4, s4, s5
    s_lshl_b32 s5, s54, 1
    s_add_u32 s4, s4, s5
    s_lshl_b32 s4, s4, 7
    s_add_u32 s4, s4, {WS_HF}
    v_mov_b32 v6, s4
    s_lshl_b32 s10, s54, 14
    s_add_u32 s10, s10, {WS_S}
    s_lshl_b32 s11, s53, 10
    s_add_u32 s11, s11, s10
    s_lshl_b32 s4, s48, 7
    s_add_u32 s4, s4, {GXL}
    v_lshl_add_u32 v19, v5, 6, s4
    v_lshlrev_b32 v16, 4, v1             ; 16*lane
    v_add_u32 v17, s11, v16
    s_lshl_b32 s4, s48, 10
    s_add_u32 s4, s4, {EXE}
    v_add_u32 v18, s4, v16
    v_add_u32 v28, {EXE}, v16
    v_mov_b64 v[126:127], 0
    ds_write_b64 v18, v[126:127] offset:8
    ds_write_b64 v18, v[126:127] offset:4104
    v_lshrrev_b32 v29, 4, v4
    v_lshlrev_b32 v29, 12, v29
    v_lshl_add_u32 v29, v5, 9, v29
    v_lshl_add_u32 v29, v2, 4, v29
    v_xor_b32 v30, 64, v29               ; half 1
    v_cmp_eq_u32 s[64:65], 0, v5
    s_lshl_b32 s4, s48, 5
    v_cvt_f32_u32 v31, s4                ; 32w
    v_mul_f32 v32, 4.0, v31              ; 128w
    """)
    for q in range(4):
        k(f"s_sub_u32 s4, s53, s48\ns_sub_u32 s4, s4, {1+4*q}\ns_lshl_b32 s5, s4, 10\ns_add_u32 s5, s5, s10\ns_cmp_ge_i32 s4, 0\ns_cselect_b32 s5, s5, 0x80000000\ns_cselect_b32 s{24+q}, -1, 0\nv_add_u32 v{24+q}, s5, v16")
    p2_min(g); p2_setup(g)
    EO = 120
    k(f"s_mul_i32 s55, s55, {LCG_A}\ns_add_u32 s55, s55, {LCG_C}\ns_max_u32 s55, s55, 1\ns_not_b32 s62, s55\nv_mov_b32 v{EO+2}, s55\nv_mov_b32 v{EO+3}, s62\ns_mov_b32 s6, s55")
    for q in range(4): k(f"s_and_b32 s{28+q}, s{24+q}, s62\ns_and_b32 s{24+q}, s{24+q}, s55")
    k(f"s_getreg_b32 s4, hwreg(HW_REG_XCC_ID, 0, 4)\nv_mov_b32 v116, s55\nv_mov_b32 v117, s4\ns_lshl_b32 s4, s56, 3\ns_add_u32 s4, s4, s52\ns_lshl_b32 s4, s4, 7\ns_add_u32 s4, s4, {WS_XI}\nv_mov_b32 v119, s4")
    k("v_min_u32 v118, 5, v1\nv_lshl_add_u32 v118, v118, 7, s13")
    k(f"s_mul_i32 s4, s53, 9\ns_add_u32 s4, s4, s54\ns_lshl_b32 s4, s4, 9\ns_lshl_b32 s5, s48, 7\ns_add_u32 s4, s4, s5\ns_add_u32 s4, s4, {WS_G}\ns_add_u32 s5, s5, {GXL}")
    k("v_and_b32 v106, 7, v1\nv_lshl_add_u32 v107, v106, 4, s5\nv_lshl_add_u32 v106, v106, 4, s4")
    Z, LM, L32, L512, WH, LW = 112, 114, 34, 36, 38, 40
    SS, WSr, WSi, MPr, MPi, TB = 42, 46, 50, 54, 58, 64
    tb = lambda p, j: TB + 16*p + 2*(j - 1)
    T = 192
    cs = Rec()
    cs(f"""
    v_lshlrev_b32 v20, 16, v20
    v_mul_f32 v20, {fl(LOG2E)}, v20
    v_exp_f32 v20, v20
    v_lshlrev_b32 v{LM}, 16, v21
    v_lshlrev_b32 v{LM+1}, 16, v22
    v_cvt_pk_bf16_f32 v20, v20, v20
    v_mul_f32 v21, v{LM}, v{LM}
    v_and_b32 v20, 0xffff0000, v20
    v_fmac_f32 v21, v{LM+1}, v{LM+1}
    v_mul_f32 v{Z}, v20, v{LM}
    v_mul_f32 v{Z+1}, v20, v{LM+1}
    v_rcp_f32 v21, v21
    v_mul_f32 v{Z}, {fl(LOG2E)}, v{Z}
    v_mul_f32 v{Z+1}, {fl(INV2PI)}, v{Z+1}
    v_add_f32 v21, v21, v21
    v_mul_f32 v{LM}, v{LM}, v21
    v_mul_f32 v{LM+1}, -v{LM+1}, v21
    """)
    cpow_multi(cs, [(d, d+1, Z, Z+1, ex, T+2*i, T+2*i+1) for i, (d, ex) in enumerate(((tb(0,1), "1.0"), (L32, fl(32.0)), (L512, fl(512.0))))])
    cpow_multi(cs, [(d, d+1, Z, Z+1, ex, T+2*i, T+2*i+1) for i, (d, ex) in enumerate(((WH, "v32"), (LW, "v31")))])
    cs(f"v_add_f32 v{T}, -1.0, v{tb(0,1)}")
    smul(cs, SS, SS+1, T, tb(0,1)+1, LM, LM+1)
    cs(f"v_mov_b32 v{tb(1,1)}, v{tb(0,1)}\nv_mov_b32 v{tb(1,1)+1}, v{tb(0,1)+1}\nv_mov_b32 v{SS+2}, v{SS}\nv_mov_b32 v{SS+3}, v{SS+1}")
    for a_, b_ in ((tb(0,1), tb(1,1)), (tb(0,1)+1, tb(1,1)+1), (SS, SS+2), (SS+1, SS+3)): cs(f"v_permlane32_swap_b32 v{a_}, v{b_}")
    sm = lambda d, x, y: smul(cs, d, d+1, x, x+1, y, y+1)
    for j, (x, y) in {2: (1, 1), 3: (2, 1), 4: (2, 2), 5: (4, 1), 6: (4, 2), 7: (4, 3), 8: (4, 4)}.items():
        for p in range(2): sm(tb(p,j), tb(p,x), tb(p,y))
    L16 = T + 4
    for p in range(2): sm(L16+2*p, tb(p,8), tb(p,8))
    for p in range(2):
        cs(f"""
        v_cndmask_b32 v{WSr+2*p+1}, 1.0, v{L16+2*p}, s[64:65]
        v_cndmask_b32 v{WSi+2*p+1}, 0, v{L16+2*p+1}, s[64:65]
        v_cndmask_b32 v{T+2*p}, v{L16+2*p}, 1.0, s[64:65]
        v_cndmask_b32 v{T+2*p+1}, v{L16+2*p+1}, 0, s[64:65]
        """)
    for p in range(2):
        smul(cs, WSr+2*p, WSi+2*p, tb(p,8), tb(p,8)+1, WSr+2*p+1, WSi+2*p+1)
        smul(cs, MPr+2*p, MPi+2*p, T+2*p, T+2*p+1, SS+2*p, SS+2*p+1)
        smul(cs, MPr+2*p+1, MPi+2*p+1, tb(p,8), tb(p,8)+1, MPr+2*p, MPi+2*p)
    CW = 32
    cs(f"v_mov_b32 v{CW}, 0\nv_mov_b32 v{CW+1}, 0")
    g.st("setup")
    R = [128, 160]; I = [144, 176]; GA = 80; FR = 208
    ACC = [R[0], R[1], I[0], I[1]]
    def reads(e, q):
        c, ks = divmod(q, 4); b = FR + 20*(q % 2)
        e(f"ds_read_b128 {v(b,4)}, v{AX+ks} offset:{16384*(c%3)}")
        for t in (0, 2, 1, 3): e(f"ds_read_b128 {v(b+4+4*t,4)}, v{AWr+ks} offset:{16384*(c%3)+4096*t}")
    def mf(q):
        e = Rec(); b = FR + 20*(q % 2)
        for t in (0, 2, 1, 3): e(f"{M32} {v(ACC[t],16)}, {v(b,4)}, {v(b+4+4*t,4)}, {'0' if q == 0 else v(ACC[t],16)}")
        if q // 4 == GP: e(f"{M32} {v(GA,16)}, {v(b,4)}, {v(GF+4*(q%4),4)}, {'0' if q % 4 == 0 else v(GA,16)}")
        return e.items
    k.wait_lg(); k("s_barrier"); g.st("c0")
    reads(k, 0)
    q0, q1 = g.cs_span
    per = -(-len(cs.items) // (q1 - q0))
    for q in range(36):
        rd = Rec(); ex = Rec()
        if q % 4 == 3 and q < (31 if g.nob8 else 35):
            k.wait_lg(); k("s_barrier"); g.st(f"c{q//4+1}")
        if q < 35: reads(rd, q + 1)
        if q == 4*GP + 5:
            ex.group("s_mov_b32 exec_lo, 1\ns_mov_b32 exec_hi, 1\n" + "\n".join(f"ds_write_b128 v19, {v(GA+4*i,4)} offset:{16*i}" for i in range(4)) + "\ns_mov_b64 exec, -1")
        if q == g.xq:
            ex.items.append(("raw", "    s_cmp_lg_u32 s48, 0\n    s_cbranch_scc1 L_xp1\n    s_mov_b64 exec, 1\n    global_store_dwordx2 v119, v[116:117], s[46:47] sc1\n    s_mov_b64 exec, -1\nL_xp1:", None))
        if q == 4*GP + 8: ex("ds_read_b128 v[108:111], v107")
        cp = cs.items[(q-q0)*per:(q-q0+1)*per] if q0 <= q < q1 else []
        weave(k, mf(q), [(rd.items, 1, 3), (ex.items, 4, 4), (cp, 1, 4)])
    g.st("gemm1")
    for st in range(1, 8):
        for p in range(2):
            pk_bc(k, R[p]+2*st, R[p]+2*st-2, tb(p,1), 0, R[p]+2*st)
            pk_bc(k, I[p]+2*st, I[p]+2*st-2, tb(p,1), 0, I[p]+2*st)
            pk_bc(k, R[p]+2*st, I[p]+2*st-2, tb(p,1), 1, R[p]+2*st, neg=True)
            pk_bc(k, I[p]+2*st, R[p]+2*st-2, tb(p,1), 1, I[p]+2*st)
    T = 208
    for p in range(2): k(f"v_pk_mul_f32 {v(T+4*p,2)}, {v(R[p]+14,2)}, {v(WSr+2*p,2)}\nv_pk_mul_f32 {v(T+4*p+2,2)}, {v(I[p]+14,2)}, {v(WSr+2*p,2)}")
    for p in range(2): k(f"v_pk_fma_f32 {v(T+4*p,2)}, {v(I[p]+14,2)}, {v(WSi+2*p,2)}, {v(T+4*p,2)} neg_lo:[1,0,0] neg_hi:[1,0,0]\nv_pk_fma_f32 {v(T+4*p+2,2)}, {v(R[p]+14,2)}, {v(WSi+2*p,2)}, {v(T+4*p+2,2)}")
    for i in range(4): k(f"v_add_f32 v{T+2*i}, v{T+2*i}, v{T+2*i+1}")
    k(f"v_permlane32_swap_b32 v{T}, v{T+4}\nv_permlane32_swap_b32 v{T+2}, v{T+6}")
    k(f"v_add_f32 v{EO}, v{T}, v{T+4}\nv_add_f32 v{EO+1}, v{T+2}, v{T+6}")
    g.st("p1")
    k(f"ds_write_b128 v18, {v(EO,4)}")
    sc = Rec()
    for p in range(2):
        for st in range(8):
            a, b = T + 4*(st % 2), T + 4*(st % 2) + 2
            pk_bc(sc, a, R[p]+2*st, SS+2*p, 0); pk_bc(sc, b, R[p]+2*st, SS+2*p, 1)
            pk_bc(sc, R[p]+2*st, I[p]+2*st, SS+2*p, 1, a, neg=True); pk_bc(sc, I[p]+2*st, I[p]+2*st, SS+2*p, 0, b)
    for it in sc.items[:g.e_gap]: play(k, it)
    E = 216
    def issE():
        for w in range(3): k(f"ds_read_b128 {v(E+4*w,4)}, v28 offset:{1024*w}")
    def chkE():
        k(f"v_and_b32 v{E+3}, v{E+2}, v{E+6}\nv_and_b32 v{E+3}, v{E+3}, v{E+10}\nv_cmp_ne_u32 vcc, s55, v{E+3}\ns_nop 0")
    k("s_cmp_lg_u32 s48, 3\ns_cbranch_scc1 L_nopub")
    k.vm = []
    g.poll("L_pollE3", issE, chkE)
    g.st("Earr")
    cmac(k, [(E+4, E, L32, E+4)])
    cmac(k, [(CW, E+4, L32, E+8)])
    cmac(k, [(EO, CW, L32, EO)])
    k(f"global_store_dwordx4 v17, {v(EO,4)}, s[46:47] sc1"); k.vm = []
    g.st("pub")
    k.raw("L_nopub:"); k.lg = [(set(), None)]
    p2_loads(g)
    k("global_load_dwordx2 v[124:125], v118, s[46:47] sc1")
    k("s_mov_b64 exec, 0xff\nglobal_store_dwordx4 v106, v[108:111], s[46:47] sc1\ns_mov_b64 exec, -1")
    for it in sc.items[g.e_gap:]: play(k, it)
    CPr, CPi = WSr, WSi
    for p in range(2):
        smul(k, T+2*p, T+2*p+1, tb(p,8), tb(p,8)+1, R[p]+14, I[p]+14, R[p]+15, I[p]+15)
        k(f"v_mov_b32 v{CPr+2*p}, 0\nv_mov_b32 v{CPi+2*p}, 0")
    for p in range(2): k(f"v_permlane32_swap_b32 v{CPr+2*p}, v{T+2*p}\nv_permlane32_swap_b32 v{CPi+2*p}, v{T+2*p+1}")
    for p in range(2): smul(k, CPr+2*p+1, CPi+2*p+1, tb(p,8), tb(p,8)+1, CPr+2*p, CPi+2*p, R[p]+14, I[p]+14)
    g.st("scale")
    PD = 232
    def issS():
        for q in range(4): k(f"buffer_load_dwordx4 {v(PD+4*q,4)}, v{24+q}, s[76:79], 0 offen sc1")
    def chkS():
        for q in range(4): k(f"v_xor_b32 v{PD+4*q+2}, s{24+q}, v{PD+4*q+2}\nv_xor_b32 v{PD+4*q+3}, s{28+q}, v{PD+4*q+3}")
        k(f"v_or3_b32 v{PD+2}, v{PD+2}, v{PD+3}, v{PD+6}\nv_or3_b32 v{PD+7}, v{PD+7}, v{PD+10}, v{PD+11}\nv_or3_b32 v{PD+2}, v{PD+2}, v{PD+14}, v{PD+15}\nv_or_b32 v{PD+2}, v{PD+2}, v{PD+7}\nv_cmp_ne_u32 vcc, 0, v{PD+2}\ns_nop 0")
    k("s_add_u32 s4, s48, 1\ns_bitcmp0_b32 s4, 1\ns_cbranch_scc1 L_cw_done")
    vms = list(k.vm); k.vm = []
    g.poll("L_pollE", issE, chkE)
    k(f"v_mov_b64 {v(CW,2)}, {v(E,2)}\ns_cmp_eq_u32 s48, 1\ns_cbranch_scc1 L_cw_done")
    cmac(k, [(CW, E, L32, E+4)])
    k.raw("L_cw_done:"); k.vm = vms
    p2_unpack(g)
    g.st("prep")
    k.vm = [(set(), None)]
    g.poll("L_pollS", issS, chkS)
    g.st("Sarr")
    for q in (2, 1, 0): cmac(k, [(PD+4*q, PD+4*q+4, L512, PD+4*q)])
    cmul_multi(k, [(EO, PD, WH, T)])
    k(f"ds_write_b128 v18, {v(EO,4)} offset:4096")
    k("v_cmp_ne_u64 s[72:73], v[124:125], v[116:117]")
    def iss():
        for w in range(4): k(f"ds_read_b128 {v(PD+4*w,4)}, v28 offset:{4096+1024*w}")
    def chk():
        k(f"v_and_b32 v{PD+3}, v{PD+2}, v{PD+6}\nv_and_b32 v{PD+7}, v{PD+10}, v{PD+14}\nv_pk_add_f32 {v(PD,2)}, {v(PD,2)}, {v(PD+4,2)}\nv_and_b32 v{PD+3}, v{PD+3}, v{PD+7}\nv_cmp_ne_u32 vcc, s55, v{PD+3}\nv_pk_add_f32 {v(PD+8,2)}, {v(PD+8,2)}, {v(PD+12,2)}")
    g.poll("L_pollX", iss, chk)
    g.st("Xarr")
    k(f"v_pk_add_f32 {v(PD,2)}, {v(PD,2)}, {v(PD+8,2)}")
    cmac(k, [(CW, PD, LW, CW)])
    HH = [CW, T]
    k(f"v_mov_b64 {v(T,2)}, {v(CW,2)}\ns_cmp_lg_u64 s[72:73], 0\nv_permlane32_swap_b32 v{CW}, v{T}\nv_permlane32_swap_b32 v{CW+1}, v{T+1}")
    for p in range(2):
        pk_bc(k, CPr+2*p, MPr+2*p, HH[p], 0, CPr+2*p); pk_bc(k, CPi+2*p, MPi+2*p, HH[p], 0, CPi+2*p)
    for p in range(2):
        pk_bc(k, CPr+2*p, MPi+2*p, HH[p], 1, CPr+2*p, neg=True); pk_bc(k, CPi+2*p, MPr+2*p, HH[p], 1, CPi+2*p)
    HO = 216
    def tail(sc):
        for p in range(2):
            for comp in range(2):
                A_, c0, c1 = (R[p], CPr, CPi) if comp == 0 else (I[p], CPi, CPr)
                for st in range(8): pk_bc(k, A_+2*st, c0+2*p, tb(p,st+1), 0, A_+2*st)
                for st in range(8): pk_bc(k, A_+2*st, c1+2*p, tb(p,st+1), 1, A_+2*st, neg=(comp == 0))
                n = "-" if comp else ""
                for half in range(2):
                    o = HO + 16*p + 8*comp + 4*half
                    for i in range(4): k(f"v_cvt_pk_bf16_f32 v{o+i}, {n}v{A_+4*i+half}, {n}v{A_+4*i+2+half}")
                    k(f"buffer_store_dwordx4 {v(o,4)}, v{29+half}, s[68:71], s{60+p} offen offset:{1024*comp+256*half} {sc}")
        g.st("hst")
        p2_zero(g)
        k("s_mov_b64 exec, 1")
        k.raw("    s_waitcnt vmcnt(0)"); k.vm = []
        k(f"global_store_dword v6, v{EO+2}, s[46:47] {sc}\ns_mov_b64 exec, -1")
        g.st("flag")
    if g.fast:
        k("s_cbranch_scc1 L_slow")
        g.slow_tail = lambda: tail("sc1")
        tail(g.hst)
    else: tail("sc1")
    k.raw("L_tail_done:"); k.vm = []

XR, DBR, DBF = 232, [204, 206, 244], 216
XB = list(range(192, 204)) + list(range(8, 16)) + list(range(20, 24))
AR = 32
def p2_loads(g):
    k = g.k
    for jj in range(3):
        k(f"global_load_dwordx2 {v(XR+2*jj,2)}, v100, s[8:9] offset:{64*jj}\nglobal_load_dwordx2 {v(XR+6+2*jj,2)}, v101, s[8:9] offset:{64*jj}\nglobal_load_dwordx2 {v(DBR[jj],2)}, v99, s[38:39] offset:{64*jj}")
    k("v_lshlrev_b32 v100, 1, v100\nv_lshlrev_b32 v101, 1, v101")
def p2_unpack(g):
    k = g.k
    for jj in range(3):
        for h in range(2): k(f"v_lshlrev_b32 v{DBF+4*jj+2*h}, 16, v{DBR[jj]+h}\nv_and_b32 v{DBF+4*jj+2*h+1}, 0xffff0000, v{DBR[jj]+h}")
    for q in range(12): k(f"v_lshlrev_b32 v{XB[2*q]}, 16, v{XR+q}\nv_and_b32 v{XB[2*q+1]}, 0xffff0000, v{XR+q}")
    for q in range(12): k(f"v_pk_mul_f32 {v(XB[2*q],2)}, {v(XB[2*q],2)}, {v(DBF+2*(q%6),2)}")
def p2_zero(g):
    for q in range(12): g.k(f"v_mov_b64 {v(AR+2*q,2)}, 0")
def p2_min(g):
    k = g.k
    k(f"""
    s_cmp_lt_u32 s48, 2
    s_cselect_b32 s16, s32, s34
    s_cselect_b32 s17, s33, s35
    s_mov_b32 s18, 663552
    s_mov_b32 s19, 0x20000
    s_mov_b32 s68, s{42 if g.hout else 46}
    s_mov_b32 s69, s{43 if g.hout else 47}
    s_mov_b32 s70, {4718592 if g.hout else WS_SIZE}
    s_mov_b32 s71, 0x20000
    s_getreg_b32 s14, hwreg(HW_REG_XCC_ID, 0, 4)
    s_lshl_b32 s12, s56, 10
    s_add_u32 s12, s12, {WS_XI}
    s_lshl_b32 s23, s52, 7
    s_add_u32 s23, s23, s12
    s_lshl_b32 s4, s48, 2
    s_add_u32 s23, s23, s4
    s_mov_b32 s{UO[0]}, s57
    s_mul_i32 s4, s56, {18*128}
    s_add_u32 s4, s4, {WS_HF}
    v_min_u32 v62, 17, v1
    v_lshl_add_u32 v62, v62, 7, s4
    s_mul_i32 s4, s56, {HBLK}
    s_lshl_b32 s15, s48, 12
    s_add_u32 s4, s4, s15
    s_add_u32 s4, s4, {0 if g.hout else WS_H}
    v_lshl_add_u32 v63, v1, 4, s4
    """)
    offsets(k, UO)
def p2_setup(g):
    k = g.k
    k(f"""
    s_lshl_b32 s4, s56, 6
    v_lshrrev_b32 v96, 3, v0             ; tl
    v_add_u32 v97, s4, v96
    v_and_b32 v98, 7, v0                 ; dl
    s_mul_i32 s5, s52, 192
    v_lshl_add_u32 v99, v98, 3, s5
    v_mul_u32_u24 v100, 1152, v97
    v_add_u32 v100, v100, v99
    v_add_u32 v101, {32*1152}, v100
    """)
    k(f"""
    s_lshr_b32 s4, s56, 1
    s_mul_i32 s4, s4, {9*512}
    s_lshl_b32 s5, s51, 8
    s_add_u32 s4, s4, s5
    s_lshr_b32 s5, s48, 1
    s_lshl_b32 s5, s5, 6
    s_add_u32 s4, s4, s5
    s_and_b32 s5, s48, 1
    s_lshl_b32 s5, s5, 2
    s_add_u32 s4, s4, s5
    s_add_u32 s4, s4, {WS_G}
    v_lshrrev_b32 v102, 3, v1
    v_lshl_add_u32 v103, v102, 3, s4       ; j=8 base - 4096
    v_lshl_add_u32 v104, v98, 9, v103
    v_add_u32 v103, 4096, v103
    s_mul_i32 s4, s52, 384
    s_add_u32 s4, s4, {WS_AF}
    v_min_u32 v105, 47, v1
    v_lshl_add_u32 v105, v105, 3, s4
    s_mul_i32 s4, s52, 96
    s_mul_i32 s5, s48, 24
    s_add_u32 s4, s4, s5
    s_lshl_b32 s4, s4, 12
    s_lshl_b32 s5, s56, 7
    s_add_u32 s4, s4, s5
    s_add_u32 s4, s4, {WS_A}
    v_lshl_add_u32 v253, v102, 12, s4
    v_lshrrev_b32 v254, 5, v1
    s_mul_i32 s5, s48, 6
    v_add_u32 v254, s5, v254
    """)
    for n in range(3): k(f"v_add_u32 v255, {2*n}, v254\nv_xor_b32 v255, v255, v1\nv_and_b32 v255, 7, v255\nv_lshl_add_u32 v{248+n}, v255, 4, v253")
    k(f"""
    s_mul_i32 s4, s52, 96
    s_and_b32 s5, s48, 1
    s_mul_i32 s5, s5, 48
    s_add_u32 s4, s4, s5
    v_add_u32 v253, s4, v102
    v_mul_u32_u24 v253, 1152, v253
    v_xor_b32 v254, v98, v3
    v_lshl_add_u32 v253, v254, 4, v253   ; vC0
    v_xor_b32 v254, 64, v253
    v_add_u32 v254, 8192, v254           ; vC1
    s_mul_i32 s22, s48, 12288
    s_add_u32 s22, s22, {CST}
    s_mul_i32 s21, s48, 3072
    s_and_b32 s4, s48, 1
    s_lshl_b32 s4, s4, 2
    s_lshr_b32 s5, s48, 1
    s_add_u32 s4, s4, s5
    v_xor_b32 v251, s4, v98
    v_lshlrev_b32 v251, 4, v251
    v_lshl_add_u32 v251, v98, 9, v251
    v_lshl_add_u32 v251, v102, 1, v251
    v_add_u32 v251, {AST}, v251
    v_xor_b32 v252, 32, v251
    v_mul_u32_u24 v96, 400, v96
    v_lshl_add_u32 v96, v98, 4, v96
    v_add_u32 v96, {IMG}, v96
    """)

def loader2(g):
    k = g.k
    k.raw("L_P2:"); k.vm = []; k.lg = []
    GG, OM = 58, 60
    g.poll("L_pollH", lambda: k("global_load_dword v97, v62, s[46:47] sc1"), lambda: k("v_cmp_ne_u32 vcc, s55, v97\ns_nop 1"))
    g.st("Harr")
    def h_dma(u):
        k(f"s_add_u32 m0, s15, {16384*(u%6)}\ns_lshl_b32 s63, s{UO[u]}, 7")
        for n in range(4): k(f"buffer_load_dwordx4 v63, s[68:71], s63 offen offset:{1024*n} {g.hld} lds", tag=("h", u))
    def c_blk(n):
        k(f"s_add_u32 m0, s22, {2048*(n%6)}\ns_add_u32 s20, s{UO[n//3]}, {18432*(n%3)}\nbuffer_load_dwordx4 v253, s[16:19], s20 offen lds\nbuffer_load_dwordx4 v254, s[16:19], s20 offen offset:1024 lds", tag="C")
    def bar(u, *tags):
        for t in tags: k.wait_vm(t)
        k("s_barrier"); g.st(f"u{u}")
    cb = list(range(g.cmf, 27))
    h_dma(0); h_dma(1)
    k(f"v_mov_b32 v26, {ASY}\nv_mov_b64 v[28:29], 0\nds_write_b64 v26, v[28:29]\nds_write_b64 v26, v[28:29] offset:8"); k.wait_lg()
    bar(0, ("h", 0)); h_dma(2)
    bar(1, ("h", 1)); h_dma(3)
    bar(2, ("h", 2)); h_dma(4); h_dma(5)
    bar(3, ("h", 4))
    for ii in range(2): k(f"global_load_dword v{GG+ii}, v104, s[46:47] offset:{128*ii} sc1\nglobal_load_dword v{56+ii}, v103, s[46:47] offset:{128*ii} sc1")
    k("v_min_u32 v30, 5, v1\nv_lshl_add_u32 v30, v30, 7, s12\nglobal_load_dwordx2 v[28:29], v30, s[46:47] sc1")
    h_dma(6)
    for n in cb[:3]: c_blk(n)
    k("global_load_dwordx2 v[24:25], v105, s[46:47] sc1", tag="af")
    h_dma(7)
    bar(5, ("h", 6), "C")
    chk = lambda: k("v_cmp_ne_u32 vcc, s55, v24\nv_cmp_ne_u32 s[4:5], s55, v25\ns_or_b64 vcc, vcc, s[4:5]")
    h_dma(8)
    for n in cb[3:]: c_blk(n)
    def a_fetch(lab):
        k.wait_vm("af"); chk(); k(f"s_cbranch_vccz {lab}_done")
        save = list(k.vm)
        g.poll(lab, lambda: k("global_load_dwordx2 v[24:25], v105, s[46:47] sc1"), chk)
        k.vm = save
        g.st("Aarr")
        k(f"s_add_u32 m0, s21, {AST}")
        for n in range(3): k(f"s_mov_b32 s4, {32768*n - 1024*n}\nbuffer_load_dwordx4 v{248+n}, s[76:79], s4 offen offset:{1024*n} sc1 lds", tag="a")
    if not g.a_late: a_fetch("L_pollA")
    for ctl in ("quad_perm:[1,0,3,2]", "quad_perm:[2,3,0,1]", "row_half_mirror"):
        for ii in range(2): k(f"v_add_f32_dpp v{GG+ii}, v{GG+ii}, v{GG+ii} {ctl} row_mask:0xf bank_mask:0xf")
    for ii in range(2): k(f"v_add_f32 v{GG+ii}, v{GG+ii}, v{56+ii}\nv_mul_f32 v{GG+ii}, {fl(-LOG2E)}, v{GG+ii}")
    for ii in range(2): k(f"v_exp_f32 v{GG+ii}, v{GG+ii}")
    for ii in range(2): k(f"v_add_f32 v{GG+ii}, 1.0, v{GG+ii}")
    for ii in range(2): k(f"v_rcp_f32 v{GG+ii}, v{GG+ii}")
    for ii in range(2): k(f"v_sub_f32 v{OM+ii}, 1.0, v{GG+ii}")
    for q in range(24): k(f"v_mul_f32 v{XB[q]}, v{XB[q]}, v{OM+q//12}")
    if g.hout:
        k("v_mov_b32 v64, s55\nv_mov_b32 v65, s14\nv_mov_b32 v31, s23\nv_cmp_ne_u64 vcc, v[28:29], v[64:65]\nv_min_u32 v30, 23, v1\nv_lshrrev_b32 v66, 2, v30\nv_and_b32 v30, 3, v30\nv_lshlrev_b32 v30, 2, v30\nv_lshl_add_u32 v30, v66, 7, v30\nv_add_u32 v30, s12, v30")
        k.wait_vm(("h", 8))
        k("s_mov_b64 exec, 1\ns_cbranch_vccnz L_dfs\nglobal_store_dword v31, v64, s[46:47] offset:16\ns_branch L_dfd"); k.vm.pop()
        k.raw("L_dfs:"); k("global_store_dword v31, v64, s[46:47] offset:16 sc1"); k.raw("L_dfd:"); k("s_mov_b64 exec, -1")
    bar(7, ("h", 8), "C")
    if g.a_late: a_fetch("L_pollA")
    k.wait_vm("a")
    k(f"s_lshl_b32 s4, s48, 2\ns_add_u32 s4, s4, {ASY}\nv_mov_b32 v26, s4\nv_mov_b32 v27, s55\nds_write_b32 v26, v27\nv_and_b32 v26, 3, v1\nv_lshlrev_b32 v26, 2, v26\nv_add_u32 v26, {ASY}, v26")
    g.poll("L_pollY", lambda: k("ds_read_b32 v27, v26"), lambda: k("v_cmp_ne_u32 vcc, s55, v27\ns_nop 0"))
    g.st("u8")
    for q in range(24): k(f"ds_read_u16_d16_hi v{AR+q}, v{251+q//12} offset:{128*(q%4)+4096*((q%12)//4)}")
    for q in range(24): k(f"v_fmac_f32 v{XB[q]}, v{AR+q}, v{GG+q//12}")
    if g.hout:
        g.poll("L_pollF", lambda: k("global_load_dword v66, v30, s[46:47] offset:16 sc1"), lambda: k("v_cmp_ne_u32 vcc, s55, v66\ns_nop 0"))
        g.st("Farr")
    E0 = 128
    for ii in range(2):
        k("s_barrier"); g.st(f"img{ii}")
        for jj in range(3):
            q = 3*ii + jj
            k(f"ds_read_b128 {v(E0+8*q,4)}, v96 offset:{12800*ii+128*jj}\nds_read_b128 {v(E0+8*q+4,4)}, v96 offset:{25600+12800*ii+128*jj}")
        for jj in range(3):
            q = 3*ii + jj
            if ii == 0:
                for e_ in range(4): k(f"v_add_f32 v{E0+8*q+e_}, v{E0+8*q+e_}, v{E0+8*q+4+e_}")
                for e_ in range(4): k(f"v_fma_f32 v{E0+8*q+e_}, v{E0+8*q+e_}, v{OM}, v{XB[4*jj+e_]}")
            else:
                for h in range(2): k(f"v_pk_add_f32 {v(E0+8*q+2*h,2)}, {v(E0+8*q+2*h,2)}, {v(E0+8*q+4+2*h,2)}")
                for h in range(2): pk_bc(k, E0+8*q+2*h, E0+8*q+2*h, OM, ii, XB[12+4*jj+2*h])
            k(f"global_store_dwordx4 v{100+ii}, {v(E0+8*q,4)}, s[42:43] offset:{128*jj} {g.ost}")
    g.st("stiss")
    k(f"s_cmp_lg_u32 s56, {99 if g.dbg_now2 else 31}\ns_cbranch_scc1 L_fin2\ns_or_b32 s4, s52, s48\ns_cbranch_scc1 L_fin2")
    k(f"v_min_u32 v8, 47, v1\nv_lshlrev_b32 v8, 4, v8\nv_add_u32 v8, {WS_AF}, v8")
    def iss():
        for i in range(3): k(f"global_load_dwordx4 {v(64+4*i,4)}, v8, s[46:47] offset:{768*i} sc1")
    def chk():
        for i in range(12): k(f"v_xor_b32 v{64+i}, s55, v{64+i}")
        for i in range(1, 12): k(f"v_or_b32 v64, v64, v{64+i}")
        k("v_cmp_ne_u32 vcc, 0, v64\ns_nop 1")
    g.poll("L_pollW", iss, chk)
    k("v_mov_b32 v6, 0\nv_mov_b32 v7, s55\ns_mov_b64 exec, 1\nglobal_store_dword v6, v7, s[46:47]\ns_mov_b64 exec, -1")
    k.out.append("L_fin2:")
    g.fin()
    if g.fast:
        g.enter("L_slow", karg=False); k("s_nop 1"); g.slow_tail(); k("s_branch L_tail_done")

def loader1(g):
    k = g.k
    k(f"""
    s_sub_u32 s62, s48, 4                ; lw
    v_lshrrev_b32 v4, 3, v1              ; rl
    v_and_b32 v5, 7, v1
    {'v_xor_b32 v5, v5, v3' if not g.dbg_noswz else ''}
    v_lshlrev_b32 v5, 4, v5
    v_mul_u32_u24 v6, 1152, v4
    v_add_u32 v6, v6, v5
    s_mov_b32 s66, 2359296
    s_mov_b32 s67, 0x20000
    s_mov_b32 s70, 663552
    s_mov_b32 s71, 0x20000
    v_lshrrev_b32 v8, 2, v4
    v_lshlrev_b32 v8, 4, v8
    v_and_b32 v9, 1, v4
    v_lshl_add_u32 v8, v9, 3, v8
    v_bfe_u32 v9, v4, 1, 1
    v_add_u32 v8, v8, v9
    s_lshl_b32 s4, s53, 7
    s_lshl_b32 s5, s62, 5
    s_add_u32 s4, s4, s5
    v_add_u32 v8, s4, v8
    v_mul_u32_u24 v8, 1152, v8
    v_add_u32 v8, v8, v5                 ; x n=0
    v_xor_b32 v9, 64, v8
    v_add_u32 v10, {2*(2304-1024)}, v8
    v_add_u32 v11, {3*(2304-1024)}, v9
    v_add_u32 v9, {2304-1024}, v9
    s_lshl_b32 s4, s54, 6
    s_and_b32 s5, s62, 1
    s_lshl_b32 s5, s5, 5
    s_add_u32 s4, s4, s5
    s_mul_i32 s4, s4, 1152
    v_add_u32 v12, s4, v6
    v_xor_b32 v13, 64, v12
    v_add_u32 v14, {2*8192}, v12
    v_add_u32 v15, {3*8192}, v13
    v_add_u32 v13, 8192, v13
    s_lshl_b32 s6, s62, 12
    s_cmp_lt_u32 s62, 2
    s_mov_b32 s64, s8
    s_mov_b32 s65, s9
    s_cselect_b32 s68, s28, s30
    s_cselect_b32 s69, s29, s31
    s_mov_b32 s10, s59
    """)
    CO = list(range(10, 19))
    def dma(c, parts="wx"):
        if "w" in parts:
            k(f"s_add_u32 m0, s6, {WSL + 16384*(c%3)}")
            for n in range(4): k(f"buffer_load_dwordx4 v{12+n}, s[68:71], s{CO[c]} offen offset:{1024*n} lds", tag=("c", c))
        if "x" in parts:
            k(f"s_add_u32 m0, s6, {XS + 16384*(c%3)}")
            for n in range(4): k(f"buffer_load_dwordx4 v{8+n}, s[64:67], s{CO[c]} offen offset:{1024*n} lds", tag=("c", c))
    def csetup():
        g.ids2()
        k(f"""
        s_mov_b32 s74, {0 if g.dbg_noC else 663552}
        s_mov_b32 s75, 0x20000
        s_mul_i32 s61, s62, 12288
        s_add_u32 s61, s61, {CST}
        s_cmp_lt_u32 s62, 2
        s_cselect_b32 s72, s32, s34
        s_cselect_b32 s73, s33, s35
        s_mov_b32 s{UO[0]}, s57
        s_mul_i32 s4, s52, 96
        s_and_b32 s5, s62, 1
        s_mul_i32 s5, s5, 48
        s_add_u32 s4, s4, s5
        s_mul_i32 s4, s4, 1152
        v_add_u32 v6, s4, v6                 ; vC0
        v_xor_b32 v7, 64, v6
        v_add_u32 v7, 8192, v7               ; vC1
        v_lshrrev_b32 v4, 1, v2
        v_xor_b32 v4, v4, v3
        v_lshlrev_b32 v4, 4, v4
        v_lshl_add_u32 v4, v2, 7, v4
        v_add_u32 v4, s61, v4
        v_xor_b32 v5, 64, v4
        """)
        offsets(k, UO)
    CU = lambda u: 88 + 24*(u % 7)
    def c_dma(n):
        k(f"s_add_u32 m0, s61, {2048*(n%6)}\ns_add_u32 s20, s{UO[n//3]}, {18432*(n%3)}\nbuffer_load_dwordx4 v6, s[72:75], s20 offen lds\nbuffer_load_dwordx4 v7, s[72:75], s20 offen offset:1024 lds", tag=("C", n))
    def c_drain(e, n):
        for ks in range(2): e(f"ds_read_b128 {v(CU(n//3)+12*ks+4*(n%3),4)}, v{4+ks} offset:{2048*(n%6)}", tag=("Cd", n))
    def cstream(n0, depth):
        drained = 0
        for n in range(n0, g.cmf):
            D = depth(n)
            while drained <= n - D and drained < 21:
                k.wait_vm(("C", drained)); c_drain(k, drained); drained += 1
            if drained >= 21: k.wait_vm(("C", n - D))
            if n >= 6: k.wait_lg(("Cd", n - 6))
            c_dma(n)
        while drained < 21:
            k.wait_vm(("C", drained)); c_drain(k, drained); drained += 1
        k.wait_vm()
    g.st("karg")
    dma(0)
    offsets(k, CO)
    csetup()
    if g.prioL: k(f"s_setprio {g.prioL}")
    dma(1, g.first)
    for c in range(9):
        if g.nob8 and c == 8: break
        k.wait_vm(("c", 8 if (g.nob8 and c == 7) else c)); g.st(f"l{c}"); k("s_barrier")
        if c == 0: dma(1, [p for p in "wx" if p not in g.first])
        if c + 2 < 9: dma(c + 2)
        if c == (6 if g.nob8 else 7):
            for n in range(g.cpre): c_dma(n)
    cstream(g.cpre, lambda n: 5 if n < g.cfast else g.cthr)
    k("s_branch L_CPF")
    vm_c = list(k.vm)
    g.enter("L_R2G"); k.vm = list(g.pvm)
    UK0 = 34816
    k(f"""
    s_sub_u32 s62, s48, 4                ; lw
    v_lshrrev_b32 v4, 3, v1              ; rl
    s_mul_i32 s3, s62, 14
    v_and_b32 v8, 7, v1
    s_add_u32 s3, s3, s49
    v_mul_u32_u24 v6, 1152, v4
    s_sub_u32 s3, s3, 18
    s_lshr_b32 s6, s3, 2                 ; col
    s_and_b32 s7, s3, 3
    s_lshl_b32 s4, s50, 2
    s_add_u32 s7, s7, s4                 ; tb
    s_mul_i32 s4, s7, {64*1152}
    s_lshl_b32 s5, s6, 7
    s_add_u32 s4, s4, s5
    v_lshl_add_u32 v9, v8, 4, v6
    v_add_u32 v9, s4, v9
    s_mul_i32 s63, s62, 12288
    s_add_u32 s63, s63, {CST}
    v_mov_b32 v60, 0
    v_mov_b32 v61, 0
    s_mov_b32 s66, 2359296
    s_mov_b32 s67, 0x20000
    s_cmp_ge_u32 s3, 36
    s_mov_b32 s64, s8
    s_mov_b32 s65, s9
    s_cbranch_scc1 L_noT1
    """)
    for n in range(8):
        k(f"s_add_u32 m0, s63, {1024*n}\ns_mov_b32 s4, {9216*n}\nv_xor_b32 v11, {16*n}, v9\nbuffer_load_dwordx4 v11, s[64:67], s4 offen lds")
    k.raw("L_noT1:")
    k(f"""
    global_load_dword v62, v60, s[46:47]
    v_xor_b32 v5, v8, v3
    v_lshl_add_u32 v6, v5, 4, v6
    s_lshl_b32 s4, s48, 3
    s_add_u32 s4, s4, {EXE}
    v_mov_b32 v10, s4
    ds_write_b64 v10, v[60:61]
    s_mul_i32 s10, s62, {AW}
    s_add_u32 s10, s10, {UK0}
    v_lshl_add_u32 v12, v1, 3, s10
    ds_write_b64 v12, v[60:61]
    s_and_b32 s4, s62, 1
    s_mul_i32 s11, s4, {AW}
    s_add_u32 s11, s11, {UK0 + 4*AW}
    v_lshl_add_u32 v12, v1, 3, s11
    ds_write_b64 v12, v[60:61]
    s_mov_b32 s76, s46
    s_mov_b32 s77, s47
    s_mov_b32 s78, {WS_SIZE}
    s_mov_b32 s79, 0x20000
    s_mov_b32 s22, 0x05040100
    s_mov_b32 s23, 0x07060302
    s_lshl_b32 s5, s6, 18
    s_lshl_b32 s12, s7, 7
    s_add_u32 s5, s5, s12
    s_add_u32 s5, s5, {WS_UT}
    v_lshl_add_u32 v13, v8, 4, s5
    v_lshl_add_u32 v13, v4, 15, v13
    s_lshl_b32 s5, s6, 5
    s_add_u32 s5, s5, s7
    s_lshl_b32 s5, s5, {g.tfs}
    s_add_u32 s5, s5, {WS_TF}
    v_mov_b32 v14, s5
    v_lshrrev_b32 v15, 5, v1
    v_mad_u32_u24 v15, v15, 5, s60
    v_min_u32 v15, 575, v15
    v_lshrrev_b32 v15, 6, v15
    v_and_b32 v16, 31, v1
    v_lshl_add_u32 v15, v15, 5, v16
    v_lshlrev_b32 v15, {g.tfs}, v15
    v_add_u32 v15, {WS_TF}, v15
    s_lshl_b32 s12, s60, 12
    s_add_u32 s12, s12, {WS_UT}
    v_lshlrev_b32 v16, 4, v1
    v_xor_b32 v11, v4, v8
    v_lshlrev_b32 v11, 4, v11
    v_lshl_add_u32 v11, v8, 10, v11
    v_add_u32 v11, s63, v11
    """)
    k.wait_lg(); k("s_barrier")
    k("s_cmp_ge_u32 s3, 36\ns_cbranch_scc1 L_noT2")
    k.raw(f"    s_waitcnt vmcnt(1)"); k.vm = k.vm[-1:]
    g.st("Tld")
    for i in range(8): k(f"ds_read_b128 {v(64+4*i,4)}, v11 offset:{128*i}")
    for e in range(8):
        for p in range(4): k(f"v_perm_b32 v{96+4*e+p}, v{64+8*p+4+e//2}, v{64+8*p+e//2}, s{22+e%2}")
        k(f"s_mov_b32 s4, {4096*e}\nbuffer_store_dwordx4 {v(96+4*e,4)}, v13, s[76:79], s4 offen sc1")
    k.raw("L_noT2:")
    tagc = f"v_readfirstlane_b32 s55, v62\ns_mul_i32 s55, s55, {LCG_A}\ns_add_u32 s55, s55, {LCG_C}\ns_max_u32 s55, s55, 1\nv_mov_b32 v17, s55"
    k.raw("    s_waitcnt vmcnt(0)"); k.vm = []
    k(tagc + "\ns_cmp_ge_u32 s3, 36\ns_cbranch_scc1 L_noT3")
    k("s_mov_b64 exec, 1\nglobal_store_dword v14, v17, s[46:47] sc1\ns_mov_b64 exec, -1")
    k.raw("L_noT3:")
    g.st("Tst")
    save = list(k.vm)
    def fetchU(lab, nch):
        k(f"s_cmp_lg_u32 s62, 3\ns_cbranch_scc1 {lab}_skip")
        g.poll(lab, lambda: k(f"s_sleep {g.tsleep}\nglobal_load_dword v18, v15, s[46:47] sc1"), lambda: k("v_cmp_ne_u32 vcc, s55, v18\ns_nop 1"))
        g.st("Tarr")
        for c in range(nch):
            k(f"s_mov_b32 m0, {UK0 + AW*c + 512}\ns_add_u32 s4, s12, {4096*c}")
            for n in range(4): k(f"buffer_load_dwordx4 v16, s[76:79], s4 offen offset:{1024*n} sc1 lds")
        k.wait_vm()
        k("v_mov_b32 v60, 1\nds_write_b32 v10, v60")
        k.wait_lg(); g.st("gath")
        k.raw(lab + "_skip:")
        if g.uwait:
            k(f"v_mov_b32 v19, {EXE+56}")
            g.poll(lab + "w", lambda: k("s_sleep 2\nds_read_b32 v18, v19"), lambda: k("v_cmp_ne_u32 vcc, 1, v18\ns_nop 1"))
    k("s_cmp_lt_u32 s49, 24\ns_cbranch_scc1 L_R2C")
    k(f"""
    s_sub_u32 s4, s49, 24
    s_lshl_b32 s4, s4, 2
    s_add_u32 s4, s4, s62                ; 0..31
    s_mul_i32 s5, s4, {144*128}
    s_mul_i32 s14, s50, {4*HBLK}
    s_add_u32 s5, s5, s14
    s_add_u32 s5, s5, {0 if g.hout else WS_H}
    v_min_u32 v56, 47, v1
    v_lshl_add_u32 v56, v56, 7, s5
    s_and_b32 s5, s4, 15
    s_mul_i32 s5, s5, 36
    v_min_u32 v57, 35, v1
    v_add_u32 v57, s5, v57               ; C row
    v_mul_u32_u24 v58, 683, v57
    v_lshrrev_b32 v58, 16, v58
    v_mul_u32_u24 v58, 3, v58
    v_lshrrev_b32 v58, 1, v58
    v_mul_u32_u24 v57, 1152, v57
    s_cmp_lt_u32 s4, 16
    s_cselect_b32 s72, s32, s34
    s_cselect_b32 s73, s33, s35
    s_mov_b32 s74, 663552
    s_mov_b32 s75, 0x20000
    """)
    pf = Rec()
    for i in range(g.cpf):
        pf.group(f"v_add_u32 v59, {(3*g.rot2i + 8 - i) % 9}, v58\nv_subrev_u32 v62, 9, v59\nv_min_u32 v59, v59, v62\nv_lshl_add_u32 v59, v59, 7, v57\nbuffer_load_dword v{64+i}, v59, s[72:75], 0 offen")
    if g.hpre:
        for i in range(3): pf.group(f"global_load_dword v{80+i}, v56, s[{42 if g.hout else 46}:{43 if g.hout else 47}]\nv_add_u32 v56, {48*128}, v56")
    if g.pf_pre:
        k("s_cmp_ge_u32 s62, 2\ns_cbranch_scc1 L_nopre")
        k(f"s_sub_u32 s4, s49, 24\ns_lshl_b32 s4, s4, 1\ns_add_u32 s4, s4, s62\ns_mul_i32 s5, s4, {288*128}\ns_add_u32 s5, s5, s14\ns_add_u32 s5, s5, {0 if g.hout else WS_H}\nv_lshl_add_u32 v63, v1, 7, s5")
        for i in range(g.pf_pre): k(f"global_load_dword v{90+i}, v63, s[{42 if g.hout else 46}:{43 if g.hout else 47}]\nv_add_u32 v63, {64*128}, v63")
        k.raw("L_nopre:")
    fetchU("L_pollT3", 6)
    for it in pf.items:
        play(k, it); k._wait(vm=g.pf_depth)
    k.wait_vm(); g.st("pfdone")
    g.fin()
    k.raw("L_R2C:"); k.vm = save; k.hist = []
    csetup()
    fetchU("L_pollT2", 4)
    k.vm = []
    cstream(0, lambda n: g.cthr2)
    k.raw("L_CPF:"); k.vm = []; k.lg = [(set(), None)]
    k(f"""
    v_lshrrev_b32 v8, 1, v3
    v_lshlrev_b32 v8, 12, v8
    s_lshr_b32 s4, s62, 1
    s_lshl_b32 s5, s4, 10
    v_add_u32 v8, s5, v8
    v_bfe_u32 v9, v1, 1, 1
    v_lshl_add_u32 v8, v9, 8, v8
    v_and_b32 v10, 1, v3
    v_lshlrev_b32 v10, 3, v10
    v_bfe_u32 v11, v1, 2, 2
    v_add_u32 v10, v10, v11
    v_lshlrev_b32 v9, 2, v9
    v_xor_b32 v10, v10, v9
    v_lshl_add_u32 v8, v10, 4, v8
    v_and_b32 v10, 1, v1
    v_lshl_add_u32 v6, v10, 3, v8
    v_xor_b32 v7, 64, v6
    s_mul_i32 s4, s4, 25600
    s_and_b32 s5, s62, 1
    s_mul_i32 s5, s5, 192
    s_add_u32 s4, s4, s5
    s_add_u32 s4, s4, {IMG}
    v_mul_u32_u24 v0, 400, v2
    v_lshl_add_u32 v0, v3, 4, v0
    v_add_u32 v0, s4, v0
    v_add_u32 v2, 49152, v6
    v_add_u32 v3, 49152, v7
    """)
    k.wait_all(); g.st("cdone")
    A2, HF = 40, 8
    def hreads(e, u, ks):
        sl = u % 6; a0 = 6 if sl < 3 else 2
        for tt in range(4):
            off = 16384*(sl % 3) + 8192*ks + 2048*(tt >> 1) + 512*(tt & 1)
            e(f"ds_read_b64_tr_b16 {v(HF+16*ks+4*tt,2)}, v{a0} offset:{off}\nds_read_b64_tr_b16 {v(HF+16*ks+4*tt+2,2)}, v{a0+1} offset:{off}")
    def mf1(u, ks, tt, dt):
        d = A2 + 16*dt + 4*tt
        cc = "0" if (u == 0 and ks == 0) else v(d, 4)
        return ("i", f"{M16} {v(d,4)}, {v(CU(u)+12*ks+4*dt,4)}, {v(HF+16*ks+4*tt,4)}, {cc}", None)
    mf2 = lambda u, ks: [mf1(u, ks, tt, dt) for tt in range(4) for dt in range(3)]
    k("s_barrier")
    hreads(k, 0, 0)
    if g.wb: k.raw("    s_or_b32 s4, s52, s62\n    s_cbranch_scc1 L_nowb\n    buffer_wbl2 sc1\nL_nowb:")
    tail = [[(7,0,tt),(7,1,tt),(8,0,tt),(8,1,tt)] for tt in range(4)]
    def treads(e, st):
        for i, (u, ks, tt) in enumerate(tail[st]):
            off = 16384*(u % 6) + 8192*ks + 2048*(tt >> 1) + 512*(tt & 1); b_ = HF + 16*(st % 2) + 4*i
            e(f"ds_read_b64_tr_b16 {v(b_,2)}, v6 offset:{off}\nds_read_b64_tr_b16 {v(b_+2,2)}, v7 offset:{off}")
    def tmf(st):
        return [("i", f"{M16} {v(A2+16*dt+4*tt,4)}, {v(CU(u)+12*ks+4*dt,4)}, {v(HF+16*(st%2)+4*i,4)}, {v(A2+16*dt+4*tt,4)}", None) for i, (u, ks, tt) in enumerate(tail[st]) for dt in range(3)]
    def wr(tts):
        e = Rec()
        for tt in tts:
            for dt in range(3): e(f"ds_write_b128 v0, {v(A2+16*dt+4*tt,4)} offset:{6400*tt+64*dt}")
        return e.items
    early = g.cmf == 27
    for u in range(7):
        rd = Rec(); hreads(rd, u, 1)
        ex = Rec()
        if u == (2 if early else 5):
            for n in range(21, 24): c_drain(ex, n)
        if early and u == 3:
            for n in range(24, 27): c_drain(ex, n)
        weave(k, mf2(u, 0), [(rd.items, 0, 7), (ex.items, 4, 9)])
        if u + 1 in (1, 2, 3, 5, 7): k.wait_lg(); k("s_barrier")
        rd = Rec(); ex = Rec()
        if u < 6: hreads(rd, u + 1, 0)
        else:
            treads(rd, 0)
            if not early:
                for n in range(24, 27): c_drain(ex, n)
        weave(k, mf2(u, 1), [(rd.items, 1, 8), (ex.items, 5, 10)])
    for st in range(4):
        rd = Rec()
        if st < 3: treads(rd, st + 1)
        w_ = wr([st - 1]) if st else []
        m_ = tmf(st)
        if st == 3:
            for it in m_[:2]: play(k, it)
            k.wait_lg(); k("s_barrier"); m_ = m_[2:]
        weave(k, m_, [(rd.items, 0, 4), (w_, 3 if st < 3 else 2, len(m_) - 1)])
    for it in wr([3]): play(k, it)
    k.wait_lg(); g.st("p2end"); k("s_barrier")
    g.fin()
```

```python
from g2 import *
kw = dict(stamps=True, clk="s_memtime")
B1 = ['c4','gemm1','hst','u0','u7','u8','Farr','img0','stiss']
make("y1.s", bst=B1, **kw)
make("y2.s", bst=B1, hout=0, **kw)
make("y3.s", bst=B1, rot1x=0, **kw)
make("t1.s"); make("t2.s", hout=0); make("t3.s", cthr=3); make("t4.s", rot1x=0)
```

```python
from g2 import *
import g2b
UK0 = 34816
def partA(self):
    k = self.k
    self.enter("L_A"); k.vm = list(self.pvm)
    k(f"""
    s_add_u32 s61, s60, s48          ; d
    s_and_b32 s5, s48, 1
    s_add_u32 s5, s5, 4
    s_cmp_ge_u32 s49, 24
    s_cselect_b32 s64, s5, s48
    s_add_u32 s65, s60, s64          ; second d
    s_lshl_b32 s62, s61, 8
    v_lshl_add_u32 v26, v1, 2, s62
    s_lshl_b32 s62, s61, 1
    v_mov_b32 v27, s62
    s_lshl_b32 s62, s65, 8
    v_lshl_add_u32 v24, v1, 2, s62
    s_lshl_b32 s62, s65, 1
    v_mov_b32 v25, s62
    v_mov_b32 v60, 0
    v_mov_b32 v61, 0
    global_load_dword v10, v26, s[10:11]
    global_load_dword v11, v26, s[12:13]
    global_load_ushort v14, v27, s[18:19]
    global_load_dword v12, v26, s[14:15]
    global_load_dword v13, v26, s[16:17]
    global_load_ushort v15, v27, s[20:21]
    global_load_dword v22, v60, s[46:47]
    """)
    self.st("karg")
    k(f"""
    s_lshl_b32 s4, s48, 3
    s_add_u32 s4, s4, {EXE}
    v_mov_b32 v4, s4
    ds_write_b64 v4, v[60:61]
    """)
    k("""
    global_load_dword v16, v24, s[10:11]
    global_load_dword v17, v24, s[12:13]
    global_load_ushort v20, v25, s[18:19]
    global_load_dword v18, v24, s[14:15]
    global_load_dword v19, v24, s[16:17]
    global_load_ushort v21, v25, s[20:21]
    """)
    k.wait_lg(); k("s_barrier")
    self.ids2()
    k(f"""
    s_mov_b32 s76, s46
    s_mov_b32 s77, s47
    s_mov_b32 s78, {WS_SIZE}
    s_mov_b32 s79, 0x20000
    s_mul_i32 s68, s48, {TW}
    s_add_u32 s69, s68, {UK0}
    s_add_u32 s70, s69, 4608            ; K base
    s_mul_i32 s66, s64, {AW}
    s_add_u32 s66, s66, {UK0}
    s_mov_b32 m0, s68
    s_cmp_ge_u32 s49, 24
    s_cselect_b32 s63, 1, 0
    s_cmp_lt_u32 s48, 2
    s_cselect_b32 s63, s63, 0
    v_mul_u32_u24 v59, 544, v2
    v_lshl_add_u32 v59, v3, 4, v59
    v_add_u32 v59, s68, v59
    v_and_b32 v58, 7, v2
    v_lshlrev_b32 v58, 2, v58
    s_mov_b32 s62, 0x43222100
    v_lshrrev_b32 v58, v58, s62
    v_and_b32 v58, 15, v58
    v_lshrrev_b32 v62, 3, v2
    v_mad_u32_u24 v58, v62, 5, v58
    v_mul_u32_u24 v58, 544, v58
    v_lshl_add_u32 v58, v3, 4, v58
    v_add_u32 v58, s68, v58
    v_lshrrev_b32 v5, 1, v3
    v_lshlrev_b32 v5, 8, v5
    v_lshl_add_u32 v5, v2, 4, v5
    v_and_b32 v6, 1, v3
    v_lshl_add_u32 v5, v6, 3, v5
    v_sub_u32 v5, 568, v5
    v_lshrrev_b32 v6, 1, v2
    v_and_b32 v8, 1, v2
    v_lshlrev_b32 v9, 6, v3
    v_lshl_add_u32 v9, v6, 2, v9
    v_lshlrev_b32 v23, 8, v8
    v_sub_u32 v23, v23, v9
    v_add_u32 v23, {2368 + 188 - 32}, v23
    v_lshlrev_b32 v9, 7, v3
    v_lshl_add_u32 v9, v6, 2, v9
    v_lshlrev_b32 v8, 1, v8
    v_sub_u32 v8, v8, v9
    v_add_u32 v8, {2368 + 512 + 252 + 256 - 96}, v8
    v_cmp_gt_u32 vcc, 2, v3
    v_cndmask_b32 v6, v8, v23, vcc
    """)
    def tag():
        k(f"v_readfirstlane_b32 s55, v22\ns_mul_i32 s55, s55, {LCG_A}\ns_add_u32 s55, s55, {LCG_C}\ns_max_u32 s55, s55, 1\ns_cmp_ge_u32 s49, 24\ns_cbranch_scc1 L_xp2")
        self.pub_xcc(244, "L_xp2", 0)
    if self.skipA: tag()
    vFR, vFR1 = 59, 58
    pend_vm = list(k.vm)
    k.raw(".p2align 3\nL_tab:"); k.hist = []
    k(f"""
    v_mov_b32 v60, 0
    v_mov_b32 v61, 0
    v_mov_b32 v62, 0
    v_mov_b32 v63, 0
    v_lshl_add_u32 v8, v1, 4, s70
    v_lshlrev_b32 v14, 16, v14
    v_mul_f32 v14, {fl(LOG2E)}, v14
    v_lshlrev_b32 v64, 16, v10
    v_and_b32 v66, 0xffff0000, v10
    ds_write_b128 v8, v[60:63]
    ds_write_b128 v8, v[60:63] offset:1024
    ds_write_b128 v8, v[60:63] offset:2048
    ds_write_b128 v8, v[60:63] offset:3072
    v_exp_f32 v14, v14
    v_mul_f32 v64, {fl(LOG2E)}, v64
    v_mul_f32 v66, {fl(LOG2E)}, v66
    v_exp_f32 v64, v64
    v_exp_f32 v66, v66
    v_cvt_pk_bf16_f32 v14, v14, v14
    v_lshlrev_b32 v65, 16, v11
    v_and_b32 v67, 0xffff0000, v11
    v_cvt_pk_bf16_f32 v10, v64, v66
    v_and_b32 v14, 0xffff0000, v14
    v_lshlrev_b32 v64, 16, v10
    v_and_b32 v66, 0xffff0000, v10
    v_mul_f32 v64, v64, v14
    v_mul_f32 v66, v66, v14
    v_mul_f32 v65, v65, v14
    v_mul_f32 v67, v67, v14
    v_mul_f32 v64, {fl(-LOG2E)}, v64
    v_mul_f32 v66, {fl(-LOG2E)}, v66
    v_mul_f32 v65, {fl(INV2PI)}, v65
    v_mul_f32 v67, {fl(INV2PI)}, v67
    """)
    self.st("par")
    AR, AI = (64, 66), (65, 67)
    E8, E16, E1, W = (68, 70), (72, 74), (76, 78), (80, 82)
    T = list(range(84, 104, 2))
    G = [[104 + 4*c, 106 + 4*c] for c in range(9)]
    LA, LBb = (140, 142), (144, 146)
    OUT = [148, 150, 152, 154, 232, 234, 236, 238]
    LOF, HF, DT = 156, 188, [220, 224, 228]
    oc = [0]; pendw = []
    def flushw():
        for w_ in pendw: k(w_)
        pendw.clear()
    def entry(row, x0, x1, neg):
        o = OUT[oc[0] % 8]; oc[0] += 1
        n = "-" if neg else ""
        k(f"v_cvt_pk_bf16_f32 v{o}, v{x0}, {n}v{x0+1}\nv_cvt_pk_bf16_f32 v{o+1}, v{x1}, {n}v{x1+1}")
        pendw.append(f"ds_write_addtid_b32 v{o} offset:{544*row}\nds_write_addtid_b32 v{o+1} offset:{544*row+256}")
        if len(pendw) >= self.wbatch: flushw()
    cpow_multi(k, [(E8[n], E8[n]+1, AR[n], AI[n], fl(8.0), T[n], T[n]+1) for n in range(2)] +
                  [(E1[n], E1[n]+1, AR[n], AI[n], "1.0", T[2+n], T[2+n]+1) for n in range(2)] +
                  [(W[n], W[n]+1, AR[n], AI[n], fl(128.0), T[4+n], T[4+n]+1) for n in range(2)])
    cmul_multi(k, [(E16[n], E8[n], E8[n], T[n]) for n in range(2)])
    k(f"v_mov_b32 v{OUT[7]}, 0x3f80"); pendw.append(f"ds_write_addtid_b32 v{OUT[7]}\nds_write_addtid_b32 v{OUT[7]} offset:256")
    entry(1, E8[0], E8[1], True); entry(2, E16[0], E16[1], True)
    pa, pb = E8, E16
    for j in range(3, 16, 2):
        items = [(LA[n], pa[n], E16[n], T[n]) for n in range(2)]
        if j + 1 < 16: items += [(LBb[n], pb[n], E16[n], T[2+n]) for n in range(2)]
        cmul_multi(k, items)
        pa, pb = LA, LBb
        entry(j, LA[0], LA[1], True)
        if j + 1 < 16: entry(j + 1, LBb[0], LBb[1], True)
    flushw()
    for ks in range(8): k(f"ds_read_b128 {v(LOF+4*ks,4)}, v{vFR} offset:{64*ks}")
    k(f"""
    v_add_f32 v14, v14, v14
    v_lshlrev_b32 v{G[0][0]}, 16, v12
    v_lshlrev_b32 v{G[0][0]+1}, 16, v13
    v_and_b32 v{G[0][1]}, 0xffff0000, v12
    v_and_b32 v{G[0][1]+1}, 0xffff0000, v13
    """)
    pk_bc(k, G[0][0], G[0][0], 14, 0); pk_bc(k, G[0][1], G[0][1], 14, 0)
    cmul_multi(k, [(LA[n], E1[n], E1[n], T[n]) for n in range(2)] + [(G[1][n], G[0][n], E1[n], T[2+n]) for n in range(2)]
                    + [(G[8][n], G[0][n], E8[n], T[4+n]) for n in range(2)])
    entry(0, G[0][0], G[0][1], False); entry(1, G[1][0], G[1][1], False)
    for c in range(2, 8, 2):
        cmul_multi(k, [(G[c+i][n], G[c+i-2][n], LA[n], T[2*i+n]) for i in range(2) for n in range(2)])
        entry(c, G[c][0], G[c][1], False); entry(c+1, G[c+1][0], G[c+1][1], False)
    def mulW(cs, Wp=W):
        cmul_multi(k, [(G[c][n], G[c][n], Wp[n], T[(2*i+n) % 10]) for i, c in enumerate(cs) for n in range(2)])
    for cs in ([0, 1, 2], [3, 4, 5], [6, 7, 8]):
        mulW(cs)
        for c in cs:
            if c < 8: entry(8 + c, G[c][0], G[c][1], False)
    def kgen(tile, addr, cinit):
        flushw()
        for ks in range(8): k(f"ds_read_b128 {v(HF+4*ks,4)}, v{addr} offset:{64*ks}")
        return [("i", f"{M16} {v(DT[tile],4)}, {v(HF+4*ks,4)}, {v(LOF+4*ks,4)}, {cinit if ks == 0 else v(DT[tile],4)}", None) for ks in range(8)]
    k(f"v_lshlrev_b32 v15, 16, v15\nv_cmp_eq_u32 vcc, 0, v1\nv_mov_b32 v{DT[0]+1}, 0\nv_mov_b32 v{DT[0]+2}, 0\nv_cndmask_b32 v{DT[0]}, 0, v15, vcc\nv_mov_b32 v{DT[0]+3}, 0")
    def with_mf(mf, fn):
        nonlocal k
        real = k; k = Rec(); fn(); flushw(); items = k.items; k = real
        k.wait_lg()
        weave(k, mf, [(items, 1, len(mf))])
    mf = kgen(0, vFR, v(DT[0], 4))
    ev = [0, 2, 4, 6, 8]
    mulW(ev)
    with_mf(mf, lambda: [entry(i, G[c][0], G[c][1], False) for i, c in enumerate(ev)])
    mulW(ev)
    for i, c in enumerate(ev): entry(5 + i, G[c][0], G[c][1], False)
    mf = kgen(1, vFR1, "0")
    cmul_multi(k, [(E1[n], W[n], W[n], T[n]) for n in range(2)] + [(G[c][n], G[c][n], W[n], T[2+2*i+n]) for i, c in enumerate((4, 8)) for n in range(2)])
    cmul_multi(k, [(G[d_][n], G[c][n], W[n], T[2*i+n]) for i, (d_, c) in enumerate(((3, 4), (7, 8))) for n in range(2)])
    def post(j):
        d = DT[j]; off = 512 if j == 0 else 0; t = 240 + 4*j
        k(f"""
        v_cvt_pk_bf16_f32 v{t}, v{d+3}, v{d+2}
        v_cvt_pk_bf16_f32 v{t+1}, v{d+1}, v{d}
        v_cvt_pk_bf16_f32 v{t+2}, v{d+2}, v{d+1}
        ds_write_b64 v61, v[{t}:{t+1}] offset:{off}
        ds_write_b16 v61, v{t} offset:{off+1214}
        ds_write_b32 v61, v{t+2} offset:{off+1216}
        ds_write_b16_d16_hi v61, v{t+1} offset:{off+1220}
        """)
    k("v_add_u32 v61, s70, v5\nv_mov_b32 v62, s70\nv_add_u32 v63, s70, v6")
    with_mf(mf, lambda: [entry(i, G[c][0], G[c][1], False) for i, c in enumerate((4, 8, 3, 7))])
    mulW([4, 8, 3, 7], E1)
    for i, c in enumerate((4, 8, 3, 7)): entry(4 + i, G[c][0], G[c][1], False)
    for h in range(0, 8, 2):
        mulW([8, 7], E1)
        entry(8 + h, G[8][0], G[8][1], False); entry(9 + h, G[7][0], G[7][1], False)
    mf = kgen(2, vFR, "0")
    self.st("tabs")
    post(0)
    with_mf(mf, lambda: post(1))
    d = DT[1]
    k(f"""
    v_cvt_pk_bf16_f32 v72, v{d+3}, v{d+3}
    s_mov_b32 exec_lo, 0
    s_mov_b32 exec_hi, 0x80000000
    ds_write_b32 v62, v72 offset:60
    ds_write_b16 v62, v72 offset:58
    ds_write_b32 v62, v72 offset:1272
    ds_write_b16 v62, v72 offset:1276
    s_mov_b64 exec, -1
    """)
    d = DT[2]
    k(f"""
    v_cvt_pk_bf16_f32 v74, v{d}, v{d+1}
    v_cvt_pk_bf16_f32 v75, v{d+2}, v{d+3}
    s_mov_b32 exec_hi, 0
    ds_write_b32 v63, v74 offset:32
    ds_write_b32 v63, v75
    s_mov_b32 exec_hi, -1
    s_mov_b32 exec_lo, 0
    ds_write_b16 v63, v74 offset:96
    ds_write_b16_d16_hi v63, v74 offset:64
    ds_write_b16 v63, v75 offset:32
    ds_write_b16_d16_hi v63, v75
    s_mov_b32 exec_lo, -1
    """)
    k.wait_vm()
    k("s_cmp_eq_u32 s63, 0\ns_cbranch_scc1 L_tab_done\ns_cmp_eq_u32 s63, 2\ns_cbranch_scc1 L_tab_sig")
    for i in range(3): k(f"v_mov_b64 {v(10+2*i,2)}, {v(16+2*i,2)}")
    k("s_mov_b32 s63, 2\ns_add_u32 s70, s66, 4608\ns_branch L_tab")
    k.raw("L_tab_sig:")
    k(f"v_mov_b32 v60, 1\nds_write_b32 v4, v60 offset:4\ns_add_u32 s70, s69, 4608")
    k.raw("L_tab_done:")
    self.st("kgen")
    if not self.skipA: tag()
    k(f"""
    v_lshlrev_b32 v10, 3, v3
    v_sub_u32 v10, v10, v2
    v_add_u32 v10, 15, v10
    v_lshlrev_b32 v10, 1, v10
    v_and_b32 v11, 1, v2
    v_cmp_eq_u32 vcc, 0, v11
    v_mov_b32 v11, 1214
    v_lshlrev_b32 v24, 2, v3
    v_cndmask_b32 v11, 0, v11, vcc
    v_add_u32 v10, v10, v11
    v_sub_u32 v24, v24, v2
    v_add_u32 v24, {15 + 2368//4}, v24
    v_lshlrev_b32 v24, 2, v24           ; P offset
    v_lshlrev_b32 v25, 5, v2
    v_lshl_add_u32 v25, v3, 4, v25
    v_add_u32 v25, 32, v25
    v_and_b32 v26, 1, v3
    v_lshlrev_b32 v26, 9, v26
    v_lshrrev_b32 v27, 2, v2
    v_lshl_add_u32 v26, v27, 7, v26
    v_lshrrev_b32 v27, 1, v3
    v_lshl_add_u32 v26, v27, 6, v26
    v_and_b32 v27, 3, v2
    v_lshl_add_u32 v26, v27, 4, v26
    v_and_b32 v27, 3, v1
    v_lshlrev_b32 v27, 3, v27
    v_add_u32 v27, {EXE+32}, v27
    """)
    ACC, KF, K23, ZT, ZP, UR, XT, BAND = 56, 88, 156, 196, 220, 232, 12, 28
    def out_txt(B):
        q = ACC + 4*B
        return ("\n".join(f"v_cvt_pk_bf16_f32 v{q+i}, v{q+2*i}, v{q+2*i+1}" for i in range(4)),
                f"v_permlane16_swap_b32 v{q}, v{q+2}\nv_permlane16_swap_b32 v{q+1}, v{q+3}", f"buffer_store_dwordx4 {v(q,4)}, v26, s[76:79], s62 offen offset:{512*B} sc1")
    def conv(name, BS, band):
        k.raw(f".p2align 3\nL_conv{name}:"); k.hist = []; k.lg = [(set(), None)]; k.vm = []
        self.poll(f"L_pollU{name}", lambda: k("s_sleep 1\nds_read_b32 v11, v27"), lambda: k("v_cmp_ne_u32 vcc, 1, v11\ns_nop 1"))
        self.st("U" + name)
        k(f"""
        v_add_u32 v5, s70, v10
        v_add_u32 v6, 1024, v5
        v_add_u32 v8, s70, v24
        v_add_u32 v7, s69, v25
        s_lshl_b32 s62, s61, 12
        s_add_u32 s62, s62, {WS_A}
        """)
        if band:
            k(f"v_lshlrev_b32 v9, 4, v1\nv_add_u32 v9, {g2b.BND}, v9")
            for i in (0, 1, 2, 4, 3, 5, 6): k(f"ds_read_b128 {v(28+4*i,4)}, v9 offset:{1024*i}")
        k("v_mov_b32 v9, s70")
        fq = []; made = set()
        def fill(text, key=None):
            ls = text.split("\n")
            for i, l in enumerate(ls): fq.append((l, key if i == len(ls) - 1 else None))
        def pop():
            l, key = fq.pop(0); k(l)
            if key is not None: made.add(key)
        def mf(text, needs):
            for key in needs:
                while key not in made: pop()
            k(text)
            for _ in range(2):
                if fq: pop()
        k2t = {}; idx = 0
        for D_ in (2, 3, 4):
            for pr in range(2):
                k2t[(2, D_, pr)] = (K23 + 4*idx, 64*pr + 64 - 16*D_); idx += 1
        for D_ in (4, 5, 6, 7):
            k2t[(3, D_, 0)] = (K23 + 4*idx, 128 + 112 - 16*D_); idx += 1
        asked = set()
        def want(key):
            if key in asked: return
            asked.add(key)
            if key == "xt":
                fill(f"ds_read_u16 v11, v9 offset:{2368 + 256 + 4*16 + 2}")
                later.append([3, lambda: fill("v_lshl_or_b32 v11, v11, 16, v11\n" + "\n".join(f"v_and_b32 v{XT+i}, v{52+i}, v11" for i in range(4)), "xt")])
            elif key[0] == "kf":
                s_ = key[1]; a_, o = (6, 0) if s_ == 0 else (5, 16*(16 - s_))
                fill(f"ds_read2_b32 {v(KF+4*s_,2)}, v{a_} offset0:{o} offset1:{o+1}\nds_read2_b32 {v(KF+4*s_+2,2)}, v{a_} offset0:{o+2} offset1:{o+3}", key)
            else:
                r_, o = k2t[key]
                fill(f"ds_read2_b32 {v(r_,2)}, v8 offset0:{o} offset1:{o+1}\nds_read2_b32 {v(r_+2,2)}, v8 offset0:{o+2} offset1:{o+3}", key)
        later = []
        z2 = [p for p in range(6) if any(p + D_ in BS for D_ in (2, 3, 4))]
        z3 = [p for p in range(4) if any(p + D_ in BS for D_ in (4, 5, 6, 7))]
        js = [j for j in range(-7, 57) if any(0 <= 8*B - j <= 16 for B in BS)]
        gap = max(6, (len(js) - 8) // len(z2)) if name else 8
        zpos = {}
        for i, p in enumerate(z2): zpos[0 if i == 0 else (gap*i + (7 if not name else 3))] = p
        steps = []
        for i, j in enumerate(js):
            if i in zpos:
                p = zpos[i]
                if 8*p == j: steps.append((("u", j), "both", p))
                else: steps.append((("z", p), "band", p))
                steps.append((("c", p), "band2", p))
                if 8*p == j: continue
            steps.append((("u", j), "toep", None))
        xdone = set()
        def needs_of(st):
            key, kind, p = st
            out = []
            if kind in ("toep", "both"): out += [("kf", 8*B - key[1]) for B in BS if 0 <= 8*B - key[1] <= 16]
            return out
        ring = [UR + 4*i for i in range(6)] + [16, 20]
        reg = {}; nl = [0]; PD0 = self.cpd
        xsrc = {}
        for st in steps:
            key, kind, p = st
            pp = key[1] // 8 if (key[0] == "u" and key[1] % 8 == 0 and key[1] >= 0) else p if key[0] == "z" else None
            if pp is not None and pp <= 3 and pp + 4 in BS: xsrc[pp] = key
        def issue_load():
            if nl[0] >= len(steps): return
            st = steps[nl[0]]; key = st[0]; r_ = ring[nl[0] % len(ring)]; reg[key] = r_; nl[0] += 1
            off = 64*(key[1] + 7) if key[0] == "u" else 64*(8*key[1] + 7) - (16 if key[0] == "c" else 0)
            if nl[0] > PD0: fq.insert(0, (f"ds_read_b128 {v(r_,4)}, v7 offset:{off}", key))
            else: fill(f"ds_read_b128 {v(r_,4)}, v7 offset:{off}", key)
            for kk_ in needs_of(st): want(kk_)
        if xsrc and list(xsrc.values())[0][0] == "z":
            k(f"ds_read_u16 v11, v9 offset:{2368 + 256 + 4*16 + 2}"); asked.add("xt")
            pre_xt = True
        else: pre_xt = False
        for _ in range(PD0): issue_load()
        for _ in range(min(self.cpre_pop, len(fq))): pop()
        if pre_xt: fq[0:0] = [(l, None) for l in ["v_lshl_or_b32 v11, v11, 16, v11"] + [f"v_and_b32 v{XT+i}, v{52+i}, v11" for i in range(3)]] + [(f"v_and_b32 v{XT+3}, v55, v11", "xt")]
        first = set()
        def acc(B, a_, b_, needs):
            c = v(ACC+4*B, 4) if B in first else "0"
            first.add(B)
            mf(f"{M16} {v(ACC+4*B,4)}, {v(a_,4)}, {v(b_,4)}, {c}", needs)
        def tick():
            for p in later: p[0] -= 1
            while later and min(p[0] for p in later) <= 0:
                i = min(range(len(later)), key=lambda i: later[i][0]); later.pop(i)[1]()
        s2done = set(); outq = [B for B in BS if B % 2 == 0][:-1]; lastz = None; ntoep = 0
        for st in steps:
            key, kind, p = st
            issue_load()
            r_ = reg[key]
            if kind in ("band", "both"):
                assert lastz is None or lastz in s2done, (name, st)
                lastz = p
                for ph in (0, 1, 2) + ((4,) if p in z3 else ()):
                    mf(f"{M16} {v(ZT+4*ph,4)}, {v(r_,4)}, {v(BAND+4*ph,4)}, 0", [key])
            for pp, kx in xsrc.items():
                if kx == key: acc(pp + 4, XT, r_, [key, "xt"])
            if kind in ("toep", "both"):
                j = key[1]; ntoep += 1
                if ntoep == 2 and xsrc: want("xt")
                for B in BS:
                    if 0 <= 8*B - j <= 16: acc(B, KF + 4*(8*B - j), r_, [key, ("kf", 8*B - j)])
                if outq and j >= 8*(outq[0] + 1) and all(q_ in s2done for q_ in z2 if q_ + 2 <= outq[0] + 1):
                    t_ = out_txt(outq.pop(0))
                    later += [[3, lambda t_=t_: fill(t_[0])], [5, lambda t_=t_: fill(t_[1])], [6, lambda t_=t_: fill(t_[2])]]
                tick()
            if kind == "band2":
                for ph in (3,) + ((5,) if p in z3 else ()):
                    mf(f"{M16} {v(ZT+4*ph,4)}, {v(r_,4)}, {v(BAND+4*ph,4)}, 0", [key])
                def mk_cvt(p, pr):
                    return lambda: fill("\n".join(f"v_cvt_pk_bf16_f32 v{ZP+4*pr+i}, v{ZT+8*pr+i}, v{ZT+8*pr+4+i}" for i in range(4)), ("zp", p, pr))
                def tiles(p, pr):
                    seg, Ds = (2, (2, 3, 4)) if pr < 2 else (3, (4, 5, 6, 7))
                    return [(D_, (seg, D_, pr % 2)) for D_ in Ds if p + D_ in BS]
                def mk_s2(p, pr, last):
                    def f():
                        for D_, kk_ in tiles(p, pr): acc(p + D_, ZP + 4*pr, k2t[kk_][0], [("zp", p, pr), kk_])
                        if last: s2done.add(p)
                    return f
                prs = [0, 1] + ([2] if p in z3 else [])
                d0 = (9 if not name else 3) if p == z2[0] else 0
                for pr in prs:
                    later.append([max(0, d0 - 4) + pr, lambda p=p, pr=pr: [want(kk_) for _, kk_ in tiles(p, pr)]])
                    later.append([1 + pr + d0 - d0//3, mk_cvt(p, pr)])
                    later.append([(4 if not name else 3) + pr + d0, mk_s2(p, pr, pr == prs[-1])])
        while later: tick()
        while fq: pop()
        assert not outq, (name, outq)
        self.st("conv" + name)
        for t_ in out_txt(BS[-2]): k(t_)
    conv("", list(range(8)), True)
    k(f"s_lshl_b32 s71, s61, 3\ns_add_u32 s71, s71, {WS_AF}")
    k.raw("L_A_skip:")
    k("s_cmp_lt_u32 s49, 24\ns_cbranch_scc1 L_A_R2")
    save = list(k.vm)
    k(f"s_mov_b32 s61, s65\ns_mov_b32 s69, s66\ns_add_u32 s70, s66, 4608\ns_and_b32 s4, s48, 1\ns_lshl_b32 s4, s4, 3\ns_add_u32 s4, s4, {EXE+4}\nv_mov_b32 v27, s4\ns_cmp_lt_u32 s48, 2\ns_cbranch_scc0 L_convH")
    conv("L", [0, 1, 2, 3], False)
    k("s_branch L_A_last")
    conv("H", [4, 5, 6, 7], False)
    k.raw("L_A_last:")
    k(f"s_lshl_b32 s4, s61, 3\ns_and_b32 s5, s48, 2\ns_lshl_b32 s5, s5, 1\ns_add_u32 s4, s4, s5\ns_add_u32 s4, s4, {WS_AF}\nv_mov_b32 v9, s4\nv_mov_b32 v6, s71\nv_mov_b32 v22, s55\nv_mov_b32 v23, s55\ns_mov_b64 exec, 1")
    k.wait_vm()
    k("global_store_dwordx2 v6, v[22:23], s[46:47] sc1\nglobal_store_dword v9, v22, s[46:47] sc1\ns_mov_b64 exec, -1")
    self.st("aend")
    self.fin()
    k.raw("L_A_R2:"); k.vm = list(save)
    k(f"v_mov_b32 v6, s71\nv_mov_b32 v22, s55\nv_mov_b32 v23, s55\nv_mov_b32 v9, 1\nv_and_b32 v5, 3, v1\nv_lshlrev_b32 v5, 3, v5\nv_add_u32 v5, {EXE}, v5\nds_write_b32 v4, v9")
    g2b.p2_min(self); g2b.p2_setup(self); g2b.p2_loads(self)
    k.wait_vm()
    k("s_mov_b64 exec, 1\nglobal_store_dwordx2 v6, v[22:23], s[46:47] sc1\ns_mov_b64 exec, -1")
    self.st("aend")
    k.vm = []
    k("s_nop 0"); g2b.p2_unpack(self); g2b.p2_zero(self)
    self.poll("L_pollD", lambda: k("ds_read_b32 v26, v5"), lambda: k("v_cmp_ne_u32 vcc, 1, v26\ns_nop 1"))
    k("s_branch L_P2")
```

```python
from g2 import *
ASY = EXE + 1024
BND = 90112
GXL = 157696
def compute1(g):
    k = g.k
    AX, AWr, GX = 8, 10, 12
    GP = g.gpos
    k(f"""
    s_lshl_b32 s4, s54, 7
    s_lshl_b32 s5, s48, 5
    s_add_u32 s4, s4, s5
    v_lshl_add_u32 v16, v2, 1, s4
    s_add_u32 s4, s59, {128*GP}
    s_sub_u32 s5, s4, 1152
    s_min_u32 s4, s4, s5
    v_lshl_add_u32 v17, v3, 4, s4
    global_load_ushort v20, v16, s[36:37]
    global_load_ushort v21, v16, s[24:25]
    global_load_ushort v22, v16, s[26:27]
    s_load_dword s55, s[46:47], 0
    """)
    GF, GXF, GA = 64, 72, 80
    if g.prioC: k(f"s_setprio {g.prioC}")
    for ks in range(2): k(f"global_load_dwordx4 {v(GF+4*ks,4)}, v17, s[40:41] offset:{64*ks}")
    g.st("karg")
    g.ids2()
    k(f"""
    v_lshrrev_b32 v6, 1, v2
    v_xor_b32 v6, v6, v3
    v_lshlrev_b32 v6, 4, v6
    v_lshl_add_u32 v{AX}, v2, 7, v6
    v_xor_b32 v{AX+1}, 64, v{AX}
    s_lshl_b32 s4, s48, 11
    s_add_u32 s4, s4, {WSL}
    v_add_u32 v{AWr}, s4, v{AX}
    v_xor_b32 v{AWr+1}, 64, v{AWr}
    s_lshl_b32 s4, s48, 12
    v_add_u32 v{GX}, s4, v{AX}
    v_xor_b32 v{GX+1}, 64, v{GX}
    s_mov_b32 s76, s46
    s_mov_b32 s77, s47
    s_mov_b32 s78, {WS_SIZE}
    s_mov_b32 s79, 0x20000
    s_lshl_b32 s13, s53, 11
    s_add_u32 s13, s13, {WS_XI}
    s_lshl_b32 s5, s54, 2
    s_add_u32 s5, s5, s48                ; beta = 4j + w
    s_mul_i32 s6, s53, {2*HBLK}
    s_lshl_b32 s7, s5, 12
    s_add_u32 s60, s6, s7
    s_mul_i32 s4, s53, 36
    s_add_u32 s4, s4, s5
    s_lshl_b32 s4, s4, 7
    s_add_u32 s6, s4, {WS_HF}
    v_mov_b32 v6, s6
    s_add_u32 s4, s4, {WS_G}
    v_and_b32 v106, 7, v1
    v_lshl_add_u32 v106, v106, 2, s4
    v_lshl_add_u32 v106, v3, 5, v106
    s_lshl_b32 s10, s54, 14
    s_lshl_b32 s4, s48, 8
    s_add_u32 s10, s10, s4
    s_add_u32 s10, s10, {WS_S}
    v_lshl_add_u32 v16, v2, 4, s10
    s_lshl_b32 s11, s53, 10
    v_add_u32 v17, s11, v16
    v_lshrrev_b32 v29, 1, v3
    v_mul_u32_u24 v29, {HBLK}, v29
    v_and_b32 v5, 1, v3
    v_lshl_add_u32 v29, v5, 11, v29
    v_lshl_add_u32 v29, v2, 4, v29
    v_xor_b32 v30, 64, v29
    v_cmp_eq_u32 s[64:65], 0, v5
    v_lshlrev_b32 v31, 5, v3
    v_cvt_f32_u32 v31, v31               ; 32g
    v_mul_f32 v32, 4.0, v31              ; 128g
    v_sub_f32 v33, {fl(96.0)}, v31
    s_sub_u32 s4, s53, 1
    v_sub_u32 v28, s4, v3
    v_mov_b32 v4, 0x80000000
    """)
    for q in range(4):
        k(f"v_subrev_u32 v5, {4*q}, v28\nv_cmp_le_i32 s[{24+2*q}:{25+2*q}], 0, v5\nv_lshl_add_u32 v5, v5, 10, v16\nv_cndmask_b32 v{24+q}, v4, v5, s[{24+2*q}:{25+2*q}]")
    p2_min(g); p2_setup(g)
    if g.xearly: p2_loads(g)
    EO = 120
    k(f"s_mul_i32 s55, s55, {LCG_A}\ns_add_u32 s55, s55, {LCG_C}\ns_max_u32 s55, s55, 1\ns_not_b32 s62, s55\nv_mov_b32 v{EO+2}, s55\nv_mov_b32 v{EO+3}, s62")
    k(f"v_mov_b32 v116, s55\nv_mov_b32 v117, s14\ns_lshl_b32 s4, s52, 7\ns_add_u32 s4, s4, s12\nv_mov_b32 v119, s4")
    k("v_and_b32 v118, 7, v1\nv_min_u32 v118, 5, v118\nv_and_b32 v5, 8, v1\nv_add_u32 v118, v118, v5\nv_lshl_add_u32 v118, v118, 7, s13")
    if not g.tmode: k(f"""
    v_lshrrev_b32 v52, 3, v1             ; hc
    v_and_b32 v53, 7, v1                 ; rg
    s_and_b32 s4, s48, 1
    s_lshl_b32 s5, s4, 2
    v_lshrrev_b32 v54, 1, v52
    v_add_u32 v54, s5, v54               ; chunk
    s_and_b32 s5, s48, 2
    v_lshrrev_b32 v55, 2, v53
    v_add_u32 v55, s5, v55
    v_lshlrev_b32 v56, 1, v55
    v_xor_b32 v54, v54, v56
    v_lshlrev_b32 v54, 4, v54
    v_lshl_add_u32 v54, v55, 9, v54
    v_bfe_u32 v55, v53, 1, 1
    v_lshl_add_u32 v54, v55, 7, v54
    v_and_b32 v55, 1, v52
    v_lshl_add_u32 v54, v55, 3, v54
    v_and_b32 v55, 1, v53
    v_lshl_add_u32 v54, v55, 13, v54
    v_xor_b32 v55, 16, v54
    s_lshr_b32 s5, s48, 1
    s_lshr_b32 s6, s59, 6
    s_add_u32 s6, s6, s4
    s_lshl_b32 s7, s53, 1
    s_add_u32 s7, s7, s5                 ; tb
    s_lshl_b32 s4, s6, 17
    s_lshl_b32 s5, s7, 7
    s_add_u32 s4, s4, s5
    s_add_u32 s4, s4, {WS_UT}
    v_lshl_add_u32 v58, v53, 4, s4
    v_lshl_add_u32 v58, v52, 14, v58
    s_lshl_b32 s6, s6, 5
    s_add_u32 s6, s6, s7
    s_lshl_b32 s6, s6, {g.tfs}
    s_add_u32 s6, s6, {WS_TF}
    v_mov_b32 v23, s6
    s_mov_b32 s66, 0x05040100
    s_mov_b32 s67, 0x07060302
    s_mov_b32 s72, 4096
    s_mov_b32 s73, 8192
    s_mov_b32 s74, 12288
    """)
    tr1, tr2 = Rec(), Rec()
    for i in range(8): tr1(f"ds_read_b64 {v(80+2*i,2)}, v{54 + (i & 1)} offset:{2048*(i>>1) + 256*(i&1)}")
    for e in range(4):
        for p in range(4): tr2(f"v_perm_b32 v{36+4*e+p}, v{80+4*p+2+e//2}, v{80+4*p+e//2}, s{66+e%2}")
        tr2(f"buffer_store_dwordx4 {v(36+4*e,4)}, v58, s[76:79], {'0' if e == 0 else 's%d' % (71+e)} offen sc1", tag="T")
    Z, LM, L32, L512, WH, MU, SS, WSr, WSi, MPr, MPi, EX, TB = 14, 18, 34, 36, 38, 40, 42, 44, 46, 48, 50, 52, 64
    tb = lambda j: TB + 2*(j - 1)
    TT = [112, 114, 60]
    cs = Rec()
    cs(f"""
    v_lshlrev_b32 v20, 16, v20
    v_mul_f32 v20, {fl(LOG2E)}, v20
    v_exp_f32 v20, v20
    v_lshlrev_b32 v{LM}, 16, v21
    v_lshlrev_b32 v{LM+1}, 16, v22
    v_cvt_pk_bf16_f32 v20, v20, v20
    v_mul_f32 v21, v{LM}, v{LM}
    v_and_b32 v20, 0xffff0000, v20
    v_fmac_f32 v21, v{LM+1}, v{LM+1}
    v_mul_f32 v{Z}, v20, v{LM}
    v_mul_f32 v{Z+1}, v20, v{LM+1}
    v_rcp_f32 v21, v21
    v_mul_f32 v{Z}, {fl(LOG2E)}, v{Z}
    v_mul_f32 v{Z+1}, {fl(INV2PI)}, v{Z+1}
    v_add_f32 v21, v21, v21
    v_mul_f32 v{LM}, v{LM}, v21
    v_mul_f32 v{LM+1}, -v{LM+1}, v21
    """)
    cpow_multi(cs, [(d0, d1, Z, Z+1, ex, TT[i], TT[i]+1) for i, (d0, d1, ex) in enumerate(((tb(1), tb(1)+1, "1.0"), (WSr+1, WSi+1, "v33"), (L512, L512+1, fl(512.0))))])
    cpow_multi(cs, [(d0, d1, Z, Z+1, ex, TT[i], TT[i]+1) for i, (d0, d1, ex) in enumerate(((WH, WH+1, "v32"), (MU, MU+1, "v31"), (tb(8), tb(8)+1, fl(8.0))))])
    cs(f"v_add_f32 v{TT[0]}, -1.0, v{tb(1)}")
    smul(cs, SS, SS+1, TT[0], tb(1)+1, LM, LM+1)
    sm = lambda d, x, y: smul(cs, d, d+1, x, x+1, y, y+1)
    for j, (x, y) in {2: (1, 1), 16: (8, 8), 3: (2, 1), 4: (2, 2), 9: (8, 1), 10: (8, 2), 5: (4, 1), 6: (4, 2), 7: (4, 3), 11: (8, 3), 12: (8, 4), 13: (8, 5), 14: (8, 6), 15: (8, 7)}.items():
        sm(tb(j), tb(x), tb(y))
    sm(L32, tb(16), tb(16))
    smul(cs, WSr, WSi, tb(16), tb(16)+1, WSr+1, WSi+1)
    smul(cs, MPr, MPi, MU, MU+1, SS, SS+1)
    smul(cs, MPr+1, MPi+1, tb(16), tb(16)+1, MPr, MPi)
    cs(f"v_cndmask_b32 v{MU}, v{L32}, 1.0, s[64:65]\nv_cndmask_b32 v{MU+1}, v{L32+1}, 0, s[64:65]")
    for q in range(4): cs(f"v_cndmask_b32 v{EX+2*q}, 0, v{EO+2}, s[{24+2*q}:{25+2*q}]\nv_cndmask_b32 v{EX+2*q+1}, 0, v{EO+3}, s[{24+2*q}:{25+2*q}]")
    g.st("setup")
    R, I, XF, WF = 128, 160, 208, [240, 192]
    LA = g.xla
    def xread(n):
        q, m = divmod(n, 8); c, ks = divmod(q, 2)
        return f"ds_read_b128 {v(XF+4*m,4)}, v{AX+ks} offset:{16384*(c%3)+2048*m}"
    def wread(q, comp):
        c, ks = divmod(q, 2)
        return f"ds_read_b128 {v(WF[q%2]+4*comp,4)}, v{AWr+ks} offset:{16384*(c%3)+8192*comp}"
    k.wait_lg(); k("s_barrier"); g.st("c0")
    k(wread(0, 0)); k(xread(0)); k(wread(0, 1))
    for n in range(1, LA): k(xread(n))
    fq = []
    sched = {}; barp = {}; BL = g.xbl
    for q in range(1, 18):
        p0 = 8*q - (BL if q % 2 == 0 else 5)
        sched.setdefault(p0, []).append(wread(q, 0)); sched.setdefault(p0 + 1, []).append(wread(q, 1))
        if q % 2 == 0: barp[p0] = q // 2
    for n in range(LA, 144):
        sched.setdefault(max(n - LA, n - n % 16 - BL + (n % 16 + 1)//2), []).append(xread(n))
    q0, q1 = g.cs_span
    per = -(-len(cs.items) // (q1 - q0))
    for q in range(18):
        g.st(f"q{q}")
        if q == 0 and not g.tmode: fq += tr1.items + tr2.items
        if q0 <= q < q1: fq += cs.items[(q-q0)*per:(q-q0+1)*per]
        if q == 2*GP + 2:
            gs = Rec()
            for n_ in (4, 2, 1):
                gs(f"v_and_b32 v107, {n_}, v1\nv_cmp_ne_u32 vcc, 0, v107")
                for i in range(n_): gs(f"v_cndmask_b32 v{108 if n_ == 1 else GA+i}, v{GA+i}, v{GA+i+n_}, vcc")
            fq += [("nop", None, None)]*6 + gs.items
        if q == g.tq and not g.tmode:
            fq.insert(0, ("wv", "T", None)); fq.insert(1, ("g", ["s_mov_b64 exec, 1", f"global_store_dword v23, v{EO+2}, s[46:47] sc1", "s_mov_b64 exec, -1"], None))
        if q == g.xq:
            fq.insert(0, ("raw", "    s_cmp_lg_u32 s48, 0\n    s_cbranch_scc1 L_xp1\n    s_mov_b64 exec, 1\n    global_store_dwordx2 v119, v[116:117], s[46:47] sc1\n    s_mov_b64 exec, -1\nL_xp1:", None))
        for m in range(8):
            pos = 8*q + m
            if pos in barp:
                assert not any(it[0] == "i" and it[1].startswith("ds_read") for it in fq)
                k.wait_lg(); k("s_barrier"); g.st(f"c{barp[pos]}")
            rl_ = list(sched.get(pos, []))
            if q // 2 == GP and m in (0, 1): rl_.append(f"ds_read_b128 {v(GXF+4*m,4)}, v{GX+q%2} offset:{16384*(GP%3)+2048*m}")
            for comp, A_ in enumerate((R, I)):
                k(f"{M16} {v(A_+4*m,4)}, {v(XF+4*m,4)}, {v(WF[q%2]+4*comp,4)}, {'0' if q == 0 else v(A_+4*m,4)}")
                mine = rl_[:(len(rl_) + 1)//2] if comp == 0 else rl_[(len(rl_) + 1)//2:]
                for r_ in mine: k(r_)
                for _ in range((1 if comp == 1 else 2) - len(mine) + (1 if len(fq) > 2*(16 - 2*m) else 0)):
                    if fq: play(k, fq.pop(0))
        if q // 2 == GP:
            for mm in range(2): k(f"{M16} {v(GA+4*mm,4)}, {v(GXF+4*mm,4)}, {v(GF+4*(q%2),4)}, {'0' if q % 2 == 0 else v(GA+4*mm,4)}")
        if q == g.tq: g.st("Tst")
    while fq: play(k, fq.pop(0))
    g.st("gemm1")
    for st in range(1, 16):
        pk_bc(k, R+2*st, R+2*st-2, tb(1), 0, R+2*st)
        pk_bc(k, I+2*st, I+2*st-2, tb(1), 0, I+2*st)
        pk_bc(k, R+2*st, I+2*st-2, tb(1), 1, R+2*st, neg=True)
        pk_bc(k, I+2*st, R+2*st-2, tb(1), 1, I+2*st)
    T = 208
    k(f"v_pk_mul_f32 {v(T,2)}, {v(R+30,2)}, {v(WSr,2)}\nv_pk_mul_f32 {v(T+2,2)}, {v(I+30,2)}, {v(WSr,2)}")
    k(f"v_pk_fma_f32 {v(T,2)}, {v(I+30,2)}, {v(WSi,2)}, {v(T,2)} neg_lo:[1,0,0] neg_hi:[1,0,0]\nv_pk_fma_f32 {v(T+2,2)}, {v(R+30,2)}, {v(WSi,2)}, {v(T+2,2)}")
    k(f"v_add_f32 v{T}, v{T}, v{T+1}\nv_add_f32 v{T+1}, v{T+2}, v{T+3}")
    def allred(x, o):
        k(f"v_permlane32_swap_b32 v{x}, v{x+1}\nv_add_f32 v{x+2}, v{x}, v{x+1}\nv_add_f32 v{x+3}, v{x}, v{x+1}\nv_permlane16_swap_b32 v{x+2}, v{x+3}")
        k(f"v_add_f32 v{o}, v{x+2}, v{x+3}\nv_add_f32 v{o+1}, v{x+2}, v{x+3}\nv_permlane32_swap_b32 v{o}, v{o+1}")
    allred(T, EO)
    k.vm = []
    k(f"s_mov_b64 exec, 0xffff\nglobal_store_dwordx4 v17, {v(EO,4)}, s[46:47] sc1\ns_mov_b64 exec, -1")
    g.st("pub")
    for st in range(16):
        a, b = T + 4*(st % 2), T + 4*(st % 2) + 2
        pk_bc(k, a, R+2*st, SS, 0); pk_bc(k, b, R+2*st, SS, 1)
        pk_bc(k, R+2*st, I+2*st, SS, 1, a, neg=True); pk_bc(k, I+2*st, I+2*st, SS, 0, b)
    CPr, CPi = WSr, WSi
    F, Q, Y, U_ = T, T + 2, T + 4, T + 6
    smul(k, F, F+1, tb(16), tb(16)+1, R+30, I+30, R+31, I+31)
    k(f"v_mov_b64 {v(Q,2)}, 0\nv_mov_b64 {v(Y,2)}, {v(F,2)}\nv_mov_b64 {v(U_,2)}, 0\nv_permlane16_swap_b32 v{Q}, v{Y}\nv_permlane16_swap_b32 v{Q+1}, v{Y+1}")
    cmac(k, [(F, Q, L32, F)])
    k(f"v_mov_b64 {v(Y,2)}, {v(F,2)}\nv_permlane16_swap_b32 v{F}, v{Y}\nv_permlane16_swap_b32 v{F+1}, v{Y+1}\nv_permlane32_swap_b32 v{U_}, v{Y}\nv_permlane32_swap_b32 v{U_+1}, v{Y+1}")
    smul(k, CPr, CPi, MU, MU+1, U_, U_+1, Q, Q+1)
    smul(k, CPr+1, CPi+1, tb(16), tb(16)+1, CPr, CPi, R+30, I+30)
    g.st("prep")
    PD = 232
    def issS():
        for q in range(4): k(f"buffer_load_dwordx4 {v(PD+4*q,4)}, v{24+q}, s[76:79], 0 offen sc1")
    def chkS():
        for q in range(4): k(f"v_cmp_ne_u64 s[{24+2*q}:{25+2*q}], {v(PD+4*q+2,2)}, {v(EX+2*q,2)}")
        k("s_or_b64 s[24:25], s[24:25], s[26:27]\ns_or_b64 vcc, s[28:29], s[30:31]\ns_or_b64 vcc, vcc, s[24:25]")
    issS()
    k("global_load_dwordx2 v[228:229], v118, s[46:47] sc1")
    k("s_mov_b32 exec_lo, 0xff00ff\ns_mov_b32 exec_hi, 0xff00ff\nglobal_store_dword v106, v108, s[46:47] sc1\ns_mov_b64 exec, -1")
    if not g.xearly: p2_loads(g)
    chkS(); k("s_cbranch_vccz L_pollS_done")
    vms = list(k.vm)
    g.poll("L_pollS", issS, chkS)
    k.vm = vms
    g.st("Sarr")
    for q in (2, 1, 0): cmac(k, [(PD+4*q, PD+4*q+4, L512, PD+4*q)])
    cmul_multi(k, [(T, PD, WH, T+2)])
    HH = T + 4
    allred(T, HH)
    k("v_cmp_ne_u64 s[72:73], v[228:229], v[116:117]")
    pk_bc(k, CPr, MPr, HH, 0, CPr); pk_bc(k, CPi, MPi, HH, 0, CPi)
    pk_bc(k, CPr, MPi, HH, 1, CPr, neg=True); pk_bc(k, CPi, MPr, HH, 1, CPi)
    k("s_cmp_lg_u64 s[72:73], 0")
    HO = 216
    def tail(sc):
        for comp in range(2):
            A_, c0, c1 = (R, CPr, CPi) if comp == 0 else (I, CPi, CPr)
            n = "-" if comp else ""
            for hh in range(2):
                for st in range(8*hh, 8*hh + 8): pk_bc(k, A_+2*st, c0, tb(st+1), 0, A_+2*st)
                for st in range(8*hh, 8*hh + 8): pk_bc(k, A_+2*st, c1, tb(st+1), 1, A_+2*st, neg=(comp == 0))
                for half in range(2):
                    o = HO + 16*comp + 8*hh + 4*half
                    for i in range(4): k(f"v_cvt_pk_bf16_f32 v{o+i}, {n}v{A_+16*hh+4*i+half}, {n}v{A_+16*hh+4*i+2+half}")
                    k(f"buffer_store_dwordx4 {v(o,4)}, v{29+hh}, s[68:71], s60 offen offset:{1024*comp+256*(2*half+hh)} {sc}")
        g.st("hst")
        if not g.xearly: k.raw("    s_waitcnt vmcnt(8)"); k.vm = k.vm[-8:]
        p2_unpack(g)
        k("s_mov_b64 exec, 1")
        k.raw("    s_waitcnt vmcnt(0)"); k.vm = []
        k(f"global_store_dword v6, v{EO+2}, s[46:47] {sc}\ns_mov_b64 exec, -1")
        g.st("flag")
        p2_zero(g)
    if g.fast:
        k("s_cbranch_scc1 L_slow")
        g.slow_tail = lambda: tail("sc1")
        tail(g.hst)
    else: tail("sc1")
    k.raw("L_tail_done:"); k.vm = []

XR, DBR, DBF = [200, 202, 204, 206, 124, 126], [102, 110, 98], 64
XB = list(range(76, 96)) + list(range(20, 24))
AR = 32
def p2_loads(g):
    k = g.k
    for jj in range(3):
        k(f"global_load_dwordx2 {v(XR[jj],2)}, v100, s[8:9] offset:{64*jj}\nglobal_load_dwordx2 {v(XR[3+jj],2)}, v101, s[8:9] offset:{64*jj}\nglobal_load_dwordx2 {v(DBR[jj],2)}, v99, s[38:39] offset:{64*jj}")
    k("v_lshlrev_b32 v100, 1, v100\nv_lshlrev_b32 v101, 1, v101")
def p2_unpack(g):
    k = g.k
    for jj in range(3):
        for h in range(2): k(f"v_lshlrev_b32 v{DBF+4*jj+2*h}, 16, v{DBR[jj]+h}\nv_and_b32 v{DBF+4*jj+2*h+1}, 0xffff0000, v{DBR[jj]+h}")
    for q in range(12): k(f"v_lshlrev_b32 v{XB[2*q]}, 16, v{XR[q//2]+q%2}\nv_and_b32 v{XB[2*q+1]}, 0xffff0000, v{XR[q//2]+q%2}")
    for q in range(12): k(f"v_pk_mul_f32 {v(XB[2*q],2)}, {v(XB[2*q],2)}, {v(DBF+2*(q%6),2)}")
def p2_zero(g):
    for q in range(12): g.k(f"v_mov_b64 {v(AR+2*q,2)}, 0")
def p2_min(g):
    k = g.k
    k(f"""
    s_cmp_lt_u32 s48, 2
    s_cselect_b32 s16, s32, s34
    s_cselect_b32 s17, s33, s35
    s_mov_b32 s18, 663552
    s_mov_b32 s19, 0x20000
    s_mov_b32 s68, s{42 if g.hout else 46}
    s_mov_b32 s69, s{43 if g.hout else 47}
    s_mov_b32 s70, {4718592 if g.hout else WS_SIZE}
    s_mov_b32 s71, 0x20000
    s_getreg_b32 s14, hwreg(HW_REG_XCC_ID, 0, 4)
    s_lshl_b32 s12, s56, 10
    s_add_u32 s12, s12, {WS_XI}
    s_lshl_b32 s23, s52, 7
    s_add_u32 s23, s23, s12
    s_lshl_b32 s4, s48, 2
    s_add_u32 s23, s23, s4
    s_mov_b32 s{UO[0]}, s57
    s_lshr_b32 s4, s56, 1
    s_mul_i32 s4, s4, {36*128}
    s_add_u32 s4, s4, {WS_HF}
    v_min_u32 v62, 35, v1
    v_lshl_add_u32 v62, v62, 7, s4
    s_mul_i32 s4, s56, {HBLK}
    s_lshl_b32 s15, s48, 12
    s_add_u32 s4, s4, s15
    s_add_u32 s4, s4, {0 if g.hout else WS_H}
    v_lshl_add_u32 v63, v1, 4, s4
    """)
    offsets(k, UO)
def p2_setup(g):
    k = g.k
    k(f"""
    s_lshl_b32 s4, s56, 6
    v_lshrrev_b32 v96, 3, v0             ; tl
    v_add_u32 v97, s4, v96
    v_and_b32 v98, 7, v0                 ; dl
    s_mul_i32 s5, s52, 192
    v_lshl_add_u32 v99, v98, 3, s5
    v_mul_u32_u24 v100, 1152, v97
    v_add_u32 v100, v100, v99
    v_add_u32 v101, {32*1152}, v100
    """)
    k(f"""
    s_lshr_b32 s4, s56, 1
    s_mul_i32 s4, s4, {9*512}
    s_lshl_b32 s5, s51, 6
    s_add_u32 s4, s4, s5
    s_lshr_b32 s5, s48, 1
    s_lshl_b32 s5, s5, 2
    s_add_u32 s4, s4, s5
    s_and_b32 s5, s48, 1
    s_lshl_b32 s5, s5, 8
    s_add_u32 s4, s4, s5
    s_add_u32 s4, s4, {WS_G}
    v_lshrrev_b32 v102, 3, v1
    v_and_b32 v109, 3, v102
    v_lshl_add_u32 v109, v109, 3, s4
    v_lshrrev_b32 v104, 5, v1
    v_lshl_add_u32 v109, v104, 7, v109
    v_lshl_add_u32 v104, v98, 9, v109
    v_add_u32 v109, 4096, v109
    s_mul_i32 s4, s52, 768
    s_add_u32 s4, s4, {WS_AF}
    v_min_u32 v105, 47, v1
    v_lshl_add_u32 v105, v105, 4, s4
    s_mul_i32 s4, s52, 96
    s_mul_i32 s5, s48, 24
    s_add_u32 s4, s4, s5
    s_lshl_b32 s4, s4, 12
    s_lshl_b32 s5, s56, 7
    s_add_u32 s4, s4, s5
    s_add_u32 s4, s4, {WS_A}
    v_lshl_add_u32 v253, v102, 12, s4
    v_lshrrev_b32 v254, 5, v1
    s_mul_i32 s5, s48, 6
    v_add_u32 v254, s5, v254
    """)
    for n in range(3): k(f"v_add_u32 v255, {2*n}, v254\nv_xor_b32 v255, v255, v1\nv_and_b32 v255, 7, v255\nv_lshl_add_u32 v{248+n}, v255, 4, v253")
    k(f"""
    s_mul_i32 s4, s52, 96
    s_and_b32 s5, s48, 1
    s_mul_i32 s5, s5, 48
    s_add_u32 s4, s4, s5
    v_add_u32 v253, s4, v102
    v_mul_u32_u24 v253, 1152, v253
    v_xor_b32 v254, v98, v3
    v_lshl_add_u32 v253, v254, 4, v253   ; vC0
    v_xor_b32 v254, 64, v253
    v_add_u32 v254, 8192, v254           ; vC1
    s_mul_i32 s22, s48, 12288
    s_add_u32 s22, s22, {CST}
    s_mul_i32 s21, s48, 3072
    s_and_b32 s4, s48, 1
    s_lshl_b32 s4, s4, 2
    s_lshr_b32 s5, s48, 1
    s_add_u32 s4, s4, s5
    v_xor_b32 v251, s4, v98
    v_lshlrev_b32 v251, 4, v251
    v_lshl_add_u32 v251, v98, 9, v251
    v_lshl_add_u32 v251, v102, 1, v251
    v_add_u32 v251, {AST}, v251
    v_xor_b32 v252, 32, v251
    v_mul_u32_u24 v96, 400, v96
    v_lshl_add_u32 v96, v98, 4, v96
    v_add_u32 v96, {IMG}, v96
    """)

def loader2(g):
    k = g.k
    k.raw("L_P2:"); k.vm = []; k.lg = []
    GG, OM = 58, 60
    g.poll("L_pollH", lambda: k("global_load_dword v97, v62, s[46:47] sc1"), lambda: k("v_cmp_ne_u32 vcc, s55, v97\ns_nop 1"))
    g.st("Harr")
    def h_dma(u):
        k(f"s_add_u32 m0, s15, {16384*(u%6)}\ns_lshl_b32 s63, s{UO[u]}, 7")
        for n in range(4): k(f"buffer_load_dwordx4 v63, s[68:71], s63 offen offset:{1024*n} {g.hld} lds", tag=("h", u))
    def c_blk(n):
        k(f"s_add_u32 m0, s22, {2048*(n%6)}\ns_add_u32 s20, s{UO[n//3]}, {18432*(n%3)}\nbuffer_load_dwordx4 v253, s[16:19], s20 offen lds\nbuffer_load_dwordx4 v254, s[16:19], s20 offen offset:1024 lds", tag="C")
    def bar(u, *tags):
        for t in tags: k.wait_vm(t)
        k("s_barrier"); g.st(f"u{u}")
    cb = list(range(g.cmf, 27))
    h_dma(0); h_dma(1)
    k(f"v_mov_b32 v26, {ASY}\nv_mov_b64 v[28:29], 0\nds_write_b64 v26, v[28:29]\nds_write_b64 v26, v[28:29] offset:8"); k.wait_lg()
    bar(0, ("h", 0)); h_dma(2)
    bar(1, ("h", 1)); h_dma(3)
    bar(2, ("h", 2)); h_dma(4); h_dma(5)
    bar(3, ("h", 4))
    h_dma(6); h_dma(7)
    for ii in range(2): k(f"global_load_dword v{GG+ii}, v104, s[46:47] offset:{32*ii} sc1\nglobal_load_dword v{56+ii}, v109, s[46:47] offset:{32*ii} sc1")
    k("v_min_u32 v30, 5, v1\nv_lshl_add_u32 v30, v30, 7, s12\nglobal_load_dwordx2 v[28:29], v30, s[46:47] sc1")
    k("global_load_dwordx4 v[68:71], v105, s[46:47] sc1", tag="af")
    if g.h8e: h_dma(8)
    bar(5, ("h", 6))
    chk = lambda: k("v_xor_b32 v68, s55, v68\nv_xor_b32 v69, s55, v69\nv_xor_b32 v70, s55, v70\nv_xor_b32 v71, s55, v71\nv_or3_b32 v68, v68, v69, v70\nv_or_b32 v68, v68, v71\nv_cmp_ne_u32 vcc, 0, v68\ns_nop 0")
    if not g.h8e: h_dma(8)
    assert len(cb) <= 3
    for n in cb: c_blk(n)
    def a_fetch(lab):
        k.wait_vm("af"); chk(); k(f"s_cbranch_vccz {lab}_done")
        save = list(k.vm)
        g.poll(lab, lambda: k(f"s_sleep {g.asleep}\nglobal_load_dwordx4 v[68:71], v105, s[46:47] sc1"), chk)
        k.vm = save
        g.st("Aarr")
        k(f"s_add_u32 m0, s21, {AST}")
        for n in range(3): k(f"s_mov_b32 s4, {32768*n - 1024*n}\nbuffer_load_dwordx4 v{248+n}, s[76:79], s4 offen offset:{1024*n} sc1 lds", tag="a")
    if not g.a_late: a_fetch("L_pollA")
    for ctl in ("quad_perm:[1,0,3,2]", "quad_perm:[2,3,0,1]", "row_half_mirror"):
        for ii in range(2): k(f"v_add_f32_dpp v{GG+ii}, v{GG+ii}, v{GG+ii} {ctl} row_mask:0xf bank_mask:0xf")
    for ii in range(2): k(f"v_add_f32 v{GG+ii}, v{GG+ii}, v{56+ii}\nv_mul_f32 v{GG+ii}, {fl(-LOG2E)}, v{GG+ii}")
    for ii in range(2): k(f"v_exp_f32 v{GG+ii}, v{GG+ii}")
    for ii in range(2): k(f"v_add_f32 v{GG+ii}, 1.0, v{GG+ii}")
    for ii in range(2): k(f"v_rcp_f32 v{GG+ii}, v{GG+ii}")
    for ii in range(2): k(f"v_sub_f32 v{OM+ii}, 1.0, v{GG+ii}")
    for q in range(24): k(f"v_mul_f32 v{XB[q]}, v{XB[q]}, v{OM+q//12}")
    if g.hout:
        k("v_mov_b32 v64, s55\nv_mov_b32 v65, s14\nv_mov_b32 v31, s23\nv_cmp_ne_u64 vcc, v[28:29], v[64:65]\nv_min_u32 v30, 23, v1\nv_lshrrev_b32 v66, 2, v30\nv_and_b32 v30, 3, v30\nv_lshlrev_b32 v30, 2, v30\nv_lshl_add_u32 v30, v66, 7, v30\nv_add_u32 v30, s12, v30")
        k.wait_vm(("h", 8))
        k("s_mov_b64 exec, 1\ns_cbranch_vccnz L_dfs\nglobal_store_dword v31, v64, s[46:47] offset:16\ns_branch L_dfd"); k.vm.pop()
        k.raw("L_dfs:"); k("global_store_dword v31, v64, s[46:47] offset:16 sc1"); k.raw("L_dfd:"); k("s_mov_b64 exec, -1")
    bar(7, ("h", 8), "C")
    if g.a_late: a_fetch("L_pollA")
    k.wait_vm("a")
    k(f"s_lshl_b32 s4, s48, 2\ns_add_u32 s4, s4, {ASY}\nv_mov_b32 v26, s4\nv_mov_b32 v27, s55\nds_write_b32 v26, v27\nv_and_b32 v26, 3, v1\nv_lshlrev_b32 v26, 2, v26\nv_add_u32 v26, {ASY}, v26")
    g.poll("L_pollY", lambda: k("ds_read_b32 v27, v26"), lambda: k("v_cmp_ne_u32 vcc, s55, v27\ns_nop 0"))
    g.st("u8")
    k("global_load_dword v66, v30, s[46:47] offset:16 sc1")
    for q in range(24): k(f"ds_read_u16_d16_hi v{AR+q}, v{251+q//12} offset:{128*(q%4)+4096*((q%12)//4)}")
    for q in range(24): k(f"v_fmac_f32 v{XB[q]}, v{AR+q}, v{GG+q//12}")
    if g.hout:
        k("v_cmp_ne_u32 vcc, s55, v66\ns_nop 0\ns_cbranch_vccz L_pollF_done")
        g.poll("L_pollF", lambda: k("global_load_dword v66, v30, s[46:47] offset:16 sc1"), lambda: k("v_cmp_ne_u32 vcc, s55, v66\ns_nop 0"))
        g.st("Farr")
    E0 = 128
    for ii in range(2):
        k("s_barrier"); g.st(f"img{ii}")
        for jj in range(3):
            q = 3*ii + jj
            k(f"ds_read_b128 {v(E0+8*q,4)}, v96 offset:{12800*ii+128*jj}\nds_read_b128 {v(E0+8*q+4,4)}, v96 offset:{25600+12800*ii+128*jj}")
        for jj in range(3):
            q = 3*ii + jj
            if ii == 0:
                for e_ in range(4): k(f"v_add_f32 v{E0+8*q+e_}, v{E0+8*q+e_}, v{E0+8*q+4+e_}")
                for e_ in range(4): k(f"v_fma_f32 v{E0+8*q+e_}, v{E0+8*q+e_}, v{OM}, v{XB[4*jj+e_]}")
            else:
                for h in range(2): k(f"v_pk_add_f32 {v(E0+8*q+2*h,2)}, {v(E0+8*q+2*h,2)}, {v(E0+8*q+4+2*h,2)}")
                for h in range(2): pk_bc(k, E0+8*q+2*h, E0+8*q+2*h, OM, ii, XB[12+4*jj+2*h])
            k(f"global_store_dwordx4 v{100+ii}, {v(E0+8*q,4)}, s[42:43] offset:{128*jj} {g.ost}")
    g.st("stiss")
    k(f"s_cmp_lg_u32 s56, {99 if g.dbg_now2 else 31}\ns_cbranch_scc1 L_fin2\ns_or_b32 s4, s52, s48\ns_cbranch_scc1 L_fin2")
    k(f"v_min_u32 v8, 47, v1\nv_lshlrev_b32 v8, 4, v8\nv_add_u32 v8, {WS_AF}, v8")
    def iss():
        for i in range(6): k(f"global_load_dwordx4 {v(64+4*i,4)}, v8, s[46:47] offset:{768*i} sc1")
    def chk():
        for i in range(24): k(f"v_xor_b32 v{64+i}, s55, v{64+i}")
        for i in range(1, 24): k(f"v_or_b32 v64, v64, v{64+i}")
        k("v_cmp_ne_u32 vcc, 0, v64\ns_nop 1")
    g.poll("L_pollW", iss, chk)
    k("v_mov_b32 v6, 0\nv_mov_b32 v7, s55\ns_mov_b64 exec, 1\nglobal_store_dword v6, v7, s[46:47]\ns_mov_b64 exec, -1")
    k.out.append("L_fin2:")
    g.fin()
    if g.fast:
        g.enter("L_slow", karg=False); k("s_nop 1"); g.slow_tail(); k("s_branch L_tail_done")

def loader1(g):
    k = g.k
    k(f"""
    s_sub_u32 s62, s48, 4                ; lw
    v_lshrrev_b32 v4, 3, v1              ; rl
    v_and_b32 v5, 7, v1
    {'v_xor_b32 v5, v5, v3' if not g.dbg_noswz else ''}
    v_lshlrev_b32 v5, 4, v5
    v_mul_u32_u24 v6, 1152, v4
    v_add_u32 v6, v6, v5
    s_mov_b32 s66, 2359296
    s_mov_b32 s67, 0x20000
    s_mov_b32 s70, 663552
    s_mov_b32 s71, 0x20000
    v_lshrrev_b32 v8, 2, v4
    v_lshlrev_b32 v8, 5, v8
    v_and_b32 v9, 1, v4
    v_lshl_add_u32 v8, v9, 4, v8
    v_bfe_u32 v9, v4, 1, 1
    v_add_u32 v8, v8, v9
    s_lshl_b32 s4, s53, 7
    s_lshl_b32 s5, s62, 2
    s_add_u32 s4, s4, s5
    v_add_u32 v8, s4, v8
    v_mul_u32_u24 v8, 1152, v8
    v_add_u32 v8, v8, v5                 ; x n=0
    v_xor_b32 v9, 64, v8
    v_add_u32 v10, {2*1152-2048}, v8
    v_add_u32 v11, {66*1152-3072}, v9
    v_add_u32 v9, {64*1152-1024}, v9
    s_lshl_b32 s4, s54, 6
    s_and_b32 s5, s62, 1
    s_lshl_b32 s5, s5, 5
    s_add_u32 s4, s4, s5
    s_mul_i32 s4, s4, 1152
    v_add_u32 v12, s4, v6
    v_xor_b32 v13, 64, v12
    v_add_u32 v14, {2*8192}, v12
    v_add_u32 v15, {3*8192}, v13
    v_add_u32 v13, 8192, v13
    s_lshl_b32 s6, s62, 12
    s_cmp_lt_u32 s62, 2
    s_mov_b32 s64, s8
    s_mov_b32 s65, s9
    s_cselect_b32 s68, s28, s30
    s_cselect_b32 s69, s29, s31
    s_mov_b32 s10, s59
    """)
    CO = list(range(10, 19))
    def dma(c, parts="wx"):
        if "w" in parts:
            k(f"s_add_u32 m0, s6, {WSL + 16384*(c%3)}")
            for n in range(4): k(f"buffer_load_dwordx4 v{12+n}, s[68:71], s{CO[c]} offen offset:{1024*n} lds", tag=("c", c))
        if "x" in parts:
            k(f"s_add_u32 m0, s6, {XS + 16384*(c%3)}")
            for n in range(4): k(f"buffer_load_dwordx4 v{8+n}, s[64:67], s{CO[c]} offen offset:{1024*n} lds", tag=("c", c))
    def csetup():
        g.ids2()
        k(f"""
        s_mov_b32 s74, {0 if g.dbg_noC else 663552}
        s_mov_b32 s75, 0x20000
        s_mul_i32 s61, s62, 12288
        s_add_u32 s61, s61, {CST}
        s_cmp_lt_u32 s62, 2
        s_cselect_b32 s72, s32, s34
        s_cselect_b32 s73, s33, s35
        s_mov_b32 s{UO[0]}, s57
        s_mul_i32 s4, s52, 96
        s_and_b32 s5, s62, 1
        s_mul_i32 s5, s5, 48
        s_add_u32 s4, s4, s5
        s_mul_i32 s4, s4, 1152
        v_add_u32 v6, s4, v6                 ; vC0
        v_xor_b32 v7, 64, v6
        v_add_u32 v7, 8192, v7               ; vC1
        v_lshrrev_b32 v4, 1, v2
        v_xor_b32 v4, v4, v3
        v_lshlrev_b32 v4, 4, v4
        v_lshl_add_u32 v4, v2, 7, v4
        v_add_u32 v4, s61, v4
        v_xor_b32 v5, 64, v4
        """)
        offsets(k, UO)
    CU = lambda u: 88 + 24*(u % 7)
    def c_dma(n):
        k(f"s_add_u32 m0, s61, {2048*(n%6)}\ns_add_u32 s20, s{UO[n//3]}, {18432*(n%3)}\nbuffer_load_dwordx4 v6, s[72:75], s20 offen lds\nbuffer_load_dwordx4 v7, s[72:75], s20 offen offset:1024 lds", tag=("C", n))
    def c_drain(e, n):
        for ks in range(2): e(f"ds_read_b128 {v(CU(n//3)+12*ks+4*(n%3),4)}, v{4+ks} offset:{2048*(n%6)}", tag=("Cd", n))
    def cstream(n0, depth):
        drained = 0
        for n in range(n0, g.cmf):
            D = depth(n)
            while drained <= n - D and drained < 21:
                k.wait_vm(("C", drained)); c_drain(k, drained); drained += 1
            if drained >= 21: k.wait_vm(("C", n - D))
            if n >= 6: k.wait_lg(("Cd", n - 6))
            c_dma(n)
        while drained < 21:
            k.wait_vm(("C", drained)); c_drain(k, drained); drained += 1
        k.wait_vm()
    g.st("karg")
    dma(0)
    offsets(k, CO)
    csetup()
    if g.prioL: k(f"s_setprio {g.prioL}")
    dma(1, g.first)
    for c in range(9):
        if g.nob8 and c == 8: break
        k.wait_vm(("c", 8 if (g.nob8 and c == 7) else c)); g.st(f"l{c}"); k("s_barrier")
        if c == 0: dma(1, [p for p in "wx" if p not in g.first])
        if c + 2 < 9: dma(c + 2)
        if c == (6 if g.nob8 else 7):
            for n in range(g.cpre): c_dma(n)
    cstream(g.cpre, lambda n: 5 if n < g.cfast else g.cthr)
    k("s_branch L_CPF")
    vm_c = list(k.vm)
    g.enter("L_R2G"); k.vm = list(g.pvm)
    UK0 = 34816
    k(f"""
    s_sub_u32 s62, s48, 4                ; lw
    v_lshrrev_b32 v4, 3, v1              ; rl
    s_mul_i32 s3, s62, 14
    v_and_b32 v8, 7, v1
    s_add_u32 s3, s3, s49
    v_mul_u32_u24 v6, 1152, v4
    s_sub_u32 s3, s3, 18
    """)
    if g.tmode:
        k(f"""
        s_lshr_b32 s72, s3, 2                ; col
        s_and_b32 s7, s3, 3
        s_lshl_b32 s4, s50, 2
        s_add_u32 s7, s7, s4                 ; tb
        s_mul_i32 s4, s7, {64*1152}
        s_lshl_b32 s5, s72, 7
        s_add_u32 s4, s4, s5
        v_lshl_add_u32 v9, v8, 4, v6
        v_add_u32 v9, s4, v9
        s_mul_i32 s63, s62, 12288
        s_add_u32 s63, s63, {CST}
        s_mov_b32 s78, 2359296
        s_mov_b32 s79, 0x20000
        s_cmp_ge_u32 s3, 36
        s_mov_b32 s76, s8
        s_mov_b32 s77, s9
        s_cbranch_scc1 L_noT1
        """)
        for n in range(8):
            k(f"s_add_u32 m0, s63, {1024*n}\ns_mov_b32 s4, {9216*n}\nv_xor_b32 v11, {16*n}, v9\nbuffer_load_dwordx4 v11, s[76:79], s4 offen lds")
        k.raw("L_noT1:")
    k(f"""
    v_xor_b32 v5, v8, v3
    v_lshl_add_u32 v6, v5, 4, v6
    v_mov_b32 v60, 0
    v_mov_b32 v61, 0
    s_lshl_b32 s4, s48, 3
    s_add_u32 s4, s4, {EXE}
    v_mov_b32 v10, s4
    ds_write_b64 v10, v[60:61]
    s_mul_i32 s4, s62, {AW}
    s_add_u32 s4, s4, {UK0}
    v_lshl_add_u32 v12, v1, 3, s4
    ds_write_b64 v12, v[60:61]
    s_and_b32 s4, s62, 1
    s_mul_i32 s4, s4, {AW}
    s_add_u32 s4, s4, {UK0 + 4*AW}
    v_lshl_add_u32 v12, v1, 3, s4
    ds_write_b64 v12, v[60:61]
    s_lshr_b32 s4, s3, 1
    s_mul_i32 s4, s4, 21
    v_mul_u32_u24 v20, 3121, v1
    v_lshrrev_b32 v20, 16, v20           ; lane/21
    v_mul_u32_u24 v21, 21, v20
    v_sub_u32 v21, v1, v21
    v_add_u32 v21, s4, v21
    v_lshrrev_b32 v22, 6, v21
    s_mul_i32 s4, s50, {g.rot1x}
    v_add_u32 v22, s4, v22
    v_mul_u32_u24 v25, 683, v21
    v_lshrrev_b32 v25, 16, v25
    v_mul_u32_u24 v25, 3, v25
    v_lshrrev_b32 v25, 1, v25
    v_lshlrev_b32 v20, 2, v20
    v_mul_u32_u24 v21, 1152, v21
    s_mov_b32 s70, 663552
    s_mov_b32 s71, 0x20000
    s_mov_b32 s66, 663552
    s_mov_b32 s67, 0x20000
    v_lshlrev_b32 v16, 4, v1
    """)
    k.raw("    s_getpc_b64 s[4:5]\n    s_add_u32 s4, s4, band_tab@rel32@lo+4\n    s_addc_u32 s5, s5, band_tab@rel32@hi+12")
    k(f"""
    s_lshl_b32 s6, s62, 11
    v_add_u32 v56, s6, v16
    v_mov_b32 v57, s5
    v_add_co_u32 v56, vcc, s4, v56
    s_add_u32 m0, s6, {BND}
    v_addc_co_u32 v57, vcc, 0, v57, vcc
    s_bitcmp1_b32 s3, 0
    s_cselect_b32 s68, s30, s28
    s_cselect_b32 s69, s31, s29
    s_cselect_b32 s64, s34, s32
    s_cselect_b32 s65, s35, s33
    """)
    k.wait_lg(); k("s_barrier")
    npf = [0]
    def touch(pat, rot, srd):
        d = 64 + npf[0]; npf[0] += 1
        k(f"s_mov_b32 s4, {pat}\nv_bfe_u32 v23, s4, v20, 4\nv_add_u32 v23, v23, v{rot}\nv_mul_u32_u24 v24, 7282, v23\nv_lshrrev_b32 v24, 16, v24\nv_mul_u32_u24 v24, 9, v24\nv_sub_u32 v23, v23, v24\nv_lshl_add_u32 v23, v23, 7, v21")
        k._wait(vm=g.pf_depth)
        k(f"buffer_load_dword v{d}, v23, s[{srd}:{srd+3}], 0 offen")
    if not g.wfirst:
        for pat in g.bpf: touch(pat, 22, 68)
    k("global_load_dword v62, v60, s[46:47]\nglobal_load_lds_dwordx4 v[56:57], off\nglobal_load_lds_dwordx4 v[56:57], off offset:1024")
    k(f"""
    s_mov_b32 s76, s46
    s_mov_b32 s77, s47
    s_mov_b32 s78, {WS_SIZE}
    s_mov_b32 s79, 0x20000
    v_lshrrev_b32 v15, 5, v1
    v_mad_u32_u24 v15, v15, 5, s60
    v_min_u32 v15, 575, v15
    v_lshrrev_b32 v15, {6 if g.tmode else 5}, v15
    v_and_b32 v14, 31, v1
    v_lshl_add_u32 v15, v15, 5, v14
    v_lshlrev_b32 v15, {g.tfs}, v15
    v_add_u32 v15, {WS_TF}, v15
    s_lshl_b32 s12, s60, 12
    s_add_u32 s12, s12, {WS_UT}
    s_mul_i32 s5, s3, {84*128}
    s_mul_i32 s14, s50, {4*HBLK}
    s_add_u32 s4, s14, {4*HBLK - 128}
    s_add_u32 s5, s5, s14
    v_min_u32 v58, 41, v1
    v_lshl_add_u32 v58, v58, 7, s5
    v_add_u32 v59, {42*128}, v58
    v_min_u32 v58, s4, v58
    v_min_u32 v59, s4, v59
    v_mov_b32 v19, {EXE+56}
    v_mov_b32 v60, 1
    """)
    if g.tmode:
        k(f"""
        s_mov_b32 s22, 0x05040100
        s_mov_b32 s23, 0x07060302
        s_lshl_b32 s5, s72, 18
        s_lshl_b32 s4, s7, 7
        s_add_u32 s5, s5, s4
        s_add_u32 s5, s5, {WS_UT}
        v_lshl_add_u32 v13, v8, 4, s5
        v_lshl_add_u32 v13, v4, 15, v13
        s_lshl_b32 s5, s72, 5
        s_add_u32 s5, s5, s7
        s_lshl_b32 s5, s5, {g.tfs}
        s_add_u32 s5, s5, {WS_TF}
        v_mov_b32 v14, s5
        v_xor_b32 v12, v4, v8
        v_lshlrev_b32 v12, 4, v12
        v_lshl_add_u32 v12, v8, 10, v12
        v_add_u32 v12, s63, v12
        """)
        k("s_cmp_ge_u32 s3, 36\ns_cbranch_scc1 L_noT")
        k._wait(vm=3); g.st("Tld")
        for i in range(8): k(f"ds_read_b128 {v(96+4*i,4)}, v12 offset:{128*i}")
        for e in range(8):
            for p in range(4): k(f"v_perm_b32 v{128+4*e+p}, v{96+8*p+4+e//2}, v{96+8*p+e//2}, s{22+e%2}")
            k(f"s_mov_b32 s4, {4096*e}\nbuffer_store_dwordx4 {v(128+4*e,4)}, v13, s[76:79], s4 offen sc1")
        k(f"v_readfirstlane_b32 s55, v62\ns_mul_i32 s55, s55, {LCG_A}\ns_add_u32 s55, s55, {LCG_C}\ns_max_u32 s55, s55, 1\nv_mov_b32 v17, s55")
        k("s_mov_b64 exec, 1"); k.wait_vm()
        k("global_store_dword v14, v17, s[46:47] sc1\ns_mov_b64 exec, -1"); g.st("Tst")
        k.raw("L_noT:"); k.vm = [({("v", 62)}, None), (set(), None), (set(), None)]
    if g.wfirst:
        if not g.tmode: k._wait(vm=0 if g.wfirst == 1 else 2); g.st("wl")
        for pat in g.bpf: touch(pat, 22, 68)
    g.st("bpfi")
    if g.hpre == 2:
        for i in range(2): k._wait(vm=g.pf_depth); k(f"global_load_dword v{80+i}, v{58+i}, s[42:43]")
    for pat in g.cpf[:g.cpf_pre]: touch(pat, 25, 64)
    if g.hpre == 3:
        for i in range(2): k._wait(vm=g.pf_depth); k(f"global_load_dword v{80+i}, v{58+i}, s[42:43]")
    k.wait_vm(); g.st("pre")
    k(f"v_readfirstlane_b32 s55, v62\ns_mul_i32 s55, s55, {LCG_A}\ns_add_u32 s55, s55, {LCG_C}\ns_max_u32 s55, s55, 1")
    k(f"s_cmp_lg_u32 s62, 3\ns_cbranch_scc1 L_pollT_skip")
    g.poll("L_pollT", lambda: k(f"s_sleep {g.tsleep}\nglobal_load_dword v18, v15, s[46:47] sc1"), lambda: k("v_cmp_ne_u32 vcc, s55, v18\ns_nop 1"))
    g.st("Tarr")
    for c in range(6):
        if c == 4: k("s_cmp_lt_u32 s49, 24\ns_cbranch_scc1 L_u4")
        k(f"s_mov_b32 m0, {UK0 + AW*c + 512}\ns_add_u32 s4, s12, {4096*c}")
        for n in range(4): k(f"buffer_load_dwordx4 v16, s[76:79], s4 offen offset:{1024*n} sc1 lds")
    k.raw("L_u4:")
    k("ds_write_b32 v10, v60 offset:4")
    k.wait_vm(); g.st("gath")
    k.raw("L_pollT_skip:")
    k("ds_write_b32 v10, v60")
    if g.uwait:
        g.poll("L_pollTw", lambda: k("s_sleep 2\nds_read_b32 v18, v19 offset:4"), lambda: k("v_cmp_ne_u32 vcc, 1, v18\ns_nop 1"))
    for pat in g.bpf2: touch(pat, 22, 68)
    if g.r2skip: k("s_cmp_lt_u32 s49, 24\ns_cbranch_scc1 L_R2C")
    for pat in g.cpf[g.cpf_pre:]: touch(pat, 25, 64)
    ho = 42 if g.hout else 46
    if g.hpre == 1 and not g.r2skip:
        for i in range(2): k._wait(vm=g.pf_depth); k(f"global_load_dword v{80+i}, v{58+i}, s[{ho}:{ho+1}]")
    if g.hpre == 1 and g.r2skip:
        k(f"s_sub_u32 s4, s49, 24\ns_lshl_b32 s4, s4, 2\ns_add_u32 s4, s4, s62\ns_mul_i32 s4, s4, {144*128}\ns_add_u32 s4, s4, s14\nv_min_u32 v58, 47, v1\nv_lshl_add_u32 v58, v58, 7, s4")
        for i in range(3): k._wait(vm=g.pf_depth); k(f"global_load_dword v{80+i}, v58, s[{ho}:{ho+1}]\nv_add_u32 v58, {48*128}, v58")
    k("s_cmp_lt_u32 s49, 24\ns_cbranch_scc1 L_R2C")
    save = list(k.vm)
    k.wait_vm(); g.st("pfdone")
    g.fin()
    k.raw("L_R2C:"); k.vm = [(set(("v", i) for i in range(64, 70)), None)] if g.r2skip else save; k.hist = []; k.lg = [(set(), None)]
    csetup()
    cstream(0, lambda n: g.cthr2)
    k.raw("L_CPF:"); k.vm = []; k.lg = [(set(), None)]
    k(f"""
    v_lshrrev_b32 v8, 1, v3
    v_lshlrev_b32 v8, 12, v8
    s_lshr_b32 s4, s62, 1
    s_lshl_b32 s5, s4, 10
    v_add_u32 v8, s5, v8
    v_bfe_u32 v9, v1, 1, 1
    v_lshl_add_u32 v8, v9, 8, v8
    v_and_b32 v10, 1, v3
    v_lshlrev_b32 v10, 3, v10
    v_bfe_u32 v11, v1, 2, 2
    v_add_u32 v10, v10, v11
    v_lshlrev_b32 v9, 2, v9
    v_xor_b32 v10, v10, v9
    v_lshl_add_u32 v8, v10, 4, v8
    v_and_b32 v10, 1, v1
    v_lshl_add_u32 v6, v10, 3, v8
    v_xor_b32 v7, 64, v6
    s_mul_i32 s4, s4, 25600
    s_and_b32 s5, s62, 1
    s_mul_i32 s5, s5, 192
    s_add_u32 s4, s4, s5
    s_add_u32 s4, s4, {IMG}
    v_mul_u32_u24 v0, 400, v2
    v_lshl_add_u32 v0, v3, 4, v0
    v_add_u32 v0, s4, v0
    v_add_u32 v2, 49152, v6
    v_add_u32 v3, 49152, v7
    """)
    k.wait_all(); g.st("cdone")
    A2, HF = 40, 8
    def hreads(e, u, ks):
        sl = u % 6; a0 = 6 if sl < 3 else 2
        for tt in range(4):
            off = 16384*(sl % 3) + 8192*ks + 2048*(tt >> 1) + 512*(tt & 1)
            e(f"ds_read_b64_tr_b16 {v(HF+16*ks+4*tt,2)}, v{a0} offset:{off}\nds_read_b64_tr_b16 {v(HF+16*ks+4*tt+2,2)}, v{a0+1} offset:{off}")
    def mf1(u, ks, tt, dt):
        d = A2 + 16*dt + 4*tt
        cc = "0" if (u == 0 and ks == 0) else v(d, 4)
        return ("i", f"{M16} {v(d,4)}, {v(CU(u)+12*ks+4*dt,4)}, {v(HF+16*ks+4*tt,4)}, {cc}", None)
    mf2 = lambda u, ks: [mf1(u, ks, tt, dt) for tt in range(4) for dt in range(3)]
    k("s_barrier")
    hreads(k, 0, 0)
    if g.wb: k.raw("    s_or_b32 s4, s52, s62\n    s_cbranch_scc1 L_nowb\n    buffer_wbl2 sc1\nL_nowb:")
    tail = [[(7,0,tt),(7,1,tt),(8,0,tt),(8,1,tt)] for tt in range(4)]
    def treads(e, st):
        for i, (u, ks, tt) in enumerate(tail[st]):
            off = 16384*(u % 6) + 8192*ks + 2048*(tt >> 1) + 512*(tt & 1); b_ = HF + 16*(st % 2) + 4*i
            e(f"ds_read_b64_tr_b16 {v(b_,2)}, v6 offset:{off}\nds_read_b64_tr_b16 {v(b_+2,2)}, v7 offset:{off}")
    def tmf(st):
        return [("i", f"{M16} {v(A2+16*dt+4*tt,4)}, {v(CU(u)+12*ks+4*dt,4)}, {v(HF+16*(st%2)+4*i,4)}, {v(A2+16*dt+4*tt,4)}", None) for i, (u, ks, tt) in enumerate(tail[st]) for dt in range(3)]
    def wr(tts):
        e = Rec()
        for tt in tts:
            for dt in range(3): e(f"ds_write_b128 v0, {v(A2+16*dt+4*tt,4)} offset:{6400*tt+64*dt}")
        return e.items
    early = g.cmf == 27
    for u in range(7):
        rd = Rec(); hreads(rd, u, 1)
        ex = Rec()
        if u == (2 if early else 5):
            for n in range(21, 24): c_drain(ex, n)
        if early and u == 3:
            for n in range(24, 27): c_drain(ex, n)
        weave(k, mf2(u, 0), [(rd.items, 0, 7), (ex.items, 4, 9)])
        if u + 1 in (1, 2, 3, 5, 7): k.wait_lg(); k("s_barrier")
        rd = Rec(); ex = Rec()
        if u < 6: hreads(rd, u + 1, 0)
        else:
            treads(rd, 0)
            if not early:
                for n in range(24, 27): c_drain(ex, n)
        weave(k, mf2(u, 1), [(rd.items, 1, 8), (ex.items, 5, 10)])
    for st in range(4):
        rd = Rec()
        if st < 3: treads(rd, st + 1)
        w_ = wr([st - 1]) if st else []
        m_ = tmf(st)
        if st == 3:
            for it in m_[:2]: play(k, it)
            k.wait_lg(); k("s_barrier"); m_ = m_[2:]
        weave(k, m_, [(rd.items, 0, 4), (w_, 3 if st < 3 else 2, len(m_) - 1)])
    for it in wr([3]): play(k, it)
    k.wait_lg(); g.st("p2end"); k("s_barrier")
    g.fin()
```

```python
import sys, struct
sys.path.insert(0, "work")
from kasm import *
from align import align
NAME = "gated_mix__ssm_conv_s4d__ssm_conv_s5__prompt_kernel"
NWG = 256
WS_XI = 0xA0000
WS_TF, WS_UT = 0x90000, 0xA00000
WS_S, WS_HF, WS_AF, WS_G, WS_H, WS_A, WS_STAMP = 0x1000, 0x40000, 0x60000, 0x70000, 0x100000, 0x600000, 0x900000
WS_SIZE = 0x10000000
import os
_B = int(os.environ.get("WSB", "0"), 0)
WS_XI += _B; WS_TF += _B; WS_UT += _B; WS_S += _B; WS_HF += _B; WS_AF += _B; WS_G += _B; WS_H += _B; WS_A += _B
HBLK = 147456
LOG2E = 1.4426950408889634
INV2PI = 0.15915494309189535
LCG_A, LCG_C = 0x0019660D, 0x3C6EF35F
SPIN = 200000
M16, M32 = "v_mfma_f32_16x16x32_bf16", "v_mfma_f32_32x32x16_bf16"
def fl(x): return "0x%08x" % struct.unpack("<I", struct.pack("<f", x))[0]
XS, WSL, CST, EXE, EXH, AST, IMG = 0, 49152, 100352, 149504, 153600, 151552, 49152
TW, AW, AB0 = 8704, 8704, 69632
UO = [33, 34, 35, 36, 37, 40, 41, 44, 45]

def cmul_multi(e, items):
    for d, x, y, t in items: e(f"v_pk_mul_f32 {v(t,2)}, {v(x,2)}, {v(y,2)} op_sel:[0,0] op_sel_hi:[0,1]")
    for d, x, y, t in items: e(f"v_pk_fma_f32 {v(d,2)}, {v(x,2)}, {v(y,2)}, {v(t,2)} op_sel:[1,1,0] op_sel_hi:[1,0,1] neg_lo:[1,0,0]")
def cmac(e, items):
    for d, x, y, c in items: e(f"v_pk_fma_f32 {v(d,2)}, {v(x,2)}, {v(y,2)}, {v(c,2)} op_sel:[0,0,0] op_sel_hi:[0,1,1]")
    for d, x, y, c in items: e(f"v_pk_fma_f32 {v(d,2)}, {v(x,2)}, {v(y,2)}, {v(d,2)} op_sel:[1,1,0] op_sel_hi:[1,0,1] neg_lo:[1,0,0]")
def cpow_multi(e, items):
    for dre, dim, ar, ai, n, t0, t1 in items: e(f"v_mul_f32 v{t0}, {n}, v{ar}\nv_mul_f32 v{t1}, {n}, v{ai}")
    for dre, dim, ar, ai, n, t0, t1 in items: e(f"v_exp_f32 v{t0}, v{t0}\nv_fract_f32 v{t1}, v{t1}")
    for dre, dim, ar, ai, n, t0, t1 in items: e(f"v_cos_f32 v{dre}, v{t1}\nv_sin_f32 v{dim}, v{t1}")
    for dre, dim, ar, ai, n, t0, t1 in items: e(f"v_mul_f32 v{dre}, v{dre}, v{t0}\nv_mul_f32 v{dim}, v{dim}, v{t0}")
def pk_bc(e, d, a, b, bsel, c=None, neg=False):
    if c is None:
        e(f"v_pk_mul_f32 {v(d,2)}, {v(b,2)}, {v(a,2)} op_sel:[{bsel},0] op_sel_hi:[{bsel},1]")
    else:
        n = " neg_lo:[1,0,0] neg_hi:[1,0,0]" if neg else ""
        e(f"v_pk_fma_f32 {v(d,2)}, {v(b,2)}, {v(a,2)}, {v(c,2)} op_sel:[{bsel},0,0] op_sel_hi:[{bsel},1,1]{n}")
def smul(e, dr, di, ar, ai, br, bi, cr=None, ci=None):
    if cr is None: e(f"v_mul_f32 v{dr}, v{ar}, v{br}\nv_mul_f32 v{di}, v{ar}, v{bi}")
    else: e(f"v_fma_f32 v{dr}, v{ar}, v{br}, v{cr}\nv_fma_f32 v{di}, v{ar}, v{bi}, v{ci}")
    e(f"v_fma_f32 v{dr}, -v{ai}, v{bi}, v{dr}\nv_fma_f32 v{di}, v{ai}, v{br}, v{di}")
def offsets(e, arr):
    for c in range(1, 9): e(f"s_add_u32 s{arr[c]}, s{arr[c-1]}, 128\ns_cmp_eq_u32 s{arr[c]}, 1152\ns_cselect_b32 s{arr[c]}, 0, s{arr[c]}")
def mod9(e, r, t): e(f"s_mul_hi_u32 s{t}, s{r}, 0x1C71C71D\ns_mul_i32 s{t}, s{t}, 9\ns_sub_u32 s{r}, s{r}, s{t}")

class Gen:
    def __init__(self):
        self.k = K()
    def run(self, r):
        for it in r.items: play(self.k, it)
    def st(self, name):
        if self.stamps and name in self.bst:
            i = 1 + self.bst.index(name)
            self.k.raw(f"    {self.clk} s[{80+2*i}:{81+2*i}]")
            self.k.smem |= {("s", 80+2*i), ("s", 81+2*i)}
            self.k.wait_lg()
    def fin(self):
        k = self.k
        if self.stamps:
            k.raw("    s_waitcnt vmcnt(0) lgkmcnt(0)"); k.vm = []; k.lg = []
            self.st("end")
            if self.amp:
                self.namp = getattr(self, "namp", 0) + 1
                k.raw(f"""    s_cmp_eq_u32 s82, 0
    s_cbranch_scc1 L_amp_d{self.namp}
    s_sub_u32 s82, s82, s80
    s_min_u32 s82, s82, 5000
    {'s_mul_i32 s82, s82, %d' % self.amp if self.amp < 100 else 's_mov_b32 s82, %d' % self.amp}
L_amp{self.namp}:
    s_sleep 1
    s_memrealtime s[84:85]
    s_waitcnt lgkmcnt(0)
    s_sub_u32 s84, s84, s80
    s_cmp_lt_u32 s84, s82
    s_cbranch_scc1 L_amp{self.namp}
L_amp_d{self.namp}:
    s_endpgm""")
                return
            k("s_mov_b64 exec, 1")
            for i in range(10): k(f"v_mov_b32 v{8+i}, s{80+2*i}")
            k("s_getreg_b32 s3, hwreg(HW_REG_XCC_ID)\nv_mov_b32 v18, s3\ns_getreg_b32 s3, hwreg(HW_REG_HW_ID)\nv_mov_b32 v19, s3")
            k(f"s_lshl_b32 s3, s2, 3\ns_add_u32 s3, s3, s48\ns_lshl_b32 s3, s3, 6\ns_add_u32 s3, s3, {WS_STAMP}\nv_mov_b32 v4, s3")
            for i in range(3): k(f"global_store_dwordx4 v4, v[{8+4*i}:{11+4*i}], s[46:47] offset:{16*i}")
        k("s_endpgm")
    def enter(self, label, karg=True):
        k = self.k
        k.reset()
        if karg: k.smem = {("s", i) for i in range(8, 48)}
        k.raw(".p2align 3\n" + label + ":")
    def poll(self, label, issue, check, first_done=False):
        k = self.k
        k(f"s_mov_b32 s58, {SPIN}")
        k.out.append(label + ":")
        issue(); k("s_sub_u32 s58, s58, 1"); k.wait_all()
        k(f"s_cbranch_scc1 {label}_done"); check(); k(f"s_cbranch_vccnz {label}")
        k.out.append(label + "_done:")
    def pub_xcc(self, t, lab, wv):
        k = self.k
        k(f"s_getreg_b32 s4, hwreg(HW_REG_XCC_ID, 0, 4)\nv_mov_b32 v{t}, s55\nv_mov_b32 v{t+1}, s4")
        if wv is not None: k(f"s_cmp_lg_u32 s48, {wv}\ns_cbranch_scc1 {lab}")
        k(f"s_lshl_b32 s4, s56, 3\ns_add_u32 s4, s4, s52\ns_lshl_b32 s4, s4, 7\ns_add_u32 s4, s4, {WS_XI}\nv_mov_b32 v{t+2}, s4\ns_mov_b64 exec, 1\nglobal_store_dwordx2 v{t+2}, v[{t}:{t+1}], s[46:47] sc1\ns_mov_b64 exec, -1")
        if wv is not None: k.vm.pop()
        k.raw(lab + ":")
    def prologue(self):
        k = self.k
        if self.stamps:
            k.raw(f"    {self.clk} s[80:81]")
            for i in range(82, 100, 2): k.raw(f"    s_mov_b32 s{i}, 0")
        k(f"""
        s_load_dwordx16 s[8:23], s[0:1], 0
        s_load_dwordx16 s[24:39], s[0:1], 64
        s_load_dwordx8 s[40:47], s[0:1], 128
        s_cmp_ge_u32 s2, {NWG}
        s_cbranch_scc1 L_end
        v_lshrrev_b32 v4, 6, v0
        s_lshr_b32 s6, s2, 3
        v_readfirstlane_b32 s48, v4
        s_add_u32 s49, s6, {self.nshift}
        s_and_b32 s49, s49, 31           ; n
        s_and_b32 s50, s2, 7
        """)
        k(f"s_getpc_b64 s[4:5]\ns_lshl_b32 s6, s6, 4\nv_lshrrev_b32 v252, 5, v0\nv_add_u32 v252, s6, v252\nv_min_u32 v252, (L_end - {NAME})/128, v252\nv_lshlrev_b32 v252, 7, v252\nv_mov_b32 v253, s5\nv_add_co_u32 v252, vcc, s4, v252\nv_and_b32 v1, 63, v0\nv_and_b32 v2, 15, v0\nv_addc_co_u32 v253, vcc, 0, v253, vcc\nv_lshrrev_b32 v3, 4, v1\nglobal_load_dword v7, v[252:253], off")
        k(f"""
        s_cmp_ge_u32 s49, 18
        s_cbranch_scc0 L_r1
        s_mul_i32 s60, s50, 72
        s_mul_i32 s4, s49, 6
        s_lshl_b32 s5, s49, 2
        s_sub_u32 s4, s4, 144
        s_sub_u32 s5, s5, 24
        s_cmp_ge_u32 s49, 24
        s_cselect_b32 s4, s4, s5
        s_add_u32 s60, s60, s4           ; d0 (A roles)
        s_cmp_lt_u32 s48, 4
        s_cbranch_scc1 L_A
        s_branch L_R2G
        """)
        k.raw("L_r1:")
        k(f"""
        s_cmp_ge_u32 s49, 9
        s_cselect_b32 s5, 1, 0
        s_cselect_b32 s54, 9, 0
        s_lshl_b32 s53, s50, 1
        s_sub_u32 s54, s49, s54          ; j
        s_add_u32 s53, s53, s5           ; i
        s_mul_i32 s59, s5, {self.rot1i}
        s_mul_i32 s4, s50, {self.rot1x}
        s_add_u32 s59, s59, s54
        s_add_u32 s59, s59, s4
        """)
        mod9(k, 59, 4)
        k("s_lshl_b32 s59, s59, 7\ns_cmp_lt_u32 s48, 4\ns_cbranch_scc1 L_LO")
        self.pvm = list(k.vm)
    def ids2(self):
        k = self.k
        k(f"""
        s_cmp_ge_u32 s49, 12
        s_mov_b32 s4, 3393292320
        s_mov_b32 s5, 155585890
        s_cmov_b32 s4, 899438227
        s_cmov_b32 s5, 250833482
        s_cselect_b32 s52, 12, 0
        s_sub_u32 s52, s49, s52
        s_mul_i32 s52, s52, 5
        s_lshr_b64 s[4:5], s[4:5], s52
        s_and_b32 s52, s4, 7             ; dj
        s_bfe_u32 s4, s4, 0x20003
        s_and_b32 s51, s4, 1             ; th
        s_lshl_b32 s56, s50, 2
        s_add_u32 s56, s56, s4           ; tb
        s_mul_i32 s57, s52, 3
        s_lshr_b32 s57, s57, 1
        s_mul_i32 s4, s4, {self.rot2i}
        s_add_u32 s57, s57, s4
        """)
        mod9(k, 57, 4)
        k("s_lshl_b32 s57, s57, 7")
    def band_data(self):
        wins = [(range(3,6),16), (range(6,11),16), (range(11,14),16), (range(14,19),24), (range(5,12),16), (range(12,21),24), ((3,4),16)]
        out = []
        for ti, (w, c) in enumerate(wins):
            val = 0xFFFF if ti == 6 else 0x3F80
            for l in range(64):
                r, G = l & 15, l >> 4
                e = [val if (r + c - (8*G + i)) in w else 0 for i in range(8)]
                out.append(".long " + ", ".join("0x%08x" % (e[2*i] | (e[2*i+1] << 16)) for i in range(4)))
        out += ['.fill 256, 4, 0']
        return "\n".join(out)
    def build(self):
        import g2a, g2b
        k = self.k
        self.prologue()
        g2b.loader1(self)
        self.enter("L_LO"); k.vm = list(self.pvm)
        g2b.compute1(self)
        g2b.loader2(self)
        g2a.partA(self)

        k.raw("L_end:\n    s_endpgm")
        k.raw(".fill 64, 4, 0xbf800000")
        hdr = open("gated_mix__ssm_conv_s4d__ssm_conv_s5__prompt.s.ref").read().split("; Override")[0]
        if self.stamps: hdr += f"; bst start {' '.join(self.bst)}\n"
        return (hdr + f"; @launch grid=({NWG},1,1) block=(512,1,1) lds=163840\n"
            '.amdgcn_target "amdgcn-amd-amdhsa--gfx950"\n.text\n'
            f".globl {NAME}\n.p2align 8\n.type {NAME},@function\n{NAME}:\n" + (align(k.text(), self.minrun) if self.align else k.text()) +
            '.section .rodata,"a"\n.p2align 8\nband_tab:\n' + self.band_data() + f"""
.p2align 6
.amdhsa_kernel {NAME}
  .amdhsa_next_free_vgpr 256
  .amdhsa_next_free_sgpr 102
  .amdhsa_accum_offset 256
  .amdhsa_group_segment_fixed_size 0
  .amdhsa_kernarg_size 160
  .amdhsa_user_sgpr_count 2
  .amdhsa_user_sgpr_kernarg_segment_ptr 1
  .amdhsa_system_sgpr_workgroup_id_x 1
.end_amdhsa_kernel
""")
DEF = dict(asleep=4, tmode=0, tdel=None, bpf2=[], xbl=5, xla=7, xearly=0, h8e=1, r2skip=1, dbg_nog=0, noT=0, tq0=1, wfirst=2, hout=1, wb=0, ost='', dbg_now2=0, cpd=5, cpre_pop=12, ast=1, uwait=1, xq=7, tfs=5, abar=1, a_late=0, dbg_bw=0, nob8=0, cpre=4, cfast=9, cthr2=5, prioC=0, spre=0, gpos=1, cs_span=(5, 17), e_gap=12, cmf=27, a_lat=2, first='wx', gather=0, bpf=[0x5543, 0x8876], tsleep=2, amp=0, pf_pre=0, pf_depth=1, cpf=[0x2210, 0x5543, 0x8876], cpf_pre=1, tq=3, hpre=1, hld='sc1', hst='', rot1i=0, rot1j=1, rot1x=1, fast=1, dbg_noC=0, p_span=(0.75, 0.95), r3pf=2, pdel=0, align=1, minrun=6, dbg_now=0, dbg_noswz=0, dbg_nomf=0, dbg_free=0, prioL=0, rd_span=(1, 3), nshift=18, nogather=0, stamps=False, clk="s_memrealtime", bst=[], pf=216, rot2i=0, wbatch=2, g_span=(0.02, 0.7), cthr=3, hdist=3, a_at=5, skipA=0)
def make(path, **opt):
    g = Gen()
    for a_, b_ in {**DEF, **opt}.items(): setattr(g, a_, b_)
    t = g.build()
    open(path, "w").write(t)
    return g
if __name__ == "__main__":
    g = make("k2.s")
    print("nops", g.k.nops)
```

```python
import sys, struct
sys.path.insert(0, "work")
from kasm import *
from align import align
NAME = "gated_mix__ssm_conv_s4d__ssm_conv_s5__prompt_kernel"
NWG = 256
WS_XI = 0xA0000
WS_TF, WS_UT = 0x90000, 0xA00000
WS_S, WS_HF, WS_AF, WS_G, WS_H, WS_A, WS_STAMP = 0x1000, 0x40000, 0x60000, 0x70000, 0x100000, 0x600000, 0x900000
WS_SIZE = 0x10000000
import os
_B = int(os.environ.get("WSB", "0"), 0)
WS_XI += _B; WS_TF += _B; WS_UT += _B; WS_S += _B; WS_HF += _B; WS_AF += _B; WS_G += _B; WS_H += _B; WS_A += _B
HBLK = 147456
LOG2E = 1.4426950408889634
INV2PI = 0.15915494309189535
LCG_A, LCG_C = 0x0019660D, 0x3C6EF35F
SPIN = 200000
M16, M32 = "v_mfma_f32_16x16x32_bf16", "v_mfma_f32_32x32x16_bf16"
def fl(x): return "0x%08x" % struct.unpack("<I", struct.pack("<f", x))[0]
XS, WSL, CST, EXE, EXH, AST, IMG = 0, 49152, 100352, 149504, 153600, 151552, 49152
TW, AW, AB0 = 8704, 8704, 69632
UO = [33, 34, 35, 36, 37, 40, 41, 44, 45]

def cmul_multi(e, items):
    for d, x, y, t in items: e(f"v_pk_mul_f32 {v(t,2)}, {v(x,2)}, {v(y,2)} op_sel:[0,0] op_sel_hi:[0,1]")
    for d, x, y, t in items: e(f"v_pk_fma_f32 {v(d,2)}, {v(x,2)}, {v(y,2)}, {v(t,2)} op_sel:[1,1,0] op_sel_hi:[1,0,1] neg_lo:[1,0,0]")
def cmac(e, items):
    for d, x, y, c in items: e(f"v_pk_fma_f32 {v(d,2)}, {v(x,2)}, {v(y,2)}, {v(c,2)} op_sel:[0,0,0] op_sel_hi:[0,1,1]")
    for d, x, y, c in items: e(f"v_pk_fma_f32 {v(d,2)}, {v(x,2)}, {v(y,2)}, {v(d,2)} op_sel:[1,1,0] op_sel_hi:[1,0,1] neg_lo:[1,0,0]")
def cpow_multi(e, items):
    for dre, dim, ar, ai, n, t0, t1 in items: e(f"v_mul_f32 v{t0}, {n}, v{ar}\nv_mul_f32 v{t1}, {n}, v{ai}")
    for dre, dim, ar, ai, n, t0, t1 in items: e(f"v_exp_f32 v{t0}, v{t0}\nv_fract_f32 v{t1}, v{t1}")
    for dre, dim, ar, ai, n, t0, t1 in items: e(f"v_cos_f32 v{dre}, v{t1}\nv_sin_f32 v{dim}, v{t1}")
    for dre, dim, ar, ai, n, t0, t1 in items: e(f"v_mul_f32 v{dre}, v{dre}, v{t0}\nv_mul_f32 v{dim}, v{dim}, v{t0}")
def pk_bc(e, d, a, b, bsel, c=None, neg=False):
    if c is None:
        e(f"v_pk_mul_f32 {v(d,2)}, {v(b,2)}, {v(a,2)} op_sel:[{bsel},0] op_sel_hi:[{bsel},1]")
    else:
        n = " neg_lo:[1,0,0] neg_hi:[1,0,0]" if neg else ""
        e(f"v_pk_fma_f32 {v(d,2)}, {v(b,2)}, {v(a,2)}, {v(c,2)} op_sel:[{bsel},0,0] op_sel_hi:[{bsel},1,1]{n}")
def smul(e, dr, di, ar, ai, br, bi, cr=None, ci=None):
    if cr is None: e(f"v_mul_f32 v{dr}, v{ar}, v{br}\nv_mul_f32 v{di}, v{ar}, v{bi}")
    else: e(f"v_fma_f32 v{dr}, v{ar}, v{br}, v{cr}\nv_fma_f32 v{di}, v{ar}, v{bi}, v{ci}")
    e(f"v_fma_f32 v{dr}, -v{ai}, v{bi}, v{dr}\nv_fma_f32 v{di}, v{ai}, v{br}, v{di}")
def offsets(e, arr):
    for c in range(1, 9): e(f"s_add_u32 s{arr[c]}, s{arr[c-1]}, 128\ns_cmp_eq_u32 s{arr[c]}, 1152\ns_cselect_b32 s{arr[c]}, 0, s{arr[c]}")
def mod9(e, r, t): e(f"s_mul_hi_u32 s{t}, s{r}, 0x1C71C71D\ns_mul_i32 s{t}, s{t}, 9\ns_sub_u32 s{r}, s{r}, s{t}")

class Gen:
    def __init__(self):
        self.k = K()
    def run(self, r):
        for it in r.items: play(self.k, it)
    def st(self, name):
        if self.stamps and name in self.bst:
            i = 1 + self.bst.index(name)
            self.k.raw(f"    {self.clk} s[{80+2*i}:{81+2*i}]")
            self.k.smem |= {("s", 80+2*i), ("s", 81+2*i)}
            self.k.wait_lg()
    def fin(self):
        k = self.k
        if self.stamps:
            k.raw("    s_waitcnt vmcnt(0) lgkmcnt(0)"); k.vm = []; k.lg = []
            self.st("end")
            if self.amp:
                self.namp = getattr(self, "namp", 0) + 1
                if self.ampx is not None: k.raw(f"    s_cmp_lg_u32 s50, {self.ampx}\n    s_cbranch_scc1 L_amp_d{self.namp}")
                k.raw(f"""    s_cmp_eq_u32 s82, 0
    s_cbranch_scc1 L_amp_d{self.namp}
    s_sub_u32 s82, s82, s80
    s_min_u32 s82, s82, 5000
    {'s_mul_i32 s82, s82, %d' % self.amp if self.amp < 100 else 's_mov_b32 s82, %d' % self.amp}
L_amp{self.namp}:
    s_sleep 1
    s_memrealtime s[84:85]
    s_waitcnt lgkmcnt(0)
    s_sub_u32 s84, s84, s80
    s_cmp_lt_u32 s84, s82
    s_cbranch_scc1 L_amp{self.namp}
L_amp_d{self.namp}:
    s_endpgm""")
                return
            k("s_mov_b64 exec, 1")
            for i in range(10): k(f"v_mov_b32 v{8+i}, s{80+2*i}")
            k("s_getreg_b32 s3, hwreg(HW_REG_XCC_ID)\nv_mov_b32 v18, s3\ns_getreg_b32 s3, hwreg(HW_REG_HW_ID)\nv_mov_b32 v19, s3")
            k(f"s_lshl_b32 s3, s2, 3\ns_add_u32 s3, s3, s48\ns_lshl_b32 s3, s3, 6\ns_add_u32 s3, s3, {WS_STAMP}\nv_mov_b32 v4, s3")
            for i in range(3): k(f"global_store_dwordx4 v4, v[{8+4*i}:{11+4*i}], s[46:47] offset:{16*i}")
        k("s_endpgm")
    def enter(self, label, karg=True):
        k = self.k
        k.reset()
        if karg: k.smem = {("s", i) for i in range(8, 48)}
        k.raw(".p2align 3\n" + label + ":")
    def poll(self, label, issue, check, first_done=False):
        k = self.k
        k(f"s_mov_b32 s58, {SPIN}")
        k.out.append(label + ":")
        issue(); k("s_sub_u32 s58, s58, 1"); k.wait_all()
        k(f"s_cbranch_scc1 {label}_done"); check()
        sl = self.slp.get(label[6:7], 0)
        if sl: k(f"s_cbranch_vccz {label}_done\ns_sleep {sl}\ns_branch {label}")
        else: k(f"s_cbranch_vccnz {label}")
        k.out.append(label + "_done:")
    def pub_xcc(self, t, lab, wv):
        k = self.k
        k(f"s_getreg_b32 s4, hwreg(HW_REG_XCC_ID, 0, 4)\nv_mov_b32 v{t}, s55\nv_mov_b32 v{t+1}, s4")
        if wv is not None: k(f"s_cmp_lg_u32 s48, {wv}\ns_cbranch_scc1 {lab}")
        k(f"s_lshl_b32 s4, s56, 3\ns_add_u32 s4, s4, s52\ns_lshl_b32 s4, s4, 7\ns_add_u32 s4, s4, {WS_XI}\nv_mov_b32 v{t+2}, s4\ns_mov_b64 exec, 1\nglobal_store_dwordx2 v{t+2}, v[{t}:{t+1}], s[46:47] sc1\ns_mov_b64 exec, -1")
        if wv is not None: k.vm.pop()
        k.raw(lab + ":")
    def prologue(self):
        k = self.k
        if self.stamps:
            k.raw(f"    {self.clk} s[80:81]")
            for i in range(82, 100, 2): k.raw(f"    s_mov_b32 s{i}, 0")
        k(f"""
        s_load_dwordx16 s[8:23], s[0:1], 0
        s_load_dwordx16 s[24:39], s[0:1], 64
        s_load_dwordx8 s[40:47], s[0:1], 128
        s_cmp_ge_u32 s2, {NWG}
        s_cbranch_scc1 L_end
        v_lshrrev_b32 v4, 6, v0
        s_lshr_b32 s6, s2, 3
        v_readfirstlane_b32 s48, v4
        s_add_u32 s49, s6, {self.nshift}
        s_and_b32 s49, s49, 31           ; n
        s_and_b32 s50, s2, 7
        {'s_lshr_b32 s4, s50, 1' if self.xperm else ''}
        {'s_and_b32 s4, s4, 2' if self.xperm else ''}
        {'s_xor_b32 s50, s50, s4' if self.xperm else ''}
        """)
        k(f"s_getpc_b64 s[4:5]\ns_lshl_b32 s6, s6, 4\nv_lshrrev_b32 v252, 5, v0\nv_add_u32 v252, s6, v252\nv_min_u32 v252, (L_end - {NAME})/128, v252\nv_lshlrev_b32 v252, 7, v252\nv_mov_b32 v253, s5\nv_add_co_u32 v252, vcc, s4, v252\nv_and_b32 v1, 63, v0\nv_and_b32 v2, 15, v0\nv_addc_co_u32 v253, vcc, 0, v253, vcc\nv_lshrrev_b32 v3, 4, v1\nglobal_load_dword v7, v[252:253], off")
        k(f"""
        s_cmp_ge_u32 s49, 18
        s_cbranch_scc0 L_r1
        s_mul_i32 s60, s50, 72
        s_mul_i32 s4, s49, 6
        s_lshl_b32 s5, s49, 2
        s_sub_u32 s4, s4, 144
        s_sub_u32 s5, s5, 24
        s_cmp_ge_u32 s49, 24
        s_cselect_b32 s4, s4, s5
        s_add_u32 s60, s60, s4           ; d0 (A roles)
        s_cmp_lt_u32 s48, 4
        s_cbranch_scc1 L_A
        s_branch L_R2G
        """)
        k.raw("L_r1:")
        k(f"""
        s_cmp_ge_u32 s49, 9
        s_cselect_b32 s5, 1, 0
        s_cselect_b32 s54, 9, 0
        s_lshl_b32 s53, s50, 1
        s_sub_u32 s54, s49, s54          ; j
        s_add_u32 s53, s53, s5           ; i
        s_mul_i32 s59, s5, {self.rot1i}
        s_mul_i32 s4, s50, {self.rot1x}
        s_add_u32 s59, s59, s54
        s_add_u32 s59, s59, s4
        """)
        mod9(k, 59, 4)
        k("s_lshl_b32 s59, s59, 7\ns_cmp_lt_u32 s48, 4\ns_cbranch_scc1 L_LO")
        self.pvm = list(k.vm)
    def ids2(self):
        k = self.k
        k(f"""
        s_cmp_ge_u32 s49, 12
        s_mov_b32 s4, 3393292320
        s_mov_b32 s5, 155585890
        s_cmov_b32 s4, 899438227
        s_cmov_b32 s5, 250833482
        s_cselect_b32 s52, 12, 0
        s_sub_u32 s52, s49, s52
        s_mul_i32 s52, s52, 5
        s_lshr_b64 s[4:5], s[4:5], s52
        s_and_b32 s52, s4, 7             ; dj
        s_bfe_u32 s4, s4, 0x20003
        s_and_b32 s51, s4, 1             ; th
        s_lshl_b32 s56, s50, 2
        s_add_u32 s56, s56, s4           ; tb
        s_mul_i32 s57, s52, 3
        s_lshr_b32 s57, s57, 1
        s_mul_i32 s4, s4, {self.rot2i}
        s_add_u32 s57, s57, s4
        """)
        mod9(k, 57, 4)
        k("s_lshl_b32 s57, s57, 7")
    def band_data(self):
        wins = [(range(3,6),16), (range(6,11),16), (range(11,14),16), (range(14,19),24), (range(5,12),16), (range(12,21),24), ((3,4),16)]
        out = []
        for ti, (w, c) in enumerate(wins):
            val = 0xFFFF if ti == 6 else 0x3F80
            for l in range(64):
                r, G = l & 15, l >> 4
                e = [val if (r + c - (8*G + i)) in w else 0 for i in range(8)]
                out.append(".long " + ", ".join("0x%08x" % (e[2*i] | (e[2*i+1] << 16)) for i in range(4)))
        out += ['.fill 256, 4, 0']
        return "\n".join(out)
    def build(self):
        import g2a, g2b
        k = self.k
        self.prologue()
        g2b.loader1(self)
        self.enter("L_LO"); k.vm = list(self.pvm)
        g2b.compute1(self)
        g2b.loader2(self)
        g2a.partA(self)

        k.raw("L_end:\n    s_endpgm")
        k.raw(".fill 64, 4, 0xbf800000")
        hdr = open("gated_mix__ssm_conv_s4d__ssm_conv_s5__prompt.s.ref").read().split("; Override")[0]
        if self.stamps: hdr += f"; bst start {' '.join(self.bst)}\n"
        return (hdr + f"; @launch grid=({NWG},1,1) block=(512,1,1) lds=163840\n"
            '.amdgcn_target "amdgcn-amd-amdhsa--gfx950"\n.text\n'
            f".globl {NAME}\n.p2align 8\n.type {NAME},@function\n{NAME}:\n" + (align(k.text(), self.minrun) if self.align else k.text()) +
            '.section .rodata,"a"\n.p2align 8\nband_tab:\n' + self.band_data() + f"""
.p2align 6
.amdhsa_kernel {NAME}
  .amdhsa_next_free_vgpr 256
  .amdhsa_next_free_sgpr 102
  .amdhsa_accum_offset 256
  .amdhsa_group_segment_fixed_size 0
  .amdhsa_kernarg_size 160
  .amdhsa_user_sgpr_count 2
  .amdhsa_user_sgpr_kernarg_segment_ptr 1
  .amdhsa_system_sgpr_workgroup_id_x 1
.end_amdhsa_kernel
""")
DEF = dict(pure=0, gpf=0, awarm=0, sdel=0, csig=None, r3all=0, noaw=0, nosw=0, slp={'U': 2, 'I': 1, 'Y': 1}, xperm=0, prioE=0, sm_early=1, smpos=9, bar7=0, ampx=None, asleep=4, tmode=0, tdel=None, bpf2=[], xbl=5, xla=7, xearly=0, h8e=1, r2skip=1, dbg_nog=0, noT=0, tq0=1, wfirst=2, hout=1, wb=0, ost='', dbg_now2=0, cpd=5, cpre_pop=12, ast=1, uwait=1, xq=7, tfs=5, abar=1, a_late=1, dbg_bw=0, nob8=0, cpre=4, cfast=9, cthr2=5, prioC=0, spre=0, gpos=1, cs_span=(5, 17), e_gap=12, cmf=27, a_lat=2, first='wx', gather=0, bpf=[0x5543, 0x8876], tsleep=2, amp=0, pf_pre=0, pf_depth=1, cpf=[0x2210, 0x5543, 0x8876], cpf_pre=1, tq=3, hpre=1, hld='sc1', hst='', rot1i=0, rot1j=1, rot1x=1, fast=1, dbg_noC=0, p_span=(0.75, 0.95), r3pf=2, pdel=0, align=1, minrun=6, dbg_now=0, dbg_noswz=0, dbg_nomf=0, dbg_free=0, prioL=0, rd_span=(1, 3), nshift=18, nogather=0, stamps=False, clk="s_memrealtime", bst=[], pf=216, rot2i=0, wbatch=4, g_span=(0.02, 0.7), cthr=3, hdist=3, a_at=5, skipA=0)
def make(path, **opt):
    g = Gen()
    for a_, b_ in {**DEF, **opt}.items(): setattr(g, a_, b_)
    t = g.build()
    open(path, "w").write(t)
    return g
if __name__ == "__main__":
    g = make("k2.s")
    print("nops", g.k.nops)
```

```python
from g2 import *
import g2b
UK0 = 34816
def partA(self):
    k = self.k
    self.enter("L_A"); k.vm = list(self.pvm)
    k(f"""
    s_add_u32 s61, s60, s48          ; d
    s_and_b32 s5, s48, 1
    s_add_u32 s5, s5, 4
    s_cmp_ge_u32 s49, 24
    s_cselect_b32 s64, s5, s48
    s_add_u32 s65, s60, s64          ; second d
    s_lshl_b32 s62, s61, 8
    v_lshl_add_u32 v26, v1, 2, s62
    s_lshl_b32 s62, s61, 1
    v_mov_b32 v27, s62
    s_lshl_b32 s62, s65, 8
    v_lshl_add_u32 v24, v1, 2, s62
    s_lshl_b32 s62, s65, 1
    v_mov_b32 v25, s62
    v_mov_b32 v60, 0
    v_mov_b32 v61, 0
    global_load_dword v10, v26, s[10:11]
    global_load_dword v11, v26, s[12:13]
    global_load_ushort v14, v27, s[18:19]
    global_load_dword v12, v26, s[14:15]
    global_load_dword v13, v26, s[16:17]
    global_load_ushort v15, v27, s[20:21]
    global_load_dword v22, v60, s[46:47]
    """)
    self.st("karg")
    k(f"""
    s_lshl_b32 s4, s48, 3
    s_add_u32 s4, s4, {EXE}
    v_mov_b32 v4, s4
    ds_write_b64 v4, v[60:61]
    """)
    k("""
    global_load_dword v16, v24, s[10:11]
    global_load_dword v17, v24, s[12:13]
    global_load_ushort v20, v25, s[18:19]
    global_load_dword v18, v24, s[14:15]
    global_load_dword v19, v24, s[16:17]
    global_load_ushort v21, v25, s[20:21]
    """)
    k.wait_lg(); k("s_barrier")
    self.ids2()
    k(f"""
    s_mov_b32 s76, s46
    s_mov_b32 s77, s47
    s_mov_b32 s78, {WS_SIZE}
    s_mov_b32 s79, 0x20000
    s_mul_i32 s68, s48, {TW}
    s_add_u32 s69, s68, {UK0}
    s_add_u32 s70, s69, 4608            ; K base
    s_mul_i32 s66, s64, {AW}
    s_add_u32 s66, s66, {UK0}
    s_mov_b32 m0, s68
    s_cmp_ge_u32 s49, 24
    s_cselect_b32 s63, 1, 0
    s_cmp_lt_u32 s48, 2
    s_cselect_b32 s63, s63, 0
    v_mul_u32_u24 v59, 544, v2
    v_lshl_add_u32 v59, v3, 4, v59
    v_add_u32 v59, s68, v59
    v_and_b32 v58, 7, v2
    v_lshlrev_b32 v58, 2, v58
    s_mov_b32 s62, 0x43222100
    v_lshrrev_b32 v58, v58, s62
    v_and_b32 v58, 15, v58
    v_lshrrev_b32 v62, 3, v2
    v_mad_u32_u24 v58, v62, 5, v58
    v_mul_u32_u24 v58, 544, v58
    v_lshl_add_u32 v58, v3, 4, v58
    v_add_u32 v58, s68, v58
    v_lshrrev_b32 v5, 1, v3
    v_lshlrev_b32 v5, 8, v5
    v_lshl_add_u32 v5, v2, 4, v5
    v_and_b32 v6, 1, v3
    v_lshl_add_u32 v5, v6, 3, v5
    v_sub_u32 v5, 568, v5
    v_lshrrev_b32 v6, 1, v2
    v_and_b32 v8, 1, v2
    v_lshlrev_b32 v9, 6, v3
    v_lshl_add_u32 v9, v6, 2, v9
    v_lshlrev_b32 v23, 8, v8
    v_sub_u32 v23, v23, v9
    v_add_u32 v23, {2368 + 188 - 32}, v23
    v_lshlrev_b32 v9, 7, v3
    v_lshl_add_u32 v9, v6, 2, v9
    v_lshlrev_b32 v8, 1, v8
    v_sub_u32 v8, v8, v9
    v_add_u32 v8, {2368 + 512 + 252 + 256 - 96}, v8
    v_cmp_gt_u32 vcc, 2, v3
    v_cndmask_b32 v6, v8, v23, vcc
    """)
    def tag():
        k(f"v_readfirstlane_b32 s55, v22\ns_mul_i32 s55, s55, {LCG_A}\ns_add_u32 s55, s55, {LCG_C}\ns_max_u32 s55, s55, 1\ns_cmp_ge_u32 s49, 24\ns_cbranch_scc1 L_xp2")
        self.pub_xcc(244, "L_xp2", 0)
    if self.skipA: tag()
    if self.skipA:
        k.raw("    s_waitcnt vmcnt(0)")
        k(f"s_mul_i32 s71, s50, 14\ns_add_u32 s71, s71, s49\ns_lshl_b32 s71, s71, 5\ns_add_u32 s71, s71, s48\ns_lshl_b32 s71, s71, 2\ns_add_u32 s71, s71, {WS_AF - 18*128}")
        k("s_cmp_lt_u32 s49, 24\ns_cbranch_scc1 L_A_R2\ns_branch L_A_last")
    vFR, vFR1 = 59, 58
    pend_vm = list(k.vm)
    k.raw(".p2align 3\nL_tab:"); k.hist = []
    k(f"""
    v_mov_b32 v60, 0
    v_mov_b32 v61, 0
    v_mov_b32 v62, 0
    v_mov_b32 v63, 0
    v_lshl_add_u32 v8, v1, 4, s70
    v_lshlrev_b32 v14, 16, v14
    v_mul_f32 v14, {fl(LOG2E)}, v14
    v_lshlrev_b32 v64, 16, v10
    v_and_b32 v66, 0xffff0000, v10
    ds_write_b128 v8, v[60:63]
    ds_write_b128 v8, v[60:63] offset:1024
    ds_write_b128 v8, v[60:63] offset:2048
    ds_write_b128 v8, v[60:63] offset:3072
    v_exp_f32 v14, v14
    v_mul_f32 v64, {fl(LOG2E)}, v64
    v_mul_f32 v66, {fl(LOG2E)}, v66
    v_exp_f32 v64, v64
    v_exp_f32 v66, v66
    v_cvt_pk_bf16_f32 v14, v14, v14
    v_lshlrev_b32 v65, 16, v11
    v_and_b32 v67, 0xffff0000, v11
    v_cvt_pk_bf16_f32 v10, v64, v66
    v_and_b32 v14, 0xffff0000, v14
    v_lshlrev_b32 v64, 16, v10
    v_and_b32 v66, 0xffff0000, v10
    v_mul_f32 v64, v64, v14
    v_mul_f32 v66, v66, v14
    v_mul_f32 v65, v65, v14
    v_mul_f32 v67, v67, v14
    v_mul_f32 v64, {fl(-LOG2E)}, v64
    v_mul_f32 v66, {fl(-LOG2E)}, v66
    v_mul_f32 v65, {fl(INV2PI)}, v65
    v_mul_f32 v67, {fl(INV2PI)}, v67
    """)
    self.st("par")
    AR, AI = (64, 66), (65, 67)
    E8, E16, E1, W = (68, 70), (72, 74), (76, 78), (80, 82)
    T = list(range(84, 104, 2))
    G = [[104 + 4*c, 106 + 4*c] for c in range(9)]
    LA, LBb = (140, 142), (144, 146)
    OUT = [148, 150, 152, 154, 232, 234, 236, 238]
    LOF, HF, DT = 156, 188, [220, 224, 228]
    oc = [0]; pendw = []
    def flushw():
        for w_ in pendw: k(w_)
        pendw.clear()
    def entry(row, x0, x1, neg):
        o = OUT[oc[0] % 8]; oc[0] += 1
        n = "-" if neg else ""
        k(f"v_cvt_pk_bf16_f32 v{o}, v{x0}, {n}v{x0+1}\nv_cvt_pk_bf16_f32 v{o+1}, v{x1}, {n}v{x1+1}")
        pendw.append(f"ds_write_addtid_b32 v{o} offset:{544*row}\nds_write_addtid_b32 v{o+1} offset:{544*row+256}")
        if len(pendw) >= self.wbatch: flushw()
    cpow_multi(k, [(E8[n], E8[n]+1, AR[n], AI[n], fl(8.0), T[n], T[n]+1) for n in range(2)] +
                  [(E1[n], E1[n]+1, AR[n], AI[n], "1.0", T[2+n], T[2+n]+1) for n in range(2)] +
                  [(W[n], W[n]+1, AR[n], AI[n], fl(128.0), T[4+n], T[4+n]+1) for n in range(2)])
    cmul_multi(k, [(E16[n], E8[n], E8[n], T[n]) for n in range(2)])
    k(f"v_mov_b32 v{OUT[7]}, 0x3f80"); pendw.append(f"ds_write_addtid_b32 v{OUT[7]}\nds_write_addtid_b32 v{OUT[7]} offset:256")
    entry(1, E8[0], E8[1], True); entry(2, E16[0], E16[1], True)
    pa, pb = E8, E16
    for j in range(3, 16, 2):
        items = [(LA[n], pa[n], E16[n], T[n]) for n in range(2)]
        if j + 1 < 16: items += [(LBb[n], pb[n], E16[n], T[2+n]) for n in range(2)]
        cmul_multi(k, items)
        pa, pb = LA, LBb
        entry(j, LA[0], LA[1], True)
        if j + 1 < 16: entry(j + 1, LBb[0], LBb[1], True)
    flushw()
    for ks in range(8): k(f"ds_read_b128 {v(LOF+4*ks,4)}, v{vFR} offset:{64*ks}")
    k(f"""
    v_add_f32 v14, v14, v14
    v_lshlrev_b32 v{G[0][0]}, 16, v12
    v_lshlrev_b32 v{G[0][0]+1}, 16, v13
    v_and_b32 v{G[0][1]}, 0xffff0000, v12
    v_and_b32 v{G[0][1]+1}, 0xffff0000, v13
    """)
    pk_bc(k, G[0][0], G[0][0], 14, 0); pk_bc(k, G[0][1], G[0][1], 14, 0)
    cmul_multi(k, [(LA[n], E1[n], E1[n], T[n]) for n in range(2)] + [(G[1][n], G[0][n], E1[n], T[2+n]) for n in range(2)]
                    + [(G[8][n], G[0][n], E8[n], T[4+n]) for n in range(2)])
    entry(0, G[0][0], G[0][1], False); entry(1, G[1][0], G[1][1], False)
    for c in range(2, 8, 2):
        cmul_multi(k, [(G[c+i][n], G[c+i-2][n], LA[n], T[2*i+n]) for i in range(2) for n in range(2)])
        entry(c, G[c][0], G[c][1], False); entry(c+1, G[c+1][0], G[c+1][1], False)
    def mulW(cs, Wp=W):
        cmul_multi(k, [(G[c][n], G[c][n], Wp[n], T[(2*i+n) % 10]) for i, c in enumerate(cs) for n in range(2)])
    for cs in ([0, 1, 2], [3, 4, 5], [6, 7, 8]):
        mulW(cs)
        for c in cs:
            if c < 8: entry(8 + c, G[c][0], G[c][1], False)
    def kgen(tile, addr, cinit):
        flushw()
        for ks in range(8): k(f"ds_read_b128 {v(HF+4*ks,4)}, v{addr} offset:{64*ks}")
        return [("i", f"{M16} {v(DT[tile],4)}, {v(HF+4*ks,4)}, {v(LOF+4*ks,4)}, {cinit if ks == 0 else v(DT[tile],4)}", None) for ks in range(8)]
    k(f"v_lshlrev_b32 v15, 16, v15\nv_cmp_eq_u32 vcc, 0, v1\nv_mov_b32 v{DT[0]+1}, 0\nv_mov_b32 v{DT[0]+2}, 0\nv_cndmask_b32 v{DT[0]}, 0, v15, vcc\nv_mov_b32 v{DT[0]+3}, 0")
    def with_mf(mf, fn):
        nonlocal k
        real = k; k = Rec(); fn(); flushw(); items = k.items; k = real
        k.wait_lg()
        weave(k, mf, [(items, 1, len(mf))])
    mf = kgen(0, vFR, v(DT[0], 4))
    ev = [0, 2, 4, 6, 8]
    mulW(ev)
    with_mf(mf, lambda: [entry(i, G[c][0], G[c][1], False) for i, c in enumerate(ev)])
    mulW(ev)
    for i, c in enumerate(ev): entry(5 + i, G[c][0], G[c][1], False)
    mf = kgen(1, vFR1, "0")
    cmul_multi(k, [(E1[n], W[n], W[n], T[n]) for n in range(2)] + [(G[c][n], G[c][n], W[n], T[2+2*i+n]) for i, c in enumerate((4, 8)) for n in range(2)])
    cmul_multi(k, [(G[d_][n], G[c][n], W[n], T[2*i+n]) for i, (d_, c) in enumerate(((3, 4), (7, 8))) for n in range(2)])
    def post(j):
        d = DT[j]; off = 512 if j == 0 else 0; t = 240 + 4*j
        k(f"""
        v_cvt_pk_bf16_f32 v{t}, v{d+3}, v{d+2}
        v_cvt_pk_bf16_f32 v{t+1}, v{d+1}, v{d}
        v_cvt_pk_bf16_f32 v{t+2}, v{d+2}, v{d+1}
        ds_write_b64 v61, v[{t}:{t+1}] offset:{off}
        ds_write_b16 v61, v{t} offset:{off+1214}
        ds_write_b32 v61, v{t+2} offset:{off+1216}
        ds_write_b16_d16_hi v61, v{t+1} offset:{off+1220}
        """)
    k("v_add_u32 v61, s70, v5\nv_mov_b32 v62, s70\nv_add_u32 v63, s70, v6")
    with_mf(mf, lambda: [entry(i, G[c][0], G[c][1], False) for i, c in enumerate((4, 8, 3, 7))])
    mulW([4, 8, 3, 7], E1)
    for i, c in enumerate((4, 8, 3, 7)): entry(4 + i, G[c][0], G[c][1], False)
    for h in range(0, 8, 2):
        mulW([8, 7], E1)
        entry(8 + h, G[8][0], G[8][1], False); entry(9 + h, G[7][0], G[7][1], False)
    mf = kgen(2, vFR, "0")
    self.st("tabs")
    post(0)
    with_mf(mf, lambda: post(1))
    d = DT[1]
    k(f"""
    v_cvt_pk_bf16_f32 v72, v{d+3}, v{d+3}
    s_mov_b32 exec_lo, 0
    s_mov_b32 exec_hi, 0x80000000
    ds_write_b32 v62, v72 offset:60
    ds_write_b16 v62, v72 offset:58
    ds_write_b32 v62, v72 offset:1272
    ds_write_b16 v62, v72 offset:1276
    s_mov_b64 exec, -1
    """)
    d = DT[2]
    k(f"""
    v_cvt_pk_bf16_f32 v74, v{d}, v{d+1}
    v_cvt_pk_bf16_f32 v75, v{d+2}, v{d+3}
    s_mov_b32 exec_hi, 0
    ds_write_b32 v63, v74 offset:32
    ds_write_b32 v63, v75
    s_mov_b32 exec_hi, -1
    s_mov_b32 exec_lo, 0
    ds_write_b16 v63, v74 offset:96
    ds_write_b16_d16_hi v63, v74 offset:64
    ds_write_b16 v63, v75 offset:32
    ds_write_b16_d16_hi v63, v75
    s_mov_b32 exec_lo, -1
    """)
    k.wait_vm()
    k("s_cmp_eq_u32 s63, 0\ns_cbranch_scc1 L_tab_done\ns_cmp_eq_u32 s63, 2\ns_cbranch_scc1 L_tab_sig")
    for i in range(3): k(f"v_mov_b64 {v(10+2*i,2)}, {v(16+2*i,2)}")
    k("s_mov_b32 s63, 2\ns_add_u32 s70, s66, 4608\ns_branch L_tab")
    k.raw("L_tab_sig:")
    k(f"v_mov_b32 v60, 1\nds_write_b32 v4, v60 offset:4\ns_add_u32 s70, s69, 4608")
    k.raw("L_tab_done:")
    self.st("kgen")
    if not self.skipA: tag()
    k(f"""
    v_lshlrev_b32 v10, 3, v3
    v_sub_u32 v10, v10, v2
    v_add_u32 v10, 15, v10
    v_lshlrev_b32 v10, 1, v10
    v_and_b32 v11, 1, v2
    v_cmp_eq_u32 vcc, 0, v11
    v_mov_b32 v11, 1214
    v_lshlrev_b32 v24, 2, v3
    v_cndmask_b32 v11, 0, v11, vcc
    v_add_u32 v10, v10, v11
    v_sub_u32 v24, v24, v2
    v_add_u32 v24, {15 + 2368//4}, v24
    v_lshlrev_b32 v24, 2, v24           ; P offset
    v_lshlrev_b32 v25, 5, v2
    v_lshl_add_u32 v25, v3, 4, v25
    v_add_u32 v25, 32, v25
    v_and_b32 v26, 1, v3
    v_lshlrev_b32 v26, 9, v26
    v_lshrrev_b32 v27, 2, v2
    v_lshl_add_u32 v26, v27, 7, v26
    v_lshrrev_b32 v27, 1, v3
    v_lshl_add_u32 v26, v27, 6, v26
    v_and_b32 v27, 3, v2
    v_lshl_add_u32 v26, v27, 4, v26
    v_and_b32 v27, 3, v1
    v_lshlrev_b32 v27, 3, v27
    v_add_u32 v27, {EXE+32}, v27
    """)
    ACC, KF, K23, ZT, ZP, UR, XT, BAND = 56, 88, 156, 196, 220, 232, 12, 28
    def out_txt(B):
        q = ACC + 4*B
        return ("\n".join(f"v_cvt_pk_bf16_f32 v{q+i}, v{q+2*i}, v{q+2*i+1}" for i in range(4)),
                f"v_permlane16_swap_b32 v{q}, v{q+2}\nv_permlane16_swap_b32 v{q+1}, v{q+3}", f"buffer_store_dwordx4 {v(q,4)}, v26, s[76:79], s62 offen offset:{512*B} sc1")
    def conv(name, BS, band):
        k.raw(f".p2align 3\nL_conv{name}:"); k.hist = []; k.lg = [(set(), None)]; k.vm = []
        self.poll(f"L_pollU{name}", lambda: k("ds_read_b32 v11, v27"), lambda: k("v_cmp_ne_u32 vcc, 1, v11\ns_nop 1"))
        self.st("U" + name)
        k(f"""
        v_add_u32 v5, s70, v10
        v_add_u32 v6, 1024, v5
        v_add_u32 v8, s70, v24
        v_add_u32 v7, s69, v25
        s_lshl_b32 s62, s61, 12
        s_add_u32 s62, s62, {WS_A}
        """)
        if band:
            k(f"v_lshlrev_b32 v9, 4, v1\nv_add_u32 v9, {g2b.BND}, v9")
            for i in (0, 1, 2, 4, 3, 5, 6): k(f"ds_read_b128 {v(28+4*i,4)}, v9 offset:{1024*i}")
        k("v_mov_b32 v9, s70")
        fq = []; made = set()
        def fill(text, key=None):
            ls = text.split("\n")
            for i, l in enumerate(ls): fq.append((l, key if i == len(ls) - 1 else None))
        def pop():
            l, key = fq.pop(0); k(l)
            if key is not None: made.add(key)
        def mf(text, needs):
            for key in needs:
                while key not in made: pop()
            k(text)
            for _ in range(2):
                if fq: pop()
        k2t = {}; idx = 0
        for D_ in (2, 3, 4):
            for pr in range(2):
                k2t[(2, D_, pr)] = (K23 + 4*idx, 64*pr + 64 - 16*D_); idx += 1
        for D_ in (4, 5, 6, 7):
            k2t[(3, D_, 0)] = (K23 + 4*idx, 128 + 112 - 16*D_); idx += 1
        asked = set()
        def want(key):
            if key in asked: return
            asked.add(key)
            if key == "xt":
                fill(f"ds_read_u16 v11, v9 offset:{2368 + 256 + 4*16 + 2}")
                later.append([3, lambda: fill("v_lshl_or_b32 v11, v11, 16, v11\n" + "\n".join(f"v_and_b32 v{XT+i}, v{52+i}, v11" for i in range(4)), "xt")])
            elif key[0] == "kf":
                s_ = key[1]; a_, o = (6, 0) if s_ == 0 else (5, 16*(16 - s_))
                fill(f"ds_read2_b32 {v(KF+4*s_,2)}, v{a_} offset0:{o} offset1:{o+1}\nds_read2_b32 {v(KF+4*s_+2,2)}, v{a_} offset0:{o+2} offset1:{o+3}", key)
            else:
                r_, o = k2t[key]
                fill(f"ds_read2_b32 {v(r_,2)}, v8 offset0:{o} offset1:{o+1}\nds_read2_b32 {v(r_+2,2)}, v8 offset0:{o+2} offset1:{o+3}", key)
        later = []
        z2 = [p for p in range(6) if any(p + D_ in BS for D_ in (2, 3, 4))]
        z3 = [p for p in range(4) if any(p + D_ in BS for D_ in (4, 5, 6, 7))]
        js = [j for j in range(-7, 57) if any(0 <= 8*B - j <= 16 for B in BS)]
        gap = max(6, (len(js) - 8) // len(z2)) if name else 8
        zpos = {}
        for i, p in enumerate(z2): zpos[0 if i == 0 else (gap*i + (7 if not name else 3))] = p
        steps = []
        for i, j in enumerate(js):
            if i in zpos:
                p = zpos[i]
                if 8*p == j: steps.append((("u", j), "both", p))
                else: steps.append((("z", p), "band", p))
                steps.append((("c", p), "band2", p))
                if 8*p == j: continue
            steps.append((("u", j), "toep", None))
        xdone = set()
        def needs_of(st):
            key, kind, p = st
            out = []
            if kind in ("toep", "both"): out += [("kf", 8*B - key[1]) for B in BS if 0 <= 8*B - key[1] <= 16]
            return out
        ring = [UR + 4*i for i in range(6)] + [16, 20]
        reg = {}; nl = [0]; PD0 = self.cpd
        xsrc = {}
        for st in steps:
            key, kind, p = st
            pp = key[1] // 8 if (key[0] == "u" and key[1] % 8 == 0 and key[1] >= 0) else p if key[0] == "z" else None
            if pp is not None and pp <= 3 and pp + 4 in BS: xsrc[pp] = key
        def issue_load():
            if nl[0] >= len(steps): return
            st = steps[nl[0]]; key = st[0]; r_ = ring[nl[0] % len(ring)]; reg[key] = r_; nl[0] += 1
            off = 64*(key[1] + 7) if key[0] == "u" else 64*(8*key[1] + 7) - (16 if key[0] == "c" else 0)
            if nl[0] > PD0: fq.insert(0, (f"ds_read_b128 {v(r_,4)}, v7 offset:{off}", key))
            else: fill(f"ds_read_b128 {v(r_,4)}, v7 offset:{off}", key)
            for kk_ in needs_of(st): want(kk_)
        if xsrc and list(xsrc.values())[0][0] == "z":
            k(f"ds_read_u16 v11, v9 offset:{2368 + 256 + 4*16 + 2}"); asked.add("xt")
            pre_xt = True
        else: pre_xt = False
        for _ in range(PD0): issue_load()
        for _ in range(min(self.cpre_pop, len(fq))): pop()
        if pre_xt: fq[0:0] = [(l, None) for l in ["v_lshl_or_b32 v11, v11, 16, v11"] + [f"v_and_b32 v{XT+i}, v{52+i}, v11" for i in range(3)]] + [(f"v_and_b32 v{XT+3}, v55, v11", "xt")]
        first = set()
        def acc(B, a_, b_, needs):
            c = v(ACC+4*B, 4) if B in first else "0"
            first.add(B)
            mf(f"{M16} {v(ACC+4*B,4)}, {v(a_,4)}, {v(b_,4)}, {c}", needs)
        def tick():
            for p in later: p[0] -= 1
            while later and min(p[0] for p in later) <= 0:
                i = min(range(len(later)), key=lambda i: later[i][0]); later.pop(i)[1]()
        s2done = set(); outq = [B for B in BS if B % 2 == 0][:-1]; lastz = None; ntoep = 0
        for st in steps:
            key, kind, p = st
            issue_load()
            r_ = reg[key]
            if kind in ("band", "both"):
                assert lastz is None or lastz in s2done, (name, st)
                lastz = p
                for ph in (0, 1, 2) + ((4,) if p in z3 else ()):
                    mf(f"{M16} {v(ZT+4*ph,4)}, {v(r_,4)}, {v(BAND+4*ph,4)}, 0", [key])
            for pp, kx in xsrc.items():
                if kx == key: acc(pp + 4, XT, r_, [key, "xt"])
            if kind in ("toep", "both"):
                j = key[1]; ntoep += 1
                if ntoep == 2 and xsrc: want("xt")
                for B in BS:
                    if 0 <= 8*B - j <= 16: acc(B, KF + 4*(8*B - j), r_, [key, ("kf", 8*B - j)])
                if outq and j >= 8*(outq[0] + 1) and all(q_ in s2done for q_ in z2 if q_ + 2 <= outq[0] + 1):
                    t_ = out_txt(outq.pop(0))
                    later += [[3, lambda t_=t_: fill(t_[0])], [5, lambda t_=t_: fill(t_[1])], [6, lambda t_=t_: fill(t_[2])]]
                tick()
            if kind == "band2":
                for ph in (3,) + ((5,) if p in z3 else ()):
                    mf(f"{M16} {v(ZT+4*ph,4)}, {v(r_,4)}, {v(BAND+4*ph,4)}, 0", [key])
                def mk_cvt(p, pr):
                    return lambda: fill("\n".join(f"v_cvt_pk_bf16_f32 v{ZP+4*pr+i}, v{ZT+8*pr+i}, v{ZT+8*pr+4+i}" for i in range(4)), ("zp", p, pr))
                def tiles(p, pr):
                    seg, Ds = (2, (2, 3, 4)) if pr < 2 else (3, (4, 5, 6, 7))
                    return [(D_, (seg, D_, pr % 2)) for D_ in Ds if p + D_ in BS]
                def mk_s2(p, pr, last):
                    def f():
                        for D_, kk_ in tiles(p, pr): acc(p + D_, ZP + 4*pr, k2t[kk_][0], [("zp", p, pr), kk_])
                        if last: s2done.add(p)
                    return f
                prs = [0, 1] + ([2] if p in z3 else [])
                d0 = (9 if not name else 3) if p == z2[0] else 0
                for pr in prs:
                    later.append([max(0, d0 - 4) + pr, lambda p=p, pr=pr: [want(kk_) for _, kk_ in tiles(p, pr)]])
                    later.append([1 + pr + d0 - d0//3, mk_cvt(p, pr)])
                    later.append([(4 if not name else 3) + pr + d0, mk_s2(p, pr, pr == prs[-1])])
        while later: tick()
        while fq: pop()
        assert not outq, (name, outq)
        self.st("conv" + name)
        for t_ in out_txt(BS[-2]): k(t_)
    conv("", list(range(8)), True)
    k(f"s_mul_i32 s71, s50, 14\ns_add_u32 s71, s71, s49\ns_lshl_b32 s71, s71, 5\ns_add_u32 s71, s71, s48\ns_lshl_b32 s71, s71, 2\ns_add_u32 s71, s71, {WS_AF - 18*128}")
    k.raw("L_A_skip:")
    k("s_cmp_lt_u32 s49, 24\ns_cbranch_scc1 L_A_R2")
    save = list(k.vm)
    k(f"s_mov_b32 s61, s65\ns_mov_b32 s69, s66\ns_add_u32 s70, s66, 4608\ns_and_b32 s4, s48, 1\ns_lshl_b32 s4, s4, 3\ns_add_u32 s4, s4, {EXE+4}\nv_mov_b32 v27, s4\ns_cmp_lt_u32 s48, 2\ns_cbranch_scc0 L_convH")
    conv("L", [0, 1, 2, 3], False)
    k("s_branch L_A_last")
    conv("H", [4, 5, 6, 7], False)
    k.raw("L_A_last:")
    k("v_mov_b32 v6, s71\nv_mov_b32 v22, s55\ns_mov_b64 exec, 1")
    k.wait_vm()
    k("global_store_dword v6, v22, s[46:47] sc1\ns_mov_b64 exec, -1")
    self.st("aend")
    self.fin()
    k.raw("L_A_R2:"); k.vm = list(save)
    k(f"v_mov_b32 v6, s71\nv_mov_b32 v22, s55\nv_mov_b32 v23, s55\nv_mov_b32 v9, 1\nv_and_b32 v5, 3, v1\nv_lshlrev_b32 v5, 3, v5\nv_add_u32 v5, {EXE}, v5\nds_write_b32 v4, v9")
    g2b.p2_min(self); g2b.p2_setup(self); g2b.p2_loads(self)
    k("v_min_u32 v30, 5, v1\nv_lshl_add_u32 v30, v30, 7, s12\nglobal_load_dwordx2 v[28:29], v30, s[46:47] sc1\nv_mov_b32 v23, s14")
    k.wait_vm()
    k("v_cmp_ne_u64 s[72:73], v[28:29], v[22:23]")
    k("s_mov_b64 exec, 1\nglobal_store_dword v6, v22, s[46:47] sc1\ns_mov_b64 exec, -1")
    self.st("aend")
    k.vm = []
    k("s_nop 0"); g2b.p2_unpack(self); g2b.p2_zero(self)
    self.poll("L_pollD", lambda: k("ds_read_b32 v26, v5"), lambda: k("v_cmp_ne_u32 vcc, 1, v26\ns_nop 1"))
    k("s_branch L_P2")
```

```python
from g2 import *
ASY = EXE + 1024
BND = 90112
GXL = 157696
def compute1(g):
    k = g.k
    AX, AWr, GX = 8, 10, 12
    GP = g.gpos
    k(f"""
    s_lshl_b32 s4, s54, 7
    s_lshl_b32 s5, s48, 5
    s_add_u32 s4, s4, s5
    v_lshl_add_u32 v16, v2, 1, s4
    s_add_u32 s4, s59, {128*GP}
    s_sub_u32 s5, s4, 1152
    s_min_u32 s4, s4, s5
    v_lshl_add_u32 v17, v3, 4, s4
    global_load_ushort v20, v16, s[36:37]
    global_load_ushort v21, v16, s[24:25]
    global_load_ushort v22, v16, s[26:27]
    s_load_dword s55, s[46:47], 0
    """)
    GF, GXF, GA = 64, 72, 80
    if g.prioC: k(f"s_setprio {g.prioC}")
    for ks in range(2): k(f"global_load_dwordx4 {v(GF+4*ks,4)}, v17, s[40:41] offset:{64*ks}")
    g.st("karg")
    g.ids2()
    k(f"""
    v_lshrrev_b32 v6, 1, v2
    v_xor_b32 v6, v6, v3
    v_lshlrev_b32 v6, 4, v6
    v_lshl_add_u32 v{AX}, v2, 7, v6
    v_xor_b32 v{AX+1}, 64, v{AX}
    s_lshl_b32 s4, s48, 11
    s_add_u32 s4, s4, {WSL}
    v_add_u32 v{AWr}, s4, v{AX}
    v_xor_b32 v{AWr+1}, 64, v{AWr}
    s_lshl_b32 s4, s48, 12
    v_add_u32 v{GX}, s4, v{AX}
    v_xor_b32 v{GX+1}, 64, v{GX}
    s_mov_b32 s76, s46
    s_mov_b32 s77, s47
    s_mov_b32 s78, {WS_SIZE}
    s_mov_b32 s79, 0x20000
    s_lshl_b32 s13, s53, 11
    s_add_u32 s13, s13, {WS_XI}
    s_lshl_b32 s5, s54, 2
    s_add_u32 s5, s5, s48                ; beta = 4j + w
    s_mul_i32 s6, s53, {2*HBLK}
    s_lshl_b32 s7, s5, 12
    s_add_u32 s60, s6, s7
    s_mul_i32 s4, s53, 36
    s_add_u32 s4, s4, s5
    s_lshl_b32 s4, s4, 7
    s_add_u32 s6, s4, {WS_HF}
    v_mov_b32 v6, s6
    s_add_u32 s4, s4, {WS_G}
    v_and_b32 v106, 7, v1
    v_lshl_add_u32 v106, v106, 2, s4
    v_lshl_add_u32 v106, v3, 5, v106
    s_lshl_b32 s10, s54, 14
    s_lshl_b32 s4, s48, 8
    s_add_u32 s10, s10, s4
    s_add_u32 s10, s10, {WS_S}
    v_lshl_add_u32 v16, v2, 4, s10
    s_lshl_b32 s11, s53, 10
    v_add_u32 v17, s11, v16
    v_lshrrev_b32 v29, 1, v3
    v_mul_u32_u24 v29, {HBLK}, v29
    v_and_b32 v5, 1, v3
    v_lshl_add_u32 v29, v5, 11, v29
    v_lshl_add_u32 v29, v2, 4, v29
    v_xor_b32 v30, 64, v29
    v_cmp_eq_u32 s[64:65], 0, v5
    v_lshlrev_b32 v31, 5, v3
    v_cvt_f32_u32 v31, v31               ; 32g
    v_mul_f32 v32, 4.0, v31              ; 128g
    v_sub_f32 v33, {fl(96.0)}, v31
    s_sub_u32 s4, s53, 1
    v_sub_u32 v28, s4, v3
    v_mov_b32 v4, 0x80000000
    """)
    for q in range(4):
        k(f"v_subrev_u32 v5, {4*q}, v28\nv_cmp_le_i32 s[{24+2*q}:{25+2*q}], 0, v5\nv_lshl_add_u32 v5, v5, 10, v16\nv_cndmask_b32 v{24+q}, v4, v5, s[{24+2*q}:{25+2*q}]")
    p2_min(g); p2_setup(g)
    if g.xearly: p2_loads(g)
    EO = 120
    k(f"s_mul_i32 s55, s55, {LCG_A}\ns_add_u32 s55, s55, {LCG_C}\ns_max_u32 s55, s55, 1\ns_not_b32 s62, s55\nv_mov_b32 v{EO+2}, s55\nv_mov_b32 v{EO+3}, s62")
    k(f"v_mov_b32 v116, s55\nv_mov_b32 v117, s14\ns_lshl_b32 s4, s52, 7\ns_add_u32 s4, s4, s12\nv_mov_b32 v119, s4")
    k("v_and_b32 v118, 7, v1\nv_min_u32 v118, 5, v118\nv_and_b32 v5, 8, v1\nv_add_u32 v118, v118, v5\nv_lshl_add_u32 v118, v118, 7, s13")
    if not g.tmode: k(f"""
    v_lshrrev_b32 v52, 3, v1             ; hc
    v_and_b32 v53, 7, v1                 ; rg
    s_and_b32 s4, s48, 1
    s_lshl_b32 s5, s4, 2
    v_lshrrev_b32 v54, 1, v52
    v_add_u32 v54, s5, v54               ; chunk
    s_and_b32 s5, s48, 2
    v_lshrrev_b32 v55, 2, v53
    v_add_u32 v55, s5, v55
    v_lshlrev_b32 v56, 1, v55
    v_xor_b32 v54, v54, v56
    v_lshlrev_b32 v54, 4, v54
    v_lshl_add_u32 v54, v55, 9, v54
    v_bfe_u32 v55, v53, 1, 1
    v_lshl_add_u32 v54, v55, 7, v54
    v_and_b32 v55, 1, v52
    v_lshl_add_u32 v54, v55, 3, v54
    v_and_b32 v55, 1, v53
    v_lshl_add_u32 v54, v55, 13, v54
    v_xor_b32 v55, 16, v54
    s_lshr_b32 s5, s48, 1
    s_lshr_b32 s6, s59, 6
    s_add_u32 s6, s6, s4
    s_lshl_b32 s7, s53, 1
    s_add_u32 s7, s7, s5                 ; tb
    s_lshl_b32 s4, s6, 17
    s_lshl_b32 s5, s7, 7
    s_add_u32 s4, s4, s5
    s_add_u32 s4, s4, {WS_UT}
    v_lshl_add_u32 v58, v53, 4, s4
    v_lshl_add_u32 v58, v52, 14, v58
    s_lshl_b32 s6, s6, 5
    s_add_u32 s6, s6, s7
    s_lshl_b32 s6, s6, {g.tfs}
    s_add_u32 s6, s6, {WS_TF}
    v_mov_b32 v23, s6
    s_mov_b32 s66, 0x05040100
    s_mov_b32 s67, 0x07060302
    s_mov_b32 s72, 4096
    s_mov_b32 s73, 8192
    s_mov_b32 s74, 12288
    """)
    tr1, tr2 = Rec(), Rec()
    for i in range(8): tr1(f"ds_read_b64 {v(80+2*i,2)}, v{54 + (i & 1)} offset:{2048*(i>>1) + 256*(i&1)}")
    for e in range(4):
        for p in range(4): tr2(f"v_perm_b32 v{36+4*e+p}, v{80+4*p+2+e//2}, v{80+4*p+e//2}, s{66+e%2}")
        tr2(f"buffer_store_dwordx4 {v(36+4*e,4)}, v58, s[76:79], {'0' if e == 0 else 's%d' % (71+e)} offen sc1", tag="T")
    Z, LM, L32, L512, WH, MU, SS, WSr, WSi, MPr, MPi, EX, TB = 14, 18, 34, 36, 38, 40, 42, 44, 46, 48, 50, 52, 64
    tb = lambda j: TB + 2*(j - 1)
    TT = [112, 114, 60]
    cs = Rec()
    cs(f"""
    v_lshlrev_b32 v20, 16, v20
    v_mul_f32 v20, {fl(LOG2E)}, v20
    v_exp_f32 v20, v20
    v_lshlrev_b32 v{LM}, 16, v21
    v_lshlrev_b32 v{LM+1}, 16, v22
    v_cvt_pk_bf16_f32 v20, v20, v20
    v_mul_f32 v21, v{LM}, v{LM}
    v_and_b32 v20, 0xffff0000, v20
    v_fmac_f32 v21, v{LM+1}, v{LM+1}
    v_mul_f32 v{Z}, v20, v{LM}
    v_mul_f32 v{Z+1}, v20, v{LM+1}
    v_rcp_f32 v21, v21
    v_mul_f32 v{Z}, {fl(LOG2E)}, v{Z}
    v_mul_f32 v{Z+1}, {fl(INV2PI)}, v{Z+1}
    v_add_f32 v21, v21, v21
    v_mul_f32 v{LM}, v{LM}, v21
    v_mul_f32 v{LM+1}, -v{LM+1}, v21
    """)
    cpow_multi(cs, [(d0, d1, Z, Z+1, ex, TT[i], TT[i]+1) for i, (d0, d1, ex) in enumerate(((tb(1), tb(1)+1, "1.0"), (WSr+1, WSi+1, "v33"), (L512, L512+1, fl(512.0))))])
    cpow_multi(cs, [(d0, d1, Z, Z+1, ex, TT[i], TT[i]+1) for i, (d0, d1, ex) in enumerate(((WH, WH+1, "v32"), (MU, MU+1, "v31"), (tb(8), tb(8)+1, fl(8.0))))])
    cs(f"v_add_f32 v{TT[0]}, -1.0, v{tb(1)}")
    smul(cs, SS, SS+1, TT[0], tb(1)+1, LM, LM+1)
    sm = lambda d, x, y: smul(cs, d, d+1, x, x+1, y, y+1)
    for j, (x, y) in {2: (1, 1), 16: (8, 8), 3: (2, 1), 4: (2, 2), 9: (8, 1), 10: (8, 2), 5: (4, 1), 6: (4, 2), 7: (4, 3), 11: (8, 3), 12: (8, 4), 13: (8, 5), 14: (8, 6), 15: (8, 7)}.items():
        sm(tb(j), tb(x), tb(y))
    sm(L32, tb(16), tb(16))
    smul(cs, WSr, WSi, tb(16), tb(16)+1, WSr+1, WSi+1)
    smul(cs, MPr, MPi, MU, MU+1, SS, SS+1)
    smul(cs, MPr+1, MPi+1, tb(16), tb(16)+1, MPr, MPi)
    cs(f"v_cndmask_b32 v{MU}, v{L32}, 1.0, s[64:65]\nv_cndmask_b32 v{MU+1}, v{L32+1}, 0, s[64:65]")
    for q in range(4): cs(f"v_cndmask_b32 v{EX+2*q}, 0, v{EO+2}, s[{24+2*q}:{25+2*q}]\nv_cndmask_b32 v{EX+2*q+1}, 0, v{EO+3}, s[{24+2*q}:{25+2*q}]")
    g.st("setup")
    R, I, XF, WF = 128, 160, 208, [240, 192]
    LA = g.xla
    def xread(n):
        q, m = divmod(n, 8); c, ks = divmod(q, 2)
        return f"ds_read_b128 {v(XF+4*m,4)}, v{AX+ks} offset:{16384*(c%3)+2048*m}"
    def wread(q, comp):
        c, ks = divmod(q, 2)
        return f"ds_read_b128 {v(WF[q%2]+4*comp,4)}, v{AWr+ks} offset:{16384*(c%3)+8192*comp}"
    if g.csig: k(f"s_lshl_b32 s4, s48, 2\ns_add_u32 s4, s4, {EXE}\nv_mov_b32 v7, s4\nv_mov_b32 v5, 0\nds_write_b32 v7, v5")
    k.wait_lg(); k("s_barrier"); g.st("c0")
    k(wread(0, 0)); k(xread(0)); k(wread(0, 1))
    for n in range(1, LA): k(xread(n))
    fq = []
    sched = {}; barp = {}; BL = g.xbl
    for q in range(1, 18):
        p0 = 8*q - (BL if q % 2 == 0 else 5)
        sched.setdefault(p0, []).append(wread(q, 0)); sched.setdefault(p0 + 1, []).append(wread(q, 1))
        if q % 2 == 0: barp[p0] = q // 2
    for n in range(LA, 144):
        sched.setdefault(max(n - LA, n - n % 16 - BL + (n % 16 + 1)//2), []).append(xread(n))
    q0, q1 = g.cs_span
    per = -(-len(cs.items) // (q1 - q0))
    for q in range(18):
        g.st(f"q{q}")
        if q == 0 and not g.tmode: fq += tr1.items + tr2.items
        if q0 <= q < q1: fq += cs.items[(q-q0)*per:(q-q0+1)*per]
        if q == 2*GP + 2:
            gs = Rec()
            for n_ in (4, 2, 1):
                gs(f"v_and_b32 v107, {n_}, v1\nv_cmp_ne_u32 vcc, 0, v107")
                for i in range(n_): gs(f"v_cndmask_b32 v{108 if n_ == 1 else GA+i}, v{GA+i}, v{GA+i+n_}, vcc")
            fq += [("nop", None, None)]*6 + gs.items
        if q == g.tq and not g.tmode:
            fq.insert(0, ("wv", "T", None)); fq.insert(1, ("g", ["s_mov_b64 exec, 1", f"global_store_dword v23, v{EO+2}, s[46:47] sc1", "s_mov_b64 exec, -1"], None))
        if q == g.xq:
            fq.insert(0, ("raw", "    s_cmp_lg_u32 s48, 0\n    s_cbranch_scc1 L_xp1\n    s_mov_b64 exec, 1\n    global_store_dwordx2 v119, v[116:117], s[46:47] sc1\n    s_mov_b64 exec, -1\nL_xp1:", None))
        for m in range(8):
            pos = 8*q + m
            if pos in barp:
                assert not any(it[0] == "i" and it[1].startswith("ds_read") for it in fq)
                k.wait_lg(); k("s_barrier"); g.st(f"c{barp[pos]}")
            rl_ = list(sched.get(pos, []))
            if q // 2 == GP and m in (0, 1): rl_.append(f"ds_read_b128 {v(GXF+4*m,4)}, v{GX+q%2} offset:{16384*(GP%3)+2048*m}")
            for comp, A_ in enumerate((R, I)):
                k(f"{M16} {v(A_+4*m,4)}, {v(XF+4*m,4)}, {v(WF[q%2]+4*comp,4)}, {'0' if q == 0 else v(A_+4*m,4)}")
                mine = rl_[:(len(rl_) + 1)//2] if comp == 0 else rl_[(len(rl_) + 1)//2:]
                for r_ in mine: k(r_)
                for _ in range((1 if comp == 1 else 2) - len(mine) + (1 if len(fq) > 2*(16 - 2*m) else 0)):
                    if fq: play(k, fq.pop(0))
        if q // 2 == GP:
            for mm in range(2): k(f"{M16} {v(GA+4*mm,4)}, {v(GXF+4*mm,4)}, {v(GF+4*(q%2),4)}, {'0' if q % 2 == 0 else v(GA+4*mm,4)}")
        if q == g.tq: g.st("Tst")
    while fq: play(k, fq.pop(0))
    g.st("gemm1")
    for st in range(1, 16):
        pk_bc(k, R+2*st, R+2*st-2, tb(1), 0, R+2*st)
        pk_bc(k, I+2*st, I+2*st-2, tb(1), 0, I+2*st)
        pk_bc(k, R+2*st, I+2*st-2, tb(1), 1, R+2*st, neg=True)
        pk_bc(k, I+2*st, R+2*st-2, tb(1), 1, I+2*st)
    T = 208
    k(f"v_pk_mul_f32 {v(T,2)}, {v(R+30,2)}, {v(WSr,2)}\nv_pk_mul_f32 {v(T+2,2)}, {v(I+30,2)}, {v(WSr,2)}")
    k(f"v_pk_fma_f32 {v(T,2)}, {v(I+30,2)}, {v(WSi,2)}, {v(T,2)} neg_lo:[1,0,0] neg_hi:[1,0,0]\nv_pk_fma_f32 {v(T+2,2)}, {v(R+30,2)}, {v(WSi,2)}, {v(T+2,2)}")
    k(f"v_add_f32 v{T}, v{T}, v{T+1}\nv_add_f32 v{T+1}, v{T+2}, v{T+3}")
    def allred(x, o):
        k(f"v_permlane32_swap_b32 v{x}, v{x+1}\nv_add_f32 v{x+2}, v{x}, v{x+1}\nv_add_f32 v{x+3}, v{x}, v{x+1}\nv_permlane16_swap_b32 v{x+2}, v{x+3}")
        k(f"v_add_f32 v{o}, v{x+2}, v{x+3}\nv_add_f32 v{o+1}, v{x+2}, v{x+3}\nv_permlane32_swap_b32 v{o}, v{o+1}")
    allred(T, EO)
    k.vm = []
    k(f"s_mov_b64 exec, 0xffff\nglobal_store_dwordx4 v17, {v(EO,4)}, s[46:47] sc1\ns_mov_b64 exec, -1")
    g.st("pub")
    def smalls():
        k("global_load_dwordx2 v[228:229], v118, s[46:47] sc1")
        k("s_mov_b32 exec_lo, 0xff00ff\ns_mov_b32 exec_hi, 0xff00ff\nglobal_store_dword v106, v108, s[46:47] sc1\ns_mov_b64 exec, -1")
    if g.sm_early == 3:
        k("s_mov_b32 exec_lo, 0xff00ff\ns_mov_b32 exec_hi, 0xff00ff\nglobal_store_dword v106, v108, s[46:47] sc1\ns_mov_b64 exec, -1")
        if not g.xearly: p2_loads(g)
    elif g.sm_early: smalls()
    if g.sm_early == 2 and not g.xearly: p2_loads(g)
    for st in range(16):
        a, b = T + 4*(st % 2), T + 4*(st % 2) + 2
        pk_bc(k, a, R+2*st, SS, 0); pk_bc(k, b, R+2*st, SS, 1)
        pk_bc(k, R+2*st, I+2*st, SS, 1, a, neg=True); pk_bc(k, I+2*st, I+2*st, SS, 0, b)
    CPr, CPi = WSr, WSi
    F, Q, Y, U_ = T, T + 2, T + 4, T + 6
    smul(k, F, F+1, tb(16), tb(16)+1, R+30, I+30, R+31, I+31)
    k(f"v_mov_b64 {v(Q,2)}, 0\nv_mov_b64 {v(Y,2)}, {v(F,2)}\nv_mov_b64 {v(U_,2)}, 0\nv_permlane16_swap_b32 v{Q}, v{Y}\nv_permlane16_swap_b32 v{Q+1}, v{Y+1}")
    cmac(k, [(F, Q, L32, F)])
    k(f"v_mov_b64 {v(Y,2)}, {v(F,2)}\nv_permlane16_swap_b32 v{F}, v{Y}\nv_permlane16_swap_b32 v{F+1}, v{Y+1}\nv_permlane32_swap_b32 v{U_}, v{Y}\nv_permlane32_swap_b32 v{U_+1}, v{Y+1}")
    smul(k, CPr, CPi, MU, MU+1, U_, U_+1, Q, Q+1)
    smul(k, CPr+1, CPi+1, tb(16), tb(16)+1, CPr, CPi, R+30, I+30)
    g.st("prep")
    PD = 232
    def issS():
        for q in range(4): k(f"buffer_load_dwordx4 {v(PD+4*q,4)}, v{24+q}, s[76:79], 0 offen sc1")
    def chkS():
        for q in range(4): k(f"v_cmp_ne_u64 s[{24+2*q}:{25+2*q}], {v(PD+4*q+2,2)}, {v(EX+2*q,2)}")
        k("s_or_b64 s[24:25], s[24:25], s[26:27]\ns_or_b64 vcc, s[28:29], s[30:31]\ns_or_b64 vcc, vcc, s[24:25]")
    if g.csig:
        vms = list(k.vm); k.vm = []
        g.poll("L_pollC", lambda: k("ds_read_b32 v5, v7"), lambda: k("v_cmp_ne_u32 vcc, 1, v5\ns_nop 0"))
        k.vm = vms; g.st("Csig")
    if g.sdel: k(f"s_sleep {g.sdel}")
    if g.sm_early == 3: k("global_load_dwordx2 v[228:229], v118, s[46:47] sc1")
    issS()
    if not g.sm_early: smalls()
    if not g.xearly and g.sm_early < 2: p2_loads(g)
    chkS(); k("s_cbranch_vccz L_pollS_done" if not g.nosw else "s_branch L_pollS_done")
    vms = list(k.vm)
    g.poll("L_pollS", issS, chkS)
    k.vm = vms
    g.st("Sarr")
    for q in (2, 1, 0): cmac(k, [(PD+4*q, PD+4*q+4, L512, PD+4*q)])
    cmul_multi(k, [(T, PD, WH, T+2)])
    HH = T + 4
    allred(T, HH)
    k("v_cmp_ne_u64 s[72:73], v[228:229], v[116:117]")
    pk_bc(k, CPr, MPr, HH, 0, CPr); pk_bc(k, CPi, MPi, HH, 0, CPi)
    pk_bc(k, CPr, MPi, HH, 1, CPr, neg=True); pk_bc(k, CPi, MPr, HH, 1, CPi)
    k("s_cmp_lg_u64 s[72:73], 0")
    HO = 216
    def tail(sc):
        for comp in range(2):
            A_, c0, c1 = (R, CPr, CPi) if comp == 0 else (I, CPi, CPr)
            n = "-" if comp else ""
            for hh in range(2):
                for st in range(8*hh, 8*hh + 8): pk_bc(k, A_+2*st, c0, tb(st+1), 0, A_+2*st)
                for st in range(8*hh, 8*hh + 8): pk_bc(k, A_+2*st, c1, tb(st+1), 1, A_+2*st, neg=(comp == 0))
                for half in range(2):
                    o = HO + 16*comp + 8*hh + 4*half
                    for i in range(4): k(f"v_cvt_pk_bf16_f32 v{o+i}, {n}v{A_+16*hh+4*i+half}, {n}v{A_+16*hh+4*i+2+half}")
                    k(f"buffer_store_dwordx4 {v(o,4)}, v{29+hh}, s[68:71], s60 offen offset:{1024*comp+256*(2*half+hh)} {sc}")
        g.st("hst")
        if not g.xearly: k.raw("    s_waitcnt vmcnt(8)"); k.vm = k.vm[-8:]
        p2_unpack(g)
        k("s_mov_b64 exec, 1")
        k.raw("    s_waitcnt vmcnt(0)"); k.vm = []
        k(f"global_store_dword v6, v{EO+2}, s[46:47] {sc}\ns_mov_b64 exec, -1")
        g.st("flag")
        if g.gpf: k("global_load_dword v28, v104, s[46:47] sc1\nglobal_load_dword v29, v109, s[46:47] sc1")
        p2_zero(g)
    if g.fast:
        k("s_cbranch_scc1 L_slow")
        g.slow_tail = lambda: tail("sc1")
        tail(g.hst)
    else: tail("sc1")
    k.raw("L_tail_done:"); k.vm = []

XR, DBR, DBF = [200, 202, 204, 206, 124, 126], [102, 110, 98], 64
XB = list(range(76, 96)) + list(range(20, 24))
AR = 32
def p2_loads(g):
    k = g.k
    for jj in range(3):
        k(f"global_load_dwordx2 {v(XR[jj],2)}, v100, s[8:9] offset:{64*jj}\nglobal_load_dwordx2 {v(XR[3+jj],2)}, v101, s[8:9] offset:{64*jj}\nglobal_load_dwordx2 {v(DBR[jj],2)}, v99, s[38:39] offset:{64*jj}")
    k("v_lshlrev_b32 v100, 1, v100\nv_lshlrev_b32 v101, 1, v101")
def p2_unpack(g):
    k = g.k
    for jj in range(3):
        for h in range(2): k(f"v_lshlrev_b32 v{DBF+4*jj+2*h}, 16, v{DBR[jj]+h}\nv_and_b32 v{DBF+4*jj+2*h+1}, 0xffff0000, v{DBR[jj]+h}")
    for q in range(12): k(f"v_lshlrev_b32 v{XB[2*q]}, 16, v{XR[q//2]+q%2}\nv_and_b32 v{XB[2*q+1]}, 0xffff0000, v{XR[q//2]+q%2}")
    for q in range(12): k(f"v_pk_mul_f32 {v(XB[2*q],2)}, {v(XB[2*q],2)}, {v(DBF+2*(q%6),2)}")
def p2_zero(g):
    for q in range(12): g.k(f"v_mov_b64 {v(AR+2*q,2)}, 0")
def p2_min(g):
    k = g.k
    k(f"""
    s_cmp_lt_u32 s48, 2
    s_cselect_b32 s16, s32, s34
    s_cselect_b32 s17, s33, s35
    s_mov_b32 s18, 663552
    s_mov_b32 s19, 0x20000
    s_mov_b32 s68, s{42 if g.hout else 46}
    s_mov_b32 s69, s{43 if g.hout else 47}
    s_mov_b32 s70, {4718592 if g.hout else WS_SIZE}
    s_mov_b32 s71, 0x20000
    s_getreg_b32 s14, hwreg(HW_REG_XCC_ID, 0, 4)
    s_lshl_b32 s12, s56, 10
    s_add_u32 s12, s12, {WS_XI}
    s_lshl_b32 s23, s52, 7
    s_add_u32 s23, s23, s12
    s_lshl_b32 s4, s48, 2
    s_add_u32 s23, s23, s4
    s_mov_b32 s{UO[0]}, s57
    s_lshr_b32 s4, s56, 1
    s_mul_i32 s4, s4, {36*128}
    s_add_u32 s4, s4, {WS_HF}
    v_min_u32 v62, 35, v1
    v_lshl_add_u32 v62, v62, 7, s4
    s_mul_i32 s4, s56, {HBLK}
    s_lshl_b32 s15, s48, 12
    s_add_u32 s4, s4, s15
    s_add_u32 s4, s4, {0 if g.hout else WS_H}
    v_lshl_add_u32 v63, v1, 4, s4
    """)
    offsets(k, UO)
def p2_setup(g):
    k = g.k
    k(f"""
    s_lshl_b32 s4, s56, 6
    v_lshrrev_b32 v96, 3, v0             ; tl
    v_add_u32 v97, s4, v96
    v_and_b32 v98, 7, v0                 ; dl
    s_mul_i32 s5, s52, 192
    v_lshl_add_u32 v99, v98, 3, s5
    v_mul_u32_u24 v100, 1152, v97
    v_add_u32 v100, v100, v99
    v_add_u32 v101, {32*1152}, v100
    """)
    k(f"""
    s_lshr_b32 s4, s56, 1
    s_mul_i32 s4, s4, {9*512}
    s_lshl_b32 s5, s51, 6
    s_add_u32 s4, s4, s5
    s_lshr_b32 s5, s48, 1
    s_lshl_b32 s5, s5, 2
    s_add_u32 s4, s4, s5
    s_and_b32 s5, s48, 1
    s_lshl_b32 s5, s5, 8
    s_add_u32 s4, s4, s5
    s_add_u32 s4, s4, {WS_G}
    v_lshrrev_b32 v102, 3, v1
    v_and_b32 v109, 3, v102
    v_lshl_add_u32 v109, v109, 3, s4
    v_lshrrev_b32 v104, 5, v1
    v_lshl_add_u32 v109, v104, 7, v109
    v_lshl_add_u32 v104, v98, 9, v109
    v_add_u32 v109, 4096, v109
    s_mul_i32 s4, s52, 43
    s_lshr_b32 s4, s4, 5
    s_mul_i32 s4, s4, {14*128}
    s_add_u32 s4, s4, {WS_AF}
    v_min_u32 v105, 27, v1
    v_lshl_add_u32 v105, v105, 7, s4
    s_mul_i32 s4, s52, 96
    s_mul_i32 s5, s48, 24
    s_add_u32 s4, s4, s5
    s_lshl_b32 s4, s4, 12
    s_lshl_b32 s5, s56, 7
    s_add_u32 s4, s4, s5
    s_add_u32 s4, s4, {WS_A}
    v_lshl_add_u32 v253, v102, 12, s4
    v_lshrrev_b32 v254, 5, v1
    s_mul_i32 s5, s48, 6
    v_add_u32 v254, s5, v254
    """)
    for n in range(3): k(f"v_add_u32 v255, {2*n}, v254\nv_xor_b32 v255, v255, v1\nv_and_b32 v255, 7, v255\nv_lshl_add_u32 v{248+n}, v255, 4, v253")
    k(f"""
    s_mul_i32 s4, s52, 96
    s_and_b32 s5, s48, 1
    s_mul_i32 s5, s5, 48
    s_add_u32 s4, s4, s5
    v_add_u32 v253, s4, v102
    v_mul_u32_u24 v253, 1152, v253
    v_xor_b32 v254, v98, v3
    v_lshl_add_u32 v253, v254, 4, v253   ; vC0
    v_xor_b32 v254, 64, v253
    v_add_u32 v254, 8192, v254           ; vC1
    s_mul_i32 s22, s48, 12288
    s_add_u32 s22, s22, {CST}
    s_mul_i32 s21, s48, 3072
    s_and_b32 s4, s48, 1
    s_lshl_b32 s4, s4, 2
    s_lshr_b32 s5, s48, 1
    s_add_u32 s4, s4, s5
    v_xor_b32 v251, s4, v98
    v_lshlrev_b32 v251, 4, v251
    v_lshl_add_u32 v251, v98, 9, v251
    v_lshl_add_u32 v251, v102, 1, v251
    v_add_u32 v251, {AST}, v251
    v_xor_b32 v252, 32, v251
    v_mul_u32_u24 v96, 400, v96
    v_lshl_add_u32 v96, v98, 4, v96
    v_add_u32 v96, {IMG}, v96
    """)

def loader2(g):
    k = g.k
    k.raw("L_P2:"); k.vm = []; k.lg = []
    GG, OM = 58, 60
    g.poll("L_pollH", lambda: k("global_load_dword v97, v62, s[46:47] sc1"), lambda: k("v_cmp_ne_u32 vcc, s55, v97\ns_nop 1"))
    g.st("Harr")
    def h_dma(u):
        k(f"s_add_u32 m0, s15, {16384*(u%6)}\ns_lshl_b32 s63, s{UO[u]}, 7")
        for n in range(4): k(f"buffer_load_dwordx4 v63, s[68:71], s63 offen offset:{1024*n} {g.hld} lds", tag=("h", u))
    def c_blk(n):
        k(f"s_add_u32 m0, s22, {2048*(n%6)}\ns_add_u32 s20, s{UO[n//3]}, {18432*(n%3)}\nbuffer_load_dwordx4 v253, s[16:19], s20 offen lds\nbuffer_load_dwordx4 v254, s[16:19], s20 offen offset:1024 lds", tag="C")
    def bar(u, *tags):
        for t in tags: k.wait_vm(t)
        k("s_barrier"); g.st(f"u{u}")
    cb = list(range(g.cmf, 27))
    h_dma(0); h_dma(1)
    k(f"v_lshlrev_b32 v26, 2, v2\nv_add_u32 v26, {ASY}, v26\nv_mov_b32 v28, 0\nds_write_b32 v26, v28\ns_lshl_b32 s4, s48, 2\ns_add_u32 s4, s4, {ASY}\nv_mov_b32 v25, s4\nv_and_b32 v26, 3, v1\nv_lshlrev_b32 v26, 2, v26\nv_add_u32 v26, {ASY}, v26"); k.wait_lg()
    bar(0, ("h", 0)); h_dma(2)
    bar(1, ("h", 1)); h_dma(3)
    bar(2, ("h", 2)); h_dma(4); h_dma(5)
    bar(3, ("h", 4))
    assert not cb or g.bar7
    chk = lambda: k("v_xor_b32 v68, s55, v68\nv_xor_b32 v69, s55, v69\nv_xor_b32 v70, s55, v70\nv_xor_b32 v71, s55, v71\nv_or3_b32 v68, v68, v69, v70\nv_or_b32 v68, v68, v71\nv_cmp_ne_u32 vcc, 0, v68\ns_nop 0")
    def smalls():
        k("global_load_dwordx4 v[68:71], v105, s[46:47] sc1", tag="af")
        for ii in range(2): k(f"global_load_dword v{GG+ii}, v104, s[46:47] offset:{32*ii} sc1\nglobal_load_dword v{56+ii}, v109, s[46:47] offset:{32*ii} sc1")
    for u in (6, 7, 8):
        if g.smpos == u: smalls()
        h_dma(u)
    if g.smpos == 9 and not cb: smalls()
    k("v_mov_b32 v64, s55\nv_mov_b32 v31, s23\nv_min_u32 v30, 23, v1\nv_lshrrev_b32 v66, 2, v30\nv_and_b32 v30, 3, v30\nv_lshlrev_b32 v30, 2, v30\nv_lshl_add_u32 v30, v66, 7, v30\nv_add_u32 v30, s12, v30")
    bar(5, ("h", 6 if g.bar7 else 5))
    def a_fetch(lab):
        k.wait_vm("af"); chk(); k(f"s_cbranch_vccz {lab}_done" if not g.noaw else f"s_branch {lab}_done")
        save = list(k.vm)
        g.poll(lab, lambda: k(f"s_sleep {g.asleep}\nglobal_load_dwordx4 v[68:71], v105, s[46:47] sc1"), chk)
        k.vm = save
        g.st("Aarr")
        k(f"s_add_u32 m0, s21, {AST}")
        for n in range(3): k(f"s_mov_b32 s4, {32768*n - 1024*n}\nbuffer_load_dwordx4 v{248+n}, s[76:79], s4 offen offset:{1024*n} sc1 lds", tag="a")
    for n in cb: c_blk(n)
    if g.smpos == 9 and cb: smalls()
    if not g.a_late: a_fetch("L_pollA")
    bar(7 if g.bar7 else 6, ("h", 8), "C")
    if g.prioE: k(f"s_setprio {g.prioE}")
    if g.a_late: a_fetch("L_pollA")
    k("s_cmp_lg_u64 s[72:73], 0\ns_mov_b64 exec, 1\ns_cbranch_scc1 L_dfs\nglobal_store_dword v31, v64, s[46:47] offset:16\ns_branch L_dfd"); k.vm.pop()
    k.raw("L_dfs:"); k("global_store_dword v31, v64, s[46:47] offset:16 sc1"); k.raw("L_dfd:"); k("s_mov_b64 exec, -1")
    for ctl in ("quad_perm:[1,0,3,2]", "quad_perm:[2,3,0,1]", "row_half_mirror"):
        for ii in range(2): k(f"v_add_f32_dpp v{GG+ii}, v{GG+ii}, v{GG+ii} {ctl} row_mask:0xf bank_mask:0xf")
    for ii in range(2): k(f"v_add_f32 v{GG+ii}, v{GG+ii}, v{56+ii}\nv_mul_f32 v{GG+ii}, {fl(-LOG2E)}, v{GG+ii}")
    for ii in range(2): k(f"v_exp_f32 v{GG+ii}, v{GG+ii}")
    for ii in range(2): k(f"v_add_f32 v{GG+ii}, 1.0, v{GG+ii}")
    for ii in range(2): k(f"v_rcp_f32 v{GG+ii}, v{GG+ii}")
    for ii in range(2): k(f"v_sub_f32 v{OM+ii}, 1.0, v{GG+ii}")
    for q in range(24): k(f"v_mul_f32 v{XB[q]}, v{XB[q]}, v{OM+q//12}")
    k("global_load_dword v66, v30, s[46:47] offset:16 sc1")
    k.wait_vm("a")
    k("ds_write_b32 v25, v64")
    vms = list(k.vm); k.vm = []
    g.poll("L_pollY", lambda: k("ds_read_b32 v27, v26"), lambda: k("v_cmp_ne_u32 vcc, s55, v27\ns_nop 0"))
    k.vm = vms
    g.st("u8")
    for q in range(24): k(f"ds_read_u16_d16_hi v{AR+q}, v{251+q//12} offset:{128*(q%4)+4096*((q%12)//4)}")
    for q in range(24): k(f"v_fmac_f32 v{XB[q]}, v{AR+q}, v{GG+q//12}")
    k("v_cmp_ne_u32 vcc, s55, v66\ns_nop 0\ns_cbranch_vccz L_pollF_done")
    g.poll("L_pollF", lambda: k("global_load_dword v66, v30, s[46:47] offset:16 sc1"), lambda: k("v_cmp_ne_u32 vcc, s55, v66\ns_nop 0"))
    g.st("Farr")
    E0 = 128
    for ii in range(2):
        vms = list(k.vm); k.vm = []
        g.poll(f"L_pollI{ii}", lambda: k(f"ds_read_b32 v27, v26 offset:{16+16*ii}"), lambda: k("v_cmp_ne_u32 vcc, 1, v27\ns_nop 0"))
        k.vm = vms; g.st(f"img{ii}")
        for jj in range(3):
            q = 3*ii + jj
            k(f"ds_read_b128 {v(E0+8*q,4)}, v96 offset:{12800*ii+128*jj}\nds_read_b128 {v(E0+8*q+4,4)}, v96 offset:{25600+12800*ii+128*jj}")
        for jj in range(3):
            q = 3*ii + jj
            if ii == 0:
                for e_ in range(4): k(f"v_add_f32 v{E0+8*q+e_}, v{E0+8*q+e_}, v{E0+8*q+4+e_}")
                for e_ in range(4): k(f"v_fma_f32 v{E0+8*q+e_}, v{E0+8*q+e_}, v{OM}, v{XB[4*jj+e_]}")
            else:
                for h in range(2): k(f"v_pk_add_f32 {v(E0+8*q+2*h,2)}, {v(E0+8*q+2*h,2)}, {v(E0+8*q+4+2*h,2)}")
                for h in range(2): pk_bc(k, E0+8*q+2*h, E0+8*q+2*h, OM, ii, XB[12+4*jj+2*h])
            k(f"global_store_dwordx4 v{100+ii}, {v(E0+8*q,4)}, s[42:43] offset:{128*jj} {g.ost}")
    g.st("stiss")
    k(f"s_cmp_lg_u32 s56, {99 if g.dbg_now2 else 31}\ns_cbranch_scc1 L_fin2\ns_or_b32 s4, s52, s48\ns_cbranch_scc1 L_fin2")
    k(f"v_min_u32 v8, 55, v1\nv_lshlrev_b32 v8, 8, v8\nv_add_u32 v8, {WS_AF}, v8")
    def iss():
        for i in range(2): k(f"global_load_dwordx4 {v(64+4*i,4)}, v8, s[46:47] offset:{128*i} sc1")
    def chk():
        for i in range(8): k(f"v_xor_b32 v{64+i}, s55, v{64+i}")
        for i in range(1, 8): k(f"v_or_b32 v64, v64, v{64+i}")
        k("v_cmp_ne_u32 vcc, 0, v64\ns_nop 1")
    g.poll("L_pollW", iss, chk)
    k("v_mov_b32 v6, 0\nv_mov_b32 v7, s55\ns_mov_b64 exec, 1\nglobal_store_dword v6, v7, s[46:47]\ns_mov_b64 exec, -1")
    k.out.append("L_fin2:")
    g.fin()
    if g.fast:
        g.enter("L_slow", karg=False); k("s_nop 1"); g.slow_tail(); k("s_branch L_tail_done")

def loader1(g):
    k = g.k
    k(f"""
    s_sub_u32 s62, s48, 4                ; lw
    v_lshrrev_b32 v4, 3, v1              ; rl
    v_and_b32 v5, 7, v1
    {'v_xor_b32 v5, v5, v3' if not g.dbg_noswz else ''}
    v_lshlrev_b32 v5, 4, v5
    v_mul_u32_u24 v6, 1152, v4
    v_add_u32 v6, v6, v5
    s_mov_b32 s66, 2359296
    s_mov_b32 s67, 0x20000
    s_mov_b32 s70, 663552
    s_mov_b32 s71, 0x20000
    v_lshrrev_b32 v8, 2, v4
    v_lshlrev_b32 v8, 5, v8
    v_and_b32 v9, 1, v4
    v_lshl_add_u32 v8, v9, 4, v8
    v_bfe_u32 v9, v4, 1, 1
    v_add_u32 v8, v8, v9
    s_lshl_b32 s4, s53, 7
    s_lshl_b32 s5, s62, 2
    s_add_u32 s4, s4, s5
    v_add_u32 v8, s4, v8
    v_mul_u32_u24 v8, 1152, v8
    v_add_u32 v8, v8, v5                 ; x n=0
    v_xor_b32 v9, 64, v8
    v_add_u32 v10, {2*1152-2048}, v8
    v_add_u32 v11, {66*1152-3072}, v9
    v_add_u32 v9, {64*1152-1024}, v9
    s_lshl_b32 s4, s54, 6
    s_and_b32 s5, s62, 1
    s_lshl_b32 s5, s5, 5
    s_add_u32 s4, s4, s5
    s_mul_i32 s4, s4, 1152
    v_add_u32 v12, s4, v6
    v_xor_b32 v13, 64, v12
    v_add_u32 v14, {2*8192}, v12
    v_add_u32 v15, {3*8192}, v13
    v_add_u32 v13, 8192, v13
    s_lshl_b32 s6, s62, 12
    s_cmp_lt_u32 s62, 2
    s_mov_b32 s64, s8
    s_mov_b32 s65, s9
    s_cselect_b32 s68, s28, s30
    s_cselect_b32 s69, s29, s31
    s_mov_b32 s10, s59
    """)
    CO = list(range(10, 19))
    def dma(c, parts="wx"):
        if "w" in parts:
            k(f"s_add_u32 m0, s6, {WSL + 16384*(c%3)}")
            for n in range(4): k(f"buffer_load_dwordx4 v{12+n}, s[68:71], s{CO[c]} offen offset:{1024*n} lds", tag=("c", c))
        if "x" in parts:
            k(f"s_add_u32 m0, s6, {XS + 16384*(c%3)}")
            for n in range(4): k(f"buffer_load_dwordx4 v{8+n}, s[64:67], s{CO[c]} offen offset:{1024*n} lds", tag=("c", c))
    def csetup():
        g.ids2()
        k(f"""
        s_mov_b32 s74, {0 if g.dbg_noC else 663552}
        s_mov_b32 s75, 0x20000
        s_mul_i32 s61, s62, 12288
        s_add_u32 s61, s61, {CST}
        s_cmp_lt_u32 s62, 2
        s_cselect_b32 s72, s32, s34
        s_cselect_b32 s73, s33, s35
        s_mov_b32 s{UO[0]}, s57
        s_mul_i32 s4, s52, 96
        s_and_b32 s5, s62, 1
        s_mul_i32 s5, s5, 48
        s_add_u32 s4, s4, s5
        s_mul_i32 s4, s4, 1152
        v_add_u32 v6, s4, v6                 ; vC0
        v_xor_b32 v7, 64, v6
        v_add_u32 v7, 8192, v7               ; vC1
        v_lshrrev_b32 v4, 1, v2
        v_xor_b32 v4, v4, v3
        v_lshlrev_b32 v4, 4, v4
        v_lshl_add_u32 v4, v2, 7, v4
        v_add_u32 v4, s61, v4
        v_xor_b32 v5, 64, v4
        """)
        offsets(k, UO)
    CU = lambda u: 88 + 24*(u % 7)
    def c_dma(n):
        k(f"s_add_u32 m0, s61, {2048*(n%6)}\ns_add_u32 s20, s{UO[n//3]}, {18432*(n%3)}\nbuffer_load_dwordx4 v6, s[72:75], s20 offen lds\nbuffer_load_dwordx4 v7, s[72:75], s20 offen offset:1024 lds", tag=("C", n))
    def c_drain(e, n):
        for ks in range(2): e(f"ds_read_b128 {v(CU(n//3)+12*ks+4*(n%3),4)}, v{4+ks} offset:{2048*(n%6)}", tag=("Cd", n))
    def cstream(n0, depth, sig=None):
        drained = 0
        for n in range(n0, g.cmf):
            D = depth(n)
            while drained <= n - D and drained < 21:
                k.wait_vm(("C", drained)); c_drain(k, drained); drained += 1
            if drained >= 21: k.wait_vm(("C", n - D))
            if n >= 6: k.wait_lg(("Cd", n - 6))
            c_dma(n)
            g.st(f'cb{n}')
            if n == sig: k(f"s_lshl_b32 s4, s62, 2\ns_add_u32 s4, s4, {EXE}\nv_mov_b32 v8, s4\nv_mov_b32 v9, 1\nds_write_b32 v8, v9")
        while drained < 21:
            k.wait_vm(("C", drained)); c_drain(k, drained); drained += 1
        k.wait_vm()
    g.st("karg")
    dma(0)
    offsets(k, CO)
    csetup()
    if g.prioL: k(f"s_setprio {g.prioL}")
    dma(1, g.first)
    for c in range(9):
        if g.nob8 and c == 8: break
        k.wait_vm(("c", 8 if (g.nob8 and c == 7) else c)); g.st(f"l{c}"); k("s_barrier")
        if c == 0: dma(1, [p for p in "wx" if p not in g.first])
        if c + 2 < 9: dma(c + 2)
        if c == (6 if g.nob8 else 7):
            for n in range(g.cpre): c_dma(n)
    cstream(g.cpre, lambda n: 5 if n < g.cfast else g.cthr, g.csig)
    k("s_branch L_CPF")
    vm_c = list(k.vm)
    g.enter("L_R2G"); k.vm = list(g.pvm)
    UK0 = 34816
    RP = 28 if g.pure else 21
    HL = 55 if g.pure else 42
    k(f"""
    s_sub_u32 s62, s48, 4                ; lw
    v_lshrrev_b32 v4, 3, v1              ; rl
    s_mul_i32 s3, s62, 14
    v_and_b32 v8, 7, v1
    s_add_u32 s3, s3, s49
    v_mul_u32_u24 v6, 1152, v4
    s_sub_u32 s3, s3, 18
    """)
    if g.tmode:
        k(f"""
        s_lshr_b32 s72, s3, 2                ; col
        s_and_b32 s7, s3, 3
        s_lshl_b32 s4, s50, 2
        s_add_u32 s7, s7, s4                 ; tb
        s_mul_i32 s4, s7, {64*1152}
        s_lshl_b32 s5, s72, 7
        s_add_u32 s4, s4, s5
        v_lshl_add_u32 v9, v8, 4, v6
        v_add_u32 v9, s4, v9
        s_mul_i32 s63, s62, 12288
        s_add_u32 s63, s63, {CST}
        s_mov_b32 s78, 2359296
        s_mov_b32 s79, 0x20000
        s_cmp_ge_u32 s3, 36
        s_mov_b32 s76, s8
        s_mov_b32 s77, s9
        s_cbranch_scc1 L_noT1
        """)
        for n in range(8):
            k(f"s_add_u32 m0, s63, {1024*n}\ns_mov_b32 s4, {9216*n}\nv_xor_b32 v11, {16*n}, v9\nbuffer_load_dwordx4 v11, s[76:79], s4 offen lds")
        k.raw("L_noT1:")
    k(f"""
    v_xor_b32 v5, v8, v3
    v_lshl_add_u32 v6, v5, 4, v6
    v_mov_b32 v60, 0
    v_mov_b32 v61, 0
    s_lshl_b32 s4, s48, 3
    s_add_u32 s4, s4, {EXE}
    v_mov_b32 v10, s4
    ds_write_b64 v10, v[60:61]
    s_mul_i32 s4, s62, {AW}
    s_add_u32 s4, s4, {UK0}
    v_lshl_add_u32 v12, v1, 3, s4
    ds_write_b64 v12, v[60:61]
    s_and_b32 s4, s62, 1
    s_mul_i32 s4, s4, {AW}
    s_add_u32 s4, s4, {UK0 + 4*AW}
    v_lshl_add_u32 v12, v1, 3, s4
    ds_write_b64 v12, v[60:61]
    s_lshr_b32 s4, s3, 1
    s_mul_i32 s4, s4, {RP}
    v_mul_u32_u24 v20, {65536//RP + 1}, v1
    v_lshrrev_b32 v20, 16, v20           ; lane/RP
    v_mul_u32_u24 v21, {RP}, v20
    v_sub_u32 v21, v1, v21
    v_add_u32 v21, s4, v21
    v_lshrrev_b32 v22, 6, v21
    s_mul_i32 s4, s50, {g.rot1x}
    v_add_u32 v22, s4, v22
    v_mul_u32_u24 v25, 683, v21
    v_lshrrev_b32 v25, 16, v25
    v_mul_u32_u24 v25, 3, v25
    v_lshrrev_b32 v25, 1, v25
    v_lshlrev_b32 v20, 2, v20
    v_mul_u32_u24 v21, 1152, v21
    s_mov_b32 s70, 663552
    s_mov_b32 s71, 0x20000
    s_mov_b32 s66, 663552
    s_mov_b32 s67, 0x20000
    v_lshlrev_b32 v16, 4, v1
    """)
    k.raw("    s_getpc_b64 s[4:5]\n    s_add_u32 s4, s4, band_tab@rel32@lo+4\n    s_addc_u32 s5, s5, band_tab@rel32@hi+12")
    k(f"""
    s_lshl_b32 s6, s62, 11
    v_add_u32 v56, s6, v16
    v_mov_b32 v57, s5
    v_add_co_u32 v56, vcc, s4, v56
    s_add_u32 m0, s6, {BND}
    v_addc_co_u32 v57, vcc, 0, v57, vcc
    s_bitcmp1_b32 s3, 0
    s_cselect_b32 s68, s30, s28
    s_cselect_b32 s69, s31, s29
    s_cselect_b32 s64, s34, s32
    s_cselect_b32 s65, s35, s33
    """)
    k.wait_lg(); k("s_barrier")
    npf = [0]
    def touch(pat, rot, srd):
        d = 64 + npf[0]; npf[0] += 1
        k(f"s_mov_b32 s4, {pat}\nv_bfe_u32 v23, s4, v20, 4\nv_add_u32 v23, v23, v{rot}\nv_mul_u32_u24 v24, 7282, v23\nv_lshrrev_b32 v24, 16, v24\nv_mul_u32_u24 v24, 9, v24\nv_sub_u32 v23, v23, v24\nv_lshl_add_u32 v23, v23, 7, v21")
        k._wait(vm=g.pf_depth)
        k(f"buffer_load_dword v{d}, v23, s[{srd}:{srd+3}], 0 offen")
    if not g.wfirst:
        for pat in g.bpf: touch(pat, 22, 68)
    k("global_load_dword v62, v60, s[46:47]\nglobal_load_lds_dwordx4 v[56:57], off\nglobal_load_lds_dwordx4 v[56:57], off offset:1024")
    k(f"""
    s_mov_b32 s76, s46
    s_mov_b32 s77, s47
    s_mov_b32 s78, {WS_SIZE}
    s_mov_b32 s79, 0x20000
    v_lshrrev_b32 v15, 5, v1
    v_mad_u32_u24 v15, v15, 5, s60
    v_min_u32 v15, 575, v15
    v_lshrrev_b32 v15, {6 if g.tmode else 5}, v15
    v_and_b32 v14, 31, v1
    v_lshl_add_u32 v15, v15, 5, v14
    v_lshlrev_b32 v15, {g.tfs}, v15
    v_add_u32 v15, {WS_TF}, v15
    s_lshl_b32 s12, s60, 12
    s_add_u32 s12, s12, {WS_UT}
    s_mul_i32 s5, s3, {2*HL*128}
    s_mul_i32 s14, s50, {4*HBLK}
    s_add_u32 s4, s14, {4*HBLK - 128}
    s_add_u32 s5, s5, s14
    v_min_u32 v58, {HL-1}, v1
    v_lshl_add_u32 v58, v58, 7, s5
    v_add_u32 v59, {HL*128}, v58
    v_min_u32 v58, s4, v58
    v_min_u32 v59, s4, v59
    v_mov_b32 v19, {EXE+56}
    v_mov_b32 v60, 1
    """)
    if g.tmode:
        k(f"""
        s_mov_b32 s22, 0x05040100
        s_mov_b32 s23, 0x07060302
        s_lshl_b32 s5, s72, 18
        s_lshl_b32 s4, s7, 7
        s_add_u32 s5, s5, s4
        s_add_u32 s5, s5, {WS_UT}
        v_lshl_add_u32 v13, v8, 4, s5
        v_lshl_add_u32 v13, v4, 15, v13
        s_lshl_b32 s5, s72, 5
        s_add_u32 s5, s5, s7
        s_lshl_b32 s5, s5, {g.tfs}
        s_add_u32 s5, s5, {WS_TF}
        v_mov_b32 v14, s5
        v_xor_b32 v12, v4, v8
        v_lshlrev_b32 v12, 4, v12
        v_lshl_add_u32 v12, v8, 10, v12
        v_add_u32 v12, s63, v12
        """)
        k("s_cmp_ge_u32 s3, 36\ns_cbranch_scc1 L_noT")
        k._wait(vm=3); g.st("Tld")
        for i in range(8): k(f"ds_read_b128 {v(96+4*i,4)}, v12 offset:{128*i}")
        for e in range(8):
            for p in range(4): k(f"v_perm_b32 v{128+4*e+p}, v{96+8*p+4+e//2}, v{96+8*p+e//2}, s{22+e%2}")
            k(f"s_mov_b32 s4, {4096*e}\nbuffer_store_dwordx4 {v(128+4*e,4)}, v13, s[76:79], s4 offen sc1")
        k(f"v_readfirstlane_b32 s55, v62\ns_mul_i32 s55, s55, {LCG_A}\ns_add_u32 s55, s55, {LCG_C}\ns_max_u32 s55, s55, 1\nv_mov_b32 v17, s55")
        k("s_mov_b64 exec, 1"); k.wait_vm()
        k("global_store_dword v14, v17, s[46:47] sc1\ns_mov_b64 exec, -1"); g.st("Tst")
        k.raw("L_noT:"); k.vm = [({("v", 62)}, None), (set(), None), (set(), None)]
    if g.pure:
        k("s_cmp_eq_u32 s62, 3\ns_cbranch_scc1 L_pure3")
        vm0 = list(k.vm)
        k._wait(vm=2); g.st("wl")
        for i, pat in enumerate(g.bpf):
            touch(pat, 22, 68)
            if i == 1: k._wait(vm=2); k("ds_write_b32 v10, v60")
        for pat in g.cpf[:g.cpf_pre]: touch(pat, 25, 64)
        for i in range(2): k._wait(vm=g.pf_depth); k(f"global_load_dword v{80+i}, v{58+i}, s[42:43]")
        for pat in g.cpf[g.cpf_pre:]: touch(pat, 25, 64)
        g.st("pre")
        k("s_branch L_pure_end")
        k.raw("L_pure3:"); k.vm = vm0
    elif g.wfirst:
        if not g.tmode: k._wait(vm=0 if g.wfirst == 1 else 2); g.st("wl")
        for pat in g.bpf: touch(pat, 22, 68)
    g.st("bpfi")
    if g.pure: g.cpf = []; g.hpre = 0; g.uwait = 0; g.r2skip = 1
    if g.hpre == 2:
        for i in range(2): k._wait(vm=g.pf_depth); k(f"global_load_dword v{80+i}, v{58+i}, s[42:43]")
    for pat in g.cpf[:g.cpf_pre]: touch(pat, 25, 64)
    if g.hpre == 3:
        for i in range(2): k._wait(vm=g.pf_depth); k(f"global_load_dword v{80+i}, v{58+i}, s[42:43]")
    k.wait_vm(); g.st("pre")
    k(f"v_readfirstlane_b32 s55, v62\ns_mul_i32 s55, s55, {LCG_A}\ns_add_u32 s55, s55, {LCG_C}\ns_max_u32 s55, s55, 1")
    k(f"s_cmp_lg_u32 s62, 3\ns_cbranch_scc1 L_pollT_skip")
    g.poll("L_pollT", lambda: k(f"s_sleep {g.tsleep}\nglobal_load_dword v18, v15, s[46:47] sc1"), lambda: k("v_cmp_ne_u32 vcc, s55, v18\ns_nop 1"))
    g.st("Tarr")
    for c in range(6):
        if c == 4: k("s_cmp_lt_u32 s49, 24\ns_cbranch_scc1 L_u4")
        k(f"s_mov_b32 m0, {UK0 + AW*c + 512}\ns_add_u32 s4, s12, {4096*c}")
        for n in range(4): k(f"buffer_load_dwordx4 v16, s[76:79], s4 offen offset:{1024*n} sc1 lds")
    k.raw("L_u4:")
    k("ds_write_b32 v10, v60 offset:4")
    k.wait_vm(); g.st("gath")
    k.raw("L_pollT_skip:")
    k("ds_write_b32 v10, v60")
    if g.uwait:
        g.poll("L_pollTw", lambda: k("s_sleep 2\nds_read_b32 v18, v19 offset:4"), lambda: k("v_cmp_ne_u32 vcc, 1, v18\ns_nop 1"))
    if g.pure: k.raw("L_pure_end:"); k.vm = [(set(("v", i) for i in range(64, 84)), None)]
    for pat in g.bpf2: touch(pat, 22, 68)
    if g.r2skip: k("s_cmp_lt_u32 s49, 24\ns_cbranch_scc1 L_R2C")
    if g.r3all:
        k(f"""
        s_sub_u32 s4, s49, 24
        s_lshl_b32 s4, s4, 2
        s_add_u32 s4, s4, s62
        s_mul_i32 s4, s4, 18
        v_mul_u32_u24 v20, 3641, v1
        v_lshrrev_b32 v20, 16, v20           ; lane/18
        v_mul_u32_u24 v21, 18, v20
        v_sub_u32 v21, v1, v21
        v_add_u32 v21, s4, v21
        v_mul_u32_u24 v25, 683, v21
        v_lshrrev_b32 v25, 16, v25
        v_mul_u32_u24 v25, 3, v25
        v_lshrrev_b32 v25, 1, v25
        v_lshlrev_b32 v20, 2, v20
        v_mul_u32_u24 v21, 1152, v21
        s_mov_b32 s64, s32
        s_mov_b32 s65, s33
        s_mov_b32 s68, s34
        s_mov_b32 s69, s35
        """)
        for pat in g.cpf[g.cpf_pre:]: touch(pat, 25, 64); touch(pat, 25, 68)
    else:
        for pat in g.cpf[g.cpf_pre:]: touch(pat, 25, 64)
    ho = 42 if g.hout else 46
    if g.hpre == 1 and not g.r2skip:
        for i in range(2): k._wait(vm=g.pf_depth); k(f"global_load_dword v{80+i}, v{58+i}, s[{ho}:{ho+1}]")
    if g.hpre == 1 and g.r2skip:
        k(f"s_sub_u32 s4, s49, 24\ns_lshl_b32 s4, s4, 2\ns_add_u32 s4, s4, s62\ns_mul_i32 s4, s4, {144*128}\ns_add_u32 s4, s4, s14\nv_min_u32 v58, 47, v1\nv_lshl_add_u32 v58, v58, 7, s4")
        for i in range(3): k._wait(vm=g.pf_depth); k(f"global_load_dword v{80+i}, v58, s[{ho}:{ho+1}]\nv_add_u32 v58, {48*128}, v58")
    k("s_cmp_lt_u32 s49, 24\ns_cbranch_scc1 L_R2C")
    save = list(k.vm)
    k.wait_vm(); g.st("pfdone")
    if g.awarm:
        k(f"""
        s_sub_u32 s4, s49, 24
        s_mul_i32 s5, s4, {14*128}
        s_add_u32 s5, s5, {WS_AF}
        v_min_u32 v20, 13, v1
        v_lshl_add_u32 v20, v20, 7, s5
        s_lshl_b32 s4, s4, 2
        s_add_u32 s4, s4, s62
        s_mul_i32 s4, s4, {18*4096}
        s_lshl_b32 s5, s50, 9
        s_add_u32 s4, s4, s5
        s_add_u32 s4, s4, {WS_A}
        v_min_u32 v21, 35, v1
        v_and_b32 v22, 3, v21
        v_lshrrev_b32 v21, 2, v21
        v_lshlrev_b32 v21, 12, v21
        v_lshl_add_u32 v21, v22, 7, v21
        v_add_u32 v21, s4, v21
        v_add_u32 v22, {9*4096}, v21
        """)
        g.poll("L_pollV", lambda: k(f"s_sleep {g.awarm}\nglobal_load_dwordx4 v[24:27], v20, s[46:47] sc1"),
               lambda: k("v_xor_b32 v24, s55, v24\nv_xor_b32 v25, s55, v25\nv_xor_b32 v26, s55, v26\nv_xor_b32 v27, s55, v27\nv_or3_b32 v24, v24, v25, v26\nv_or_b32 v24, v24, v27\nv_cmp_ne_u32 vcc, 0, v24\ns_nop 0"))
        k("global_load_dword v24, v21, s[46:47] sc1\nglobal_load_dword v25, v22, s[46:47] sc1")
        k.wait_vm(); g.st("awd")
    g.fin()
    k.raw("L_R2C:"); k.vm = [(set(("v", i) for i in range(64, 84)), None)] if g.r2skip else save; k.hist = []; k.lg = [(set(), None)]
    csetup()
    cstream(0, lambda n: g.cthr2)
    k.raw("L_CPF:"); k.vm = []; k.lg = [(set(), None)]
    k(f"""
    v_lshrrev_b32 v8, 1, v3
    v_lshlrev_b32 v8, 12, v8
    s_lshr_b32 s4, s62, 1
    s_lshl_b32 s5, s4, 10
    v_add_u32 v8, s5, v8
    v_bfe_u32 v9, v1, 1, 1
    v_lshl_add_u32 v8, v9, 8, v8
    v_and_b32 v10, 1, v3
    v_lshlrev_b32 v10, 3, v10
    v_bfe_u32 v11, v1, 2, 2
    v_add_u32 v10, v10, v11
    v_lshlrev_b32 v9, 2, v9
    v_xor_b32 v10, v10, v9
    v_lshl_add_u32 v8, v10, 4, v8
    v_and_b32 v10, 1, v1
    v_lshl_add_u32 v6, v10, 3, v8
    v_xor_b32 v7, 64, v6
    s_mul_i32 s4, s4, 25600
    s_and_b32 s5, s62, 1
    s_mul_i32 s5, s5, 192
    s_add_u32 s4, s4, s5
    s_add_u32 s4, s4, {IMG}
    v_mul_u32_u24 v0, 400, v2
    v_lshl_add_u32 v0, v3, 4, v0
    v_add_u32 v0, s4, v0
    v_add_u32 v2, 49152, v6
    v_add_u32 v3, 49152, v7
    """)
    k.wait_all(); g.st("cdone")
    A2, HF = 40, 8
    def hreads(e, u, ks):
        sl = u % 6; a0 = 6 if sl < 3 else 2
        for tt in range(4):
            off = 16384*(sl % 3) + 8192*ks + 2048*(tt >> 1) + 512*(tt & 1)
            e(f"ds_read_b64_tr_b16 {v(HF+16*ks+4*tt,2)}, v{a0} offset:{off}\nds_read_b64_tr_b16 {v(HF+16*ks+4*tt+2,2)}, v{a0+1} offset:{off}")
    def mf1(u, ks, tt, dt):
        d = A2 + 16*dt + 4*tt
        cc = "0" if (u == 0 and ks == 0) else v(d, 4)
        return ("i", f"{M16} {v(d,4)}, {v(CU(u)+12*ks+4*dt,4)}, {v(HF+16*ks+4*tt,4)}, {cc}", None)
    mf2 = lambda u, ks: [mf1(u, ks, tt, dt) for tt in range(4) for dt in range(3)]
    k("s_barrier")
    hreads(k, 0, 0)
    if g.wb: k.raw("    s_or_b32 s4, s52, s62\n    s_cbranch_scc1 L_nowb\n    buffer_wbl2 sc1\nL_nowb:")
    tail = [[(7,0,tt),(7,1,tt),(8,0,tt),(8,1,tt)] for tt in range(4)]
    def treads(e, st):
        for i, (u, ks, tt) in enumerate(tail[st]):
            off = 16384*(u % 6) + 8192*ks + 2048*(tt >> 1) + 512*(tt & 1); b_ = HF + 16*(st % 2) + 4*i
            e(f"ds_read_b64_tr_b16 {v(b_,2)}, v6 offset:{off}\nds_read_b64_tr_b16 {v(b_+2,2)}, v7 offset:{off}")
    def tmf(st):
        return [("i", f"{M16} {v(A2+16*dt+4*tt,4)}, {v(CU(u)+12*ks+4*dt,4)}, {v(HF+16*(st%2)+4*i,4)}, {v(A2+16*dt+4*tt,4)}", None) for i, (u, ks, tt) in enumerate(tail[st]) for dt in range(3)]
    def wr(tts):
        e = Rec()
        for tt in tts:
            for dt in range(3): e(f"ds_write_b128 v0, {v(A2+16*dt+4*tt,4)} offset:{6400*tt+64*dt}")
        return e.items
    early = g.cmf == 27
    for u in range(7):
        rd = Rec(); hreads(rd, u, 1)
        ex = Rec()
        if u == 2 and g.cmf >= 24:
            for n in range(21, 24): c_drain(ex, n)
        if early and u == 3:
            for n in range(24, 27): c_drain(ex, n)
        weave(k, mf2(u, 0), [(rd.items, 0, 7), (ex.items, 4, 9)])
        if u + 1 in (1, 2, 3, 5, 7 if g.bar7 else 6): k.wait_lg(); k("s_barrier")
        rd = Rec(); ex = Rec()
        if u < 6: hreads(rd, u + 1, 0)
        else:
            treads(rd, 0)
            if not early:
                for n in range(g.cmf, 27): c_drain(ex, n)
        weave(k, mf2(u, 1), [(rd.items, 1, 8), (ex.items, 1, 10)])
    for st in range(4):
        rd = Rec()
        if st < 3: treads(rd, st + 1)
        w_ = wr([st - 1]) if st else []
        m_ = tmf(st)
        if st == 0: k(f"s_lshl_b32 s4, s62, 2\ns_add_u32 s4, s4, {ASY}\nv_mov_b32 v4, s4\nv_mov_b32 v5, 1")
        if st == 2: w_ = w_ + [("i", "ds_write_b32 v4, v5 offset:16", None)]
        weave(k, m_, [(rd.items, 0, 4), (w_, 3, len(m_) - 1)])
    for it in wr([3]): play(k, it)
    k("ds_write_b32 v4, v5 offset:32"); g.st("p2end")
    g.fin()
```

```python
from g2 import *
import g2b
UK0 = 34816
def partA(self):
    k = self.k
    self.enter("L_A"); k.vm = list(self.pvm4); k(self.aids)
    k(f"""
    s_add_u32 s61, s60, s48          ; d
    s_and_b32 s5, s48, 1
    s_add_u32 s5, s5, 4
    s_cmp_ge_u32 s49, 24
    s_cselect_b32 s64, s5, s48
    s_add_u32 s65, s60, s64          ; second d
    s_lshl_b32 s62, s61, 8
    v_lshl_add_u32 v26, v1, 2, s62
    s_lshl_b32 s62, s61, 1
    v_mov_b32 v27, s62
    s_lshl_b32 s62, s65, 8
    v_lshl_add_u32 v24, v1, 2, s62
    s_lshl_b32 s62, s65, 1
    v_mov_b32 v25, s62
    v_mov_b32 v60, 0
    v_mov_b32 v61, 0
    global_load_dword v10, v26, s[10:11]
    global_load_dword v11, v26, s[12:13]
    global_load_ushort v14, v27, s[18:19]
    global_load_dword v12, v26, s[14:15]
    global_load_dword v13, v26, s[16:17]
    global_load_ushort v15, v27, s[20:21]
    global_load_dword v22, v60, s[46:47]
    """)
    self.st("karg")
    k(f"""
    s_lshl_b32 s4, s48, 3
    s_add_u32 s4, s4, {EXE}
    v_mov_b32 v4, s4
    ds_write_b64 v4, v[60:61]
    """)
    k("""
    global_load_dword v16, v24, s[10:11]
    global_load_dword v17, v24, s[12:13]
    global_load_ushort v20, v25, s[18:19]
    global_load_dword v18, v24, s[14:15]
    global_load_dword v19, v24, s[16:17]
    global_load_ushort v21, v25, s[20:21]
    """)
    k.wait_lg(); k("s_barrier")
    self.ids2()
    k(f"""
    s_mov_b32 s76, s46
    s_mov_b32 s77, s47
    s_mov_b32 s78, {WS_SIZE}
    s_mov_b32 s79, 0x20000
    s_mul_i32 s68, s48, {TW}
    s_add_u32 s69, s68, {UK0}
    s_add_u32 s70, s69, 4608            ; K base
    s_mul_i32 s66, s64, {AW}
    s_add_u32 s66, s66, {UK0}
    s_mov_b32 m0, s68
    s_cmp_ge_u32 s49, 24
    s_cselect_b32 s63, 1, 0
    s_cmp_lt_u32 s48, 2
    s_cselect_b32 s63, s63, 0
    v_mul_u32_u24 v59, 544, v2
    v_lshl_add_u32 v59, v3, 4, v59
    v_add_u32 v59, s68, v59
    v_and_b32 v58, 7, v2
    v_lshlrev_b32 v58, 2, v58
    s_mov_b32 s62, 0x43222100
    v_lshrrev_b32 v58, v58, s62
    v_and_b32 v58, 15, v58
    v_lshrrev_b32 v62, 3, v2
    v_mad_u32_u24 v58, v62, 5, v58
    v_mul_u32_u24 v58, 544, v58
    v_lshl_add_u32 v58, v3, 4, v58
    v_add_u32 v58, s68, v58
    v_lshrrev_b32 v5, 1, v3
    v_lshlrev_b32 v5, 8, v5
    v_lshl_add_u32 v5, v2, 4, v5
    v_and_b32 v6, 1, v3
    v_lshl_add_u32 v5, v6, 3, v5
    v_sub_u32 v5, 568, v5
    v_lshrrev_b32 v6, 1, v2
    v_and_b32 v8, 1, v2
    v_lshlrev_b32 v9, 6, v3
    v_lshl_add_u32 v9, v6, 2, v9
    v_lshlrev_b32 v23, 8, v8
    v_sub_u32 v23, v23, v9
    v_add_u32 v23, {2368 + 188 - 32}, v23
    v_lshlrev_b32 v9, 7, v3
    v_lshl_add_u32 v9, v6, 2, v9
    v_lshlrev_b32 v8, 1, v8
    v_sub_u32 v8, v8, v9
    v_add_u32 v8, {2368 + 512 + 252 + 256 - 96}, v8
    v_cmp_gt_u32 vcc, 2, v3
    v_cndmask_b32 v6, v8, v23, vcc
    """)
    def tag():
        k(f"v_readfirstlane_b32 s55, v22\ns_mul_i32 s55, s55, {LCG_A}\ns_add_u32 s55, s55, {LCG_C}\ns_max_u32 s55, s55, 1\ns_cmp_ge_u32 s49, 24\ns_cbranch_scc1 L_xp2")
        self.pub_xcc(244, "L_xp2", 0)
    if self.skipA:
        k.raw("    s_waitcnt vmcnt(0)"); k("s_branch L_tab_done")
    vFR, vFR1 = 59, 58
    pend_vm = list(k.vm)
    k.raw(".p2align 3\nL_tab:"); k.hist = []
    k(f"""
    v_mov_b32 v60, 0
    v_mov_b32 v61, 0
    v_mov_b32 v62, 0
    v_mov_b32 v63, 0
    v_lshl_add_u32 v8, v1, 4, s70
    v_lshlrev_b32 v14, 16, v14
    v_mul_f32 v14, {fl(LOG2E)}, v14
    v_lshlrev_b32 v64, 16, v10
    v_and_b32 v66, 0xffff0000, v10
    ds_write_b128 v8, v[60:63]
    ds_write_b128 v8, v[60:63] offset:1024
    ds_write_b128 v8, v[60:63] offset:2048
    ds_write_b128 v8, v[60:63] offset:3072
    v_exp_f32 v14, v14
    v_mul_f32 v64, {fl(LOG2E)}, v64
    v_mul_f32 v66, {fl(LOG2E)}, v66
    v_exp_f32 v64, v64
    v_exp_f32 v66, v66
    v_cvt_pk_bf16_f32 v14, v14, v14
    v_lshlrev_b32 v65, 16, v11
    v_and_b32 v67, 0xffff0000, v11
    v_cvt_pk_bf16_f32 v10, v64, v66
    v_and_b32 v14, 0xffff0000, v14
    v_lshlrev_b32 v64, 16, v10
    v_and_b32 v66, 0xffff0000, v10
    v_mul_f32 v64, v64, v14
    v_mul_f32 v66, v66, v14
    v_mul_f32 v65, v65, v14
    v_mul_f32 v67, v67, v14
    v_mul_f32 v64, {fl(-LOG2E)}, v64
    v_mul_f32 v66, {fl(-LOG2E)}, v66
    v_mul_f32 v65, {fl(INV2PI)}, v65
    v_mul_f32 v67, {fl(INV2PI)}, v67
    """)
    self.st("par")
    AR, AI = (64, 66), (65, 67)
    E8, E16, E1, W = (68, 70), (72, 74), (76, 78), (80, 82)
    T = list(range(84, 104, 2))
    G = [[104 + 4*c, 106 + 4*c] for c in range(9)]
    LA, LBb = (140, 142), (144, 146)
    OUT = [148, 150, 152, 154, 232, 234, 236, 238]
    LOF, HF, DT = 156, 188, [220, 224, 228]
    oc = [0]; pendw = []
    def flushw():
        for w_ in pendw: k(w_)
        pendw.clear()
    def entry(row, x0, x1, neg):
        o = OUT[oc[0] % 8]; oc[0] += 1
        n = "-" if neg else ""
        k(f"v_cvt_pk_bf16_f32 v{o}, v{x0}, {n}v{x0+1}\nv_cvt_pk_bf16_f32 v{o+1}, v{x1}, {n}v{x1+1}")
        pendw.append(f"ds_write_addtid_b32 v{o} offset:{544*row}\nds_write_addtid_b32 v{o+1} offset:{544*row+256}")
        if len(pendw) >= self.wbatch: flushw()
    cpow_multi(k, [(E8[n], E8[n]+1, AR[n], AI[n], fl(8.0), T[n], T[n]+1) for n in range(2)] +
                  [(E1[n], E1[n]+1, AR[n], AI[n], "1.0", T[2+n], T[2+n]+1) for n in range(2)] +
                  [(W[n], W[n]+1, AR[n], AI[n], fl(128.0), T[4+n], T[4+n]+1) for n in range(2)])
    cmul_multi(k, [(E16[n], E8[n], E8[n], T[n]) for n in range(2)])
    k(f"v_mov_b32 v{OUT[7]}, 0x3f80"); pendw.append(f"ds_write_addtid_b32 v{OUT[7]}\nds_write_addtid_b32 v{OUT[7]} offset:256")
    entry(1, E8[0], E8[1], True); entry(2, E16[0], E16[1], True)
    pa, pb = E8, E16
    for j in range(3, 16, 2):
        items = [(LA[n], pa[n], E16[n], T[n]) for n in range(2)]
        if j + 1 < 16: items += [(LBb[n], pb[n], E16[n], T[2+n]) for n in range(2)]
        cmul_multi(k, items)
        pa, pb = LA, LBb
        entry(j, LA[0], LA[1], True)
        if j + 1 < 16: entry(j + 1, LBb[0], LBb[1], True)
    flushw()
    for ks in range(8): k(f"ds_read_b128 {v(LOF+4*ks,4)}, v{vFR} offset:{64*ks}")
    k(f"""
    v_add_f32 v14, v14, v14
    v_lshlrev_b32 v{G[0][0]}, 16, v12
    v_lshlrev_b32 v{G[0][0]+1}, 16, v13
    v_and_b32 v{G[0][1]}, 0xffff0000, v12
    v_and_b32 v{G[0][1]+1}, 0xffff0000, v13
    """)
    pk_bc(k, G[0][0], G[0][0], 14, 0); pk_bc(k, G[0][1], G[0][1], 14, 0)
    cmul_multi(k, [(LA[n], E1[n], E1[n], T[n]) for n in range(2)] + [(G[1][n], G[0][n], E1[n], T[2+n]) for n in range(2)]
                    + [(G[8][n], G[0][n], E8[n], T[4+n]) for n in range(2)])
    entry(0, G[0][0], G[0][1], False); entry(1, G[1][0], G[1][1], False)
    for c in range(2, 8, 2):
        cmul_multi(k, [(G[c+i][n], G[c+i-2][n], LA[n], T[2*i+n]) for i in range(2) for n in range(2)])
        entry(c, G[c][0], G[c][1], False); entry(c+1, G[c+1][0], G[c+1][1], False)
    def mulW(cs, Wp=W):
        cmul_multi(k, [(G[c][n], G[c][n], Wp[n], T[(2*i+n) % 10]) for i, c in enumerate(cs) for n in range(2)])
    for cs in ([0, 1, 2], [3, 4, 5], [6, 7, 8]):
        mulW(cs)
        for c in cs:
            if c < 8: entry(8 + c, G[c][0], G[c][1], False)
    def kgen(tile, addr, cinit):
        flushw()
        for ks in range(8): k(f"ds_read_b128 {v(HF+4*ks,4)}, v{addr} offset:{64*ks}")
        return [("i", f"{M16} {v(DT[tile],4)}, {v(HF+4*ks,4)}, {v(LOF+4*ks,4)}, {cinit if ks == 0 else v(DT[tile],4)}", None) for ks in range(8)]
    k(f"v_lshlrev_b32 v15, 16, v15\nv_cmp_eq_u32 vcc, 0, v1\nv_mov_b32 v{DT[0]+1}, 0\nv_mov_b32 v{DT[0]+2}, 0\nv_cndmask_b32 v{DT[0]}, 0, v15, vcc\nv_mov_b32 v{DT[0]+3}, 0")
    def with_mf(mf, fn):
        nonlocal k
        real = k; k = Rec(); fn(); flushw(); items = k.items; k = real
        k.wait_lg()
        weave(k, mf, [(items, 1, len(mf))])
    mf = kgen(0, vFR, v(DT[0], 4))
    ev = [0, 2, 4, 6, 8]
    mulW(ev)
    with_mf(mf, lambda: [entry(i, G[c][0], G[c][1], False) for i, c in enumerate(ev)])
    mulW(ev)
    for i, c in enumerate(ev): entry(5 + i, G[c][0], G[c][1], False)
    mf = kgen(1, vFR1, "0")
    cmul_multi(k, [(E1[n], W[n], W[n], T[n]) for n in range(2)] + [(G[c][n], G[c][n], W[n], T[2+2*i+n]) for i, c in enumerate((4, 8)) for n in range(2)])
    cmul_multi(k, [(G[d_][n], G[c][n], W[n], T[2*i+n]) for i, (d_, c) in enumerate(((3, 4), (7, 8))) for n in range(2)])
    def post(j):
        d = DT[j]; off = 512 if j == 0 else 0; t = 240 + 4*j
        k(f"""
        v_cvt_pk_bf16_f32 v{t}, v{d+3}, v{d+2}
        v_cvt_pk_bf16_f32 v{t+1}, v{d+1}, v{d}
        v_cvt_pk_bf16_f32 v{t+2}, v{d+2}, v{d+1}
        ds_write_b64 v61, v[{t}:{t+1}] offset:{off}
        ds_write_b16 v61, v{t} offset:{off+1214}
        ds_write_b32 v61, v{t+2} offset:{off+1216}
        ds_write_b16_d16_hi v61, v{t+1} offset:{off+1220}
        """)
    k("v_add_u32 v61, s70, v5\nv_mov_b32 v62, s70\nv_add_u32 v63, s70, v6")
    with_mf(mf, lambda: [entry(i, G[c][0], G[c][1], False) for i, c in enumerate((4, 8, 3, 7))])
    mulW([4, 8, 3, 7], E1)
    for i, c in enumerate((4, 8, 3, 7)): entry(4 + i, G[c][0], G[c][1], False)
    for h in range(0, 8, 2):
        mulW([8, 7], E1)
        entry(8 + h, G[8][0], G[8][1], False); entry(9 + h, G[7][0], G[7][1], False)
    mf = kgen(2, vFR, "0")
    self.st("tabs")
    post(0)
    with_mf(mf, lambda: post(1))
    d = DT[1]
    k(f"""
    v_cvt_pk_bf16_f32 v72, v{d+3}, v{d+3}
    s_mov_b32 exec_lo, 0
    s_mov_b32 exec_hi, 0x80000000
    ds_write_b32 v62, v72 offset:60
    ds_write_b16 v62, v72 offset:58
    ds_write_b32 v62, v72 offset:1272
    ds_write_b16 v62, v72 offset:1276
    s_mov_b64 exec, -1
    """)
    d = DT[2]
    k(f"""
    v_cvt_pk_bf16_f32 v74, v{d}, v{d+1}
    v_cvt_pk_bf16_f32 v75, v{d+2}, v{d+3}
    s_mov_b32 exec_hi, 0
    ds_write_b32 v63, v74 offset:32
    ds_write_b32 v63, v75
    s_mov_b32 exec_hi, -1
    s_mov_b32 exec_lo, 0
    ds_write_b16 v63, v74 offset:96
    ds_write_b16_d16_hi v63, v74 offset:64
    ds_write_b16 v63, v75 offset:32
    ds_write_b16_d16_hi v63, v75
    s_mov_b32 exec_lo, -1
    """)
    k.wait_vm()
    k("s_cmp_eq_u32 s63, 0\ns_cbranch_scc1 L_tab_done\ns_cmp_eq_u32 s63, 2\ns_cbranch_scc1 L_tab_sig")
    for i in range(3): k(f"v_mov_b64 {v(10+2*i,2)}, {v(16+2*i,2)}")
    k("s_mov_b32 s63, 2\ns_add_u32 s70, s66, 4608\ns_branch L_tab")
    k.raw("L_tab_sig:")
    k(f"v_mov_b32 v60, 1\nds_write_b32 v4, v60 offset:4\ns_add_u32 s70, s69, 4608")
    k.raw("L_tab_done:")
    self.st("kgen")
    tag()
    SPL = [60, 96, 100, 104, 108, 248, 252, 20, 76, 80, 84, 88, 92]
    def spill(op):
        k(f"v_lshl_add_u32 v8, v1, 4, s68\ns_mul_i32 s4, s48, 5120\ns_add_u32 s4, s4, 69632\nv_lshl_add_u32 v9, v1, 4, s4")
        for i, r_ in enumerate(SPL):
            a_, o = (8, 1024*i) if i < 8 else (9, 1024*(i - 8))
            k(f"ds_write_b128 v{a_}, {v(r_,4)} offset:{o}" if op == "w" else f"ds_read_b128 {v(r_,4)}, v{a_} offset:{o}")
    k("s_cmp_ge_u32 s49, 24\ns_cbranch_scc1 L_nosp")
    k.vm = [(set(), None)]
    g2b.p2_min(self); g2b.p2_setup(self); g2b.p2_loads(self); g2b.p2_unpack(self); spill("w")
    k.raw("L_nosp:"); k.vm = []
    k(f"s_mul_i32 s71, s50, 14\ns_add_u32 s71, s71, s49\ns_lshl_b32 s71, s71, 5\ns_add_u32 s71, s71, s48\ns_lshl_b32 s71, s71, 2\ns_add_u32 s71, s71, {WS_AF - 18*128}")
    k(f"""
    v_lshlrev_b32 v10, 3, v3
    v_sub_u32 v10, v10, v2
    v_add_u32 v10, 15, v10
    v_lshlrev_b32 v10, 1, v10
    v_and_b32 v11, 1, v2
    v_cmp_eq_u32 vcc, 0, v11
    v_mov_b32 v11, 1214
    v_lshlrev_b32 v24, 2, v3
    v_cndmask_b32 v11, 0, v11, vcc
    v_add_u32 v10, v10, v11
    v_sub_u32 v24, v24, v2
    v_add_u32 v24, {15 + 2368//4}, v24
    v_lshlrev_b32 v24, 2, v24           ; P offset
    v_lshlrev_b32 v25, 5, v2
    v_lshl_add_u32 v25, v3, 4, v25
    v_add_u32 v25, 32, v25
    v_and_b32 v26, 1, v3
    v_lshlrev_b32 v26, 9, v26
    v_lshrrev_b32 v27, 2, v2
    v_lshl_add_u32 v26, v27, 7, v26
    v_lshrrev_b32 v27, 1, v3
    v_lshl_add_u32 v26, v27, 6, v26
    v_and_b32 v27, 3, v2
    v_lshl_add_u32 v26, v27, 4, v26
    v_and_b32 v27, 3, v1
    v_lshlrev_b32 v27, 3, v27
    v_add_u32 v27, {EXE+32}, v27
    """)
    if self.skipA: k.wait_lg(); k("s_cmp_lt_u32 s49, 24\ns_cbranch_scc1 L_A_R2\ns_branch L_A_last")
    ACC, KF, K23, ZT, ZP, UR, XT, BAND = 56, 88, 156, 196, 220, 232, 12, 28
    def out_txt(B):
        q = ACC + 4*B
        return ("\n".join(f"v_cvt_pk_bf16_f32 v{q+i}, v{q+2*i}, v{q+2*i+1}" for i in range(4)),
                f"v_permlane16_swap_b32 v{q}, v{q+2}\nv_permlane16_swap_b32 v{q+1}, v{q+3}", f"buffer_store_dwordx4 {v(q,4)}, v26, s[76:79], s62 offen offset:{512*B} sc1")
    def conv(name, BS, band):
        k.raw(f".p2align 3\nL_conv{name}:"); k.hist = []; k.lg = [(set(), None)]; k.vm = []
        self.poll(f"L_pollU{name}", lambda: k("ds_read_b32 v11, v27"), lambda: k("v_cmp_ne_u32 vcc, 1, v11\ns_nop 1"))
        self.st("U" + name)
        k(f"""
        v_add_u32 v5, s70, v10
        v_add_u32 v6, 1024, v5
        v_add_u32 v8, s70, v24
        v_add_u32 v7, s69, v25
        s_lshl_b32 s62, s61, 12
        s_add_u32 s62, s62, {WS_A}
        """)
        if band:
            k(f"v_lshlrev_b32 v9, 4, v1\nv_add_u32 v9, {g2b.BND}, v9")
            for i in (0, 1, 2, 4, 3, 5, 6): k(f"ds_read_b128 {v(28+4*i,4)}, v9 offset:{1024*i}")
        k("v_mov_b32 v9, s70")
        fq = []; made = set()
        def fill(text, key=None):
            ls = text.split("\n")
            for i, l in enumerate(ls): fq.append((l, key if i == len(ls) - 1 else None))
        def pop():
            l, key = fq.pop(0); k(l)
            if key is not None: made.add(key)
        def mf(text, needs):
            for key in needs:
                while key not in made: pop()
            k(text)
            for _ in range(2):
                if fq: pop()
        k2t = {}; idx = 0
        for D_ in (2, 3, 4):
            for pr in range(2):
                k2t[(2, D_, pr)] = (K23 + 4*idx, 64*pr + 64 - 16*D_); idx += 1
        for D_ in (4, 5, 6, 7):
            k2t[(3, D_, 0)] = (K23 + 4*idx, 128 + 112 - 16*D_); idx += 1
        asked = set()
        def want(key):
            if key in asked: return
            asked.add(key)
            if key == "xt":
                fill(f"ds_read_u16 v11, v9 offset:{2368 + 256 + 4*16 + 2}")
                later.append([3, lambda: fill("v_lshl_or_b32 v11, v11, 16, v11\n" + "\n".join(f"v_and_b32 v{XT+i}, v{52+i}, v11" for i in range(4)), "xt")])
            elif key[0] == "kf":
                s_ = key[1]; a_, o = (6, 0) if s_ == 0 else (5, 16*(16 - s_))
                fill(f"ds_read2_b32 {v(KF+4*s_,2)}, v{a_} offset0:{o} offset1:{o+1}\nds_read2_b32 {v(KF+4*s_+2,2)}, v{a_} offset0:{o+2} offset1:{o+3}", key)
            else:
                r_, o = k2t[key]
                fill(f"ds_read2_b32 {v(r_,2)}, v8 offset0:{o} offset1:{o+1}\nds_read2_b32 {v(r_+2,2)}, v8 offset0:{o+2} offset1:{o+3}", key)
        later = []
        z2 = [p for p in range(6) if any(p + D_ in BS for D_ in (2, 3, 4))]
        z3 = [p for p in range(4) if any(p + D_ in BS for D_ in (4, 5, 6, 7))]
        js = [j for j in range(-7, 57) if any(0 <= 8*B - j <= 16 for B in BS)]
        gap = max(6, (len(js) - 8) // len(z2)) if name else 8
        zpos = {}
        for i, p in enumerate(z2): zpos[0 if i == 0 else (gap*i + (7 if not name else 3))] = p
        steps = []
        for i, j in enumerate(js):
            if i in zpos:
                p = zpos[i]
                if 8*p == j: steps.append((("u", j), "both", p))
                else: steps.append((("z", p), "band", p))
                steps.append((("c", p), "band2", p))
                if 8*p == j: continue
            steps.append((("u", j), "toep", None))
        xdone = set()
        def needs_of(st):
            key, kind, p = st
            out = []
            if kind in ("toep", "both"): out += [("kf", 8*B - key[1]) for B in BS if 0 <= 8*B - key[1] <= 16]
            return out
        ring = [UR + 4*i for i in range(6)] + [16, 20]
        reg = {}; nl = [0]; PD0 = self.cpd
        xsrc = {}
        for st in steps:
            key, kind, p = st
            pp = key[1] // 8 if (key[0] == "u" and key[1] % 8 == 0 and key[1] >= 0) else p if key[0] == "z" else None
            if pp is not None and pp <= 3 and pp + 4 in BS: xsrc[pp] = key
        def issue_load():
            if nl[0] >= len(steps): return
            st = steps[nl[0]]; key = st[0]; r_ = ring[nl[0] % len(ring)]; reg[key] = r_; nl[0] += 1
            off = 64*(key[1] + 7) if key[0] == "u" else 64*(8*key[1] + 7) - (16 if key[0] == "c" else 0)
            if nl[0] > PD0: fq.insert(0, (f"ds_read_b128 {v(r_,4)}, v7 offset:{off}", key))
            else: fill(f"ds_read_b128 {v(r_,4)}, v7 offset:{off}", key)
            for kk_ in needs_of(st): want(kk_)
        if xsrc and list(xsrc.values())[0][0] == "z":
            k(f"ds_read_u16 v11, v9 offset:{2368 + 256 + 4*16 + 2}"); asked.add("xt")
            pre_xt = True
        else: pre_xt = False
        for _ in range(PD0): issue_load()
        for _ in range(min(self.cpre_pop, len(fq))): pop()
        if pre_xt: fq[0:0] = [(l, None) for l in ["v_lshl_or_b32 v11, v11, 16, v11"] + [f"v_and_b32 v{XT+i}, v{52+i}, v11" for i in range(3)]] + [(f"v_and_b32 v{XT+3}, v55, v11", "xt")]
        first = set()
        def acc(B, a_, b_, needs):
            c = v(ACC+4*B, 4) if B in first else "0"
            first.add(B)
            mf(f"{M16} {v(ACC+4*B,4)}, {v(a_,4)}, {v(b_,4)}, {c}", needs)
        def tick():
            for p in later: p[0] -= 1
            while later and min(p[0] for p in later) <= 0:
                i = min(range(len(later)), key=lambda i: later[i][0]); later.pop(i)[1]()
        s2done = set(); outq = [B for B in BS if B % 2 == 0][:-1]; lastz = None; ntoep = 0
        for st in steps:
            key, kind, p = st
            issue_load()
            r_ = reg[key]
            if kind in ("band", "both"):
                assert lastz is None or lastz in s2done, (name, st)
                lastz = p
                for ph in (0, 1, 2) + ((4,) if p in z3 else ()):
                    mf(f"{M16} {v(ZT+4*ph,4)}, {v(r_,4)}, {v(BAND+4*ph,4)}, 0", [key])
            for pp, kx in xsrc.items():
                if kx == key: acc(pp + 4, XT, r_, [key, "xt"])
            if kind in ("toep", "both"):
                j = key[1]; ntoep += 1
                if ntoep == 2 and xsrc: want("xt")
                for B in BS:
                    if 0 <= 8*B - j <= 16: acc(B, KF + 4*(8*B - j), r_, [key, ("kf", 8*B - j)])
                if outq and j >= 8*(outq[0] + 1) and all(q_ in s2done for q_ in z2 if q_ + 2 <= outq[0] + 1):
                    t_ = out_txt(outq.pop(0))
                    later += [[3, lambda t_=t_: fill(t_[0])], [5, lambda t_=t_: fill(t_[1])], [6, lambda t_=t_: fill(t_[2])]]
                tick()
            if kind == "band2":
                for ph in (3,) + ((5,) if p in z3 else ()):
                    mf(f"{M16} {v(ZT+4*ph,4)}, {v(r_,4)}, {v(BAND+4*ph,4)}, 0", [key])
                def mk_cvt(p, pr):
                    return lambda: fill("\n".join(f"v_cvt_pk_bf16_f32 v{ZP+4*pr+i}, v{ZT+8*pr+i}, v{ZT+8*pr+4+i}" for i in range(4)), ("zp", p, pr))
                def tiles(p, pr):
                    seg, Ds = (2, (2, 3, 4)) if pr < 2 else (3, (4, 5, 6, 7))
                    return [(D_, (seg, D_, pr % 2)) for D_ in Ds if p + D_ in BS]
                def mk_s2(p, pr, last):
                    def f():
                        for D_, kk_ in tiles(p, pr): acc(p + D_, ZP + 4*pr, k2t[kk_][0], [("zp", p, pr), kk_])
                        if last: s2done.add(p)
                    return f
                prs = [0, 1] + ([2] if p in z3 else [])
                d0 = (9 if not name else 3) if p == z2[0] else 0
                for pr in prs:
                    later.append([max(0, d0 - 4) + pr, lambda p=p, pr=pr: [want(kk_) for _, kk_ in tiles(p, pr)]])
                    later.append([1 + pr + d0 - d0//3, mk_cvt(p, pr)])
                    later.append([(4 if not name else 3) + pr + d0, mk_s2(p, pr, pr == prs[-1])])
        while later: tick()
        while fq: pop()
        assert not outq, (name, outq)
        self.st("conv" + name)
        for t_ in out_txt(BS[-2]): k(t_)
    conv("", list(range(8)), True)
    k.raw("L_A_skip:")
    k("s_cmp_lt_u32 s49, 24\ns_cbranch_scc1 L_A_R2")
    save = list(k.vm)
    k(f"s_mov_b32 s61, s65\ns_mov_b32 s69, s66\ns_add_u32 s70, s66, 4608\ns_and_b32 s4, s48, 1\ns_lshl_b32 s4, s4, 3\ns_add_u32 s4, s4, {EXE+4}\nv_mov_b32 v27, s4\ns_cmp_lt_u32 s48, 2\ns_cbranch_scc0 L_convH")
    conv("L", [0, 1, 2, 3], False)
    k("s_branch L_A_last")
    conv("H", [4, 5, 6, 7], False)
    k.raw("L_A_last:")
    k("v_mov_b32 v6, s71\nv_mov_b32 v22, s55\ns_mov_b64 exec, 1")
    k.wait_vm()
    k("global_store_dword v6, v22, s[46:47] sc1\ns_mov_b64 exec, -1")
    self.st("aend")
    g2b.nonce(self)
    self.fin()
    k.raw("L_A_R2:"); k.vm = list(save)
    k("v_min_u32 v30, 5, v1\nv_lshl_add_u32 v30, v30, 7, s12\nglobal_load_dwordx2 v[28:29], v30, s[46:47] sc1")
    spill("r")
    k(f"v_mov_b32 v6, s71\nv_mov_b32 v16, s55\nv_mov_b32 v17, s14\nv_mov_b32 v7, 1\nv_and_b32 v5, 3, v1\nv_lshlrev_b32 v5, 3, v5\nv_add_u32 v5, {EXE}, v5\nds_write_b32 v4, v7")
    g2b.p2_srd(self); g2b.p2_zero(self)
    vms = list(k.vm); k.vm = []
    self.poll("L_pollD", lambda: k("ds_read_b32 v26, v5"), lambda: k("v_cmp_ne_u32 vcc, 1, v26\ns_nop 1"))
    k.vm = vms
    k.wait_vm()
    k("v_cmp_ne_u64 s[72:73], v[28:29], v[16:17]\ns_mov_b64 exec, 1\nglobal_store_dword v6, v16, s[46:47] sc1\ns_mov_b64 exec, -1")
    self.st("aend")
    k("s_branch L_P2")
```

```python
from g2 import *
ASY = EXE + 1024
BND = 90112
GXL = 157696
def compute1(g):
    k = g.k
    AX, AWr, GX = 8, 10, 12
    GP = g.gpos
    k(f"""
    s_lshl_b32 s4, s54, 7
    s_lshl_b32 s5, s48, 5
    s_add_u32 s4, s4, s5
    v_lshl_add_u32 v16, v2, 1, s4
    s_add_u32 s4, s59, {128*GP}
    s_sub_u32 s5, s4, 1152
    s_min_u32 s4, s4, s5
    v_lshl_add_u32 v17, v3, 4, s4
    global_load_ushort v20, v16, s[36:37]
    global_load_ushort v21, v16, s[24:25]
    global_load_ushort v22, v16, s[26:27]
    s_load_dword s55, s[46:47], 0
    """)
    GF, GXF, GA = 64, 72, 80
    if g.prioC: k(f"s_setprio {g.prioC}")
    for ks in range(2): k(f"global_load_dwordx4 {v(GF+4*ks,4)}, v17, s[40:41] offset:{64*ks}")
    g.st("karg")
    k(f"""
    v_lshrrev_b32 v6, 1, v2
    v_xor_b32 v6, v6, v3
    v_lshlrev_b32 v6, 4, v6
    v_lshl_add_u32 v{AX}, v2, 7, v6
    v_xor_b32 v{AX+1}, 64, v{AX}
    s_lshl_b32 s4, s48, 11
    s_add_u32 s4, s4, {WSL}
    v_add_u32 v{AWr}, s4, v{AX}
    v_xor_b32 v{AWr+1}, 64, v{AWr}
    s_lshl_b32 s4, s48, 12
    v_add_u32 v{GX}, s4, v{AX}
    v_xor_b32 v{GX+1}, 64, v{GX}
    s_mov_b32 s76, s46
    s_mov_b32 s77, s47
    s_mov_b32 s78, {WS_SIZE}
    s_mov_b32 s79, 0x20000
    s_lshl_b32 s13, s53, 11
    s_add_u32 s13, s13, {WS_XI}
    s_lshl_b32 s5, s54, 2
    s_add_u32 s5, s5, s48                ; beta = 4j + w
    s_mul_i32 s6, s53, {2*HBLK}
    s_lshl_b32 s7, s5, 12
    s_add_u32 s60, s6, s7
    s_mul_i32 s4, s53, 36
    s_add_u32 s4, s4, s5
    s_lshl_b32 s4, s4, 7
    s_add_u32 s6, s4, {WS_HF}
    v_mov_b32 v6, s6
    s_add_u32 s4, s4, {WS_G}
    v_and_b32 v106, 7, v1
    v_lshl_add_u32 v106, v106, 2, s4
    v_lshl_add_u32 v106, v3, 5, v106
    s_lshl_b32 s10, s54, 14
    s_lshl_b32 s4, s48, 8
    s_add_u32 s10, s10, s4
    s_add_u32 s10, s10, {WS_S}
    v_lshl_add_u32 v16, v2, 4, s10
    s_lshl_b32 s11, s53, 10
    v_add_u32 v17, s11, v16
    v_lshrrev_b32 v29, 1, v3
    v_mul_u32_u24 v29, {HBLK}, v29
    v_and_b32 v5, 1, v3
    v_lshl_add_u32 v29, v5, 11, v29
    v_lshl_add_u32 v29, v2, 4, v29
    v_xor_b32 v30, 64, v29
    v_cmp_eq_u32 s[64:65], 0, v5
    v_lshlrev_b32 v31, 5, v3
    v_cvt_f32_u32 v31, v31               ; 32g
    v_mul_f32 v32, 4.0, v31              ; 128g
    v_sub_f32 v33, {fl(96.0)}, v31
    s_sub_u32 s4, s53, 1
    v_sub_u32 v28, s4, v3
    v_mov_b32 v4, 0x80000000
    """)
    for q in range(4):
        k(f"v_subrev_u32 v5, {4*q}, v28\nv_cmp_le_i32 s[{24+2*q}:{25+2*q}], 0, v5\nv_lshl_add_u32 v5, v5, 10, v16\nv_cndmask_b32 v{24+q}, v4, v5, s[{24+2*q}:{25+2*q}]")
    def late_setup():
        g.ids2(); p2_srd(g); p2_min(g); p2_setup(g)
        k(f"v_mov_b32 v116, s55\nv_mov_b32 v117, s14\ns_lshl_b32 s4, s52, 7\ns_add_u32 s4, s4, s12\nv_mov_b32 v119, s4")
    EO = 120
    k(f"s_mul_i32 s55, s55, {LCG_A}\ns_add_u32 s55, s55, {LCG_C}\ns_max_u32 s55, s55, 1\ns_not_b32 s62, s55\nv_mov_b32 v{EO+2}, s55\nv_mov_b32 v{EO+3}, s62")
    if g.p2q == 0: late_setup()
    k("v_and_b32 v118, 7, v1\nv_min_u32 v118, 5, v118\nv_and_b32 v5, 8, v1\nv_add_u32 v118, v118, v5\nv_lshl_add_u32 v118, v118, 7, s13")
    if not g.tmode: k(f"""
    v_lshrrev_b32 v52, 3, v1             ; hc
    v_and_b32 v53, 7, v1                 ; rg
    s_and_b32 s4, s48, 1
    s_lshl_b32 s5, s4, 2
    v_lshrrev_b32 v54, 1, v52
    v_add_u32 v54, s5, v54               ; chunk
    s_and_b32 s5, s48, 2
    v_lshrrev_b32 v55, 2, v53
    v_add_u32 v55, s5, v55
    v_lshlrev_b32 v56, 1, v55
    v_xor_b32 v54, v54, v56
    v_lshlrev_b32 v54, 4, v54
    v_lshl_add_u32 v54, v55, 9, v54
    v_bfe_u32 v55, v53, 1, 1
    v_lshl_add_u32 v54, v55, 7, v54
    v_and_b32 v55, 1, v52
    v_lshl_add_u32 v54, v55, 3, v54
    v_and_b32 v55, 1, v53
    v_lshl_add_u32 v54, v55, 13, v54
    v_xor_b32 v55, 16, v54
    s_lshr_b32 s5, s48, 1
    s_lshr_b32 s6, s59, 6
    s_add_u32 s6, s6, s4
    s_lshl_b32 s7, s53, 1
    s_add_u32 s7, s7, s5                 ; tb
    s_lshl_b32 s4, s6, 17
    s_lshl_b32 s5, s7, 7
    s_add_u32 s4, s4, s5
    s_add_u32 s4, s4, {WS_UT}
    v_lshl_add_u32 v58, v53, 4, s4
    v_lshl_add_u32 v58, v52, 14, v58
    s_lshl_b32 s6, s6, 5
    s_add_u32 s6, s6, s7
    s_lshl_b32 s6, s6, {g.tfs}
    s_add_u32 s6, s6, {WS_TF}
    v_mov_b32 v23, s6
    s_mov_b32 s66, 0x05040100
    s_mov_b32 s67, 0x07060302
    s_mov_b32 s72, 4096
    s_mov_b32 s73, 8192
    s_mov_b32 s74, 12288
    """)
    tr1, tr2 = Rec(), Rec()
    for i in range(8): tr1(f"ds_read_b64 {v(80+2*i,2)}, v{54 + (i & 1)} offset:{2048*(i>>1) + 256*(i&1)}")
    for e in range(4):
        for p in range(4): tr2(f"v_perm_b32 v{36+4*e+p}, v{80+4*p+2+e//2}, v{80+4*p+e//2}, s{66+e%2}")
        tr2(f"buffer_store_dwordx4 {v(36+4*e,4)}, v58, s[76:79], {'0' if e == 0 else 's%d' % (71+e)} offen sc1", tag="T")
    Z, LM, L32, L512, WH, MU, SS, WSr, WSi, MPr, MPi, EX, TB = 14, 18, 34, 36, 38, 40, 42, 44, 46, 48, 50, 52, 64
    tb = lambda j: TB + 2*(j - 1)
    TT = [112, 114, 60]
    cs = Rec()
    cs(f"""
    v_lshlrev_b32 v20, 16, v20
    v_mul_f32 v20, {fl(LOG2E)}, v20
    v_exp_f32 v20, v20
    v_lshlrev_b32 v{LM}, 16, v21
    v_lshlrev_b32 v{LM+1}, 16, v22
    v_cvt_pk_bf16_f32 v20, v20, v20
    v_mul_f32 v21, v{LM}, v{LM}
    v_and_b32 v20, 0xffff0000, v20
    v_fmac_f32 v21, v{LM+1}, v{LM+1}
    v_mul_f32 v{Z}, v20, v{LM}
    v_mul_f32 v{Z+1}, v20, v{LM+1}
    v_rcp_f32 v21, v21
    v_mul_f32 v{Z}, {fl(LOG2E)}, v{Z}
    v_mul_f32 v{Z+1}, {fl(INV2PI)}, v{Z+1}
    v_add_f32 v21, v21, v21
    v_mul_f32 v{LM}, v{LM}, v21
    v_mul_f32 v{LM+1}, -v{LM+1}, v21
    """)
    cpow_multi(cs, [(d0, d1, Z, Z+1, ex, TT[i], TT[i]+1) for i, (d0, d1, ex) in enumerate(((tb(1), tb(1)+1, "1.0"), (WSr+1, WSi+1, "v33"), (L512, L512+1, fl(512.0))))])
    cpow_multi(cs, [(d0, d1, Z, Z+1, ex, TT[i], TT[i]+1) for i, (d0, d1, ex) in enumerate(((WH, WH+1, "v32"), (MU, MU+1, "v31"), (tb(8), tb(8)+1, fl(8.0))))])
    cs(f"v_add_f32 v{TT[0]}, -1.0, v{tb(1)}")
    smul(cs, SS, SS+1, TT[0], tb(1)+1, LM, LM+1)
    sm = lambda d, x, y: smul(cs, d, d+1, x, x+1, y, y+1)
    for j, (x, y) in {2: (1, 1), 16: (8, 8), 3: (2, 1), 4: (2, 2), 9: (8, 1), 10: (8, 2), 5: (4, 1), 6: (4, 2), 7: (4, 3), 11: (8, 3), 12: (8, 4), 13: (8, 5), 14: (8, 6), 15: (8, 7)}.items():
        sm(tb(j), tb(x), tb(y))
    sm(L32, tb(16), tb(16))
    smul(cs, WSr, WSi, tb(16), tb(16)+1, WSr+1, WSi+1)
    smul(cs, MPr, MPi, MU, MU+1, SS, SS+1)
    smul(cs, MPr+1, MPi+1, tb(16), tb(16)+1, MPr, MPi)
    cs(f"v_cndmask_b32 v{MU}, v{L32}, 1.0, s[64:65]\nv_cndmask_b32 v{MU+1}, v{L32+1}, 0, s[64:65]")
    for q in range(4): cs(f"v_cndmask_b32 v{EX+2*q}, 0, v{EO+2}, s[{24+2*q}:{25+2*q}]\nv_cndmask_b32 v{EX+2*q+1}, 0, v{EO+3}, s[{24+2*q}:{25+2*q}]")
    g.st("setup")
    R, I, XF, WF = 128, 160, 208, [240, 192]
    LA = g.xla
    def xread(n):
        q, m = divmod(n, 8); c, ks = divmod(q, 2)
        return f"ds_read_b128 {v(XF+4*m,4)}, v{AX+ks} offset:{16384*(c%3)+2048*m}"
    def wread(q, comp):
        c, ks = divmod(q, 2)
        return f"ds_read_b128 {v(WF[q%2]+4*comp,4)}, v{AWr+ks} offset:{16384*(c%3)+8192*comp}"
    if g.csig: k(f"s_lshl_b32 s4, s48, 2\ns_add_u32 s4, s4, {EXE}\nv_mov_b32 v7, s4\nv_mov_b32 v5, 0\nds_write_b32 v7, v5")
    k.wait_lg(); k("s_barrier"); g.st("c0")
    k(wread(0, 0)); k(xread(0)); k(wread(0, 1))
    for n in range(1, LA): k(xread(n))
    fq = []
    sched = {}; barp = {}; BL = g.xbl
    for q in range(1, 18):
        p0 = 8*q - (BL if q % 2 == 0 else 5)
        sched.setdefault(p0, []).append(wread(q, 0)); sched.setdefault(p0 + 1, []).append(wread(q, 1))
        if q % 2 == 0: barp[p0] = q // 2
    for n in range(LA, 144):
        sched.setdefault(max(n - LA, n - n % 16 - BL + (n % 16 + 1)//2), []).append(xread(n))
    q0, q1 = g.cs_span
    per = -(-len(cs.items) // (q1 - q0))
    for q in range(18):
        g.st(f"q{q}")
        if q == 0 and not g.tmode and not g.noT: fq += tr1.items + tr2.items
        if q0 <= q < q1: fq += cs.items[(q-q0)*per:(q-q0+1)*per]
        if q == 2*GP + 2:
            gs = Rec()
            for n_ in (4, 2, 1):
                gs(f"v_and_b32 v107, {n_}, v1\nv_cmp_ne_u32 vcc, 0, v107")
                for i in range(n_): gs(f"v_cndmask_b32 v{108 if n_ == 1 else GA+i}, v{GA+i}, v{GA+i+n_}, vcc")
            fq += [("nop", None, None)]*6 + gs.items
        if q == g.tq and not g.tmode:
            fq.insert(0, ("wv", "T", None)); fq.insert(1, ("g", ["s_mov_b64 exec, 1", f"global_store_dword v23, v{EO+2}, s[46:47] sc1", "s_mov_b64 exec, -1"], None))
        if q == g.xq:
            fq.insert(0, ("raw", "    s_cmp_lg_u32 s48, 0\n    s_cbranch_scc1 L_xp1\n    s_mov_b64 exec, 1\n    global_store_dwordx2 v119, v[116:117], s[46:47] sc1\n    s_mov_b64 exec, -1\nL_xp1:", None))
        for m in range(8):
            pos = 8*q + m
            if pos in barp:
                assert not any(it[0] == "i" and it[1].startswith("ds_read") for it in fq)
                if barp[pos] == g.p2q: late_setup()
                k.wait_lg(); k("s_barrier"); g.st(f"c{barp[pos]}")
            rl_ = list(sched.get(pos, []))
            if q // 2 == GP and m in (0, 1): rl_.append(f"ds_read_b128 {v(GXF+4*m,4)}, v{GX+q%2} offset:{16384*(GP%3)+2048*m}")
            for comp, A_ in enumerate((R, I)):
                k(f"{M16} {v(A_+4*m,4)}, {v(XF+4*m,4)}, {v(WF[q%2]+4*comp,4)}, {'0' if q == 0 else v(A_+4*m,4)}")
                mine = rl_[:(len(rl_) + 1)//2] if comp == 0 else rl_[(len(rl_) + 1)//2:]
                for r_ in mine: k(r_)
                for _ in range((1 if comp == 1 else 2) - len(mine) + (1 if len(fq) > 2*(16 - 2*m) else 0)):
                    if fq: play(k, fq.pop(0))
        if q // 2 == GP:
            for mm in range(2): k(f"{M16} {v(GA+4*mm,4)}, {v(GXF+4*mm,4)}, {v(GF+4*(q%2),4)}, {'0' if q % 2 == 0 else v(GA+4*mm,4)}")
        if q == g.tq: g.st("Tst")
    while fq: play(k, fq.pop(0))
    g.st("gemm1")
    for st in range(1, 16):
        pk_bc(k, R+2*st, R+2*st-2, tb(1), 0, R+2*st)
        pk_bc(k, I+2*st, I+2*st-2, tb(1), 0, I+2*st)
        pk_bc(k, R+2*st, I+2*st-2, tb(1), 1, R+2*st, neg=True)
        pk_bc(k, I+2*st, R+2*st-2, tb(1), 1, I+2*st)
    T = 208
    k(f"v_pk_mul_f32 {v(T,2)}, {v(R+30,2)}, {v(WSr,2)}\nv_pk_mul_f32 {v(T+2,2)}, {v(I+30,2)}, {v(WSr,2)}")
    k(f"v_pk_fma_f32 {v(T,2)}, {v(I+30,2)}, {v(WSi,2)}, {v(T,2)} neg_lo:[1,0,0] neg_hi:[1,0,0]\nv_pk_fma_f32 {v(T+2,2)}, {v(R+30,2)}, {v(WSi,2)}, {v(T+2,2)}")
    k(f"v_add_f32 v{T}, v{T}, v{T+1}\nv_add_f32 v{T+1}, v{T+2}, v{T+3}")
    def allred(x, o):
        k(f"v_permlane32_swap_b32 v{x}, v{x+1}\nv_add_f32 v{x+2}, v{x}, v{x+1}\nv_add_f32 v{x+3}, v{x}, v{x+1}\nv_permlane16_swap_b32 v{x+2}, v{x+3}")
        k(f"v_add_f32 v{o}, v{x+2}, v{x+3}\nv_add_f32 v{o+1}, v{x+2}, v{x+3}\nv_permlane32_swap_b32 v{o}, v{o+1}")
    allred(T, EO)
    k.vm = []
    k(f"s_mov_b64 exec, 0xffff\nglobal_store_dwordx4 v17, {v(EO,4)}, s[46:47] sc1\ns_mov_b64 exec, -1")
    g.st("pub")
    def smalls():
        k("global_load_dwordx2 v[228:229], v118, s[46:47] sc1")
        k("s_mov_b32 exec_lo, 0xff00ff\ns_mov_b32 exec_hi, 0xff00ff\nglobal_store_dword v106, v108, s[46:47] sc1\ns_mov_b64 exec, -1")
    if g.sm_early == 3:
        k("s_mov_b32 exec_lo, 0xff00ff\ns_mov_b32 exec_hi, 0xff00ff\nglobal_store_dword v106, v108, s[46:47] sc1\ns_mov_b64 exec, -1")
        if not g.xearly: p2_loads(g)
    elif g.sm_early: smalls()
    if g.sm_early == 2 and not g.xearly: p2_loads(g)
    for st in range(16):
        a, b = T + 4*(st % 2), T + 4*(st % 2) + 2
        pk_bc(k, a, R+2*st, SS, 0); pk_bc(k, b, R+2*st, SS, 1)
        pk_bc(k, R+2*st, I+2*st, SS, 1, a, neg=True); pk_bc(k, I+2*st, I+2*st, SS, 0, b)
    CPr, CPi = WSr, WSi
    F, Q, Y, U_ = T, T + 2, T + 4, T + 6
    smul(k, F, F+1, tb(16), tb(16)+1, R+30, I+30, R+31, I+31)
    k(f"v_mov_b64 {v(Q,2)}, 0\nv_mov_b64 {v(Y,2)}, {v(F,2)}\nv_mov_b64 {v(U_,2)}, 0\nv_permlane16_swap_b32 v{Q}, v{Y}\nv_permlane16_swap_b32 v{Q+1}, v{Y+1}")
    cmac(k, [(F, Q, L32, F)])
    k(f"v_mov_b64 {v(Y,2)}, {v(F,2)}\nv_permlane16_swap_b32 v{F}, v{Y}\nv_permlane16_swap_b32 v{F+1}, v{Y+1}\nv_permlane32_swap_b32 v{U_}, v{Y}\nv_permlane32_swap_b32 v{U_+1}, v{Y+1}")
    smul(k, CPr, CPi, MU, MU+1, U_, U_+1, Q, Q+1)
    smul(k, CPr+1, CPi+1, tb(16), tb(16)+1, CPr, CPi, R+30, I+30)
    g.st("prep")
    PD = 232
    def issS():
        for q in range(4): k(f"buffer_load_dwordx4 {v(PD+4*q,4)}, v{24+q}, s[76:79], 0 offen sc1")
    def chkS():
        for q in range(4): k(f"v_cmp_ne_u64 s[{24+2*q}:{25+2*q}], {v(PD+4*q+2,2)}, {v(EX+2*q,2)}")
        k("s_or_b64 s[24:25], s[24:25], s[26:27]\ns_or_b64 vcc, s[28:29], s[30:31]\ns_or_b64 vcc, vcc, s[24:25]")
    if g.csig:
        vms = list(k.vm); k.vm = []
        g.poll("L_pollC", lambda: k("ds_read_b32 v5, v7"), lambda: k("v_cmp_ne_u32 vcc, 1, v5\ns_nop 0"))
        k.vm = vms; g.st("Csig")
    if g.sdel: k(f"s_sleep {g.sdel}")
    if g.sm_early == 3: k("global_load_dwordx2 v[228:229], v118, s[46:47] sc1")
    issS()
    if not g.sm_early: smalls()
    if not g.xearly and g.sm_early < 2: p2_loads(g)
    chkS(); k("s_cbranch_vccz L_pollS_done" if not g.nosw else "s_branch L_pollS_done")
    vms = list(k.vm)
    g.poll("L_pollS", issS, chkS)
    k.vm = vms
    g.st("Sarr")
    for q in (2, 1, 0): cmac(k, [(PD+4*q, PD+4*q+4, L512, PD+4*q)])
    cmul_multi(k, [(T, PD, WH, T+2)])
    HH = T + 4
    allred(T, HH)
    k("v_cmp_ne_u64 s[72:73], v[228:229], v[116:117]")
    pk_bc(k, CPr, MPr, HH, 0, CPr); pk_bc(k, CPi, MPi, HH, 0, CPi)
    pk_bc(k, CPr, MPi, HH, 1, CPr, neg=True); pk_bc(k, CPi, MPr, HH, 1, CPi)
    k("s_cmp_lg_u64 s[72:73], 0")
    HO = 216
    def tail(sc):
        for comp in range(2):
            A_, c0, c1 = (R, CPr, CPi) if comp == 0 else (I, CPi, CPr)
            n = "-" if comp else ""
            for hh in range(2):
                for st in range(8*hh, 8*hh + 8): pk_bc(k, A_+2*st, c0, tb(st+1), 0, A_+2*st)
                for st in range(8*hh, 8*hh + 8): pk_bc(k, A_+2*st, c1, tb(st+1), 1, A_+2*st, neg=(comp == 0))
                for half in range(2):
                    o = HO + 16*comp + 8*hh + 4*half
                    for i in range(4): k(f"v_cvt_pk_bf16_f32 v{o+i}, {n}v{A_+16*hh+4*i+half}, {n}v{A_+16*hh+4*i+2+half}")
                    k(f"buffer_store_dwordx4 {v(o,4)}, v{29+hh}, s[68:71], s60 offen offset:{1024*comp+256*(2*half+hh)} {sc}")
        g.st("hst")
        if not g.xearly: k.raw("    s_waitcnt vmcnt(8)"); k.vm = k.vm[-8:]
        p2_unpack(g)
        k("s_mov_b64 exec, 1")
        k.raw("    s_waitcnt vmcnt(0)"); k.vm = []
        k(f"global_store_dword v6, v{EO+2}, s[46:47] {sc}\ns_mov_b64 exec, -1")
        g.st("flag")
        if g.gpf: k("global_load_dword v28, v104, s[46:47] sc1\nglobal_load_dword v29, v109, s[46:47] sc1")
        p2_zero(g)
    if g.fast:
        k("s_cbranch_scc1 L_slow")
        g.slow_tail = lambda: tail("sc1")
        tail(g.hst)
    else: tail("sc1")
    k.raw("L_tail_done:"); k.vm = []

XR, DBR, DBF = [200, 202, 204, 206, 124, 126], [102, 110, 98], 64
XB = list(range(76, 96)) + list(range(20, 24))
AR = 32
def p2_loads(g):
    k = g.k
    for jj in range(3):
        k(f"global_load_dwordx2 {v(XR[jj],2)}, v100, s[8:9] offset:{64*jj}\nglobal_load_dwordx2 {v(XR[3+jj],2)}, v101, s[8:9] offset:{64*jj}\nglobal_load_dwordx2 {v(DBR[jj],2)}, v99, s[38:39] offset:{64*jj}")
    k("v_lshlrev_b32 v100, 1, v100\nv_lshlrev_b32 v101, 1, v101")
def p2_unpack(g):
    k = g.k
    for jj in range(3):
        for h in range(2): k(f"v_lshlrev_b32 v{DBF+4*jj+2*h}, 16, v{DBR[jj]+h}\nv_and_b32 v{DBF+4*jj+2*h+1}, 0xffff0000, v{DBR[jj]+h}")
    for q in range(12): k(f"v_lshlrev_b32 v{XB[2*q]}, 16, v{XR[q//2]+q%2}\nv_and_b32 v{XB[2*q+1]}, 0xffff0000, v{XR[q//2]+q%2}")
    for q in range(12): k(f"v_pk_mul_f32 {v(XB[2*q],2)}, {v(XB[2*q],2)}, {v(DBF+2*(q%6),2)}")
def p2_zero(g):
    for q in range(12): g.k(f"v_mov_b64 {v(AR+2*q,2)}, 0")
def p2_srd(g):
    g.k(f"s_mov_b32 s68, s42\ns_mov_b32 s69, s43\ns_mov_b32 s70, 4718592\ns_mov_b32 s71, 0x20000")
def p2_min(g):
    k = g.k
    k(f"""
    s_cmp_lt_u32 s48, 2
    s_cselect_b32 s16, s32, s34
    s_cselect_b32 s17, s33, s35
    s_mov_b32 s18, 663552
    s_mov_b32 s19, 0x20000
    s_getreg_b32 s14, hwreg(HW_REG_XCC_ID, 0, 4)
    s_lshl_b32 s12, s56, 10
    s_add_u32 s12, s12, {WS_XI}
    s_lshl_b32 s23, s52, 7
    s_add_u32 s23, s23, s12
    s_lshl_b32 s4, s48, 2
    s_add_u32 s23, s23, s4
    s_mov_b32 s{UO[0]}, s57
    s_lshr_b32 s4, s56, 1
    s_mul_i32 s4, s4, {36*128}
    s_add_u32 s4, s4, {WS_HF}
    v_min_u32 v62, 35, v1
    v_lshl_add_u32 v62, v62, 7, s4
    s_mul_i32 s4, s56, {HBLK}
    s_lshl_b32 s15, s48, 12
    s_add_u32 s4, s4, s15
    s_add_u32 s4, s4, {0 if g.hout else WS_H}
    v_lshl_add_u32 v63, v1, 4, s4
    """)
    offsets(k, UO)
def p2_setup(g):
    k = g.k
    k(f"""
    s_lshl_b32 s4, s56, 6
    v_lshrrev_b32 v96, 3, v0             ; tl
    v_add_u32 v97, s4, v96
    v_and_b32 v98, 7, v0                 ; dl
    s_mul_i32 s5, s52, 192
    v_lshl_add_u32 v99, v98, 3, s5
    v_mul_u32_u24 v100, 1152, v97
    v_add_u32 v100, v100, v99
    v_add_u32 v101, {32*1152}, v100
    """)
    k(f"""
    s_lshr_b32 s4, s56, 1
    s_mul_i32 s4, s4, {9*512}
    s_lshl_b32 s5, s51, 6
    s_add_u32 s4, s4, s5
    s_lshr_b32 s5, s48, 1
    s_lshl_b32 s5, s5, 2
    s_add_u32 s4, s4, s5
    s_and_b32 s5, s48, 1
    s_lshl_b32 s5, s5, 8
    s_add_u32 s4, s4, s5
    s_add_u32 s4, s4, {WS_G}
    v_lshrrev_b32 v102, 3, v1
    v_and_b32 v109, 3, v102
    v_lshl_add_u32 v109, v109, 3, s4
    v_lshrrev_b32 v104, 5, v1
    v_lshl_add_u32 v109, v104, 7, v109
    v_lshl_add_u32 v104, v98, 9, v109
    v_add_u32 v109, 4096, v109
    s_mul_i32 s4, s52, 43
    s_lshr_b32 s4, s4, 5
    s_mul_i32 s4, s4, {14*128}
    s_add_u32 s4, s4, {WS_AF}
    v_min_u32 v105, 27, v1
    v_lshl_add_u32 v105, v105, 7, s4
    s_mul_i32 s4, s52, 96
    s_mul_i32 s5, s48, 24
    s_add_u32 s4, s4, s5
    s_lshl_b32 s4, s4, 12
    s_lshl_b32 s5, s56, 7
    s_add_u32 s4, s4, s5
    s_add_u32 s4, s4, {WS_A}
    v_lshl_add_u32 v253, v102, 12, s4
    v_lshrrev_b32 v254, 5, v1
    s_mul_i32 s5, s48, 6
    v_add_u32 v254, s5, v254
    """)
    for n in range(3): k(f"v_add_u32 v255, {2*n}, v254\nv_xor_b32 v255, v255, v1\nv_and_b32 v255, 7, v255\nv_lshl_add_u32 v{248+n}, v255, 4, v253")
    k(f"""
    s_mul_i32 s4, s52, 96
    s_and_b32 s5, s48, 1
    s_mul_i32 s5, s5, 48
    s_add_u32 s4, s4, s5
    v_add_u32 v253, s4, v102
    v_mul_u32_u24 v253, 1152, v253
    v_xor_b32 v254, v98, v3
    v_lshl_add_u32 v253, v254, 4, v253   ; vC0
    v_xor_b32 v254, 64, v253
    v_add_u32 v254, 8192, v254           ; vC1
    s_mul_i32 s22, s48, 12288
    s_add_u32 s22, s22, {CST}
    s_mul_i32 s21, s48, 3072
    s_and_b32 s4, s48, 1
    s_lshl_b32 s4, s4, 2
    s_lshr_b32 s5, s48, 1
    s_add_u32 s4, s4, s5
    v_xor_b32 v251, s4, v98
    v_lshlrev_b32 v251, 4, v251
    v_lshl_add_u32 v251, v98, 9, v251
    v_lshl_add_u32 v251, v102, 1, v251
    v_add_u32 v251, {AST}, v251
    v_xor_b32 v252, 32, v251
    v_mul_u32_u24 v96, 400, v96
    v_lshl_add_u32 v96, v98, 4, v96
    v_add_u32 v96, {IMG}, v96
    """)

def loader2(g):
    k = g.k
    k.raw("L_P2:"); k.vm = []; k.lg = []
    GG, OM = 58, 60
    g.poll("L_pollH", lambda: k("global_load_dword v97, v62, s[46:47] sc1"), lambda: k("v_cmp_ne_u32 vcc, s55, v97\ns_nop 1"))
    g.st("Harr")
    def h_dma(u):
        k(f"s_add_u32 m0, s15, {16384*(u%6)}\ns_lshl_b32 s63, s{UO[u]}, 7")
        for n in range(4): k(f"buffer_load_dwordx4 v63, s[68:71], s63 offen offset:{1024*n} {g.hld} lds", tag=("h", u))
    def c_blk(n):
        k(f"s_add_u32 m0, s22, {2048*(n%6)}\ns_add_u32 s20, s{UO[n//3]}, {18432*(n%3)}\nbuffer_load_dwordx4 v253, s[16:19], s20 offen lds\nbuffer_load_dwordx4 v254, s[16:19], s20 offen offset:1024 lds", tag="C")
    def bar(u, *tags):
        for t in tags: k.wait_vm(t)
        k("s_barrier"); g.st(f"u{u}")
    cb = list(range(g.cmf, 27))
    h_dma(0); h_dma(1)
    k(f"v_lshlrev_b32 v26, 2, v2\nv_add_u32 v26, {ASY}, v26\nv_mov_b32 v28, 0\nds_write_b32 v26, v28\ns_lshl_b32 s4, s48, 2\ns_add_u32 s4, s4, {ASY}\nv_mov_b32 v25, s4\nv_and_b32 v26, 3, v1\nv_lshlrev_b32 v26, 2, v26\nv_add_u32 v26, {ASY}, v26"); k.wait_lg()
    bar(0, ("h", 0)); h_dma(2)
    bar(1, ("h", 1)); h_dma(3)
    bar(2, ("h", 2)); h_dma(4); h_dma(5)
    bar(3, ("h", 4))
    assert not cb or g.bar7
    chk = lambda: k("v_xor_b32 v68, s55, v68\nv_xor_b32 v69, s55, v69\nv_xor_b32 v70, s55, v70\nv_xor_b32 v71, s55, v71\nv_or3_b32 v68, v68, v69, v70\nv_or_b32 v68, v68, v71\nv_cmp_ne_u32 vcc, 0, v68\ns_nop 0")
    def smalls():
        k("global_load_dwordx4 v[68:71], v105, s[46:47] sc1", tag="af")
        for ii in range(2): k(f"global_load_dword v{GG+ii}, v104, s[46:47] offset:{32*ii} sc1\nglobal_load_dword v{56+ii}, v109, s[46:47] offset:{32*ii} sc1")
    for u in (6, 7, 8):
        if g.smpos == u: smalls()
        h_dma(u)
    if g.smpos == 9 and not cb: smalls()
    k("v_mov_b32 v64, s55\nv_mov_b32 v31, s23\nv_min_u32 v30, 23, v1\nv_lshrrev_b32 v66, 2, v30\nv_and_b32 v30, 3, v30\nv_lshlrev_b32 v30, 2, v30\nv_lshl_add_u32 v30, v66, 7, v30\nv_add_u32 v30, s12, v30")
    bar(5, ("h", 6 if g.bar7 else 5))
    def a_fetch(lab):
        k.wait_vm("af"); chk(); k(f"s_cbranch_vccz {lab}_done" if not g.noaw else f"s_branch {lab}_done")
        save = list(k.vm)
        g.poll(lab, lambda: k(f"s_sleep {g.asleep}\nglobal_load_dwordx4 v[68:71], v105, s[46:47] sc1"), chk)
        k.vm = save
        g.st("Aarr")
        k(f"s_add_u32 m0, s21, {AST}")
        for n in range(3): k(f"s_mov_b32 s4, {32768*n - 1024*n}\nbuffer_load_dwordx4 v{248+n}, s[76:79], s4 offen offset:{1024*n} sc1 lds", tag="a")
    for n in cb: c_blk(n)
    if g.smpos == 9 and cb: smalls()
    if not g.a_late: a_fetch("L_pollA")
    bar(7 if g.bar7 else 6, ("h", 8), "C")
    if g.prioE: k(f"s_setprio {g.prioE}")
    if g.a_late: a_fetch("L_pollA")
    k("s_cmp_lg_u64 s[72:73], 0\ns_mov_b64 exec, 1\ns_cbranch_scc1 L_dfs\nglobal_store_dword v31, v64, s[46:47] offset:16\ns_branch L_dfd"); k.vm.pop()
    k.raw("L_dfs:"); k("global_store_dword v31, v64, s[46:47] offset:16 sc1"); k.raw("L_dfd:"); k("s_mov_b64 exec, -1")
    for ctl in ("quad_perm:[1,0,3,2]", "quad_perm:[2,3,0,1]", "row_half_mirror"):
        for ii in range(2): k(f"v_add_f32_dpp v{GG+ii}, v{GG+ii}, v{GG+ii} {ctl} row_mask:0xf bank_mask:0xf")
    for ii in range(2): k(f"v_add_f32 v{GG+ii}, v{GG+ii}, v{56+ii}\nv_mul_f32 v{GG+ii}, {fl(-LOG2E)}, v{GG+ii}")
    for ii in range(2): k(f"v_exp_f32 v{GG+ii}, v{GG+ii}")
    for ii in range(2): k(f"v_add_f32 v{GG+ii}, 1.0, v{GG+ii}")
    for ii in range(2): k(f"v_rcp_f32 v{GG+ii}, v{GG+ii}")
    for ii in range(2): k(f"v_sub_f32 v{OM+ii}, 1.0, v{GG+ii}")
    for q in range(24): k(f"v_mul_f32 v{XB[q]}, v{XB[q]}, v{OM+q//12}")
    k("global_load_dword v66, v30, s[46:47] offset:16 sc1")
    k.wait_vm("a")
    k("ds_write_b32 v25, v64")
    vms = list(k.vm); k.vm = []
    g.poll("L_pollY", lambda: k("ds_read_b32 v27, v26"), lambda: k("v_cmp_ne_u32 vcc, s55, v27\ns_nop 0"))
    k.vm = vms
    g.st("u8")
    for q in range(24): k(f"ds_read_u16_d16_hi v{AR+q}, v{251+q//12} offset:{128*(q%4)+4096*((q%12)//4)}")
    for q in range(24): k(f"v_fmac_f32 v{XB[q]}, v{AR+q}, v{GG+q//12}")
    k("v_cmp_ne_u32 vcc, s55, v66\ns_nop 0\ns_cbranch_vccz L_pollF_done")
    g.poll("L_pollF", lambda: k("global_load_dword v66, v30, s[46:47] offset:16 sc1"), lambda: k("v_cmp_ne_u32 vcc, s55, v66\ns_nop 0"))
    g.st("Farr")
    E0 = 128
    for ii in range(2):
        vms = list(k.vm); k.vm = []
        g.poll(f"L_pollI{ii}", lambda: k(f"ds_read_b32 v27, v26 offset:{16+16*ii}"), lambda: k("v_cmp_ne_u32 vcc, 1, v27\ns_nop 0"))
        k.vm = vms; g.st(f"img{ii}")
        for jj in range(3):
            q = 3*ii + jj
            k(f"ds_read_b128 {v(E0+8*q,4)}, v96 offset:{12800*ii+128*jj}\nds_read_b128 {v(E0+8*q+4,4)}, v96 offset:{25600+12800*ii+128*jj}")
        for jj in range(3):
            q = 3*ii + jj
            if ii == 0:
                for e_ in range(4): k(f"v_add_f32 v{E0+8*q+e_}, v{E0+8*q+e_}, v{E0+8*q+4+e_}")
                for e_ in range(4): k(f"v_fma_f32 v{E0+8*q+e_}, v{E0+8*q+e_}, v{OM}, v{XB[4*jj+e_]}")
            else:
                for h in range(2): k(f"v_pk_add_f32 {v(E0+8*q+2*h,2)}, {v(E0+8*q+2*h,2)}, {v(E0+8*q+4+2*h,2)}")
                for h in range(2): pk_bc(k, E0+8*q+2*h, E0+8*q+2*h, OM, ii, XB[12+4*jj+2*h])
            k(f"global_store_dwordx4 v{100+ii}, {v(E0+8*q,4)}, s[42:43] offset:{128*jj} {g.ost}")
    g.st("stiss")
    k.out.append("L_fin2:")
    g.fin()
    if g.fast:
        g.enter("L_slow", karg=False); k("s_nop 1"); g.slow_tail(); k("s_branch L_tail_done")

def nonce(g):
    k = g.k
    assert not g.tmode
    k(f"s_lshl_b32 s4, s49, 3\ns_add_u32 s4, s4, s50\ns_lshl_b32 s4, s4, 3\ns_add_u32 s4, s4, s48\ns_cmp_lg_u32 s4, {(31*8 + 0)*8 + 2}\ns_cbranch_scc1 L_fin3")
    k(f"v_min_u32 v8, 55, v1\nv_lshlrev_b32 v8, 8, v8\nv_add_u32 v8, {WS_AF}, v8")
    def iss():
        k(f"s_sleep {g.wsleep}")
        for i in range(2): k(f"global_load_dwordx4 {v(64+4*i,4)}, v8, s[46:47] offset:{128*i} sc1")
    def chk():
        for i in range(8): k(f"v_xor_b32 v{64+i}, s55, v{64+i}")
        for i in range(1, 8): k(f"v_or_b32 v64, v64, v{64+i}")
        k("v_cmp_ne_u32 vcc, 0, v64\ns_nop 1")
    g.poll("L_pollW", iss, chk)
    k("v_mov_b32 v6, 0\nv_mov_b32 v7, s55\ns_mov_b64 exec, 1\nglobal_store_dword v6, v7, s[46:47] sc1\ns_mov_b64 exec, -1")
    k.out.append("L_fin3:")

def loader1(g):
    k = g.k
    k(f"""
    s_sub_u32 s62, s48, 4                ; lw
    v_lshrrev_b32 v4, 3, v1              ; rl
    v_and_b32 v5, 7, v1
    s_lshl_b32 s4, s54, 1
    v_xor_b32 v5, v5, v3
    s_and_b32 s5, s62, 1
    v_lshlrev_b32 v5, 4, v5
    s_add_u32 s4, s4, s5
    v_mad_u32_u24 v6, v4, s3, v5         ; rl*1152 + swizzled chunk
    s_mul_i32 s4, s4, {32*1152}
    s_mov_b32 s70, {0 if g.dbg_noP1 else 663552}
    s_mov_b32 s71, 0x20000
    v_add_u32 v12, s4, v6
    s_lshl_b32 s6, s62, 12
    v_xor_b32 v13, 64, v12
    v_add_u32 v14, {2*8192}, v12
    v_add_u32 v15, {3*8192}, v13
    v_add_u32 v13, 8192, v13
    v_and_b32 v8, 4, v4
    v_lshlrev_b32 v8, 3, v8
    v_and_b32 v9, 1, v4
    v_lshl_add_u32 v8, v9, 4, v8
    v_bfe_u32 v9, v4, 1, 1
    s_lshl_b32 s4, s53, 7
    s_lshl_b32 s5, s62, 2
    s_add_u32 s4, s4, s5
    v_add3_u32 v8, v8, v9, s4
    v_mad_u32_u24 v8, v8, s3, v5         ; x n=0
    s_mov_b32 s66, {0 if g.dbg_noP1 else 2359296}
    s_mov_b32 s67, 0x20000
    v_xor_b32 v9, 64, v8
    v_add_u32 v10, {2*1152-2048}, v8
    v_add_u32 v11, {66*1152-3072}, v9
    v_add_u32 v9, {64*1152-1024}, v9
    s_cmp_lt_u32 s62, 2
    s_mov_b64 s[64:65], s[8:9]
    s_cselect_b64 s[68:69], s[28:29], s[30:31]
    s_mov_b32 s10, s59
    """.replace("    s_sub_u32 s62", "    s_movk_i32 s3, 1152\n    s_sub_u32 s62"))
    CO = list(range(10, 19))
    def dma(c, parts="wx"):
        if "w" in parts:
            k(f"s_add_u32 m0, s6, {WSL + 16384*(c%3)}")
            for n in range(4): k(f"buffer_load_dwordx4 v{12+n}, s[68:71], s{CO[c]} offen offset:{1024*n} lds", tag=("c", c))
        if "x" in parts:
            k(f"s_add_u32 m0, s6, {XS + 16384*(c%3)}")
            for n in range(4): k(f"buffer_load_dwordx4 v{8+n}, s[64:67], s{CO[c]} offen offset:{1024*n} lds", tag=("c", c))
    def csetup():
        g.ids2()
        k(f"""
        s_mov_b32 s74, {0 if g.dbg_noC else 663552}
        s_mov_b32 s75, 0x20000
        s_mul_i32 s61, s62, 12288
        s_add_u32 s61, s61, {CST}
        s_cmp_lt_u32 s62, 2
        s_cselect_b32 s72, s32, s34
        s_cselect_b32 s73, s33, s35
        s_mov_b32 s{UO[0]}, s57
        s_mul_i32 s4, s52, 96
        s_and_b32 s5, s62, 1
        s_mul_i32 s5, s5, 48
        s_add_u32 s4, s4, s5
        s_mul_i32 s4, s4, 1152
        v_add_u32 v6, s4, v6                 ; vC0
        v_xor_b32 v7, 64, v6
        v_add_u32 v7, 8192, v7               ; vC1
        v_lshrrev_b32 v4, 1, v2
        v_xor_b32 v4, v4, v3
        v_lshlrev_b32 v4, 4, v4
        v_lshl_add_u32 v4, v2, 7, v4
        v_add_u32 v4, s61, v4
        v_xor_b32 v5, 64, v4
        """)
        offsets(k, UO)
    CU = lambda u: 88 + 24*(u % 7)
    def c_dma(n):
        k(f"s_add_u32 m0, s61, {2048*(n%6)}\ns_add_u32 s20, s{UO[n//3]}, {18432*(n%3)}\nbuffer_load_dwordx4 v6, s[72:75], s20 offen lds\nbuffer_load_dwordx4 v7, s[72:75], s20 offen offset:1024 lds", tag=("C", n))
    def c_drain(e, n):
        for ks in range(2): e(f"ds_read_b128 {v(CU(n//3)+12*ks+4*(n%3),4)}, v{4+ks} offset:{2048*(n%6)}", tag=("Cd", n))
    def cstream(n0, depth, sig=None):
        drained = 0
        for n in range(n0, g.cmf if not g.dbg_cskip else n0):
            D = depth(n)
            while drained <= n - D and drained < 21:
                k.wait_vm(("C", drained)); c_drain(k, drained); drained += 1
            if drained >= 21: k.wait_vm(("C", n - D))
            if n >= 6: k.wait_lg(("Cd", n - 6))
            c_dma(n)
            g.st(f'cb{n}')
            if n == sig: k(f"s_lshl_b32 s4, s62, 2\ns_add_u32 s4, s4, {EXE}\nv_mov_b32 v8, s4\nv_mov_b32 v9, 1\nds_write_b32 v8, v9")
        while drained < 21 and not g.dbg_cskip:
            k.wait_vm(("C", drained)); c_drain(k, drained); drained += 1
        k.wait_vm()
    g.st("karg")
    dma(0)
    offsets(k, CO)
    csetup()
    if g.prioL: k(f"s_setprio {g.prioL}")
    dma(1, g.first)
    for c in range(9):
        if g.nob8 and c == 8: break
        k.wait_vm(("c", 8 if (g.nob8 and c == 7) else c)); g.st(f"l{c}"); k("s_barrier")
        if c == 0: dma(1, [p for p in "wx" if p not in g.first])
        if c + 2 < 9: dma(c + 2)
        if c == (6 if g.nob8 else 7):
            for n in range(g.cpre): c_dma(n)
    cstream(g.cpre, lambda n: 5 if n < g.cfast else g.cthr, g.csig)
    k("s_branch L_CPF")
    vm_c = list(k.vm)
    g.enter("L_R2G"); k.vm = list(g.pvm); k(g.aids)
    UK0 = 34816
    RP = 28 if g.pure else 21
    HL = 55 if g.pure else 42
    k(f"""
    s_sub_u32 s62, s48, 4                ; lw
    v_lshrrev_b32 v4, 3, v1              ; rl
    s_mul_i32 s3, s62, 14
    v_and_b32 v8, 7, v1
    s_add_u32 s3, s3, s49
    v_mul_u32_u24 v6, 1152, v4
    s_sub_u32 s3, s3, 18
    """)
    if g.tmode:
        k(f"""
        s_lshr_b32 s72, s3, 2                ; col
        s_and_b32 s7, s3, 3
        s_lshl_b32 s4, s50, 2
        s_add_u32 s7, s7, s4                 ; tb
        s_mul_i32 s4, s7, {64*1152}
        s_lshl_b32 s5, s72, 7
        s_add_u32 s4, s4, s5
        v_lshl_add_u32 v9, v8, 4, v6
        v_add_u32 v9, s4, v9
        s_mul_i32 s63, s62, 12288
        s_add_u32 s63, s63, {CST}
        s_mov_b32 s78, 2359296
        s_mov_b32 s79, 0x20000
        s_cmp_ge_u32 s3, 36
        s_mov_b32 s76, s8
        s_mov_b32 s77, s9
        s_cbranch_scc1 L_noT1
        """)
        for n in range(8):
            k(f"s_add_u32 m0, s63, {1024*n}\ns_mov_b32 s4, {9216*n}\nv_xor_b32 v11, {16*n}, v9\nbuffer_load_dwordx4 v11, s[76:79], s4 offen lds")
        k.raw("L_noT1:")
    k(f"""
    v_xor_b32 v5, v8, v3
    v_lshl_add_u32 v6, v5, 4, v6
    v_mov_b32 v60, 0
    v_mov_b32 v61, 0
    s_lshl_b32 s4, s48, 3
    s_add_u32 s4, s4, {EXE}
    v_mov_b32 v10, s4
    ds_write_b64 v10, v[60:61]
    s_mul_i32 s4, s62, {AW}
    s_add_u32 s4, s4, {UK0}
    v_lshl_add_u32 v12, v1, 3, s4
    ds_write_b64 v12, v[60:61]
    s_and_b32 s4, s62, 1
    s_mul_i32 s4, s4, {AW}
    s_add_u32 s4, s4, {UK0 + 4*AW}
    v_lshl_add_u32 v12, v1, 3, s4
    ds_write_b64 v12, v[60:61]
    s_lshr_b32 s4, s3, 1
    s_mul_i32 s4, s4, {RP}
    v_mul_u32_u24 v20, {65536//RP + 1}, v1
    v_lshrrev_b32 v20, 16, v20           ; lane/RP
    v_mul_u32_u24 v21, {RP}, v20
    v_sub_u32 v21, v1, v21
    v_add_u32 v21, s4, v21
    v_lshrrev_b32 v22, 6, v21
    s_mul_i32 s4, s50, {g.rot1x}
    v_add_u32 v22, s4, v22
    v_mul_u32_u24 v25, 683, v21
    v_lshrrev_b32 v25, 16, v25
    v_mul_u32_u24 v25, 3, v25
    v_lshrrev_b32 v25, 1, v25
    v_lshlrev_b32 v20, 2, v20
    v_mul_u32_u24 v21, 1152, v21
    s_mov_b32 s70, 663552
    s_mov_b32 s71, 0x20000
    s_mov_b32 s66, 663552
    s_mov_b32 s67, 0x20000
    v_lshlrev_b32 v16, 4, v1
    """)
    k.raw("    s_getpc_b64 s[4:5]\n    s_add_u32 s4, s4, band_tab@rel32@lo+4\n    s_addc_u32 s5, s5, band_tab@rel32@hi+12")
    k(f"""
    s_lshl_b32 s6, s62, 11
    v_add_u32 v56, s6, v16
    v_mov_b32 v57, s5
    v_add_co_u32 v56, vcc, s4, v56
    s_add_u32 m0, s6, {BND}
    v_addc_co_u32 v57, vcc, 0, v57, vcc
    s_bitcmp1_b32 s3, 0
    s_cselect_b32 s68, s30, s28
    s_cselect_b32 s69, s31, s29
    s_cselect_b32 s64, s34, s32
    s_cselect_b32 s65, s35, s33
    """)
    k.wait_lg(); k("s_barrier")
    npf = [0]
    def touch(pat, rot, srd):
        d = 64 + npf[0]; npf[0] += 1
        k(f"s_mov_b32 s4, {pat}\nv_bfe_u32 v23, s4, v20, 4\nv_add_u32 v23, v23, v{rot}\nv_mul_u32_u24 v24, 7282, v23\nv_lshrrev_b32 v24, 16, v24\nv_mul_u32_u24 v24, 9, v24\nv_sub_u32 v23, v23, v24\nv_lshl_add_u32 v23, v23, 7, v21")
        k._wait(vm=g.pf_depth)
        k(f"buffer_load_dword v{d}, v23, s[{srd}:{srd+3}], 0 offen")
    if not g.wfirst:
        for pat in g.bpf: touch(pat, 22, 68)
    for pat in g.bpf0: touch(pat, 22, 68)
    k("global_load_dword v62, v60, s[46:47]\nglobal_load_lds_dwordx4 v[56:57], off\nglobal_load_lds_dwordx4 v[56:57], off offset:1024")
    k(f"""
    s_mov_b32 s76, s46
    s_mov_b32 s77, s47
    s_mov_b32 s78, {WS_SIZE}
    s_mov_b32 s79, 0x20000
    v_lshrrev_b32 v15, 5, v1
    v_mad_u32_u24 v15, v15, 5, s60
    v_min_u32 v15, 575, v15
    v_lshrrev_b32 v15, {6 if g.tmode else 5}, v15
    v_and_b32 v14, 31, v1
    v_lshl_add_u32 v15, v15, 5, v14
    v_lshlrev_b32 v15, {g.tfs}, v15
    v_add_u32 v15, {WS_TF}, v15
    s_lshl_b32 s12, s60, 12
    s_add_u32 s12, s12, {WS_UT}
    s_mul_i32 s5, s3, {2*HL*128}
    s_mul_i32 s14, s50, {4*HBLK}
    s_add_u32 s4, s14, {4*HBLK - 128}
    s_add_u32 s5, s5, s14
    v_min_u32 v58, {HL-1}, v1
    v_lshl_add_u32 v58, v58, 7, s5
    v_add_u32 v59, {HL*128}, v58
    v_min_u32 v58, s4, v58
    v_min_u32 v59, s4, v59
    v_mov_b32 v19, {EXE+56}
    v_mov_b32 v60, 1
    """)
    if g.tmode:
        k(f"""
        s_mov_b32 s22, 0x05040100
        s_mov_b32 s23, 0x07060302
        s_lshl_b32 s5, s72, 18
        s_lshl_b32 s4, s7, 7
        s_add_u32 s5, s5, s4
        s_add_u32 s5, s5, {WS_UT}
        v_lshl_add_u32 v13, v8, 4, s5
        v_lshl_add_u32 v13, v4, 15, v13
        s_lshl_b32 s5, s72, 5
        s_add_u32 s5, s5, s7
        s_lshl_b32 s5, s5, {g.tfs}
        s_add_u32 s5, s5, {WS_TF}
        v_mov_b32 v14, s5
        v_xor_b32 v12, v4, v8
        v_lshlrev_b32 v12, 4, v12
        v_lshl_add_u32 v12, v8, 10, v12
        v_add_u32 v12, s63, v12
        """)
        k("s_cmp_ge_u32 s3, 36\ns_cbranch_scc1 L_noT")
        k._wait(vm=3); g.st("Tld")
        for i in range(8): k(f"ds_read_b128 {v(96+4*i,4)}, v12 offset:{128*i}")
        for e in range(8):
            for p in range(4): k(f"v_perm_b32 v{128+4*e+p}, v{96+8*p+4+e//2}, v{96+8*p+e//2}, s{22+e%2}")
            k(f"s_mov_b32 s4, {4096*e}\nbuffer_store_dwordx4 {v(128+4*e,4)}, v13, s[76:79], s4 offen sc1")
        k(f"v_readfirstlane_b32 s55, v62\ns_mul_i32 s55, s55, {LCG_A}\ns_add_u32 s55, s55, {LCG_C}\ns_max_u32 s55, s55, 1\nv_mov_b32 v17, s55")
        k("s_mov_b64 exec, 1"); k.wait_vm()
        k("global_store_dword v14, v17, s[46:47] sc1\ns_mov_b64 exec, -1"); g.st("Tst")
        k.raw("L_noT:"); k.vm = [({("v", 62)}, None), (set(), None), (set(), None)]
    if g.ctl:
        jobs = [(WS_HF, 72*128, 36, 0), (WS_HF, 72*128, 36, 36*128), (WS_G, 72*128, 36, 0), (WS_G, 72*128, 36, 36*128), (WS_XI, 32*128, 32, 0), (WS_AF, 14*128, 14, 0)]
        for i, (base, per, cnt, off) in enumerate(jobs):
            k(f"s_cmp_lg_u32 s3, {42+i}\ns_cbranch_scc1 L_ct{i}\ns_mul_i32 s5, s50, {per}\ns_add_u32 s5, s5, {base+off}\nv_min_u32 v30, {cnt-1}, v1\nv_lshl_add_u32 v30, v30, 7, s5\nglobal_load_dword v31, v30, s[46:47]"); k.vm.pop()
            k.raw(f"L_ct{i}:")
        k(f"s_sub_u32 s5, s3, 48\ns_cmp_ge_u32 s5, 3\ns_cbranch_scc1 L_cts\ns_mul_i32 s5, s5, {3*16384}\ns_lshl_b32 s4, s50, 11\ns_add_u32 s5, s5, s4\ns_add_u32 s5, s5, {WS_S}\nv_min_u32 v30, 2, v3\nv_lshlrev_b32 v30, 14, v30\nv_lshl_add_u32 v30, v2, 7, v30\nv_add_u32 v30, s5, v30\nglobal_load_dword v31, v30, s[46:47]"); k.vm.pop()
        k.raw("L_cts:")
    if g.pure:
        k("s_cmp_eq_u32 s62, 3\ns_cbranch_scc1 L_pure3")
        vm0 = list(k.vm)
        k._wait(vm=2); g.st("wl")
        for i, pat in enumerate(g.bpf):
            touch(pat, 22, 68)
            if i == 1: k._wait(vm=2); k("ds_write_b32 v10, v60")
        for pat in g.cpf[:g.cpf_pre]: touch(pat, 25, 64)
        for i in range(2): k._wait(vm=g.pf_depth); k(f"global_load_dword v{80+i}, v{58+i}, s[42:43]")
        for pat in g.cpf[g.cpf_pre:]: touch(pat, 25, 64)
        g.st("pre")
        k("s_branch L_pure_end")
        k.raw("L_pure3:"); k.vm = vm0
    elif g.wfirst:
        if not g.tmode: k._wait(vm=0 if g.wfirst == 1 else 2); g.st("wl")
        for pat in g.bpf: touch(pat, 22, 68)
    g.st("bpfi")
    if g.pure: g.cpf = []; g.hpre = 0; g.uwait = 0; g.r2skip = 1
    if g.hpre == 2:
        for i in range(2): k._wait(vm=g.pf_depth); k(f"global_load_dword v{80+i}, v{58+i}, s[42:43]")
    for pat in g.cpf[:g.cpf_pre]: touch(pat, 25, 64)
    for kind, pat in g.seq: touch(pat, 22 if kind == "B" else 25, 68 if kind == "B" else 64)
    if g.hpre == 3:
        for i in range(2): k._wait(vm=g.pf_depth); k(f"global_load_dword v{80+i}, v{58+i}, s[42:43]")
    k.wait_vm(); g.st("pre")
    k(f"v_readfirstlane_b32 s55, v62\ns_mul_i32 s55, s55, {LCG_A}\ns_add_u32 s55, s55, {LCG_C}\ns_max_u32 s55, s55, 1")
    k(f"s_cmp_lg_u32 s62, 3\ns_cbranch_scc1 L_pollT_skip")
    g.poll("L_pollT", lambda: k(f"s_sleep {g.tsleep}\nglobal_load_dword v18, v15, s[46:47] sc1"), lambda: k("v_cmp_ne_u32 vcc, s55, v18\ns_nop 1"))
    g.st("Tarr")
    for c in range(6):
        if c == 4: k("s_cmp_lt_u32 s49, 24\ns_cbranch_scc1 L_u4")
        k(f"s_mov_b32 m0, {UK0 + AW*c + 512}\ns_add_u32 s4, s12, {4096*c}")
        for n in range(4): k(f"buffer_load_dwordx4 v16, s[76:79], s4 offen offset:{1024*n} sc1 lds")
    k.raw("L_u4:")
    k("ds_write_b32 v10, v60 offset:4")
    k.wait_vm(); g.st("gath")
    k.raw("L_pollT_skip:")
    k("ds_write_b32 v10, v60")
    if g.uwait:
        g.poll("L_pollTw", lambda: k("s_sleep 2\nds_read_b32 v18, v19 offset:4"), lambda: k("v_cmp_ne_u32 vcc, 1, v18\ns_nop 1"))
    if g.pure: k.raw("L_pure_end:"); k.vm = [(set(("v", i) for i in range(64, 84)), None)]
    for pat in g.bpf2: touch(pat, 22, 68)
    if g.r2skip: k("s_cmp_lt_u32 s49, 24\ns_cbranch_scc1 L_R2C")
    if g.r3all:
        k(f"""
        s_sub_u32 s4, s49, 24
        s_lshl_b32 s4, s4, 2
        s_add_u32 s4, s4, s62
        s_mul_i32 s4, s4, 18
        v_mul_u32_u24 v20, 3641, v1
        v_lshrrev_b32 v20, 16, v20           ; lane/18
        v_mul_u32_u24 v21, 18, v20
        v_sub_u32 v21, v1, v21
        v_add_u32 v21, s4, v21
        v_mul_u32_u24 v25, 683, v21
        v_lshrrev_b32 v25, 16, v25
        v_mul_u32_u24 v25, 3, v25
        v_lshrrev_b32 v25, 1, v25
        v_lshlrev_b32 v20, 2, v20
        v_mul_u32_u24 v21, 1152, v21
        s_mov_b32 s64, s32
        s_mov_b32 s65, s33
        s_mov_b32 s68, s34
        s_mov_b32 s69, s35
        """)
        for pat in g.cpf[g.cpf_pre:]: touch(pat, 25, 64); touch(pat, 25, 68)
    else:
        for pat in g.cpf[g.cpf_pre:]: touch(pat, 25, 64)
    ho = 42 if g.hout else 46
    if g.hpre == 1 and not g.r2skip:
        for i in range(2): k._wait(vm=g.pf_depth); k(f"global_load_dword v{80+i}, v{58+i}, s[{ho}:{ho+1}]")
    if g.hpre == 1 and g.r2skip:
        k(f"s_sub_u32 s4, s49, 24\ns_lshl_b32 s4, s4, 2\ns_add_u32 s4, s4, s62\ns_mul_i32 s4, s4, {144*128}\ns_add_u32 s4, s4, s14\nv_min_u32 v58, 47, v1\nv_lshl_add_u32 v58, v58, 7, s4")
        for i in range(3): k._wait(vm=g.pf_depth); k(f"global_load_dword v{80+i}, v58, s[{ho}:{ho+1}]\nv_add_u32 v58, {48*128}, v58")
    k("s_cmp_lt_u32 s49, 24\ns_cbranch_scc1 L_R2C")
    save = list(k.vm)
    k.wait_vm(); g.st("pfdone")
    if g.awarm:
        k(f"""
        s_sub_u32 s4, s49, 24
        s_mul_i32 s5, s4, {14*128}
        s_add_u32 s5, s5, {WS_AF}
        v_min_u32 v20, 13, v1
        v_lshl_add_u32 v20, v20, 7, s5
        s_lshl_b32 s4, s4, 2
        s_add_u32 s4, s4, s62
        s_mul_i32 s4, s4, {18*4096}
        s_lshl_b32 s5, s50, 9
        s_add_u32 s4, s4, s5
        s_add_u32 s4, s4, {WS_A}
        v_min_u32 v21, 35, v1
        v_and_b32 v22, 3, v21
        v_lshrrev_b32 v21, 2, v21
        v_lshlrev_b32 v21, 12, v21
        v_lshl_add_u32 v21, v22, 7, v21
        v_add_u32 v21, s4, v21
        v_add_u32 v22, {9*4096}, v21
        """)
        g.poll("L_pollV", lambda: k(f"s_sleep {g.awarm}\nglobal_load_dwordx4 v[24:27], v20, s[46:47] sc1"),
               lambda: k("v_xor_b32 v24, s55, v24\nv_xor_b32 v25, s55, v25\nv_xor_b32 v26, s55, v26\nv_xor_b32 v27, s55, v27\nv_or3_b32 v24, v24, v25, v26\nv_or_b32 v24, v24, v27\nv_cmp_ne_u32 vcc, 0, v24\ns_nop 0"))
        k("global_load_dword v24, v21, s[46:47] sc1\nglobal_load_dword v25, v22, s[46:47] sc1")
        k.wait_vm(); g.st("awd")
    g.fin()
    k.raw("L_R2C:"); k.vm = [(set(("v", i) for i in range(64, 84)), None)] if g.r2skip else save; k.hist = []; k.lg = [(set(), None)]
    csetup()
    cstream(0, lambda n: g.cthr2)
    k.raw("L_CPF:"); k.vm = []; k.lg = [(set(), None)]
    k(f"""
    v_lshrrev_b32 v8, 1, v3
    v_lshlrev_b32 v8, 12, v8
    s_lshr_b32 s4, s62, 1
    s_lshl_b32 s5, s4, 10
    v_add_u32 v8, s5, v8
    v_bfe_u32 v9, v1, 1, 1
    v_lshl_add_u32 v8, v9, 8, v8
    v_and_b32 v10, 1, v3
    v_lshlrev_b32 v10, 3, v10
    v_bfe_u32 v11, v1, 2, 2
    v_add_u32 v10, v10, v11
    v_lshlrev_b32 v9, 2, v9
    v_xor_b32 v10, v10, v9
    v_lshl_add_u32 v8, v10, 4, v8
    v_and_b32 v10, 1, v1
    v_lshl_add_u32 v6, v10, 3, v8
    v_xor_b32 v7, 64, v6
    s_mul_i32 s4, s4, 25600
    s_and_b32 s5, s62, 1
    s_mul_i32 s5, s5, 192
    s_add_u32 s4, s4, s5
    s_add_u32 s4, s4, {IMG}
    v_mul_u32_u24 v0, 400, v2
    v_lshl_add_u32 v0, v3, 4, v0
    v_add_u32 v0, s4, v0
    v_add_u32 v2, 49152, v6
    v_add_u32 v3, 49152, v7
    """)
    k.wait_all(); g.st("cdone")
    A2, HF = 40, 8
    def hreads(e, u, ks):
        sl = u % 6; a0 = 6 if sl < 3 else 2
        for tt in range(4):
            off = 16384*(sl % 3) + 8192*ks + 2048*(tt >> 1) + 512*(tt & 1)
            e(f"ds_read_b64_tr_b16 {v(HF+16*ks+4*tt,2)}, v{a0} offset:{off}\nds_read_b64_tr_b16 {v(HF+16*ks+4*tt+2,2)}, v{a0+1} offset:{off}")
    def mf1(u, ks, tt, dt):
        d = A2 + 16*dt + 4*tt
        cc = "0" if (u == 0 and ks == 0) else v(d, 4)
        return ("i", f"{M16} {v(d,4)}, {v(CU(u)+12*ks+4*dt,4)}, {v(HF+16*ks+4*tt,4)}, {cc}", None)
    mf2 = lambda u, ks: [mf1(u, ks, tt, dt) for tt in range(4) for dt in range(3)]
    k("s_barrier")
    hreads(k, 0, 0)
    if g.wb: k.raw("    s_or_b32 s4, s52, s62\n    s_cbranch_scc1 L_nowb\n    buffer_wbl2 sc1\nL_nowb:")
    tail = [[(7,0,tt),(7,1,tt),(8,0,tt),(8,1,tt)] for tt in range(4)]
    def treads(e, st):
        for i, (u, ks, tt) in enumerate(tail[st]):
            off = 16384*(u % 6) + 8192*ks + 2048*(tt >> 1) + 512*(tt & 1); b_ = HF + 16*(st % 2) + 4*i
            e(f"ds_read_b64_tr_b16 {v(b_,2)}, v6 offset:{off}\nds_read_b64_tr_b16 {v(b_+2,2)}, v7 offset:{off}")
    def tmf(st):
        return [("i", f"{M16} {v(A2+16*dt+4*tt,4)}, {v(CU(u)+12*ks+4*dt,4)}, {v(HF+16*(st%2)+4*i,4)}, {v(A2+16*dt+4*tt,4)}", None) for i, (u, ks, tt) in enumerate(tail[st]) for dt in range(3)]
    def wr(tts):
        e = Rec()
        for tt in tts:
            for dt in range(3): e(f"ds_write_b128 v0, {v(A2+16*dt+4*tt,4)} offset:{6400*tt+64*dt}")
        return e.items
    early = g.cmf == 27
    for u in range(7):
        rd = Rec(); hreads(rd, u, 1)
        ex = Rec()
        if u == 2 and g.cmf >= 24:
            for n in range(21, 24): c_drain(ex, n)
        if early and u == 3:
            for n in range(24, 27): c_drain(ex, n)
        weave(k, mf2(u, 0), [(rd.items, 0, 7), (ex.items, 4, 9)])
        if u + 1 in (1, 2, 3, 5, 7 if g.bar7 else 6): k.wait_lg(); k("s_barrier")
        rd = Rec(); ex = Rec()
        if u < 6: hreads(rd, u + 1, 0)
        else:
            treads(rd, 0)
            if not early:
                for n in range(g.cmf, 27): c_drain(ex, n)
        weave(k, mf2(u, 1), [(rd.items, 1, 8), (ex.items, 1, 10)])
    for st in range(4):
        rd = Rec()
        if st < 3: treads(rd, st + 1)
        w_ = wr([st - 1]) if st else []
        m_ = tmf(st)
        if st == 0: k(f"s_lshl_b32 s4, s62, 2\ns_add_u32 s4, s4, {ASY}\nv_mov_b32 v4, s4\nv_mov_b32 v5, 1")
        if st == 2: w_ = w_ + [("i", "ds_write_b32 v4, v5 offset:16", None)]
        weave(k, m_, [(rd.items, 0, 4), (w_, 3, len(m_) - 1)])
    for it in wr([3]): play(k, it)
    k("ds_write_b32 v4, v5 offset:32"); g.st("p2end")
    g.fin()
```

```python
import sys, struct
sys.path.insert(0, "work")
from kasm import *
from align import align
NAME = "gated_mix__ssm_conv_s4d__ssm_conv_s5__prompt_kernel"
NWG = 256
WS_XI = 0xA0000
WS_TF, WS_UT = 0x90000, 0xA00000
WS_S, WS_HF, WS_AF, WS_G, WS_H, WS_A, WS_STAMP = 0x1000, 0x40000, 0x60000, 0x70000, 0x100000, 0x600000, 0x900000
WS_SIZE = 0x10000000
import os
WS_UT = WS_A
import os
_B = int(os.environ.get("WSB", "0"), 0)
WS_XI += _B; WS_TF += _B; WS_UT += _B; WS_S += _B; WS_HF += _B; WS_AF += _B; WS_G += _B; WS_H += _B; WS_A += _B
HBLK = 147456
LOG2E = 1.4426950408889634
INV2PI = 0.15915494309189535
LCG_A, LCG_C = 0x0019660D, 0x3C6EF35F
SPIN = 1000000
M16, M32 = "v_mfma_f32_16x16x32_bf16", "v_mfma_f32_32x32x16_bf16"
def fl(x): return "0x%08x" % struct.unpack("<I", struct.pack("<f", x))[0]
XS, WSL, CST, EXE, EXH, AST, IMG = 0, 49152, 100352, 149504, 153600, 151552, 98304
TW, AW, AB0 = 8704, 8704, 69632
UO = [33, 34, 35, 36, 37, 40, 41, 44, 45]

def cmul_multi(e, items):
    for d, x, y, t in items: e(f"v_pk_mul_f32 {v(t,2)}, {v(x,2)}, {v(y,2)} op_sel:[0,0] op_sel_hi:[0,1]")
    for d, x, y, t in items: e(f"v_pk_fma_f32 {v(d,2)}, {v(x,2)}, {v(y,2)}, {v(t,2)} op_sel:[1,1,0] op_sel_hi:[1,0,1] neg_lo:[1,0,0]")
def cmac(e, items):
    for d, x, y, c in items: e(f"v_pk_fma_f32 {v(d,2)}, {v(x,2)}, {v(y,2)}, {v(c,2)} op_sel:[0,0,0] op_sel_hi:[0,1,1]")
    for d, x, y, c in items: e(f"v_pk_fma_f32 {v(d,2)}, {v(x,2)}, {v(y,2)}, {v(d,2)} op_sel:[1,1,0] op_sel_hi:[1,0,1] neg_lo:[1,0,0]")
def cpow_multi(e, items):
    for dre, dim, ar, ai, n, t0, t1 in items: e(f"v_mul_f32 v{t0}, {n}, v{ar}\nv_mul_f32 v{t1}, {n}, v{ai}")
    for dre, dim, ar, ai, n, t0, t1 in items: e(f"v_exp_f32 v{t0}, v{t0}\nv_fract_f32 v{t1}, v{t1}")
    for dre, dim, ar, ai, n, t0, t1 in items: e(f"v_cos_f32 v{dre}, v{t1}\nv_sin_f32 v{dim}, v{t1}")
    for dre, dim, ar, ai, n, t0, t1 in items: e(f"v_mul_f32 v{dre}, v{dre}, v{t0}\nv_mul_f32 v{dim}, v{dim}, v{t0}")
def pk_bc(e, d, a, b, bsel, c=None, neg=False):
    if c is None:
        e(f"v_pk_mul_f32 {v(d,2)}, {v(b,2)}, {v(a,2)} op_sel:[{bsel},0] op_sel_hi:[{bsel},1]")
    else:
        n = " neg_lo:[1,0,0] neg_hi:[1,0,0]" if neg else ""
        e(f"v_pk_fma_f32 {v(d,2)}, {v(b,2)}, {v(a,2)}, {v(c,2)} op_sel:[{bsel},0,0] op_sel_hi:[{bsel},1,1]{n}")
def smul(e, dr, di, ar, ai, br, bi, cr=None, ci=None):
    if cr is None: e(f"v_mul_f32 v{dr}, v{ar}, v{br}\nv_mul_f32 v{di}, v{ar}, v{bi}")
    else: e(f"v_fma_f32 v{dr}, v{ar}, v{br}, v{cr}\nv_fma_f32 v{di}, v{ar}, v{bi}, v{ci}")
    e(f"v_fma_f32 v{dr}, -v{ai}, v{bi}, v{dr}\nv_fma_f32 v{di}, v{ai}, v{br}, v{di}")
def offsets(e, arr):
    for c in range(1, 9): e(f"s_add_u32 s{arr[c]}, s{arr[c-1]}, 128\ns_cmp_eq_u32 s{arr[c]}, 1152\ns_cselect_b32 s{arr[c]}, 0, s{arr[c]}")
def mod9(e, r, t): e(f"s_mul_hi_u32 s{t}, s{r}, 0x1C71C71D\ns_mul_i32 s{t}, s{t}, 9\ns_sub_u32 s{r}, s{r}, s{t}")

class Gen:
    def __init__(self):
        self.k = K()
    def run(self, r):
        for it in r.items: play(self.k, it)
    def st(self, name):
        if self.stamps and name in self.bst:
            i = 1 + self.bst.index(name)
            self.k.raw(f"    {self.clk} s[{80+2*i}:{81+2*i}]")
            self.k.smem |= {("s", 80+2*i), ("s", 81+2*i)}
            self.k.wait_lg()
    def fin(self):
        k = self.k
        if self.stamps:
            k.raw("    s_waitcnt vmcnt(0) lgkmcnt(0)"); k.vm = []; k.lg = []
            self.st("end")
            if self.amp:
                self.namp = getattr(self, "namp", 0) + 1
                if self.ampx is not None: k.raw(f"    s_cmp_lg_u32 s50, {self.ampx}\n    s_cbranch_scc1 L_amp_d{self.namp}")
                k.raw(f"""    s_cmp_eq_u32 s82, 0
    s_cbranch_scc1 L_amp_d{self.namp}
    s_sub_u32 s82, s82, s80
    s_min_u32 s82, s82, 5000
    {'s_mul_i32 s82, s82, %d' % self.amp if self.amp < 100 else 's_mov_b32 s82, %d' % self.amp}
L_amp{self.namp}:
    s_sleep 1
    s_memrealtime s[84:85]
    s_waitcnt lgkmcnt(0)
    s_sub_u32 s84, s84, s80
    s_cmp_lt_u32 s84, s82
    s_cbranch_scc1 L_amp{self.namp}
L_amp_d{self.namp}:
    s_endpgm""")
                return
            k("s_mov_b64 exec, 1")
            for i in range(10): k(f"v_mov_b32 v{8+i}, s{80+2*i}")
            k("s_getreg_b32 s3, hwreg(HW_REG_XCC_ID)\nv_mov_b32 v18, s3\ns_getreg_b32 s3, hwreg(HW_REG_HW_ID)\nv_mov_b32 v19, s3")
            k(f"s_lshl_b32 s3, s2, 3\ns_add_u32 s3, s3, s48\ns_lshl_b32 s3, s3, 6\ns_add_u32 s3, s3, {WS_STAMP}\nv_mov_b32 v4, s3")
            for i in range(3): k(f"global_store_dwordx4 v4, v[{8+4*i}:{11+4*i}], s[46:47] offset:{16*i}")
        k("s_endpgm")
    def enter(self, label, karg=True):
        k = self.k
        k.reset()
        if karg: k.smem = {("s", i) for i in range(8, 48)}
        k.raw(".p2align 3\n" + label + ":")
    def poll(self, label, issue, check, first_done=False):
        k = self.k
        k(f"s_mov_b32 s58, {SPIN}")
        k.out.append(label + ":")
        issue(); k("s_sub_u32 s58, s58, 1"); k.wait_all()
        k(f"s_cbranch_scc1 {label}_done"); check()
        sl = self.slp.get(label[6:7], 0)
        if sl: k(f"s_cbranch_vccz {label}_done\ns_sleep {sl}\ns_branch {label}")
        else: k(f"s_cbranch_vccnz {label}")
        k.out.append(label + "_done:")
    def pub_xcc(self, t, lab, wv):
        k = self.k
        k(f"s_getreg_b32 s4, hwreg(HW_REG_XCC_ID, 0, 4)\nv_mov_b32 v{t}, s55\nv_mov_b32 v{t+1}, s4")
        if wv is not None: k(f"s_cmp_lg_u32 s48, {wv}\ns_cbranch_scc1 {lab}")
        k(f"s_lshl_b32 s4, s56, 3\ns_add_u32 s4, s4, s52\ns_lshl_b32 s4, s4, 7\ns_add_u32 s4, s4, {WS_XI}\nv_mov_b32 v{t+2}, s4\ns_mov_b64 exec, 1\nglobal_store_dwordx2 v{t+2}, v[{t}:{t+1}], s[46:47] sc1\ns_mov_b64 exec, -1")
        if wv is not None: k.vm.pop()
        k.raw(lab + ":")
    def prologue(self):
        k = self.k
        if self.stamps:
            k.raw(f"    {self.clk} s[80:81]")
            for i in range(82, 100, 2): k.raw(f"    s_mov_b32 s{i}, 0")
        if self.skew:
            d = [int(round(x*self.skew)) for x in (0, 19, 27, 35, 60, 67, 40, 44)]
            lo = sum(x << (8*i) for i, x in enumerate(d[:4])); hi = sum(x << (8*i) for i, x in enumerate(d[4:]))
            k.raw(f"""    s_memrealtime s[10:11]
    s_mov_b32 s4, {lo}
    s_mov_b32 s5, {hi}
    s_and_b32 s6, s2, 7
    s_lshl_b32 s6, s6, 3
    s_lshr_b64 s[4:5], s[4:5], s6
    s_and_b32 s4, s4, 255
    s_lshr_b32 s6, s2, 3
    s_mul_i32 s6, s6, {self.ramp}
    s_lshr_b32 s6, s6, 5
    s_add_u32 s4, s4, s6
L_skew:
    s_memrealtime s[12:13]
    s_waitcnt lgkmcnt(0)
    s_sub_u32 s12, s12, s10
    s_cmp_lt_u32 s12, s4
    s_cbranch_scc1 L_skew""")
        k(f"""
        s_load_dwordx16 s[8:23], s[0:1], 0
        s_load_dwordx16 s[24:39], s[0:1], 64
        s_load_dwordx8 s[40:47], s[0:1], 128
        s_cmp_ge_u32 s2, {NWG}
        s_cbranch_scc1 L_end
        v_lshrrev_b32 v4, 6, v0
        s_lshr_b32 s6, s2, 3
        v_readfirstlane_b32 s48, v4
        s_add_u32 s49, s6, {self.nshift}
        s_and_b32 s49, s49, 31           ; n
        s_and_b32 s50, s2, 7
        {'s_lshr_b32 s4, s50, 1' if self.xperm else ''}
        {'s_and_b32 s4, s4, 2' if self.xperm else ''}
        {'s_xor_b32 s50, s50, s4' if self.xperm else ''}
        """)
        k("v_and_b32 v1, 63, v0\nv_and_b32 v2, 15, v0\nv_bfe_u32 v3, v0, 4, 2")
        r1ids = f"""
        s_cmp_ge_u32 s49, 9
        s_cselect_b32 s5, 1, 0
        s_cselect_b32 s54, 9, 0
        s_lshl_b32 s53, s50, 1
        s_sub_u32 s54, s49, s54          ; j
        s_add_u32 s53, s53, s5           ; i
        s_add_u32 s59, s54, s50
        s_sub_u32 s4, s59, 9
        s_min_u32 s59, s59, s4
        s_lshl_b32 s59, s59, 7           ; rot1
        """
        aids = """
        s_mul_i32 s60, s50, 72
        s_mul_i32 s4, s49, 6
        s_lshl_b32 s5, s49, 2
        s_sub_u32 s4, s4, 144
        s_sub_u32 s5, s5, 24
        s_cmp_ge_u32 s49, 24
        s_cselect_b32 s4, s4, s5
        s_add_u32 s60, s60, s4           ; d0 (A roles)
        """
        assert self.rot1i == 0 and self.rot1x == 1
        self.r1ids, self.aids = r1ids, aids
        k("s_cmp_lt_u32 s48, 4\ns_cbranch_scc0 L_hi")
        self.codepf()
        k("s_cmp_ge_u32 s49, 18\ns_cbranch_scc1 L_A\ns_branch L_LO")
        self.pvm4 = list(k.vm); k.vm = []
        k.raw("L_hi:")
        k("s_cmp_ge_u32 s49, 18\ns_cbranch_scc1 L_R2G")
        k(r1ids)
        self.pvm = list(k.vm)
    def codepf(self):
        k = self.k
        k("s_getpc_b64 s[4:5]")
        k(f"s_lshl_b32 s6, s6, 4\nv_lshrrev_b32 v252, 4, v0\nv_add_u32 v252, s6, v252\nv_min_u32 v252, (L_end - {NAME})/128, v252\nv_lshlrev_b32 v252, 7, v252\nv_mov_b32 v253, s5\nv_add_co_u32 v252, vcc, s4, v252\nv_addc_co_u32 v253, vcc, 0, v253, vcc\nglobal_load_dword v7, v[252:253], off")
    def ids2(self):
        k = self.k
        k(f"""
        s_cmp_ge_u32 s49, 12
        s_mov_b32 s4, 3393292320
        s_mov_b32 s5, 155585890
        s_cmov_b32 s4, 899438227
        s_cmov_b32 s5, 250833482
        s_cselect_b32 s52, 12, 0
        s_sub_u32 s52, s49, s52
        s_mul_i32 s52, s52, 5
        s_lshr_b64 s[4:5], s[4:5], s52
        s_and_b32 s52, s4, 7             ; dj
        s_bfe_u32 s4, s4, 0x20003
        s_and_b32 s51, s4, 1             ; th
        s_lshl_b32 s56, s50, 2
        s_add_u32 s56, s56, s4           ; tb
        s_mul_i32 s57, s52, 3
        s_lshr_b32 s57, s57, 1
        s_mul_i32 s4, s4, {self.rot2i}
        s_add_u32 s57, s57, s4
        s_mul_i32 s4, s50, {self.rot2x}
        s_add_u32 s57, s57, s4
        """)
        mod9(k, 57, 4)
        k("s_lshl_b32 s57, s57, 7")
    def band_data(self):
        wins = [(range(3,6),16), (range(6,11),16), (range(11,14),16), (range(14,19),24), (range(5,12),16), (range(12,21),24), ((3,4),16)]
        out = []
        for ti, (w, c) in enumerate(wins):
            val = 0xFFFF if ti == 6 else 0x3F80
            for l in range(64):
                r, G = l & 15, l >> 4
                e = [val if (r + c - (8*G + i)) in w else 0 for i in range(8)]
                out.append(".long " + ", ".join("0x%08x" % (e[2*i] | (e[2*i+1] << 16)) for i in range(4)))
        out += ['.fill 256, 4, 0']
        return "\n".join(out)
    def build(self):
        import g2a, g2b
        k = self.k
        self.prologue()
        g2b.loader1(self)
        self.enter("L_LO"); k.vm = list(self.pvm4); k(self.r1ids)
        g2b.compute1(self)
        g2b.loader2(self)
        g2a.partA(self)

        k.raw("L_end:\n    s_endpgm")
        k.raw(".fill 64, 4, 0xbf800000")
        hdr = open("gated_mix__ssm_conv_s4d__ssm_conv_s5__prompt.s.ref").read().split("; Override")[0]
        if self.stamps: hdr += f"; bst start {' '.join(self.bst)}\n"
        return (hdr + f"; @launch grid=({NWG},1,1) block=(512,1,1) lds=163840\n"
            '.amdgcn_target "amdgcn-amd-amdhsa--gfx950"\n.text\n'
            f".globl {NAME}\n.p2align 8\n.type {NAME},@function\n{NAME}:\n" + (align(k.text(), self.minrun) if self.align else k.text()) +
            '.section .rodata,"a"\n.p2align 8\nband_tab:\n' + self.band_data() + f"""
.p2align 6
.amdhsa_kernel {NAME}
  .amdhsa_next_free_vgpr 256
  .amdhsa_next_free_sgpr 102
  .amdhsa_accum_offset 256
  .amdhsa_group_segment_fixed_size 0
  .amdhsa_kernarg_size 160
  .amdhsa_user_sgpr_count 2
  .amdhsa_user_sgpr_kernarg_segment_ptr 1
  .amdhsa_system_sgpr_workgroup_id_x 1
.end_amdhsa_kernel
""")
DEF = dict(prebar=0, rot2x=3, tlb=0, gates={}, split=([0, 1, 2, 3, 4], [5, 6, 7]), epk=0, e1=[2], e2=[3,4,5,6,7,8], clate=1, uflag=1, unsafe=0, prioM=0, trs=4, tws=3, kpre=1, p2s="i h0 h1 b0:0 h2 b1:1 h3 b2:2 h4 h5 b3:3 h6 h7 b4:5 h8 b6:8 g f d m a", wsleep=24, dbg_noP1=0, dbg_cskip=0, bpf0=[], seq=[], p2q=0, ctl=1, skew=0, ramp=0, pure=0, gpf=0, awarm=0, sdel=0, csig=None, r3all=1, noaw=0, nosw=0, slp={'U': 2, 'I': 1, 'Y': 1, 'G': 1}, xperm=0, prioE=0, sm_early=1, smpos=9, bar7=0, ampx=None, asleep=16, tmode=0, tdel=None, bpf2=[], xbl=5, xla=7, xearly=0, h8e=1, r2skip=1, dbg_nog=0, noT=0, tq0=1, wfirst=0, hout=1, wb=0, ost='', dbg_now2=0, cpd=5, cpre_pop=12, ast=1, uwait=1, xq=7, tfs=5, abar=1, a_late=1, dbg_bw=0, nob8=0, cpre=4, cfast=9, cthr2=5, prioC=0, spre=0, gpos=1, cs_span=(5, 17), e_gap=12, cmf=27, a_lat=2, first='wx', gather=0, bpf=[0x4432, 0x7765, 0x8888], tsleep=2, amp=0, pf_pre=0, pf_depth=1, cpf=[0x2210, 0x5543, 0x8876], cpf_pre=2, tq=3, hpre=1, hld='sc1', hst='', rot1i=0, rot1j=1, rot1x=1, fast=1, dbg_noC=0, p_span=(0.75, 0.95), r3pf=2, pdel=0, align=1, minrun=6, dbg_now=0, dbg_noswz=0, dbg_nomf=0, dbg_free=0, prioL=0, rd_span=(1, 3), nshift=18, nogather=0, stamps=False, clk="s_memrealtime", bst=[], pf=216, rot2i=0, wbatch=4, g_span=(0.02, 0.7), cthr=4, hdist=3, a_at=5, skipA=0)
def make(path, **opt):
    g = Gen()
    for a_, b_ in {**DEF, **opt}.items(): setattr(g, a_, b_)
    t = g.build()
    open(path, "w").write(t)
    return g
if __name__ == "__main__":
    g = make("k2.s")
    print("nops", g.k.nops)
```

```python
from g2 import *
import g2b
UK0 = 34816
def partA(self):
    k = self.k
    self.enter("L_A"); k.vm = list(self.pvm4); k(self.aids)
    k(f"""
    s_add_u32 s61, s60, s48          ; d
    s_and_b32 s5, s48, 1
    s_add_u32 s5, s5, 4
    s_cmp_ge_u32 s49, 24
    s_cselect_b32 s64, s5, s48
    s_add_u32 s65, s60, s64          ; second d
    s_lshl_b32 s62, s61, 8
    v_lshl_add_u32 v26, v1, 2, s62
    s_lshl_b32 s62, s61, 1
    v_mov_b32 v27, s62
    s_lshl_b32 s62, s65, 8
    v_lshl_add_u32 v24, v1, 2, s62
    s_lshl_b32 s62, s65, 1
    v_mov_b32 v25, s62
    v_mov_b32 v60, 0
    v_mov_b32 v61, 0
    global_load_dword v10, v26, s[10:11]
    global_load_dword v11, v26, s[12:13]
    global_load_ushort v14, v27, s[18:19]
    global_load_dword v12, v26, s[14:15]
    global_load_dword v13, v26, s[16:17]
    global_load_ushort v15, v27, s[20:21]
    global_load_dword v22, v60, s[46:47]
    """)
    self.st("karg")
    k(f"""
    s_lshl_b32 s4, s48, 3
    s_add_u32 s4, s4, {EXE}
    v_mov_b32 v4, s4
    ds_write_b64 v4, v[60:61]
    """)
    k("""
    global_load_dword v16, v24, s[10:11]
    global_load_dword v17, v24, s[12:13]
    global_load_ushort v20, v25, s[18:19]
    global_load_dword v18, v24, s[14:15]
    global_load_dword v19, v24, s[16:17]
    global_load_ushort v21, v25, s[20:21]
    """)
    k.wait_lg(); k("s_barrier")
    self.ids2()
    k(f"""
    s_mov_b32 s76, s46
    s_mov_b32 s77, s47
    s_mov_b32 s78, {WS_SIZE}
    s_mov_b32 s79, 0x20000
    s_mul_i32 s68, s48, {TW}
    s_add_u32 s69, s68, {UK0}
    s_add_u32 s70, s69, 4608            ; K base
    s_mul_i32 s66, s64, {AW}
    s_add_u32 s66, s66, {UK0}
    s_mov_b32 m0, s68
    s_cmp_ge_u32 s49, 24
    s_cselect_b32 s63, 1, 0
    s_cmp_lt_u32 s48, 2
    s_cselect_b32 s63, s63, 0
    v_mul_u32_u24 v59, 544, v2
    v_lshl_add_u32 v59, v3, 4, v59
    v_add_u32 v59, s68, v59
    v_and_b32 v58, 7, v2
    v_lshlrev_b32 v58, 2, v58
    s_mov_b32 s62, 0x43222100
    v_lshrrev_b32 v58, v58, s62
    v_and_b32 v58, 15, v58
    v_lshrrev_b32 v62, 3, v2
    v_mad_u32_u24 v58, v62, 5, v58
    v_mul_u32_u24 v58, 544, v58
    v_lshl_add_u32 v58, v3, 4, v58
    v_add_u32 v58, s68, v58
    v_lshrrev_b32 v5, 1, v3
    v_lshlrev_b32 v5, 8, v5
    v_lshl_add_u32 v5, v2, 4, v5
    v_and_b32 v6, 1, v3
    v_lshl_add_u32 v5, v6, 3, v5
    v_sub_u32 v5, 568, v5
    v_lshrrev_b32 v6, 1, v2
    v_and_b32 v8, 1, v2
    v_lshlrev_b32 v9, 6, v3
    v_lshl_add_u32 v9, v6, 2, v9
    v_lshlrev_b32 v23, 8, v8
    v_sub_u32 v23, v23, v9
    v_add_u32 v23, {2368 + 188 - 32}, v23
    v_lshlrev_b32 v9, 7, v3
    v_lshl_add_u32 v9, v6, 2, v9
    v_lshlrev_b32 v8, 1, v8
    v_sub_u32 v8, v8, v9
    v_add_u32 v8, {2368 + 512 + 252 + 256 - 96}, v8
    v_cmp_gt_u32 vcc, 2, v3
    v_cndmask_b32 v6, v8, v23, vcc
    """)
    def tag():
        k(f"v_readfirstlane_b32 s55, v22\ns_mul_i32 s55, s55, {LCG_A}\ns_add_u32 s55, s55, {LCG_C}\ns_max_u32 s55, s55, 1\ns_cmp_ge_u32 s49, 24\ns_cbranch_scc1 L_xp2")
        self.pub_xcc(244, "L_xp2", 0)
    if self.skipA:
        k.raw("    s_waitcnt vmcnt(0)"); k("s_branch L_tab_done")
    vFR, vFR1 = 59, 58
    pend_vm = list(k.vm)
    k.raw(".p2align 3\nL_tab:"); k.hist = []
    self.st("tab0")
    k(f"""
    v_mov_b32 v60, 0
    v_mov_b32 v61, 0
    v_mov_b32 v62, 0
    v_mov_b32 v63, 0
    v_lshl_add_u32 v8, v1, 4, s70
    v_lshlrev_b32 v14, 16, v14
    v_mul_f32 v14, {fl(LOG2E)}, v14
    v_lshlrev_b32 v64, 16, v10
    v_and_b32 v66, 0xffff0000, v10
    ds_write_b128 v8, v[60:63]
    ds_write_b128 v8, v[60:63] offset:1024
    ds_write_b128 v8, v[60:63] offset:2048
    ds_write_b128 v8, v[60:63] offset:3072
    v_exp_f32 v14, v14
    v_mul_f32 v64, {fl(LOG2E)}, v64
    v_mul_f32 v66, {fl(LOG2E)}, v66
    v_exp_f32 v64, v64
    v_exp_f32 v66, v66
    v_cvt_pk_bf16_f32 v14, v14, v14
    v_lshlrev_b32 v65, 16, v11
    v_and_b32 v67, 0xffff0000, v11
    v_cvt_pk_bf16_f32 v10, v64, v66
    v_and_b32 v14, 0xffff0000, v14
    v_lshlrev_b32 v64, 16, v10
    v_and_b32 v66, 0xffff0000, v10
    v_mul_f32 v64, v64, v14
    v_mul_f32 v66, v66, v14
    v_mul_f32 v65, v65, v14
    v_mul_f32 v67, v67, v14
    v_mul_f32 v64, {fl(-LOG2E)}, v64
    v_mul_f32 v66, {fl(-LOG2E)}, v66
    v_mul_f32 v65, {fl(INV2PI)}, v65
    v_mul_f32 v67, {fl(INV2PI)}, v67
    """)
    self.st("par")
    AR, AI = (64, 66), (65, 67)
    E8, E16, E1, W = (68, 70), (72, 74), (76, 78), (80, 82)
    T = list(range(84, 104, 2))
    G = [[104 + 4*c, 106 + 4*c] for c in range(9)]
    LA, LBb = (140, 142), (144, 146)
    OUT = [148, 150, 152, 154, 232, 234, 236, 238]
    LOF, HF, DT = 156, 188, [220, 224, 228]
    oc = [0]; pendw = []
    def flushw():
        for w_ in pendw: k(w_)
        pendw.clear()
    def entry(row, x0, x1, neg):
        o = OUT[oc[0] % 8]; oc[0] += 1
        n = "-" if neg else ""
        k(f"v_cvt_pk_bf16_f32 v{o}, v{x0}, {n}v{x0+1}\nv_cvt_pk_bf16_f32 v{o+1}, v{x1}, {n}v{x1+1}")
        pendw.append(f"ds_write_addtid_b32 v{o} offset:{544*row}\nds_write_addtid_b32 v{o+1} offset:{544*row+256}")
        if len(pendw) >= self.wbatch: flushw()
    cpow_multi(k, [(E8[n], E8[n]+1, AR[n], AI[n], fl(8.0), T[n], T[n]+1) for n in range(2)] +
                  [(E1[n], E1[n]+1, AR[n], AI[n], "1.0", T[2+n], T[2+n]+1) for n in range(2)] +
                  [(W[n], W[n]+1, AR[n], AI[n], fl(128.0), T[4+n], T[4+n]+1) for n in range(2)])
    self.st("pw")
    cmul_multi(k, [(E16[n], E8[n], E8[n], T[n]) for n in range(2)])
    k(f"v_mov_b32 v{OUT[7]}, 0x3f80"); pendw.append(f"ds_write_addtid_b32 v{OUT[7]}\nds_write_addtid_b32 v{OUT[7]} offset:256")
    entry(1, E8[0], E8[1], True); entry(2, E16[0], E16[1], True)
    pa, pb = E8, E16
    for j in range(3, 16, 2):
        items = [(LA[n], pa[n], E16[n], T[n]) for n in range(2)]
        if j + 1 < 16: items += [(LBb[n], pb[n], E16[n], T[2+n]) for n in range(2)]
        cmul_multi(k, items)
        pa, pb = LA, LBb
        entry(j, LA[0], LA[1], True)
        if j + 1 < 16: entry(j + 1, LBb[0], LBb[1], True)
    flushw()
    for ks in range(8): k(f"ds_read_b128 {v(LOF+4*ks,4)}, v{vFR} offset:{64*ks}")
    self.st("lo")
    k(f"""
    v_add_f32 v14, v14, v14
    v_lshlrev_b32 v{G[0][0]}, 16, v12
    v_lshlrev_b32 v{G[0][0]+1}, 16, v13
    v_and_b32 v{G[0][1]}, 0xffff0000, v12
    v_and_b32 v{G[0][1]+1}, 0xffff0000, v13
    """)
    pk_bc(k, G[0][0], G[0][0], 14, 0); pk_bc(k, G[0][1], G[0][1], 14, 0)
    cmul_multi(k, [(LA[n], E1[n], E1[n], T[n]) for n in range(2)] + [(G[1][n], G[0][n], E1[n], T[2+n]) for n in range(2)]
                    + [(G[8][n], G[0][n], E8[n], T[4+n]) for n in range(2)])
    entry(0, G[0][0], G[0][1], False); entry(1, G[1][0], G[1][1], False)
    for c in range(2, 8, 2):
        cmul_multi(k, [(G[c+i][n], G[c+i-2][n], LA[n], T[2*i+n]) for i in range(2) for n in range(2)])
        entry(c, G[c][0], G[c][1], False); entry(c+1, G[c+1][0], G[c+1][1], False)
    def mulW(cs, Wp=W):
        cmul_multi(k, [(G[c][n], G[c][n], Wp[n], T[(2*i+n) % 10]) for i, c in enumerate(cs) for n in range(2)])
    for cs in ([0, 1, 2], [3, 4, 5], [6, 7, 8]):
        mulW(cs)
        for c in cs:
            if c < 8: entry(8 + c, G[c][0], G[c][1], False)
    def kgen(tile, addr, cinit):
        flushw()
        for ks in range(8): k(f"ds_read_b128 {v(HF+4*ks,4)}, v{addr} offset:{64*ks}")
        return [("i", f"{M16} {v(DT[tile],4)}, {v(HF+4*ks,4)}, {v(LOF+4*ks,4)}, {cinit if ks == 0 else v(DT[tile],4)}", None) for ks in range(8)]
    k(f"v_lshlrev_b32 v15, 16, v15\nv_cmp_eq_u32 vcc, 0, v1\nv_mov_b32 v{DT[0]+1}, 0\nv_mov_b32 v{DT[0]+2}, 0\nv_cndmask_b32 v{DT[0]}, 0, v15, vcc\nv_mov_b32 v{DT[0]+3}, 0")
    def with_mf(mf, fn):
        nonlocal k
        real = k; k = Rec(); fn(); flushw(); items = k.items; k = real
        k.wait_lg()
        weave(k, mf, [(items, 1, len(mf))])
    mf = kgen(0, vFR, v(DT[0], 4))
    self.st("h0")
    ev = [0, 2, 4, 6, 8]
    mulW(ev)
    with_mf(mf, lambda: [entry(i, G[c][0], G[c][1], False) for i, c in enumerate(ev)])
    mulW(ev)
    for i, c in enumerate(ev): entry(5 + i, G[c][0], G[c][1], False)
    mf = kgen(1, vFR1, "0")
    self.st("h1")
    cmul_multi(k, [(E1[n], W[n], W[n], T[n]) for n in range(2)] + [(G[c][n], G[c][n], W[n], T[2+2*i+n]) for i, c in enumerate((4, 8)) for n in range(2)])
    cmul_multi(k, [(G[d_][n], G[c][n], W[n], T[2*i+n]) for i, (d_, c) in enumerate(((3, 4), (7, 8))) for n in range(2)])
    def post(j):
        d = DT[j]; off = 512 if j == 0 else 0; t = 240 + 4*j
        k(f"""
        v_cvt_pk_bf16_f32 v{t}, v{d+3}, v{d+2}
        v_cvt_pk_bf16_f32 v{t+1}, v{d+1}, v{d}
        v_cvt_pk_bf16_f32 v{t+2}, v{d+2}, v{d+1}
        ds_write_b64 v61, v[{t}:{t+1}] offset:{off}
        ds_write_b16 v61, v{t} offset:{off+1214}
        ds_write_b32 v61, v{t+2} offset:{off+1216}
        ds_write_b16_d16_hi v61, v{t+1} offset:{off+1220}
        """)
    k("v_add_u32 v61, s70, v5\nv_mov_b32 v62, s70\nv_add_u32 v63, s70, v6")
    with_mf(mf, lambda: [entry(i, G[c][0], G[c][1], False) for i, c in enumerate((4, 8, 3, 7))])
    mulW([4, 8, 3, 7], E1)
    for i, c in enumerate((4, 8, 3, 7)): entry(4 + i, G[c][0], G[c][1], False)
    for h in range(0, 8, 2):
        mulW([8, 7], E1)
        entry(8 + h, G[8][0], G[8][1], False); entry(9 + h, G[7][0], G[7][1], False)
    mf = kgen(2, vFR, "0")
    self.st("tabs")
    post(0)
    with_mf(mf, lambda: post(1))
    self.st("po1")
    d = DT[1]
    k(f"""
    v_cvt_pk_bf16_f32 v72, v{d+3}, v{d+3}
    s_mov_b32 exec_lo, 0
    s_mov_b32 exec_hi, 0x80000000
    ds_write_b32 v62, v72 offset:60
    ds_write_b16 v62, v72 offset:58
    ds_write_b32 v62, v72 offset:1272
    ds_write_b16 v62, v72 offset:1276
    s_mov_b64 exec, -1
    """)
    d = DT[2]
    k(f"""
    v_cvt_pk_bf16_f32 v74, v{d}, v{d+1}
    v_cvt_pk_bf16_f32 v75, v{d+2}, v{d+3}
    s_mov_b32 exec_hi, 0
    ds_write_b32 v63, v74 offset:32
    ds_write_b32 v63, v75
    s_mov_b32 exec_hi, -1
    s_mov_b32 exec_lo, 0
    ds_write_b16 v63, v74 offset:96
    ds_write_b16_d16_hi v63, v74 offset:64
    ds_write_b16 v63, v75 offset:32
    ds_write_b16_d16_hi v63, v75
    s_mov_b32 exec_lo, -1
    """)
    k.wait_vm()
    k("s_cmp_eq_u32 s63, 0\ns_cbranch_scc1 L_tab_done\ns_cmp_eq_u32 s63, 2\ns_cbranch_scc1 L_tab_sig")
    for i in range(3): k(f"v_mov_b64 {v(10+2*i,2)}, {v(16+2*i,2)}")
    k("s_mov_b32 s63, 2\ns_add_u32 s70, s66, 4608\ns_branch L_tab")
    k.raw("L_tab_sig:")
    k(f"v_mov_b32 v60, 1\nds_write_b32 v4, v60 offset:4\ns_add_u32 s70, s69, 4608")
    k.raw("L_tab_done:")
    self.st("kgen")
    tag()
    SPL = [60, 96, 100, 104, 108, 248, 252, 20, 76, 80, 84, 88, 92]
    def spill(op):
        k(f"v_lshl_add_u32 v8, v1, 4, s68\ns_mul_i32 s4, s48, 5120\ns_add_u32 s4, s4, 69632\nv_lshl_add_u32 v9, v1, 4, s4")
        for i, r_ in enumerate(SPL):
            a_, o = (8, 1024*i) if i < 8 else (9, 1024*(i - 8))
            k(f"ds_write_b128 v{a_}, {v(r_,4)} offset:{o}" if op == "w" else f"ds_read_b128 {v(r_,4)}, v{a_} offset:{o}")
    k("s_cmp_ge_u32 s49, 24\ns_cbranch_scc1 L_nosp")
    k.vm = [(set(), None)]
    g2b.p2_min(self); g2b.p2_setup(self); g2b.p2_loads(self); g2b.p2_unpack(self); spill("w")
    k.raw("L_nosp:"); k.vm = []
    k(f"s_mul_i32 s71, s50, 14\ns_add_u32 s71, s71, s49\ns_lshl_b32 s71, s71, 5\ns_add_u32 s71, s71, s48\ns_lshl_b32 s71, s71, 2\ns_add_u32 s71, s71, {WS_AF - 18*128}")
    k(f"""
    v_lshlrev_b32 v10, 3, v3
    v_sub_u32 v10, v10, v2
    v_add_u32 v10, 15, v10
    v_lshlrev_b32 v10, 1, v10
    v_and_b32 v11, 1, v2
    v_cmp_eq_u32 vcc, 0, v11
    v_mov_b32 v11, 1214
    v_lshlrev_b32 v24, 2, v3
    v_cndmask_b32 v11, 0, v11, vcc
    v_add_u32 v10, v10, v11
    v_sub_u32 v24, v24, v2
    v_add_u32 v24, {15 + 2368//4}, v24
    v_lshlrev_b32 v24, 2, v24           ; P offset
    v_lshlrev_b32 v25, 5, v2
    v_lshl_add_u32 v25, v3, 4, v25
    v_add_u32 v25, 32, v25
    v_and_b32 v26, 1, v3
    v_lshlrev_b32 v26, 9, v26
    v_lshrrev_b32 v27, 2, v2
    v_lshl_add_u32 v26, v27, 7, v26
    v_lshrrev_b32 v27, 1, v3
    v_lshl_add_u32 v26, v27, 6, v26
    v_and_b32 v27, 3, v2
    v_lshl_add_u32 v26, v27, 4, v26
    v_and_b32 v27, 3, v1
    v_lshlrev_b32 v27, 3, v27
    v_add_u32 v27, {EXE+32}, v27
    """)
    if self.skipA: k.wait_lg(); k("s_cmp_lt_u32 s49, 24\ns_cbranch_scc1 L_A_R2\ns_branch L_A_last")
    ACC, KF, K23, ZT, ZP, UR, XT, BAND = 56, 88, 156, 196, 220, 232, 12, 28
    def out_txt(B):
        q = ACC + 4*B
        return ("\n".join(f"v_cvt_pk_bf16_f32 v{q+i}, v{q+2*i}, v{q+2*i+1}" for i in range(4)),
                f"v_permlane16_swap_b32 v{q}, v{q+2}\nv_permlane16_swap_b32 v{q+1}, v{q+3}", f"buffer_store_dwordx4 {v(q,4)}, v26, s[76:79], s62 offen offset:{512*B} sc1")
    def conv(name, BS, band):
        k.raw(f".p2align 3\nL_conv{name}:"); k.hist = []; k.lg = [(set(), None)]; k.vm = []
        pre = band and self.kpre
        def pollU():
            self.poll(f"L_pollU{name}", lambda: k("ds_read_b32 v16, v27"), lambda: k("v_cmp_ne_u32 vcc, 1, v16\ns_nop 1"))
            self.st("U" + name)
        if not pre: pollU()
        k(f"""
        v_add_u32 v5, s70, v10
        v_add_u32 v6, 1024, v5
        v_add_u32 v8, s70, v24
        v_add_u32 v7, s69, v25
        s_lshl_b32 s62, s61, 12
        s_add_u32 s62, s62, {WS_A}
        """)
        def bandrd():
            k(f"v_lshlrev_b32 v17, 4, v1\nv_add_u32 v17, {g2b.BND}, v17")
            for i in (0, 1, 2, 4, 3, 5, 6): k(f"ds_read_b128 {v(28+4*i,4)}, v17 offset:{1024*i}")
        if band and not pre: bandrd()
        k("v_mov_b32 v9, s70")
        fq = []; made = set()
        def fill(text, key=None):
            ls = text.split("\n")
            for i, l in enumerate(ls): fq.append((l, key if i == len(ls) - 1 else None))
        def pop():
            l, key = fq.pop(0); k(l)
            if key is not None: made.add(key)
        def mf(text, needs):
            for key in needs:
                while key not in made: pop()
            k(text)
            for _ in range(2):
                if fq: pop()
        k2t = {}; idx = 0
        for D_ in (2, 3, 4):
            for pr in range(2):
                k2t[(2, D_, pr)] = (K23 + 4*idx, 64*pr + 64 - 16*D_); idx += 1
        for D_ in (4, 5, 6, 7):
            k2t[(3, D_, 0)] = (K23 + 4*idx, 128 + 112 - 16*D_); idx += 1
        asked = set()
        def want(key):
            if key in asked: return
            asked.add(key)
            if key == "xt":
                fill(f"ds_read_u16 v11, v9 offset:{2368 + 256 + 4*16 + 2}")
                later.append([3, lambda: fill("v_lshl_or_b32 v11, v11, 16, v11\n" + "\n".join(f"v_and_b32 v{XT+i}, v{52+i}, v11" for i in range(4)), "xt")])
            elif key[0] == "kf":
                s_ = key[1]; a_, o = (6, 0) if s_ == 0 else (5, 16*(16 - s_))
                fill(f"ds_read2_b32 {v(KF+4*s_,2)}, v{a_} offset0:{o} offset1:{o+1}\nds_read2_b32 {v(KF+4*s_+2,2)}, v{a_} offset0:{o+2} offset1:{o+3}", key)
            else:
                r_, o = k2t[key]
                fill(f"ds_read2_b32 {v(r_,2)}, v8 offset0:{o} offset1:{o+1}\nds_read2_b32 {v(r_+2,2)}, v8 offset0:{o+2} offset1:{o+3}", key)
        later = []
        if pre:
            for s_ in range(17): want(("kf", s_))
            for kk_ in k2t: want(kk_)
            while fq: pop()
            pollU(); bandrd()
        z2 = [p for p in range(6) if any(p + D_ in BS for D_ in (2, 3, 4))]
        z3 = [p for p in range(4) if any(p + D_ in BS for D_ in (4, 5, 6, 7))]
        js = [j for j in range(-7, 57) if any(0 <= 8*B - j <= 16 for B in BS)]
        gap = max(6, (len(js) - 8) // len(z2)) if name else 8
        zpos = {}
        for i, p in enumerate(z2): zpos[0 if i == 0 else (gap*i + (7 if not name else 3))] = p
        steps = []
        for i, j in enumerate(js):
            if i in zpos:
                p = zpos[i]
                if 8*p == j: steps.append((("u", j), "both", p))
                else: steps.append((("z", p), "band", p))
                steps.append((("c", p), "band2", p))
                if 8*p == j: continue
            steps.append((("u", j), "toep", None))
        xdone = set()
        def needs_of(st):
            key, kind, p = st
            out = []
            if kind in ("toep", "both"): out += [("kf", 8*B - key[1]) for B in BS if 0 <= 8*B - key[1] <= 16]
            return out
        ring = [UR + 4*i for i in range(6)] + [16, 20]
        reg = {}; nl = [0]; PD0 = self.cpd
        xsrc = {}
        for st in steps:
            key, kind, p = st
            pp = key[1] // 8 if (key[0] == "u" and key[1] % 8 == 0 and key[1] >= 0) else p if key[0] == "z" else None
            if pp is not None and pp <= 3 and pp + 4 in BS: xsrc[pp] = key
        def issue_load():
            if nl[0] >= len(steps): return
            st = steps[nl[0]]; key = st[0]; r_ = ring[nl[0] % len(ring)]; reg[key] = r_; nl[0] += 1
            off = 64*(key[1] + 7) if key[0] == "u" else 64*(8*key[1] + 7) - (16 if key[0] == "c" else 0)
            if nl[0] > PD0: fq.insert(0, (f"ds_read_b128 {v(r_,4)}, v7 offset:{off}", key))
            else: fill(f"ds_read_b128 {v(r_,4)}, v7 offset:{off}", key)
            for kk_ in needs_of(st): want(kk_)
        if xsrc and list(xsrc.values())[0][0] == "z":
            k(f"ds_read_u16 v11, v9 offset:{2368 + 256 + 4*16 + 2}"); asked.add("xt")
            pre_xt = True
        else: pre_xt = False
        for _ in range(PD0): issue_load()
        for _ in range(min(self.cpre_pop, len(fq))): pop()
        if pre_xt: fq[0:0] = [(l, None) for l in ["v_lshl_or_b32 v11, v11, 16, v11"] + [f"v_and_b32 v{XT+i}, v{52+i}, v11" for i in range(3)]] + [(f"v_and_b32 v{XT+3}, v55, v11", "xt")]
        first = set()
        def acc(B, a_, b_, needs):
            c = v(ACC+4*B, 4) if B in first else "0"
            first.add(B)
            mf(f"{M16} {v(ACC+4*B,4)}, {v(a_,4)}, {v(b_,4)}, {c}", needs)
        def tick():
            for p in later: p[0] -= 1
            while later and min(p[0] for p in later) <= 0:
                i = min(range(len(later)), key=lambda i: later[i][0]); later.pop(i)[1]()
        s2done = set(); outq = [B for B in BS if B % 2 == 0][:-1]; lastz = None; ntoep = 0
        for st in steps:
            key, kind, p = st
            issue_load()
            r_ = reg[key]
            if kind in ("band", "both"):
                assert lastz is None or lastz in s2done, (name, st)
                lastz = p
                for ph in (0, 1, 2) + ((4,) if p in z3 else ()):
                    mf(f"{M16} {v(ZT+4*ph,4)}, {v(r_,4)}, {v(BAND+4*ph,4)}, 0", [key])
            for pp, kx in xsrc.items():
                if kx == key: acc(pp + 4, XT, r_, [key, "xt"])
            if kind in ("toep", "both"):
                j = key[1]; ntoep += 1
                if ntoep == 2 and xsrc: want("xt")
                for B in BS:
                    if 0 <= 8*B - j <= 16: acc(B, KF + 4*(8*B - j), r_, [key, ("kf", 8*B - j)])
                if outq and j >= 8*(outq[0] + 1) and all(q_ in s2done for q_ in z2 if q_ + 2 <= outq[0] + 1):
                    t_ = out_txt(outq.pop(0))
                    later += [[3, lambda t_=t_: fill(t_[0])], [5, lambda t_=t_: fill(t_[1])], [6, lambda t_=t_: fill(t_[2])]]
                tick()
            if kind == "band2":
                for ph in (3,) + ((5,) if p in z3 else ()):
                    mf(f"{M16} {v(ZT+4*ph,4)}, {v(r_,4)}, {v(BAND+4*ph,4)}, 0", [key])
                def mk_cvt(p, pr):
                    return lambda: fill("\n".join(f"v_cvt_pk_bf16_f32 v{ZP+4*pr+i}, v{ZT+8*pr+i}, v{ZT+8*pr+4+i}" for i in range(4)), ("zp", p, pr))
                def tiles(p, pr):
                    seg, Ds = (2, (2, 3, 4)) if pr < 2 else (3, (4, 5, 6, 7))
                    return [(D_, (seg, D_, pr % 2)) for D_ in Ds if p + D_ in BS]
                def mk_s2(p, pr, last):
                    def f():
                        for D_, kk_ in tiles(p, pr): acc(p + D_, ZP + 4*pr, k2t[kk_][0], [("zp", p, pr), kk_])
                        if last: s2done.add(p)
                    return f
                prs = [0, 1] + ([2] if p in z3 else [])
                d0 = (9 if not name else 3) if p == z2[0] else 0
                for pr in prs:
                    later.append([max(0, d0 - 4) + pr, lambda p=p, pr=pr: [want(kk_) for _, kk_ in tiles(p, pr)]])
                    later.append([1 + pr + d0 - d0//3, mk_cvt(p, pr)])
                    later.append([(4 if not name else 3) + pr + d0, mk_s2(p, pr, pr == prs[-1])])
        while later: tick()
        while fq: pop()
        assert not outq, (name, outq)
        self.st("conv" + name)
        for t_ in out_txt(BS[-2]): k(t_)
    conv("", list(range(8)), True)
    k.raw("L_A_skip:")
    k("s_cmp_lt_u32 s49, 24\ns_cbranch_scc1 L_A_R2")
    save = list(k.vm)
    k(f"s_mov_b32 s61, s65\ns_mov_b32 s69, s66\ns_add_u32 s70, s66, 4608\ns_and_b32 s4, s48, 1\ns_lshl_b32 s4, s4, 3\ns_add_u32 s4, s4, {EXE+4}\nv_mov_b32 v27, s4\nv_mov_b32 v11, {EXE+52}\nv_cmp_gt_u32 vcc, 32, v1\nv_cndmask_b32 v27, v27, v11, vcc\ns_cmp_lt_u32 s48, 2\ns_cbranch_scc0 L_convH")
    conv("L", [0, 1, 2, 3], False)
    k("s_branch L_A_last")
    conv("H", [4, 5, 6, 7], False)
    k.raw("L_A_last:")
    k("v_mov_b32 v6, s71\nv_mov_b32 v22, s55\ns_mov_b64 exec, 1")
    k.wait_vm()
    k("global_store_dword v6, v22, s[46:47] sc1\ns_mov_b64 exec, -1")
    self.st("aend")
    g2b.nonce(self)
    self.fin()
    k.raw("L_A_R2:"); k.vm = list(save)
    k("v_min_u32 v30, 5, v1\nv_lshl_add_u32 v30, v30, 7, s12\nglobal_load_dwordx2 v[28:29], v30, s[46:47] sc1")
    spill("r")
    k(f"v_mov_b32 v6, s71\nv_mov_b32 v16, s55\nv_mov_b32 v17, s14\nv_mov_b32 v7, 1\nv_and_b32 v5, 3, v1\nv_lshlrev_b32 v5, 3, v5\nv_add_u32 v5, {EXE}, v5\nds_write_b32 v4, v7")
    g2b.p2_srd(self)
    if ' z ' not in self.p2s: g2b.p2_zero(self)
    vms = list(k.vm); k.vm = []
    self.poll("L_pollD", lambda: k("ds_read_b32 v26, v5"), lambda: k("v_cmp_ne_u32 vcc, 1, v26\ns_nop 1"))
    k.vm = vms
    k.wait_vm()
    k("v_cmp_ne_u64 s[72:73], v[28:29], v[16:17]")
    if " F " not in self.p2s: k("s_mov_b64 exec, 1\nglobal_store_dword v6, v16, s[46:47] sc1\ns_mov_b64 exec, -1")
    self.st("aend")
    k("s_branch L_P2")
```

```python
from g2 import *
ASY = EXE + 1024
BND = 90112
GXL = 157696
def compute1(g):
    k = g.k
    AX, AWr, GX = 8, 10, 12
    GP = g.gpos
    k(f"""
    s_lshl_b32 s4, s54, 7
    s_lshl_b32 s5, s48, 5
    s_add_u32 s4, s4, s5
    v_lshl_add_u32 v16, v2, 1, s4
    s_add_u32 s4, s59, {128*GP}
    s_sub_u32 s5, s4, 1152
    s_min_u32 s4, s4, s5
    v_lshl_add_u32 v17, v3, 4, s4
    global_load_ushort v20, v16, s[36:37]
    global_load_ushort v21, v16, s[24:25]
    global_load_ushort v22, v16, s[26:27]
    s_load_dword s55, s[46:47], 0
    """)
    GF, GXF, GA = 64, 72, 80
    if g.prioC: k(f"s_setprio {g.prioC}")
    for ks in range(2): k(f"global_load_dwordx4 {v(GF+4*ks,4)}, v17, s[40:41] offset:{64*ks}")
    g.st("karg")
    k(f"""
    v_lshrrev_b32 v6, 1, v2
    v_xor_b32 v6, v6, v3
    v_lshlrev_b32 v6, 4, v6
    v_lshl_add_u32 v{AX}, v2, 7, v6
    v_xor_b32 v{AX+1}, 64, v{AX}
    s_lshl_b32 s4, s48, 11
    s_add_u32 s4, s4, {WSL}
    v_add_u32 v{AWr}, s4, v{AX}
    v_xor_b32 v{AWr+1}, 64, v{AWr}
    s_lshl_b32 s4, s48, 12
    v_add_u32 v{GX}, s4, v{AX}
    v_xor_b32 v{GX+1}, 64, v{GX}
    s_mov_b32 s76, s46
    s_mov_b32 s77, s47
    s_mov_b32 s78, {WS_SIZE}
    s_mov_b32 s79, 0x20000
    s_lshl_b32 s13, s53, 11
    s_add_u32 s13, s13, {WS_XI}
    s_lshl_b32 s5, s54, 2
    s_add_u32 s5, s5, s48                ; beta = 4j + w
    s_mul_i32 s6, s53, {2*HBLK}
    s_lshl_b32 s7, s5, 12
    s_add_u32 s60, s6, s7
    s_mul_i32 s4, s53, 36
    s_add_u32 s4, s4, s5
    s_lshl_b32 s4, s4, 7
    s_add_u32 s6, s4, {WS_HF}
    v_mov_b32 v6, s6
    s_add_u32 s4, s4, {WS_G}
    v_and_b32 v106, 7, v1
    v_lshl_add_u32 v106, v106, 2, s4
    v_lshl_add_u32 v106, v3, 5, v106
    s_lshl_b32 s10, s54, 14
    s_lshl_b32 s4, s48, 8
    s_add_u32 s10, s10, s4
    s_add_u32 s10, s10, {WS_S}
    v_lshl_add_u32 v16, v2, 4, s10
    s_lshl_b32 s11, s53, 10
    v_add_u32 v17, s11, v16
    v_lshrrev_b32 v29, 1, v3
    v_mul_u32_u24 v29, {HBLK}, v29
    v_and_b32 v5, 1, v3
    v_lshl_add_u32 v29, v5, 11, v29
    v_lshl_add_u32 v29, v2, 4, v29
    v_xor_b32 v30, 64, v29
    v_cmp_eq_u32 s[64:65], 0, v5
    v_lshlrev_b32 v31, 5, v3
    v_cvt_f32_u32 v31, v31               ; 32g
    v_mul_f32 v32, 4.0, v31              ; 128g
    v_sub_f32 v33, {fl(96.0)}, v31
    s_sub_u32 s4, s53, 1
    v_sub_u32 v28, s4, v3
    v_mov_b32 v4, 0x80000000
    """)
    for q in range(4):
        k(f"v_subrev_u32 v5, {4*q}, v28\nv_cmp_le_i32 s[{24+2*q}:{25+2*q}], 0, v5\nv_lshl_add_u32 v5, v5, 10, v16\nv_cndmask_b32 v{24+q}, v4, v5, s[{24+2*q}:{25+2*q}]")
    def late_setup():
        g.ids2(); p2_srd(g); p2_min(g); p2_setup(g)
        k(f"v_mov_b32 v116, s55\nv_mov_b32 v117, s14\ns_lshl_b32 s4, s52, 7\ns_add_u32 s4, s4, s12\nv_mov_b32 v119, s4")
    EO = 120
    k(f"s_mul_i32 s55, s55, {LCG_A}\ns_add_u32 s55, s55, {LCG_C}\ns_max_u32 s55, s55, 1\ns_not_b32 s62, s55\nv_mov_b32 v{EO+2}, s55\nv_mov_b32 v{EO+3}, s62")
    if g.p2q == 0: late_setup()
    k("v_and_b32 v118, 7, v1\nv_min_u32 v118, 5, v118\nv_and_b32 v5, 8, v1\nv_add_u32 v118, v118, v5\nv_lshl_add_u32 v118, v118, 7, s13")
    if not g.tmode: k(f"""
    v_lshrrev_b32 v52, 3, v1             ; hc
    v_and_b32 v53, 7, v1                 ; rg
    s_and_b32 s4, s48, 1
    s_lshl_b32 s5, s4, 2
    v_lshrrev_b32 v54, 1, v52
    v_add_u32 v54, s5, v54               ; chunk
    s_and_b32 s5, s48, 2
    v_lshrrev_b32 v55, 2, v53
    v_add_u32 v55, s5, v55
    v_lshlrev_b32 v56, 1, v55
    v_xor_b32 v54, v54, v56
    v_lshlrev_b32 v54, 4, v54
    v_lshl_add_u32 v54, v55, 9, v54
    v_bfe_u32 v55, v53, 1, 1
    v_lshl_add_u32 v54, v55, 7, v54
    v_and_b32 v55, 1, v52
    v_lshl_add_u32 v54, v55, 3, v54
    v_and_b32 v55, 1, v53
    v_lshl_add_u32 v54, v55, 13, v54
    v_xor_b32 v55, 16, v54
    s_lshr_b32 s5, s48, 1
    s_lshr_b32 s6, s59, 6
    s_add_u32 s6, s6, s4
    s_lshl_b32 s7, s53, 1
    s_add_u32 s7, s7, s5                 ; tb
    s_lshl_b32 s4, s6, 17
    s_lshl_b32 s5, s7, 7
    s_add_u32 s4, s4, s5
    s_add_u32 s4, s4, {WS_UT}
    v_lshl_add_u32 v58, v53, 4, s4
    v_lshl_add_u32 v58, v52, 14, v58
    s_lshl_b32 s6, s6, 5
    s_add_u32 s6, s6, s7
    s_lshl_b32 s6, s6, {g.tfs}
    s_add_u32 s6, s6, {WS_TF}
    v_mov_b32 v23, s6
    s_mov_b32 s66, 0x05040100
    s_mov_b32 s67, 0x07060302
    s_mov_b32 s72, 4096
    s_mov_b32 s73, 8192
    s_mov_b32 s74, 12288
    """)
    tr1, tr2 = Rec(), Rec()
    for i in range(8): tr1(f"ds_read_b64 {v(80+2*i,2)}, v{54 + (i & 1)} offset:{2048*(i>>1) + 256*(i&1)}")
    for e in range(4):
        for p in range(4): tr2(f"v_perm_b32 v{36+4*e+p}, v{80+4*p+2+e//2}, v{80+4*p+e//2}, s{66+e%2}")
        tr2(f"buffer_store_dwordx4 {v(36+4*e,4)}, v58, s[76:79], {'0' if e == 0 else 's%d' % (71+e)} offen sc1", tag="T")
    Z, LM, L32, L512, WH, MU, SS, WSr, WSi, MPr, MPi, EX, TB = 14, 18, 34, 36, 38, 40, 42, 44, 46, 48, 50, 52, 64
    tb = lambda j: TB + 2*(j - 1)
    TT = [112, 114, 60]
    cs = Rec()
    cs(f"""
    v_lshlrev_b32 v20, 16, v20
    v_mul_f32 v20, {fl(LOG2E)}, v20
    v_exp_f32 v20, v20
    v_lshlrev_b32 v{LM}, 16, v21
    v_lshlrev_b32 v{LM+1}, 16, v22
    v_cvt_pk_bf16_f32 v20, v20, v20
    v_mul_f32 v21, v{LM}, v{LM}
    v_and_b32 v20, 0xffff0000, v20
    v_fmac_f32 v21, v{LM+1}, v{LM+1}
    v_mul_f32 v{Z}, v20, v{LM}
    v_mul_f32 v{Z+1}, v20, v{LM+1}
    v_rcp_f32 v21, v21
    v_mul_f32 v{Z}, {fl(LOG2E)}, v{Z}
    v_mul_f32 v{Z+1}, {fl(INV2PI)}, v{Z+1}
    v_add_f32 v21, v21, v21
    v_mul_f32 v{LM}, v{LM}, v21
    v_mul_f32 v{LM+1}, -v{LM+1}, v21
    """)
    cpow_multi(cs, [(d0, d1, Z, Z+1, ex, TT[i], TT[i]+1) for i, (d0, d1, ex) in enumerate(((tb(1), tb(1)+1, "1.0"), (WSr+1, WSi+1, "v33"), (L512, L512+1, fl(512.0))))])
    cpow_multi(cs, [(d0, d1, Z, Z+1, ex, TT[i], TT[i]+1) for i, (d0, d1, ex) in enumerate(((WH, WH+1, "v32"), (MU, MU+1, "v31"), (tb(8), tb(8)+1, fl(8.0))))])
    cs(f"v_add_f32 v{TT[0]}, -1.0, v{tb(1)}")
    smul(cs, SS, SS+1, TT[0], tb(1)+1, LM, LM+1)
    sm = lambda d, x, y: smul(cs, d, d+1, x, x+1, y, y+1)
    for j, (x, y) in {2: (1, 1), 16: (8, 8), 3: (2, 1), 4: (2, 2), 9: (8, 1), 10: (8, 2), 5: (4, 1), 6: (4, 2), 7: (4, 3), 11: (8, 3), 12: (8, 4), 13: (8, 5), 14: (8, 6), 15: (8, 7)}.items():
        sm(tb(j), tb(x), tb(y))
    sm(L32, tb(16), tb(16))
    smul(cs, WSr, WSi, tb(16), tb(16)+1, WSr+1, WSi+1)
    smul(cs, MPr, MPi, MU, MU+1, SS, SS+1)
    smul(cs, MPr+1, MPi+1, tb(16), tb(16)+1, MPr, MPi)
    cs(f"v_cndmask_b32 v{MU}, v{L32}, 1.0, s[64:65]\nv_cndmask_b32 v{MU+1}, v{L32+1}, 0, s[64:65]")
    for q in range(4): cs(f"v_cndmask_b32 v{EX+2*q}, 0, v{EO+2}, s[{24+2*q}:{25+2*q}]\nv_cndmask_b32 v{EX+2*q+1}, 0, v{EO+3}, s[{24+2*q}:{25+2*q}]")
    g.st("setup")
    R, I, XF, WF = 128, 160, 208, [240, 192]
    LA = g.xla
    def xread(n):
        q, m = divmod(n, 8); c, ks = divmod(q, 2)
        return f"ds_read_b128 {v(XF+4*m,4)}, v{AX+ks} offset:{16384*(c%3)+2048*m}"
    def wread(q, comp):
        c, ks = divmod(q, 2)
        return f"ds_read_b128 {v(WF[q%2]+4*comp,4)}, v{AWr+ks} offset:{16384*(c%3)+8192*comp}"
    if g.csig: k(f"s_lshl_b32 s4, s48, 2\ns_add_u32 s4, s4, {EXE}\nv_mov_b32 v7, s4\nv_mov_b32 v5, 0\nds_write_b32 v7, v5")
    k.wait_lg(); k("s_barrier"); g.st("c0")
    k(wread(0, 0)); k(xread(0)); k(wread(0, 1))
    for n in range(1, LA): k(xread(n))
    fq = []
    sched = {}; barp = {}; BL = g.xbl
    for q in range(1, 18):
        p0 = 8*q - (BL if q % 2 == 0 else 5)
        sched.setdefault(p0, []).append(wread(q, 0)); sched.setdefault(p0 + 1, []).append(wread(q, 1))
        if q % 2 == 0: barp[p0] = q // 2
    for n in range(LA, 144):
        sched.setdefault(max(n - LA, n - n % 16 - BL + (n % 16 + 1)//2), []).append(xread(n))
    q0, q1 = g.cs_span
    per = -(-len(cs.items) // (q1 - q0))
    for q in range(18):
        g.st(f"q{q}")
        if q == 0 and not g.tmode and not g.noT: fq += tr1.items + tr2.items
        if q0 <= q < q1: fq += cs.items[(q-q0)*per:(q-q0+1)*per]
        if q == 2*GP + 2:
            gs = Rec()
            for n_ in (4, 2, 1):
                gs(f"v_and_b32 v107, {n_}, v1\nv_cmp_ne_u32 vcc, 0, v107")
                for i in range(n_): gs(f"v_cndmask_b32 v{108 if n_ == 1 else GA+i}, v{GA+i}, v{GA+i+n_}, vcc")
            fq += [("nop", None, None)]*6 + gs.items
        if q == g.tq and not g.tmode:
            fq.insert(0, ("wv", "T", None)); fq.insert(1, ("g", ["s_mov_b64 exec, 1", f"global_store_dword v23, v{EO+2}, s[46:47] sc1", "s_mov_b64 exec, -1"], None))
        if q == g.xq:
            fq.insert(0, ("raw", "    s_cmp_lg_u32 s48, 0\n    s_cbranch_scc1 L_xp1\n    s_mov_b64 exec, 1\n    global_store_dwordx2 v119, v[116:117], s[46:47] sc1\n    s_mov_b64 exec, -1\nL_xp1:", None))
        for m in range(8):
            pos = 8*q + m
            if pos in barp:
                assert not any(it[0] == "i" and it[1].startswith("ds_read") for it in fq)
                if barp[pos] == g.p2q: late_setup()
                k.wait_lg(); k("s_barrier"); g.st(f"c{barp[pos]}")
            rl_ = list(sched.get(pos, []))
            if q // 2 == GP and m in (0, 1): rl_.append(f"ds_read_b128 {v(GXF+4*m,4)}, v{GX+q%2} offset:{16384*(GP%3)+2048*m}")
            for comp, A_ in enumerate((R, I)):
                k(f"{M16} {v(A_+4*m,4)}, {v(XF+4*m,4)}, {v(WF[q%2]+4*comp,4)}, {'0' if q == 0 else v(A_+4*m,4)}")
                mine = rl_[:(len(rl_) + 1)//2] if comp == 0 else rl_[(len(rl_) + 1)//2:]
                for r_ in mine: k(r_)
                for _ in range((1 if comp == 1 else 2) - len(mine) + (1 if len(fq) > 2*(16 - 2*m) else 0)):
                    if fq: play(k, fq.pop(0))
        if q // 2 == GP:
            for mm in range(2): k(f"{M16} {v(GA+4*mm,4)}, {v(GXF+4*mm,4)}, {v(GF+4*(q%2),4)}, {'0' if q % 2 == 0 else v(GA+4*mm,4)}")
        if q == g.tq: g.st("Tst")
    while fq: play(k, fq.pop(0))
    g.st("gemm1")
    for st in range(1, 16):
        pk_bc(k, R+2*st, R+2*st-2, tb(1), 0, R+2*st)
        pk_bc(k, I+2*st, I+2*st-2, tb(1), 0, I+2*st)
        pk_bc(k, R+2*st, I+2*st-2, tb(1), 1, R+2*st, neg=True)
        pk_bc(k, I+2*st, R+2*st-2, tb(1), 1, I+2*st)
    T = 208
    k(f"v_pk_mul_f32 {v(T,2)}, {v(R+30,2)}, {v(WSr,2)}\nv_pk_mul_f32 {v(T+2,2)}, {v(I+30,2)}, {v(WSr,2)}")
    k(f"v_pk_fma_f32 {v(T,2)}, {v(I+30,2)}, {v(WSi,2)}, {v(T,2)} neg_lo:[1,0,0] neg_hi:[1,0,0]\nv_pk_fma_f32 {v(T+2,2)}, {v(R+30,2)}, {v(WSi,2)}, {v(T+2,2)}")
    k(f"v_add_f32 v{T}, v{T}, v{T+1}\nv_add_f32 v{T+1}, v{T+2}, v{T+3}")
    def allred(x, o):
        k(f"v_permlane32_swap_b32 v{x}, v{x+1}\nv_add_f32 v{x+2}, v{x}, v{x+1}\nv_add_f32 v{x+3}, v{x}, v{x+1}\nv_permlane16_swap_b32 v{x+2}, v{x+3}")
        k(f"v_add_f32 v{o}, v{x+2}, v{x+3}\nv_add_f32 v{o+1}, v{x+2}, v{x+3}\nv_permlane32_swap_b32 v{o}, v{o+1}")
    allred(T, EO)
    k.vm = []
    k(f"s_mov_b64 exec, 0xffff\nglobal_store_dwordx4 v17, {v(EO,4)}, s[46:47] sc1\ns_mov_b64 exec, -1")
    g.st("pub")
    def smalls():
        k("global_load_dwordx2 v[228:229], v118, s[46:47] sc1")
        k("s_mov_b32 exec_lo, 0xff00ff\ns_mov_b32 exec_hi, 0xff00ff\nglobal_store_dword v106, v108, s[46:47] sc1\ns_mov_b64 exec, -1")
    if g.sm_early == 3:
        k("s_mov_b32 exec_lo, 0xff00ff\ns_mov_b32 exec_hi, 0xff00ff\nglobal_store_dword v106, v108, s[46:47] sc1\ns_mov_b64 exec, -1")
        if not g.xearly: p2_loads(g)
    elif g.sm_early: smalls()
    if g.sm_early == 2 and not g.xearly: p2_loads(g)
    for st in range(16):
        a, b = T + 4*(st % 2), T + 4*(st % 2) + 2
        pk_bc(k, a, R+2*st, SS, 0); pk_bc(k, b, R+2*st, SS, 1)
        pk_bc(k, R+2*st, I+2*st, SS, 1, a, neg=True); pk_bc(k, I+2*st, I+2*st, SS, 0, b)
    CPr, CPi = WSr, WSi
    F, Q, Y, U_ = T, T + 2, T + 4, T + 6
    smul(k, F, F+1, tb(16), tb(16)+1, R+30, I+30, R+31, I+31)
    k(f"v_mov_b64 {v(Q,2)}, 0\nv_mov_b64 {v(Y,2)}, {v(F,2)}\nv_mov_b64 {v(U_,2)}, 0\nv_permlane16_swap_b32 v{Q}, v{Y}\nv_permlane16_swap_b32 v{Q+1}, v{Y+1}")
    cmac(k, [(F, Q, L32, F)])
    k(f"v_mov_b64 {v(Y,2)}, {v(F,2)}\nv_permlane16_swap_b32 v{F}, v{Y}\nv_permlane16_swap_b32 v{F+1}, v{Y+1}\nv_permlane32_swap_b32 v{U_}, v{Y}\nv_permlane32_swap_b32 v{U_+1}, v{Y+1}")
    smul(k, CPr, CPi, MU, MU+1, U_, U_+1, Q, Q+1)
    smul(k, CPr+1, CPi+1, tb(16), tb(16)+1, CPr, CPi, R+30, I+30)
    g.st("prep")
    PD = 232
    def issS():
        for q in range(4): k(f"buffer_load_dwordx4 {v(PD+4*q,4)}, v{24+q}, s[76:79], 0 offen sc1")
    def chkS():
        for q in range(4): k(f"v_cmp_ne_u64 s[{24+2*q}:{25+2*q}], {v(PD+4*q+2,2)}, {v(EX+2*q,2)}")
        k("s_or_b64 s[24:25], s[24:25], s[26:27]\ns_or_b64 vcc, s[28:29], s[30:31]\ns_or_b64 vcc, vcc, s[24:25]")
    if g.csig:
        vms = list(k.vm); k.vm = []
        g.poll("L_pollC", lambda: k("ds_read_b32 v5, v7"), lambda: k("v_cmp_ne_u32 vcc, 1, v5\ns_nop 0"))
        k.vm = vms; g.st("Csig")
    if g.sdel: k(f"s_sleep {g.sdel}")
    if g.sm_early == 3: k("global_load_dwordx2 v[228:229], v118, s[46:47] sc1")
    issS()
    if not g.sm_early: smalls()
    if not g.xearly and g.sm_early < 2: p2_loads(g)
    chkS(); k("s_cbranch_vccz L_pollS_done" if not g.nosw else "s_branch L_pollS_done")
    vms = list(k.vm)
    g.poll("L_pollS", issS, chkS)
    k.vm = vms
    g.st("Sarr")
    for q in (2, 1, 0): cmac(k, [(PD+4*q, PD+4*q+4, L512, PD+4*q)])
    cmul_multi(k, [(T, PD, WH, T+2)])
    HH = T + 4
    allred(T, HH)
    k("v_cmp_ne_u64 s[72:73], v[228:229], v[116:117]")
    pk_bc(k, CPr, MPr, HH, 0, CPr); pk_bc(k, CPi, MPi, HH, 0, CPi)
    pk_bc(k, CPr, MPi, HH, 1, CPr, neg=True); pk_bc(k, CPi, MPr, HH, 1, CPi)
    k("s_cmp_lg_u64 s[72:73], 0")
    HO = 216
    def tail(sc):
        for comp in range(2):
            A_, c0, c1 = (R, CPr, CPi) if comp == 0 else (I, CPi, CPr)
            n = "-" if comp else ""
            for hh in range(2):
                for st in range(8*hh, 8*hh + 8): pk_bc(k, A_+2*st, c0, tb(st+1), 0, A_+2*st)
                for st in range(8*hh, 8*hh + 8): pk_bc(k, A_+2*st, c1, tb(st+1), 1, A_+2*st, neg=(comp == 0))
                for half in range(2):
                    o = HO + 16*comp + 8*hh + 4*half
                    for i in range(4): k(f"v_cvt_pk_bf16_f32 v{o+i}, {n}v{A_+16*hh+4*i+half}, {n}v{A_+16*hh+4*i+2+half}")
                    k(f"buffer_store_dwordx4 {v(o,4)}, v{29+hh}, s[68:71], s60 offen offset:{1024*comp+256*(2*half+hh)} {sc}")
        g.st("hst")
        if not g.xearly: k.raw("    s_waitcnt vmcnt(8)"); k.vm = k.vm[-8:]
        p2_unpack(g)
        k("s_mov_b64 exec, 1")
        k.raw("    s_waitcnt vmcnt(0)"); k.vm = []
        k(f"global_store_dword v6, v{EO+2}, s[46:47] {sc}\ns_mov_b64 exec, -1")
        g.st("flag")
        if g.gpf: k("global_load_dword v28, v104, s[46:47] sc1\nglobal_load_dword v29, v109, s[46:47] sc1")
        if " z " not in g.p2s: p2_zero(g)
    if g.fast:
        k("s_cbranch_scc1 L_slow")
        g.slow_tail = lambda: tail("sc1")
        tail(g.hst)
    else: tail("sc1")
    k.raw("L_tail_done:"); k.vm = []

XR, DBR, DBF = [200, 202, 204, 206, 124, 126], [102, 110, 98], 64
XB = list(range(76, 96)) + list(range(20, 24))
AR = 32
def p2_loads(g):
    k = g.k
    for jj in range(3):
        k(f"global_load_dwordx2 {v(XR[jj],2)}, v100, s[8:9] offset:{64*jj}\nglobal_load_dwordx2 {v(XR[3+jj],2)}, v101, s[8:9] offset:{64*jj}\nglobal_load_dwordx2 {v(DBR[jj],2)}, v99, s[38:39] offset:{64*jj}")
    k("v_lshlrev_b32 v100, 1, v100\nv_lshlrev_b32 v101, 1, v101")
def p2_unpack(g):
    k = g.k
    for jj in range(3):
        for h in range(2): k(f"v_lshlrev_b32 v{DBF+4*jj+2*h}, 16, v{DBR[jj]+h}\nv_and_b32 v{DBF+4*jj+2*h+1}, 0xffff0000, v{DBR[jj]+h}")
    for q in range(12): k(f"v_lshlrev_b32 v{XB[2*q]}, 16, v{XR[q//2]+q%2}\nv_and_b32 v{XB[2*q+1]}, 0xffff0000, v{XR[q//2]+q%2}")
    for q in range(12): k(f"v_pk_mul_f32 {v(XB[2*q],2)}, {v(XB[2*q],2)}, {v(DBF+2*(q%6),2)}")
def p2_zero(g):
    for q in range(12): g.k(f"v_mov_b64 {v(AR+2*q,2)}, 0")
def p2_srd(g):
    g.k(f"s_mov_b32 s68, s42\ns_mov_b32 s69, s43\ns_mov_b32 s70, 4718592\ns_mov_b32 s71, 0x20000")
def p2_min(g):
    k = g.k
    k(f"""
    s_cmp_lt_u32 s48, 2
    s_cselect_b32 s16, s32, s34
    s_cselect_b32 s17, s33, s35
    s_mov_b32 s18, 663552
    s_mov_b32 s19, 0x20000
    s_getreg_b32 s14, hwreg(HW_REG_XCC_ID, 0, 4)
    s_lshl_b32 s12, s56, 10
    s_add_u32 s12, s12, {WS_XI}
    s_lshl_b32 s23, s52, 7
    s_add_u32 s23, s23, s12
    s_lshl_b32 s4, s48, 2
    s_add_u32 s23, s23, s4
    s_mov_b32 s{UO[0]}, s57
    s_lshr_b32 s4, s56, 1
    s_mul_i32 s4, s4, {36*128}
    s_add_u32 s4, s4, {WS_HF}
    {"v_min_u32 v62, 35, v1" if not g.uflag else f"v_min_u32 v62, 8, v1; v_lshl_add_u32 v62, v62, 7, s57; v_subrev_u32 v63, 1152, v62; v_min_u32 v62, v62, v63; v_lshrrev_b32 v62, 5, v62; v_add_u32 v62, s48, v62".replace("; ", chr(10))}
    v_lshl_add_u32 v62, v62, 7, s4
    s_mul_i32 s4, s56, {HBLK}
    s_lshl_b32 s15, s48, 12
    s_add_u32 s4, s4, s15
    s_add_u32 s4, s4, {0 if g.hout else WS_H}
    v_lshl_add_u32 v63, v1, 4, s4
    """)
    offsets(k, UO)
def p2_setup(g):
    k = g.k
    k(f"""
    s_lshl_b32 s4, s56, 6
    v_lshrrev_b32 v96, 3, v0             ; tl
    v_add_u32 v97, s4, v96
    v_and_b32 v98, 7, v0                 ; dl
    s_mul_i32 s5, s52, 192
    v_lshl_add_u32 v99, v98, 3, s5
    v_mul_u32_u24 v100, 1152, v97
    v_add_u32 v100, v100, v99
    v_add_u32 v101, {32*1152}, v100
    """)
    k(f"""
    s_lshr_b32 s4, s56, 1
    s_mul_i32 s4, s4, {9*512}
    s_lshl_b32 s5, s51, 6
    s_add_u32 s4, s4, s5
    s_lshr_b32 s5, s48, 1
    s_lshl_b32 s5, s5, 2
    s_add_u32 s4, s4, s5
    s_and_b32 s5, s48, 1
    s_lshl_b32 s5, s5, 8
    s_add_u32 s4, s4, s5
    s_add_u32 s4, s4, {WS_G}
    v_lshrrev_b32 v102, 3, v1
    v_and_b32 v109, 3, v102
    v_lshl_add_u32 v109, v109, 3, s4
    v_lshrrev_b32 v104, 5, v1
    v_lshl_add_u32 v109, v104, 7, v109
    v_lshl_add_u32 v104, v98, 9, v109
    v_add_u32 v109, 4096, v109
    s_mul_i32 s4, s52, 43
    s_lshr_b32 s4, s4, 5
    s_mul_i32 s4, s4, {14*128}
    s_add_u32 s4, s4, {WS_AF}
    v_min_u32 v105, 27, v1
    v_lshl_add_u32 v105, v105, 7, s4
    s_mul_i32 s4, s52, 96
    s_mul_i32 s5, s48, 24
    s_add_u32 s4, s4, s5
    s_lshl_b32 s4, s4, 12
    s_lshl_b32 s5, s56, 7
    s_add_u32 s4, s4, s5
    s_add_u32 s4, s4, {WS_A}
    v_lshl_add_u32 v253, v102, 12, s4
    v_lshrrev_b32 v254, 5, v1
    s_mul_i32 s5, s48, 6
    v_add_u32 v254, s5, v254
    """)
    for n in range(3): k(f"v_add_u32 v255, {2*n}, v254\nv_xor_b32 v255, v255, v1\nv_and_b32 v255, 7, v255\nv_lshl_add_u32 v{248+n}, v255, 4, v253")
    k(f"""
    s_mul_i32 s4, s52, 96
    s_and_b32 s5, s48, 1
    s_mul_i32 s5, s5, 48
    s_add_u32 s4, s4, s5
    v_add_u32 v253, s4, v102
    v_mul_u32_u24 v253, 1152, v253
    v_xor_b32 v254, v98, v3
    v_lshl_add_u32 v253, v254, 4, v253   ; vC0
    v_xor_b32 v254, 64, v253
    v_add_u32 v254, 8192, v254           ; vC1
    s_mul_i32 s22, s48, 12288
    s_add_u32 s22, s22, {CST}
    s_mul_i32 s21, s48, 3072
    s_and_b32 s4, s48, 1
    s_lshl_b32 s4, s4, 2
    s_lshr_b32 s5, s48, 1
    s_add_u32 s4, s4, s5
    v_xor_b32 v251, s4, v98
    v_lshlrev_b32 v251, 4, v251
    v_lshl_add_u32 v251, v98, 9, v251
    v_lshl_add_u32 v251, v102, 1, v251
    v_add_u32 v251, {AST}, v251
    v_xor_b32 v252, 32, v251
    v_mul_u32_u24 v96, 400, v96
    v_lshl_add_u32 v96, v98, 4, v96
    v_add_u32 v96, {IMG}, v96
    """)

def loader2(g):
    k = g.k
    k.raw("L_P2:"); k.vm = []; k.lg = []
    GG, OM = 58, 60
    if not g.uflag:
        g.poll("L_pollH", lambda: k("global_load_dword v97, v62, s[46:47] sc1"), lambda: k("v_cmp_ne_u32 vcc, s55, v97\ns_nop 1"))
        g.st("Harr")
    else: k("s_mov_b32 s74, -1")
    def need(u):
        k(f"s_bitcmp0_b32 s74, {u}\ns_cbranch_scc1 L_pollH{u}_done")
        save = list(k.vm)
        g.poll(f"L_pollH{u}", lambda: k("global_load_dword v97, v62, s[46:47] sc1"), lambda: k(f"v_cmp_ne_u32 s[74:75], s55, v97\ns_mov_b32 vcc_hi, 0\ns_and_b32 vcc_lo, s74, {1 << u}"))
        k.vm = save
        if u == 0: g.st("Harr")
    def h_dma(u):
        k(f"s_add_u32 m0, s15, {16384*(u%6)}\ns_lshl_b32 s63, s{UO[u]}, 7")
        for n in range(4): k(f"buffer_load_dwordx4 v63, s[68:71], s63 offen offset:{1024*n} {g.hld} lds", tag=("h", u))
    def c_blk(n):
        k(f"s_add_u32 m0, s22, {2048*(n%6)}\ns_add_u32 s20, s{UO[n//3]}, {18432*(n%3)}\nbuffer_load_dwordx4 v253, s[16:19], s20 offen lds\nbuffer_load_dwordx4 v254, s[16:19], s20 offen offset:1024 lds", tag="C")
    def bar(u, *tags):
        for t in tags: k.wait_vm(t)
        k("s_barrier"); g.st(f"u{u}")
    assert g.cmf == 27
    chk = lambda: k("v_xor_b32 v68, s55, v68\nv_xor_b32 v69, s55, v69\nv_xor_b32 v70, s55, v70\nv_xor_b32 v71, s55, v71\nv_or3_b32 v68, v68, v69, v70\nv_or_b32 v68, v68, v71\nv_cmp_ne_u32 vcc, 0, v68\ns_nop 0")
    lastb = -1
    for tok in g.p2s.split():
        if tok[0] == "h":
            assert int(tok[1:]) - 5 <= max(lastb, 0)
            if g.uflag: assert int(tok[1:]) < 2 or lastb >= 0; need(int(tok[1:]))
            h_dma(int(tok[1:]))
        elif tok[0] == "b":
            u, w = tok[1:].split(":"); lastb = int(u); k.wait_lg(); bar(int(u), ("h", int(w)))
        elif tok == "i":
            k(f"v_lshlrev_b32 v26, 2, v2\nv_add_u32 v26, {ASY}, v26\nv_mov_b32 v28, 0\nds_write_b32 v26, v28\ns_lshl_b32 s4, s48, 2\ns_add_u32 s4, s4, {ASY}\nv_mov_b32 v25, s4\nv_and_b32 v26, 3, v1\nv_lshlrev_b32 v26, 2, v26\nv_add_u32 v26, {ASY}, v26")
            k("v_mov_b32 v64, s55\nv_mov_b32 v31, s23\nv_min_u32 v30, 23, v1\nv_lshrrev_b32 v66, 2, v30\nv_and_b32 v30, 3, v30\nv_lshlrev_b32 v30, 2, v30\nv_lshl_add_u32 v30, v66, 7, v30\nv_add_u32 v30, s12, v30")
        elif tok == "f": k("global_load_dwordx4 v[68:71], v105, s[46:47] sc1", tag="af")
        elif tok == "g":
            for ii in range(2): k(f"global_load_dword v{GG+ii}, v104, s[46:47] offset:{32*ii} sc1\nglobal_load_dword v{56+ii}, v109, s[46:47] offset:{32*ii} sc1")
        elif tok == "a":
            lab = "L_pollA"
            k.wait_vm("af"); chk(); k(f"s_cbranch_vccz {lab}_done" if not g.noaw else f"s_branch {lab}_done")
            save = list(k.vm)
            g.poll(lab, lambda: k(f"s_sleep {g.asleep}\nglobal_load_dwordx4 v[68:71], v105, s[46:47] sc1"), chk)
            k.vm = save
            g.st("Aarr")
            k(f"s_add_u32 m0, s21, {AST}")
            for n in range(3): k(f"s_mov_b32 s4, {32768*n - 1024*n}\nbuffer_load_dwordx4 v{248+n}, s[76:79], s4 offen offset:{1024*n} sc1 lds", tag="a")
        elif tok == "d":
            k.wait_vm(("h", 8))
            k("s_cmp_lg_u64 s[72:73], 0\ns_mov_b64 exec, 1\ns_cbranch_scc1 L_dfs\nglobal_store_dword v31, v64, s[46:47] offset:16\ns_branch L_dfd"); k.vm.pop()
            k.raw("L_dfs:"); k("global_store_dword v31, v64, s[46:47] offset:16 sc1"); k.raw("L_dfd:"); k("s_mov_b64 exec, -1")
        elif tok == "m":
            for ctl in ("quad_perm:[1,0,3,2]", "quad_perm:[2,3,0,1]", "row_half_mirror"):
                for ii in range(2): k(f"v_add_f32_dpp v{GG+ii}, v{GG+ii}, v{GG+ii} {ctl} row_mask:0xf bank_mask:0xf")
            for ii in range(2): k(f"v_add_f32 v{GG+ii}, v{GG+ii}, v{56+ii}\nv_mul_f32 v{GG+ii}, {fl(-LOG2E)}, v{GG+ii}")
            for ii in range(2): k(f"v_exp_f32 v{GG+ii}, v{GG+ii}")
            for ii in range(2): k(f"v_add_f32 v{GG+ii}, 1.0, v{GG+ii}")
            for ii in range(2): k(f"v_rcp_f32 v{GG+ii}, v{GG+ii}")
            for ii in range(2): k(f"v_sub_f32 v{OM+ii}, 1.0, v{GG+ii}")
            for q in range(24): k(f"v_mul_f32 v{XB[q]}, v{XB[q]}, v{OM+q//12}")
        elif tok == "F":
            k("s_cmp_lt_u32 s49, 18\ns_cbranch_scc1 L_noF\ns_mov_b64 exec, 1\nglobal_store_dword v6, v64, s[46:47] sc1\ns_mov_b64 exec, -1"); k.vm.pop()
            k.raw("L_noF:")
        elif tok == "z": p2_zero(g)
        elif tok == "p": k("s_setprio 3")
        else: raise ValueError(tok)
    assert lastb >= 4
    k("global_load_dword v66, v30, s[46:47] offset:16 sc1")
    def spec(lab, off, val, reads):
        vms = list(k.vm); k.vm = []
        k(f"ds_read_b32 v27, v26 offset:{off}"); reads()
        k(f"v_cmp_ne_u32 vcc, {val}, v27\ns_nop 0\ns_cbranch_vccz {lab}_ok")
        lgs = list(k.lg)
        g.poll(lab, lambda: k(f"ds_read_b32 v27, v26 offset:{off}"), lambda: k(f"v_cmp_ne_u32 vcc, {val}, v27\ns_nop 0"))
        reads()
        k.raw(lab + "_ok:"); k.vm = vms
        if len(lgs) > len(k.lg): k.lg = lgs
    def aread(qs):
        for q in qs: k(f"ds_read_u16_d16_hi v{AR+q}, v{251+q//12} offset:{128*(q%4)+4096*((q%12)//4)}")
    E0 = 128
    def iread(ii):
        for jj in range(3):
            q = 3*ii + jj
            k(f"ds_read_b128 {v(E0+8*q,4)}, v96 offset:{12800*ii+128*jj}\nds_read_b128 {v(E0+8*q+4,4)}, v96 offset:{25600+12800*ii+128*jj}")
    k.wait_vm("a")
    k("ds_write_b32 v25, v64")
    k("v_cmp_ne_u32 vcc, s55, v66\ns_nop 0\ns_cbranch_vccz L_pollF_done")
    g.poll("L_pollF", lambda: k("global_load_dword v66, v30, s[46:47] offset:16 sc1"), lambda: k("v_cmp_ne_u32 vcc, s55, v66\ns_nop 0"))
    k.lg = [(set(), None)]
    g.st("Farr")
    spec("L_pollY", 0, "s55", lambda: aread(range(12)))
    g.st("u8")
    aread(range(12, 24))
    for q in range(12): k(f"v_fmac_f32 v{XB[q]}, v{AR+q}, v{GG}")
    for ii in range(2):
        if ii == 0: k.wait_lg()
        spec(f"L_pollI{ii}", 16 + 16*ii, 1, lambda: iread(ii))
        g.st(f"img{ii}")
        if ii == 0:
            for q in range(12, 24): k(f"v_fmac_f32 v{XB[q]}, v{AR+q}, v{GG+1}")
        for jj in range(3):
            q = 3*ii + jj
            if ii == 0 and not g.epk:
                for e_ in range(4): k(f"v_add_f32 v{E0+8*q+e_}, v{E0+8*q+e_}, v{E0+8*q+4+e_}")
                for e_ in range(4): k(f"v_fma_f32 v{E0+8*q+e_}, v{E0+8*q+e_}, v{OM}, v{XB[4*jj+e_]}")
            else:
                for h in range(2): k(f"v_pk_add_f32 {v(E0+8*q+2*h,2)}, {v(E0+8*q+2*h,2)}, {v(E0+8*q+4+2*h,2)}")
                for h in range(2): pk_bc(k, E0+8*q+2*h, E0+8*q+2*h, OM, ii, XB[12*ii+4*jj+2*h])
            k(f"global_store_dwordx4 v{100+ii}, {v(E0+8*q,4)}, s[42:43] offset:{128*jj} {g.ost}")
    g.st("stiss")
    k.out.append("L_fin2:")
    g.fin()
    if g.fast:
        g.enter("L_slow", karg=False); k("s_nop 1"); g.slow_tail(); k("s_branch L_tail_done")

def nonce(g):
    k = g.k
    assert not g.tmode or g.unsafe
    k(f"s_lshl_b32 s4, s49, 3\ns_add_u32 s4, s4, s50\ns_lshl_b32 s4, s4, 3\ns_add_u32 s4, s4, s48\ns_cmp_lg_u32 s4, {(31*8 + 0)*8 + 2}\ns_cbranch_scc1 L_fin3")
    k(f"v_min_u32 v8, 55, v1\nv_lshlrev_b32 v8, 8, v8\nv_add_u32 v8, {WS_AF}, v8")
    def iss():
        k(f"s_sleep {g.wsleep}")
        for i in range(2): k(f"global_load_dwordx4 {v(64+4*i,4)}, v8, s[46:47] offset:{128*i} sc1")
    def chk():
        for i in range(8): k(f"v_xor_b32 v{64+i}, s55, v{64+i}")
        for i in range(1, 8): k(f"v_or_b32 v64, v64, v{64+i}")
        k("v_cmp_ne_u32 vcc, 0, v64\ns_nop 1")
    g.poll("L_pollW", iss, chk)
    k("v_mov_b32 v6, 0\nv_mov_b32 v7, s55\ns_mov_b64 exec, 1\nglobal_store_dword v6, v7, s[46:47] sc1\ns_mov_b64 exec, -1")
    k.out.append("L_fin3:")

def loader1(g):
    k = g.k
    k(f"""
    s_sub_u32 s62, s48, 4                ; lw
    v_lshrrev_b32 v4, 3, v1              ; rl
    v_and_b32 v5, 7, v1
    s_lshl_b32 s4, s54, 1
    v_xor_b32 v5, v5, v3
    s_and_b32 s5, s62, 1
    v_lshlrev_b32 v5, 4, v5
    s_add_u32 s4, s4, s5
    v_mad_u32_u24 v6, v4, s3, v5         ; rl*1152 + swizzled chunk
    s_mul_i32 s4, s4, {32*1152}
    s_mov_b32 s70, {0 if g.dbg_noP1 else 663552}
    s_mov_b32 s71, 0x20000
    v_add_u32 v12, s4, v6
    s_lshl_b32 s6, s62, 12
    v_xor_b32 v13, 64, v12
    v_add_u32 v14, {2*8192}, v12
    v_add_u32 v15, {3*8192}, v13
    v_add_u32 v13, 8192, v13
    v_and_b32 v8, 4, v4
    v_lshlrev_b32 v8, 3, v8
    v_and_b32 v9, 1, v4
    v_lshl_add_u32 v8, v9, 4, v8
    v_bfe_u32 v9, v4, 1, 1
    s_lshl_b32 s4, s53, 7
    s_lshl_b32 s5, s62, 2
    s_add_u32 s4, s4, s5
    v_add3_u32 v8, v8, v9, s4
    v_mad_u32_u24 v8, v8, s3, v5         ; x n=0
    s_mov_b32 s66, {0 if g.dbg_noP1 else 2359296}
    s_mov_b32 s67, 0x20000
    v_xor_b32 v9, 64, v8
    v_add_u32 v10, {2*1152-2048}, v8
    v_add_u32 v11, {66*1152-3072}, v9
    v_add_u32 v9, {64*1152-1024}, v9
    s_cmp_lt_u32 s62, 2
    s_mov_b64 s[64:65], s[8:9]
    s_cselect_b64 s[68:69], s[28:29], s[30:31]
    s_mov_b32 s10, s59
    """.replace("    s_sub_u32 s62", "    s_movk_i32 s3, 1152\n    s_sub_u32 s62"))
    CO = list(range(10, 19))
    def dma(c, parts="wx"):
        if "w" in parts:
            k(f"s_add_u32 m0, s6, {WSL + 16384*(c%3)}")
            for n in range(4): k(f"buffer_load_dwordx4 v{12+n}, s[68:71], s{CO[c]} offen offset:{1024*n} lds", tag=("c", c))
        if "x" in parts:
            k(f"s_add_u32 m0, s6, {XS + 16384*(c%3)}")
            for n in range(4): k(f"buffer_load_dwordx4 v{8+n}, s[64:67], s{CO[c]} offen offset:{1024*n} lds", tag=("c", c))
    def csetup():
        g.ids2()
        k(f"""
        s_mov_b32 s74, {0 if g.dbg_noC else 663552}
        s_mov_b32 s75, 0x20000
        s_mul_i32 s61, s62, 12288
        s_add_u32 s61, s61, {CST}
        s_cmp_lt_u32 s62, 2
        s_cselect_b32 s72, s32, s34
        s_cselect_b32 s73, s33, s35
        s_mov_b32 s{UO[0]}, s57
        s_mul_i32 s4, s52, 96
        s_and_b32 s5, s62, 1
        s_mul_i32 s5, s5, 48
        s_add_u32 s4, s4, s5
        s_mul_i32 s4, s4, 1152
        v_add_u32 v6, s4, v6                 ; vC0
        v_xor_b32 v7, 64, v6
        v_add_u32 v7, 8192, v7               ; vC1
        v_lshrrev_b32 v4, 1, v2
        v_xor_b32 v4, v4, v3
        v_lshlrev_b32 v4, 4, v4
        v_lshl_add_u32 v4, v2, 7, v4
        v_add_u32 v4, s61, v4
        v_xor_b32 v5, 64, v4
        """)
        offsets(k, UO)
    CU = lambda u: 88 + 24*(u % 7)
    def c_dma(n):
        k(f"s_add_u32 m0, s61, {2048*(n%6)}\ns_add_u32 s20, s{UO[n//3]}, {18432*(n%3)}\nbuffer_load_dwordx4 v6, s[72:75], s20 offen lds\nbuffer_load_dwordx4 v7, s[72:75], s20 offen offset:1024 lds", tag=("C", n))
    def c_drain(e, n):
        for ks in range(2): e(f"ds_read_b128 {v(CU(n//3)+12*ks+4*(n%3),4)}, v{4+ks} offset:{2048*(n%6)}", tag=("Cd", n))
    def cstream(n0, depth, sig=None):
        drained = 0
        for n in range(n0, g.cmf if not g.dbg_cskip else n0):
            D = depth(n)
            while drained <= n - D and drained < 21:
                k.wait_vm(("C", drained)); c_drain(k, drained); drained += 1
            if drained >= 21 and not g.clate: k.wait_vm(("C", n - D))
            if n >= 6: k.wait_lg(("Cd", n - 6))
            c_dma(n)
            g.st(f'cb{n}')
            if n == sig: k(f"s_lshl_b32 s4, s62, 2\ns_add_u32 s4, s4, {EXE}\nv_mov_b32 v8, s4\nv_mov_b32 v9, 1\nds_write_b32 v8, v9")
        while drained < 21 and not g.dbg_cskip:
            k.wait_vm(("C", drained)); c_drain(k, drained); drained += 1
        if not g.clate: k.wait_vm()
    g.st("karg")
    dma(0)
    offsets(k, CO)
    csetup()
    if g.prioL: k(f"s_setprio {g.prioL}")
    dma(1, g.first)
    for c in range(9):
        if g.nob8 and c == 8: break
        k.wait_vm(("c", 8 if (g.nob8 and c == 7) else c)); g.st(f"l{c}"); k("s_barrier")
        if c == 0: dma(1, [p for p in "wx" if p not in g.first])
        if c + 2 < 9: dma(c + 2)
        if c == (6 if g.nob8 else 7):
            for n in range(g.cpre): c_dma(n)
    cstream(g.cpre, lambda n: 5 if n < g.cfast else g.cthr, g.csig)
    k("s_branch L_CPF")
    vm_c = list(k.vm)
    g.enter("L_R2G"); k.vm = list(g.pvm); k(g.aids)
    UK0 = 34816
    RP = 28 if g.pure else 21
    HL = 55 if g.pure else 42
    k(f"""
    s_sub_u32 s62, s48, 4                ; lw
    v_lshrrev_b32 v4, 3, v1              ; rl
    s_mul_i32 s3, s62, 14
    v_and_b32 v8, 7, v1
    s_add_u32 s3, s3, s49
    v_mul_u32_u24 v6, 1152, v4
    s_sub_u32 s3, s3, 18
    """)
    if g.tmode:
        k("s_mov_b32 s73, s3" if g.tmode == 1 else "s_sub_u32 s73, s49, 18\ns_lshl_b32 s73, s73, 2\ns_add_u32 s73, s73, s62")
        k(f"""
        s_lshr_b32 s72, s73, 2               ; col
        s_and_b32 s7, s73, 3
        s_lshl_b32 s4, s50, 2
        s_add_u32 s7, s7, s4                 ; tb
        s_mul_i32 s4, s7, {64*1152}
        s_lshl_b32 s5, s72, 7
        s_add_u32 s4, s4, s5
        v_lshl_add_u32 v9, v8, 4, v6
        v_add_u32 v9, s4, v9
        s_mul_i32 s63, s62, 12288
        s_add_u32 s63, s63, {CST}
        s_mov_b32 s78, 2359296
        s_mov_b32 s79, 0x20000
        s_cmp_ge_u32 s73, 36
        s_mov_b32 s76, s8
        s_mov_b32 s77, s9
        s_cbranch_scc1 L_noT1
        """)
        for n in range(8):
            k(f"s_add_u32 m0, s63, {1024*n}\ns_mov_b32 s4, {9216*n}\nv_xor_b32 v11, {16*n}, v9\nbuffer_load_dwordx4 v11, s[76:79], s4 offen lds")
        if g.tmode == 2:
            k("s_branch L_noT1b")
            k.raw("L_noT1:")
            vm1 = list(k.vm); k.vm = []
            k(f"""
            s_sub_u32 s4, s73, 36
            s_bitcmp1_b32 s4, 0
            s_cselect_b32 s76, s30, s28
            s_cselect_b32 s77, s31, s29
            s_mov_b32 s78, 663552
            s_lshr_b32 s4, s4, 1
            s_mul_i32 s4, s4, 58
            v_min_u32 v21, 57, v1
            v_add_u32 v21, s4, v21
            v_lshrrev_b32 v22, 6, v21
            v_add_u32 v22, s50, v22
            v_mul_u32_u24 v21, 1152, v21
            """)
            def touch1(c):
                k(f"v_add_u32 v23, {c}, v22\nv_mul_u32_u24 v24, 7282, v23\nv_lshrrev_b32 v24, 16, v24\nv_mul_u32_u24 v24, 9, v24\nv_sub_u32 v23, v23, v24\nv_lshl_add_u32 v{40+c}, v23, 7, v21")
            for c in range(1, 9): touch1(c)
            for c in g.e1: k(f"buffer_load_dword v{30+c}, v{40+c}, s[76:79], 0 offen")
            k("s_mov_b32 s16, s76\ns_mov_b32 s17, s77\ns_mov_b32 s18, 663552\ns_mov_b32 s19, 0x20000")
            k.raw("L_noT1b:"); k.vm = vm1
        else: k.raw("L_noT1:")
    k(f"""
    v_xor_b32 v5, v8, v3
    v_lshl_add_u32 v6, v5, 4, v6
    v_mov_b32 v60, 0
    v_mov_b32 v61, 0
    s_lshl_b32 s4, s48, 3
    s_add_u32 s4, s4, {EXE}
    v_mov_b32 v10, s4
    ds_write_b64 v10, v[60:61]
    s_mul_i32 s4, s62, {AW}
    s_add_u32 s4, s4, {UK0}
    v_lshl_add_u32 v12, v1, 3, s4
    ds_write_b64 v12, v[60:61]
    s_and_b32 s4, s62, 1
    s_mul_i32 s4, s4, {AW}
    s_add_u32 s4, s4, {UK0 + 4*AW}
    v_lshl_add_u32 v12, v1, 3, s4
    ds_write_b64 v12, v[60:61]
    s_lshr_b32 s4, s3, 1
    s_mul_i32 s4, s4, {RP}
    v_mul_u32_u24 v20, {65536//RP + 1}, v1
    v_lshrrev_b32 v20, 16, v20           ; lane/RP
    v_mul_u32_u24 v21, {RP}, v20
    v_sub_u32 v21, v1, v21
    v_add_u32 v21, s4, v21
    v_lshrrev_b32 v22, 6, v21
    s_mul_i32 s4, s50, {g.rot1x}
    v_add_u32 v22, s4, v22
    v_mul_u32_u24 v25, 683, v21
    v_lshrrev_b32 v25, 16, v25
    v_mul_u32_u24 v25, 3, v25
    v_lshrrev_b32 v25, 1, v25
    v_lshlrev_b32 v20, 2, v20
    v_mul_u32_u24 v21, 1152, v21
    s_mov_b32 s70, 663552
    s_mov_b32 s71, 0x20000
    s_mov_b32 s66, 663552
    s_mov_b32 s67, 0x20000
    v_lshlrev_b32 v16, 4, v1
    """)
    k.raw("    s_getpc_b64 s[4:5]\n    s_add_u32 s4, s4, band_tab@rel32@lo+4\n    s_addc_u32 s5, s5, band_tab@rel32@hi+12")
    k(f"""
    s_lshl_b32 s6, s62, 11
    v_add_u32 v56, s6, v16
    v_mov_b32 v57, s5
    v_add_co_u32 v56, vcc, s4, v56
    s_add_u32 m0, s6, {BND}
    v_addc_co_u32 v57, vcc, 0, v57, vcc
    s_bitcmp1_b32 s3, 0
    s_cselect_b32 s68, s30, s28
    s_cselect_b32 s69, s31, s29
    s_cselect_b32 s64, s34, s32
    s_cselect_b32 s65, s35, s33
    """)
    k.wait_lg(); k("s_barrier")
    npf = [0]
    def touch(pat, rot, srd):
        d = 64 + npf[0]; npf[0] += 1
        k(f"s_mov_b32 s4, {pat}\nv_bfe_u32 v23, s4, v20, 4\nv_add_u32 v23, v23, v{rot}\nv_mul_u32_u24 v24, 7282, v23\nv_lshrrev_b32 v24, 16, v24\nv_mul_u32_u24 v24, 9, v24\nv_sub_u32 v23, v23, v24\nv_lshl_add_u32 v23, v23, 7, v21")
        k._wait(vm=g.pf_depth)
        k(f"buffer_load_dword v{d}, v23, s[{srd}:{srd+3}], 0 offen")
    if not g.wfirst:
        for pat in g.bpf: touch(pat, 22, 68)
    for pat in g.bpf0: touch(pat, 22, 68)
    k("global_load_dword v62, v60, s[46:47]\nglobal_load_lds_dwordx4 v[56:57], off\nglobal_load_lds_dwordx4 v[56:57], off offset:1024")
    k(f"""
    s_mov_b32 s76, s46
    s_mov_b32 s77, s47
    s_mov_b32 s78, {WS_SIZE}
    s_mov_b32 s79, 0x20000
    v_lshrrev_b32 v15, 5, v1
    v_mad_u32_u24 v15, v15, 5, s60
    v_min_u32 v15, 575, v15
    v_lshrrev_b32 v15, {6 if g.tmode else 5}, v15
    v_and_b32 v14, 31, v1
    v_lshl_add_u32 v15, v15, 5, v14
    v_lshlrev_b32 v15, {g.tfs}, v15
    v_add_u32 v15, {WS_TF}, v15
    s_lshl_b32 s12, s60, 12
    s_add_u32 s12, s12, {WS_UT}
    s_mul_i32 s5, s3, {2*HL*128}
    s_mul_i32 s14, s50, {4*HBLK}
    s_add_u32 s4, s14, {4*HBLK - 128}
    s_add_u32 s5, s5, s14
    v_min_u32 v58, {HL-1}, v1
    v_lshl_add_u32 v58, v58, 7, s5
    v_add_u32 v59, {HL*128}, v58
    v_min_u32 v58, s4, v58
    v_min_u32 v59, s4, v59
    v_mov_b32 v19, {EXE+56}
    v_mov_b32 v60, 1
    """)
    if g.tmode:
        k(f"""
        s_mov_b32 s22, 0x05040100
        s_mov_b32 s23, 0x07060302
        s_lshl_b32 s5, s72, 18
        s_lshl_b32 s4, s7, 7
        s_add_u32 s5, s5, s4
        s_add_u32 s5, s5, {WS_UT}
        v_lshl_add_u32 v13, v8, 4, s5
        v_lshl_add_u32 v13, v4, 15, v13
        s_lshl_b32 s5, s72, 5
        s_add_u32 s5, s5, s7
        s_lshl_b32 s5, s5, {g.tfs}
        s_add_u32 s5, s5, {WS_TF}
        v_mov_b32 v14, s5
        v_xor_b32 v12, v4, v8
        v_lshlrev_b32 v12, 4, v12
        v_lshl_add_u32 v12, v8, 10, v12
        v_add_u32 v12, s63, v12
        """)
        k("s_cmp_ge_u32 s73, 36\ns_cbranch_scc1 L_noT")
        k._wait(vm=3); g.st("Tld")
        for i in range(8): k(f"ds_read_b128 {v(96+4*i,4)}, v12 offset:{128*i}")
        for e in range(8):
            for p in range(4): k(f"v_perm_b32 v{128+4*e+p}, v{96+8*p+4+e//2}, v{96+8*p+e//2}, s{22+e%2}")
            k(f"s_mov_b32 s4, {4096*e}\nbuffer_store_dwordx4 {v(128+4*e,4)}, v13, s[76:79], s4 offen sc1")
        k(f"v_readfirstlane_b32 s55, v62\ns_mul_i32 s55, s55, {LCG_A}\ns_add_u32 s55, s55, {LCG_C}\ns_max_u32 s55, s55, 1\nv_mov_b32 v17, s55")
        k("s_mov_b64 exec, 1"); k.wait_vm()
        k("global_store_dword v14, v17, s[46:47] sc1\ns_mov_b64 exec, -1"); g.st("Tst")
        if g.tmode == 2:
            k("s_branch L_noTb")
            k.raw("L_noT:")
            for c in g.e2: k.raw(f"    s_waitcnt vmcnt({g.pf_depth})\n    buffer_load_dword v{30+c}, v{40+c}, s[16:19], 0 offen")
            k.raw("L_noTb:")
        else: k.raw("L_noT:")
        k.vm = [({("v", 62)}, None), (set(), None), (set(), None)]
    if g.ctl:
        jobs = [(WS_HF, 72*128, 36, 0), (WS_HF, 72*128, 36, 36*128), (WS_G, 72*128, 36, 0), (WS_G, 72*128, 36, 36*128), (WS_XI, 32*128, 32, 0), (WS_AF, 14*128, 14, 0)]
        for i, (base, per, cnt, off) in enumerate(jobs):
            k(f"s_cmp_lg_u32 s3, {42+i}\ns_cbranch_scc1 L_ct{i}\ns_mul_i32 s5, s50, {per}\ns_add_u32 s5, s5, {base+off}\nv_min_u32 v30, {cnt-1}, v1\nv_lshl_add_u32 v30, v30, 7, s5\nglobal_load_dword v31, v30, s[46:47]"); k.vm.pop()
            k.raw(f"L_ct{i}:")
        k(f"s_sub_u32 s5, s3, 48\ns_cmp_ge_u32 s5, 3\ns_cbranch_scc1 L_cts\ns_mul_i32 s5, s5, {3*16384}\ns_lshl_b32 s4, s50, 11\ns_add_u32 s5, s5, s4\ns_add_u32 s5, s5, {WS_S}\nv_min_u32 v30, 2, v3\nv_lshlrev_b32 v30, 14, v30\nv_lshl_add_u32 v30, v2, 7, v30\nv_add_u32 v30, s5, v30\nglobal_load_dword v31, v30, s[46:47]"); k.vm.pop()
        k.raw("L_cts:")
    if g.pure:
        k("s_cmp_eq_u32 s62, 3\ns_cbranch_scc1 L_pure3")
        vm0 = list(k.vm)
        k._wait(vm=2); g.st("wl")
        for i, pat in enumerate(g.bpf):
            touch(pat, 22, 68)
            if i == 1: k._wait(vm=2); k("ds_write_b32 v10, v60")
        for pat in g.cpf[:g.cpf_pre]: touch(pat, 25, 64)
        for i in range(2): k._wait(vm=g.pf_depth); k(f"global_load_dword v{80+i}, v{58+i}, s[42:43]")
        for pat in g.cpf[g.cpf_pre:]: touch(pat, 25, 64)
        g.st("pre")
        k("s_branch L_pure_end")
        k.raw("L_pure3:"); k.vm = vm0
    elif g.wfirst:
        if not g.tmode: k._wait(vm=0 if g.wfirst == 1 else 2); g.st("wl")
        for pat in g.bpf: touch(pat, 22, 68)
    g.st("bpfi")
    if g.pure: g.cpf = []; g.hpre = 0; g.uwait = 0; g.r2skip = 1
    if g.hpre == 2:
        for i in range(2): k._wait(vm=g.pf_depth); k(f"global_load_dword v{80+i}, v{58+i}, s[42:43]")
    for pat in g.cpf[:g.cpf_pre]: touch(pat, 25, 64)
    for kind, pat in g.seq: touch(pat, 22 if kind == "B" else 25, 68 if kind == "B" else 64)
    if g.hpre == 3:
        for i in range(2): k._wait(vm=g.pf_depth); k(f"global_load_dword v{80+i}, v{58+i}, s[42:43]")
    k.wait_vm(); g.st("pre")
    k(f"v_readfirstlane_b32 s55, v62\ns_mul_i32 s55, s55, {LCG_A}\ns_add_u32 s55, s55, {LCG_C}\ns_max_u32 s55, s55, 1")
    k(f"s_cmp_lg_u32 s62, 3\ns_cbranch_scc1 L_pollT_skip")
    g.poll("L_pollT", lambda: k(f"s_sleep {g.tsleep}\nglobal_load_dword v18, v15, s[46:47] sc1"), lambda: k("v_cmp_ne_u32 vcc, s55, v18\ns_nop 1"))
    g.st("Tarr")
    def udma(c):
        k(f"s_mov_b32 m0, {UK0 + AW*c + 512}\ns_add_u32 s4, s12, {4096*c}")
        for n in range(4): k(f"buffer_load_dwordx4 v16, s[76:79], s4 offen offset:{1024*n} sc1 lds")
    for c in (2, 3, 0, 1): udma(c)
    k("s_cmp_lt_u32 s49, 24\ns_cbranch_scc1 L_u4")
    udma(4); udma(5)
    k("ds_write_b32 v10, v60 offset:4")
    k._wait(vm=8); k("ds_write_b32 v10, v60")
    k.wait_vm(); k(f"v_mov_b32 v18, {EXE+52}\nds_write_b32 v18, v60")
    k.raw("L_u4:"); k.vm = [(set(), None)]
    k("ds_write_b32 v10, v60 offset:4")
    k.wait_vm(); g.st("gath")
    k.raw("L_pollT_skip:")
    k("ds_write_b32 v10, v60")
    if g.uwait:
        g.poll("L_pollTw", lambda: k("s_sleep 2\nds_read_b32 v18, v19 offset:4"), lambda: k("v_cmp_ne_u32 vcc, 1, v18\ns_nop 1"))
    if g.pure: k.raw("L_pure_end:"); k.vm = [(set(("v", i) for i in range(64, 84)), None)]
    for pat in g.bpf2: touch(pat, 22, 68)
    if g.r2skip: k("s_cmp_lt_u32 s49, 24\ns_cbranch_scc1 L_R2C")
    if g.r3all:
        k(f"""
        s_sub_u32 s4, s49, 24
        s_lshl_b32 s4, s4, 2
        s_add_u32 s4, s4, s62
        s_mul_i32 s4, s4, 18
        v_mul_u32_u24 v20, 3641, v1
        v_lshrrev_b32 v20, 16, v20           ; lane/18
        v_mul_u32_u24 v21, 18, v20
        v_sub_u32 v21, v1, v21
        v_add_u32 v21, s4, v21
        v_mul_u32_u24 v25, 683, v21
        v_lshrrev_b32 v25, 16, v25
        v_mul_u32_u24 v25, 3, v25
        v_lshrrev_b32 v25, 1, v25
        v_lshlrev_b32 v20, 2, v20
        v_mul_u32_u24 v21, 1152, v21
        s_mov_b32 s64, s32
        s_mov_b32 s65, s33
        s_mov_b32 s68, s34
        s_mov_b32 s69, s35
        """)
        for pat in g.cpf[g.cpf_pre:]: touch(pat, 25, 64); touch(pat, 25, 68)
    else:
        for pat in g.cpf[g.cpf_pre:]: touch(pat, 25, 64)
    ho = 42 if g.hout else 46
    if g.hpre == 1 and not g.r2skip:
        for i in range(2): k._wait(vm=g.pf_depth); k(f"global_load_dword v{80+i}, v{58+i}, s[{ho}:{ho+1}]")
    if g.hpre == 1 and g.r2skip:
        k(f"s_sub_u32 s4, s49, 24\ns_lshl_b32 s4, s4, 2\ns_add_u32 s4, s4, s62\ns_mul_i32 s4, s4, {144*128}\ns_add_u32 s4, s4, s14\nv_min_u32 v58, 47, v1\nv_lshl_add_u32 v58, v58, 7, s4")
        for i in range(3): k._wait(vm=g.pf_depth); k(f"global_load_dword v{80+i}, v58, s[{ho}:{ho+1}]\nv_add_u32 v58, {48*128}, v58")
    k("s_cmp_lt_u32 s49, 24\ns_cbranch_scc1 L_R2C")
    save = list(k.vm)
    k.wait_vm(); g.st("pfdone")
    if g.awarm:
        k(f"""
        s_sub_u32 s4, s49, 24
        s_mul_i32 s5, s4, {14*128}
        s_add_u32 s5, s5, {WS_AF}
        v_min_u32 v20, 13, v1
        v_lshl_add_u32 v20, v20, 7, s5
        s_lshl_b32 s4, s4, 2
        s_add_u32 s4, s4, s62
        s_mul_i32 s4, s4, {18*4096}
        s_lshl_b32 s5, s50, 9
        s_add_u32 s4, s4, s5
        s_add_u32 s4, s4, {WS_A}
        v_min_u32 v21, 35, v1
        v_and_b32 v22, 3, v21
        v_lshrrev_b32 v21, 2, v21
        v_lshlrev_b32 v21, 12, v21
        v_lshl_add_u32 v21, v22, 7, v21
        v_add_u32 v21, s4, v21
        v_add_u32 v22, {9*4096}, v21
        """)
        g.poll("L_pollV", lambda: k(f"s_sleep {g.awarm}\nglobal_load_dwordx4 v[24:27], v20, s[46:47] sc1"),
               lambda: k("v_xor_b32 v24, s55, v24\nv_xor_b32 v25, s55, v25\nv_xor_b32 v26, s55, v26\nv_xor_b32 v27, s55, v27\nv_or3_b32 v24, v24, v25, v26\nv_or_b32 v24, v24, v27\nv_cmp_ne_u32 vcc, 0, v24\ns_nop 0"))
        k("global_load_dword v24, v21, s[46:47] sc1\nglobal_load_dword v25, v22, s[46:47] sc1")
        k.wait_vm(); g.st("awd")
    g.fin()
    k.raw("L_R2C:"); k.vm = [(set(("v", i) for i in range(64, 84)), None)] if g.r2skip else save; k.hist = []; k.lg = [(set(), None)]
    csetup()
    cstream(0, lambda n: g.cthr2)
    k.raw("L_CPF:"); k.vm = []; k.lg = [(set(), None)]
    k(f"""
    v_lshrrev_b32 v8, 1, v3
    v_lshlrev_b32 v8, 12, v8
    s_lshr_b32 s4, s62, 1
    s_lshl_b32 s5, s4, 10
    v_add_u32 v8, s5, v8
    v_bfe_u32 v9, v1, 1, 1
    v_lshl_add_u32 v8, v9, 8, v8
    v_and_b32 v10, 1, v3
    v_lshlrev_b32 v10, 3, v10
    v_bfe_u32 v11, v1, 2, 2
    v_add_u32 v10, v10, v11
    v_lshlrev_b32 v9, 2, v9
    v_xor_b32 v10, v10, v9
    v_lshl_add_u32 v8, v10, 4, v8
    v_and_b32 v10, 1, v1
    v_lshl_add_u32 v6, v10, 3, v8
    v_xor_b32 v7, 64, v6
    s_mul_i32 s4, s4, 25600
    s_and_b32 s5, s62, 1
    s_mul_i32 s5, s5, 192
    s_add_u32 s4, s4, s5
    s_add_u32 s4, s4, {IMG}
    v_mul_u32_u24 v0, 400, v2
    v_lshl_add_u32 v0, v3, 4, v0
    v_add_u32 v0, s4, v0
    v_add_u32 v2, 49152, v6
    v_add_u32 v3, 49152, v7
    """)
    k.wait_all(); g.st("cdone")
    A2, HF = 40, 8
    def hreads(e, u, ks):
        sl = u % 6; a0 = 6 if sl < 3 else 2
        for tt in range(4):
            off = 16384*(sl % 3) + 8192*ks + 2048*(tt >> 1) + 512*(tt & 1)
            e(f"ds_read_b64_tr_b16 {v(HF+16*ks+4*tt,2)}, v{a0} offset:{off}\nds_read_b64_tr_b16 {v(HF+16*ks+4*tt+2,2)}, v{a0+1} offset:{off}")
    def mf1(u, ks, tt, dt):
        d = A2 + 16*dt + 4*tt
        cc = "0" if (u == 0 and ks == 0) else v(d, 4)
        return ("i", f"{M16} {v(d,4)}, {v(CU(u)+12*ks+4*dt,4)}, {v(HF+16*ks+4*tt,4)}, {cc}", None)
    mf2 = lambda u, ks: [mf1(u, ks, tt, dt) for tt in range(4) for dt in range(3)]
    if g.prioM: k(f"s_setprio {g.prioM}")
    k("s_barrier")
    hreads(k, 0, 0)
    if g.wb: k.raw("    s_or_b32 s4, s52, s62\n    s_cbranch_scc1 L_nowb\n    buffer_wbl2 sc1\nL_nowb:")
    tail = [[(7,0,tt),(7,1,tt),(8,0,tt),(8,1,tt)] for tt in range(4)]
    def treads(e, st):
        for i, (u, ks, tt) in enumerate(tail[st]):
            off = 16384*(u % 6) + 8192*ks + 2048*(tt >> 1) + 512*(tt & 1); b_ = HF + 16*(st % 2) + 4*i
            e(f"ds_read_b64_tr_b16 {v(b_,2)}, v6 offset:{off}\nds_read_b64_tr_b16 {v(b_+2,2)}, v7 offset:{off}")
    def tmf(st):
        return [("i", f"{M16} {v(A2+16*dt+4*tt,4)}, {v(CU(u)+12*ks+4*dt,4)}, {v(HF+16*(st%2)+4*i,4)}, {v(A2+16*dt+4*tt,4)}", None) for i, (u, ks, tt) in enumerate(tail[st]) for dt in range(3)]
    def wr(tts):
        e = Rec()
        for tt in tts:
            for dt in range(3): e(f"ds_write_b128 v0, {v(A2+16*dt+4*tt,4)} offset:{6400*tt+64*dt}")
        return e.items
    early = g.cmf == 27
    cov = {int(t[1:].split(":")[0]): int(t.split(":")[1]) for t in g.p2s.split() if t[0] == "b"}; bars = set(cov)
    for u in range(9): assert max(cov[b_] for b_ in bars if b_ <= min(u, 7)) >= (u if u < 7 else 8), u
    for u in range(7):
        rd = Rec(); hreads(rd, u, 1)
        ex = Rec()
        if u == 2 and g.cmf >= 24:
            if g.clate: ex.items.append(("raw", "    s_waitcnt vmcnt(0)", None))
            for n in range(21, 24): c_drain(ex, n)
        if early and u == 3:
            for n in range(24, 27): c_drain(ex, n)
        weave(k, mf2(u, 0), [(rd.items, 0, 7), (ex.items, 4, 9)])
        if u + 1 in bars: k.wait_lg(); k("s_barrier")
        g.st(f'm{u+1}')
        rd = Rec(); ex = Rec()
        if u < 6: hreads(rd, u + 1, 0)
        else:
            treads(rd, 0)
            if not early:
                for n in range(g.cmf, 27): c_drain(ex, n)
        weave(k, mf2(u, 1), [(rd.items, 1, 8), (ex.items, 1, 10)])
    for st in range(4):
        rd = Rec()
        if st < 3: treads(rd, st + 1)
        w_ = wr([st - 1]) if st else []
        m_ = tmf(st)
        if st == 0: k(f"s_lshl_b32 s4, s62, 2\ns_add_u32 s4, s4, {ASY}\nv_mov_b32 v4, s4\nv_mov_b32 v5, 1")
        if st == 2: w_ = w_ + [("i", "ds_write_b32 v4, v5 offset:16", None)]
        weave(k, m_, [(rd.items, 0, g.trs), (w_, g.tws, len(m_) - 1)])
        g.st(f'T{st}')
    for it in wr([3]): play(k, it)
    k("ds_write_b32 v4, v5 offset:32"); g.st("p2end")
    g.fin()
```

```python
from g2 import *
ASY = EXE + 1024
BND = 90112
GXL = 157696
def compute1(g):
    k = g.k
    AX, AWr, GX = 8, 10, 12
    GP = g.gpos
    k(f"""
    s_lshl_b32 s4, s54, 7
    s_lshl_b32 s5, s48, 5
    s_add_u32 s4, s4, s5
    v_lshl_add_u32 v16, v2, 1, s4
    s_add_u32 s4, s59, {128*GP}
    s_sub_u32 s5, s4, 1152
    s_min_u32 s4, s4, s5
    v_lshl_add_u32 v17, v3, 4, s4
    global_load_ushort v20, v16, s[36:37]
    global_load_ushort v21, v16, s[24:25]
    global_load_ushort v22, v16, s[26:27]
    s_load_dword s55, s[46:47], 0
    """)
    GF, GXF, GA = 64, 72, 80
    if g.prioC: k(f"s_setprio {g.prioC}")
    for ks in range(2): k(f"global_load_dwordx4 {v(GF+4*ks,4)}, v17, s[40:41] offset:{64*ks}")
    g.st("karg")
    k(f"""
    v_lshrrev_b32 v6, 1, v2
    v_xor_b32 v6, v6, v3
    v_lshlrev_b32 v6, 4, v6
    v_lshl_add_u32 v{AX}, v2, 7, v6
    v_xor_b32 v{AX+1}, 64, v{AX}
    s_lshl_b32 s4, s48, 11
    s_add_u32 s4, s4, {WSL}
    v_add_u32 v{AWr}, s4, v{AX}
    v_xor_b32 v{AWr+1}, 64, v{AWr}
    s_lshl_b32 s4, s48, 12
    v_add_u32 v{GX}, s4, v{AX}
    v_xor_b32 v{GX+1}, 64, v{GX}
    s_mov_b32 s76, s46
    s_mov_b32 s77, s47
    s_mov_b32 s78, {WS_SIZE}
    s_mov_b32 s79, 0x20000
    s_lshl_b32 s13, s53, 11
    s_add_u32 s13, s13, {WS_XI}
    s_lshl_b32 s5, s54, 2
    s_add_u32 s5, s5, s48                ; beta = 4j + w
    s_mul_i32 s6, s53, {2*HBLK}
    s_lshl_b32 s7, s5, 12
    s_add_u32 s60, s6, s7
    s_mul_i32 s4, s53, 36
    s_add_u32 s4, s4, s5
    s_lshl_b32 s4, s4, 7
    s_add_u32 s6, s4, {WS_HF}
    v_mov_b32 v6, s6
    s_add_u32 s4, s4, {WS_G}
    v_and_b32 v106, 7, v1
    v_lshl_add_u32 v106, v106, 2, s4
    v_lshl_add_u32 v106, v3, 5, v106
    s_lshl_b32 s10, s54, 14
    s_lshl_b32 s4, s48, 8
    s_add_u32 s10, s10, s4
    s_add_u32 s10, s10, {WS_S}
    v_lshl_add_u32 v16, v2, 4, s10
    s_lshl_b32 s11, s53, 10
    v_add_u32 v17, s11, v16
    v_lshrrev_b32 v29, 1, v3
    v_mul_u32_u24 v29, {HBLK}, v29
    v_and_b32 v5, 1, v3
    v_lshl_add_u32 v29, v5, 11, v29
    v_lshl_add_u32 v29, v2, 4, v29
    v_xor_b32 v30, 64, v29
    v_cmp_eq_u32 s[64:65], 0, v5
    v_lshlrev_b32 v31, 5, v3
    v_cvt_f32_u32 v31, v31               ; 32g
    v_mul_f32 v32, 4.0, v31              ; 128g
    v_sub_f32 v33, {fl(96.0)}, v31
    s_sub_u32 s4, s53, 1
    v_sub_u32 v28, s4, v3
    v_mov_b32 v4, 0x80000000
    """)
    for q in range(4):
        k(f"v_subrev_u32 v5, {4*q}, v28\nv_cmp_le_i32 s[{24+2*q}:{25+2*q}], 0, v5\nv_lshl_add_u32 v5, v5, 10, v16\nv_cndmask_b32 v{24+q}, v4, v5, s[{24+2*q}:{25+2*q}]")
    def late_setup():
        g.ids2(); p2_srd(g); p2_min(g); p2_setup(g)
        k(f"v_mov_b32 v116, s55\nv_mov_b32 v117, s14\ns_lshl_b32 s4, s52, 7\ns_add_u32 s4, s4, s12\nv_mov_b32 v119, s4")
    EO = 120
    k(f"s_mul_i32 s55, s55, {LCG_A}\ns_add_u32 s55, s55, {LCG_C}\ns_max_u32 s55, s55, 1\ns_not_b32 s62, s55\nv_mov_b32 v{EO+2}, s55\nv_mov_b32 v{EO+3}, s62")
    if g.p2q == 0: late_setup()
    if g.tlb:
        k("s_mov_b64 exec, 1\nbuffer_load_dword v110, v29, s[68:71], s60 offen sc1\nbuffer_load_dword v111, v253, s[16:19], 0 offen\nglobal_load_dword v124, v99, s[38:39]\nglobal_load_dword v125, v6, s[46:47] sc1\ns_mov_b64 exec, -1")
    k("v_and_b32 v118, 7, v1\nv_min_u32 v118, 5, v118\nv_and_b32 v5, 8, v1\nv_add_u32 v118, v118, v5\nv_lshl_add_u32 v118, v118, 7, s13")
    if not g.tmode: k(f"""
    v_lshrrev_b32 v52, 3, v1             ; hc
    v_and_b32 v53, 7, v1                 ; rg
    s_and_b32 s4, s48, 1
    s_lshl_b32 s5, s4, 2
    v_lshrrev_b32 v54, 1, v52
    v_add_u32 v54, s5, v54               ; chunk
    s_and_b32 s5, s48, 2
    v_lshrrev_b32 v55, 2, v53
    v_add_u32 v55, s5, v55
    v_lshlrev_b32 v56, 1, v55
    v_xor_b32 v54, v54, v56
    v_lshlrev_b32 v54, 4, v54
    v_lshl_add_u32 v54, v55, 9, v54
    v_bfe_u32 v55, v53, 1, 1
    v_lshl_add_u32 v54, v55, 7, v54
    v_and_b32 v55, 1, v52
    v_lshl_add_u32 v54, v55, 3, v54
    v_and_b32 v55, 1, v53
    v_lshl_add_u32 v54, v55, 13, v54
    v_xor_b32 v55, 16, v54
    s_lshr_b32 s5, s48, 1
    s_lshr_b32 s6, s59, 6
    s_add_u32 s6, s6, s4
    s_lshl_b32 s7, s53, 1
    s_add_u32 s7, s7, s5                 ; tb
    s_lshl_b32 s4, s6, 17
    s_lshl_b32 s5, s7, 7
    s_add_u32 s4, s4, s5
    s_add_u32 s4, s4, {WS_UT}
    v_lshl_add_u32 v58, v53, 4, s4
    v_lshl_add_u32 v58, v52, 14, v58
    s_lshl_b32 s6, s6, 5
    s_add_u32 s6, s6, s7
    s_lshl_b32 s6, s6, {g.tfs}
    s_add_u32 s6, s6, {WS_TF}
    v_mov_b32 v23, s6
    s_mov_b32 s66, 0x05040100
    s_mov_b32 s67, 0x07060302
    s_mov_b32 s72, 4096
    s_mov_b32 s73, 8192
    s_mov_b32 s74, 12288
    """)
    tr1, tr2 = Rec(), Rec()
    for i in range(8): tr1(f"ds_read_b64 {v(80+2*i,2)}, v{54 + (i & 1)} offset:{2048*(i>>1) + 256*(i&1)}")
    for e in range(4):
        for p in range(4): tr2(f"v_perm_b32 v{36+4*e+p}, v{80+4*p+2+e//2}, v{80+4*p+e//2}, s{66+e%2}")
        tr2(f"buffer_store_dwordx4 {v(36+4*e,4)}, v58, s[76:79], {'0' if e == 0 else 's%d' % (71+e)} offen sc1", tag="T")
    Z, LM, L32, L512, WH, MU, SS, WSr, WSi, MPr, MPi, EX, TB = 14, 18, 34, 36, 38, 40, 42, 44, 46, 48, 50, 52, 64
    tb = lambda j: TB + 2*(j - 1)
    TT = [112, 114, 60]
    cs = Rec()
    cs(f"""
    v_lshlrev_b32 v20, 16, v20
    v_mul_f32 v20, {fl(LOG2E)}, v20
    v_exp_f32 v20, v20
    v_lshlrev_b32 v{LM}, 16, v21
    v_lshlrev_b32 v{LM+1}, 16, v22
    v_cvt_pk_bf16_f32 v20, v20, v20
    v_mul_f32 v21, v{LM}, v{LM}
    v_and_b32 v20, 0xffff0000, v20
    v_fmac_f32 v21, v{LM+1}, v{LM+1}
    v_mul_f32 v{Z}, v20, v{LM}
    v_mul_f32 v{Z+1}, v20, v{LM+1}
    v_rcp_f32 v21, v21
    v_mul_f32 v{Z}, {fl(LOG2E)}, v{Z}
    v_mul_f32 v{Z+1}, {fl(INV2PI)}, v{Z+1}
    v_add_f32 v21, v21, v21
    v_mul_f32 v{LM}, v{LM}, v21
    v_mul_f32 v{LM+1}, -v{LM+1}, v21
    """)
    cpow_multi(cs, [(d0, d1, Z, Z+1, ex, TT[i], TT[i]+1) for i, (d0, d1, ex) in enumerate(((tb(1), tb(1)+1, "1.0"), (WSr+1, WSi+1, "v33"), (L512, L512+1, fl(512.0))))])
    cpow_multi(cs, [(d0, d1, Z, Z+1, ex, TT[i], TT[i]+1) for i, (d0, d1, ex) in enumerate(((WH, WH+1, "v32"), (MU, MU+1, "v31"), (tb(8), tb(8)+1, fl(8.0))))])
    cs(f"v_add_f32 v{TT[0]}, -1.0, v{tb(1)}")
    smul(cs, SS, SS+1, TT[0], tb(1)+1, LM, LM+1)
    sm = lambda d, x, y: smul(cs, d, d+1, x, x+1, y, y+1)
    for j, (x, y) in {2: (1, 1), 16: (8, 8), 3: (2, 1), 4: (2, 2), 9: (8, 1), 10: (8, 2), 5: (4, 1), 6: (4, 2), 7: (4, 3), 11: (8, 3), 12: (8, 4), 13: (8, 5), 14: (8, 6), 15: (8, 7)}.items():
        sm(tb(j), tb(x), tb(y))
    sm(L32, tb(16), tb(16))
    smul(cs, WSr, WSi, tb(16), tb(16)+1, WSr+1, WSi+1)
    smul(cs, MPr, MPi, MU, MU+1, SS, SS+1)
    smul(cs, MPr+1, MPi+1, tb(16), tb(16)+1, MPr, MPi)
    cs(f"v_cndmask_b32 v{MU}, v{L32}, 1.0, s[64:65]\nv_cndmask_b32 v{MU+1}, v{L32+1}, 0, s[64:65]")
    for q in range(4): cs(f"v_cndmask_b32 v{EX+2*q}, 0, v{EO+2}, s[{24+2*q}:{25+2*q}]\nv_cndmask_b32 v{EX+2*q+1}, 0, v{EO+3}, s[{24+2*q}:{25+2*q}]")
    g.st("setup")
    R, I, XF, WF = 128, 160, 208, [240, 192]
    LA = g.xla
    def xread(n):
        q, m = divmod(n, 8); c, ks = divmod(q, 2)
        return f"ds_read_b128 {v(XF+4*m,4)}, v{AX+ks} offset:{16384*(c%3)+2048*m}"
    def wread(q, comp):
        c, ks = divmod(q, 2)
        return f"ds_read_b128 {v(WF[q%2]+4*comp,4)}, v{AWr+ks} offset:{16384*(c%3)+8192*comp}"
    if g.csig or g.gates: k(f"s_lshl_b32 s4, s48, 2\ns_add_u32 s4, s4, {EXE}\nv_mov_b32 v7, s4\nv_mov_b32 v5, 0\nds_write_b32 v7, v5")
    k.wait_lg(); k("s_barrier"); g.st("c0")
    k(wread(0, 0)); k(xread(0)); k(wread(0, 1))
    for n in range(1, LA): k(xread(n))
    fq = []
    sched = {}; barp = {}; BL = g.xbl
    for q in range(1, 18):
        p0 = 8*q - (BL if q % 2 == 0 else 5)
        sched.setdefault(p0, []).append(wread(q, 0)); sched.setdefault(p0 + 1, []).append(wread(q, 1))
        if q % 2 == 0: barp[p0] = q // 2
    for n in range(LA, 144):
        sched.setdefault(max(n - LA, n - n % 16 - BL + (n % 16 + 1)//2), []).append(xread(n))
    q0, q1 = g.cs_span
    per = -(-len(cs.items) // (q1 - q0))
    for q in range(18):
        g.st(f"q{q}")
        if q == 0 and not g.tmode and not g.noT: fq += tr1.items + tr2.items
        if q0 <= q < q1: fq += cs.items[(q-q0)*per:(q-q0+1)*per]
        if q == 2*GP + 2:
            gs = Rec()
            for n_ in (4, 2, 1):
                gs(f"v_and_b32 v107, {n_}, v1\nv_cmp_ne_u32 vcc, 0, v107")
                for i in range(n_): gs(f"v_cndmask_b32 v{108 if n_ == 1 else GA+i}, v{GA+i}, v{GA+i+n_}, vcc")
            fq += [("nop", None, None)]*6 + gs.items
        if q == g.tq and not g.tmode:
            fq.insert(0, ("wv", "T", None)); fq.insert(1, ("g", ["s_mov_b64 exec, 1", f"global_store_dword v23, v{EO+2}, s[46:47] sc1", "s_mov_b64 exec, -1"], None))
        if q == g.xq:
            fq.insert(0, ("raw", "    s_cmp_lg_u32 s48, 0\n    s_cbranch_scc1 L_xp1\n    s_mov_b64 exec, 1\n    global_store_dwordx2 v119, v[116:117], s[46:47] sc1\n    s_mov_b64 exec, -1\nL_xp1:", None))
        for m in range(8):
            pos = 8*q + m
            if pos in barp:
                assert not any(it[0] == "i" and it[1].startswith("ds_read") for it in fq)
                if barp[pos] == g.p2q: late_setup()
                k.wait_lg(); k("s_barrier"); g.st(f"c{barp[pos]}")
            rl_ = list(sched.get(pos, []))
            if q // 2 == GP and m in (0, 1): rl_.append(f"ds_read_b128 {v(GXF+4*m,4)}, v{GX+q%2} offset:{16384*(GP%3)+2048*m}")
            for comp, A_ in enumerate((R, I)):
                k(f"{M16} {v(A_+4*m,4)}, {v(XF+4*m,4)}, {v(WF[q%2]+4*comp,4)}, {'0' if q == 0 else v(A_+4*m,4)}")
                mine = rl_[:(len(rl_) + 1)//2] if comp == 0 else rl_[(len(rl_) + 1)//2:]
                for r_ in mine: k(r_)
                for _ in range((1 if comp == 1 else 2) - len(mine) + (1 if len(fq) > 2*(16 - 2*m) else 0)):
                    if fq: play(k, fq.pop(0))
        if q // 2 == GP:
            for mm in range(2): k(f"{M16} {v(GA+4*mm,4)}, {v(GXF+4*mm,4)}, {v(GF+4*(q%2),4)}, {'0' if q % 2 == 0 else v(GA+4*mm,4)}")
        if q == g.tq: g.st("Tst")
    while fq: play(k, fq.pop(0))
    g.st("gemm1")
    for st in range(1, 16):
        pk_bc(k, R+2*st, R+2*st-2, tb(1), 0, R+2*st)
        pk_bc(k, I+2*st, I+2*st-2, tb(1), 0, I+2*st)
        pk_bc(k, R+2*st, I+2*st-2, tb(1), 1, R+2*st, neg=True)
        pk_bc(k, I+2*st, R+2*st-2, tb(1), 1, I+2*st)
    T = 208
    k(f"v_pk_mul_f32 {v(T,2)}, {v(R+30,2)}, {v(WSr,2)}\nv_pk_mul_f32 {v(T+2,2)}, {v(I+30,2)}, {v(WSr,2)}")
    k(f"v_pk_fma_f32 {v(T,2)}, {v(I+30,2)}, {v(WSi,2)}, {v(T,2)} neg_lo:[1,0,0] neg_hi:[1,0,0]\nv_pk_fma_f32 {v(T+2,2)}, {v(R+30,2)}, {v(WSi,2)}, {v(T+2,2)}")
    k(f"v_add_f32 v{T}, v{T}, v{T+1}\nv_add_f32 v{T+1}, v{T+2}, v{T+3}")
    def allred(x, o):
        k(f"v_permlane32_swap_b32 v{x}, v{x+1}\nv_add_f32 v{x+2}, v{x}, v{x+1}\nv_add_f32 v{x+3}, v{x}, v{x+1}\nv_permlane16_swap_b32 v{x+2}, v{x+3}")
        k(f"v_add_f32 v{o}, v{x+2}, v{x+3}\nv_add_f32 v{o+1}, v{x+2}, v{x+3}\nv_permlane32_swap_b32 v{o}, v{o+1}")
    allred(T, EO)
    k.vm = []
    k(f"s_mov_b64 exec, 0xffff\nglobal_store_dwordx4 v17, {v(EO,4)}, s[46:47] sc1\ns_mov_b64 exec, -1")
    def level(n):
        if g.gates: k(f"v_mov_b32 v5, {n}\nds_write_b32 v7, v5")
    level(1)
    g.st("pub")
    def smalls():
        k("global_load_dwordx2 v[228:229], v118, s[46:47] sc1")
        k("s_mov_b32 exec_lo, 0xff00ff\ns_mov_b32 exec_hi, 0xff00ff\nglobal_store_dword v106, v108, s[46:47] sc1\ns_mov_b64 exec, -1")
    if g.sm_early == 3:
        k("s_mov_b32 exec_lo, 0xff00ff\ns_mov_b32 exec_hi, 0xff00ff\nglobal_store_dword v106, v108, s[46:47] sc1\ns_mov_b64 exec, -1")
        if not g.xearly: p2_loads(g)
    elif g.sm_early: smalls()
    if g.sm_early == 2 and not g.xearly: p2_loads(g)
    for st in range(16):
        a, b = T + 4*(st % 2), T + 4*(st % 2) + 2
        pk_bc(k, a, R+2*st, SS, 0); pk_bc(k, b, R+2*st, SS, 1)
        pk_bc(k, R+2*st, I+2*st, SS, 1, a, neg=True); pk_bc(k, I+2*st, I+2*st, SS, 0, b)
    CPr, CPi = WSr, WSi
    F, Q, Y, U_ = T, T + 2, T + 4, T + 6
    smul(k, F, F+1, tb(16), tb(16)+1, R+30, I+30, R+31, I+31)
    k(f"v_mov_b64 {v(Q,2)}, 0\nv_mov_b64 {v(Y,2)}, {v(F,2)}\nv_mov_b64 {v(U_,2)}, 0\nv_permlane16_swap_b32 v{Q}, v{Y}\nv_permlane16_swap_b32 v{Q+1}, v{Y+1}")
    cmac(k, [(F, Q, L32, F)])
    k(f"v_mov_b64 {v(Y,2)}, {v(F,2)}\nv_permlane16_swap_b32 v{F}, v{Y}\nv_permlane16_swap_b32 v{F+1}, v{Y+1}\nv_permlane32_swap_b32 v{U_}, v{Y}\nv_permlane32_swap_b32 v{U_+1}, v{Y+1}")
    smul(k, CPr, CPi, MU, MU+1, U_, U_+1, Q, Q+1)
    smul(k, CPr+1, CPi+1, tb(16), tb(16)+1, CPr, CPi, R+30, I+30)
    g.st("prep")
    PD = 232
    def issS():
        for q in range(4): k(f"buffer_load_dwordx4 {v(PD+4*q,4)}, v{24+q}, s[76:79], 0 offen sc1")
    def chkS():
        for q in range(4): k(f"v_cmp_ne_u64 s[{24+2*q}:{25+2*q}], {v(PD+4*q+2,2)}, {v(EX+2*q,2)}")
        k("s_or_b64 s[24:25], s[24:25], s[26:27]\ns_or_b64 vcc, s[28:29], s[30:31]\ns_or_b64 vcc, vcc, s[24:25]")
    if g.csig:
        vms = list(k.vm); k.vm = []
        g.poll("L_pollC", lambda: k("ds_read_b32 v5, v7"), lambda: k("v_cmp_ne_u32 vcc, 1, v5\ns_nop 0"))
        k.vm = vms; g.st("Csig")
    if g.sdel: k(f"s_sleep {g.sdel}")
    if g.sm_early == 3: k("global_load_dwordx2 v[228:229], v118, s[46:47] sc1")
    issS()
    if not g.sm_early: smalls()
    if not g.xearly and g.sm_early < 2: p2_loads(g)
    chkS(); k("s_cbranch_vccz L_pollS_done" if not g.nosw else "s_branch L_pollS_done")
    vms = list(k.vm)
    g.poll("L_pollS", issS, chkS)
    k.vm = vms
    level(2)
    g.st("Sarr")
    for q in (2, 1, 0): cmac(k, [(PD+4*q, PD+4*q+4, L512, PD+4*q)])
    cmul_multi(k, [(T, PD, WH, T+2)])
    HH = T + 4
    allred(T, HH)
    k("v_cmp_ne_u64 s[72:73], v[228:229], v[116:117]")
    pk_bc(k, CPr, MPr, HH, 0, CPr); pk_bc(k, CPi, MPi, HH, 0, CPi)
    pk_bc(k, CPr, MPi, HH, 1, CPr, neg=True); pk_bc(k, CPi, MPr, HH, 1, CPi)
    k("s_cmp_lg_u64 s[72:73], 0")
    HO = 216
    def tail(sc):
        for comp in range(2):
            A_, c0, c1 = (R, CPr, CPi) if comp == 0 else (I, CPi, CPr)
            n = "-" if comp else ""
            for hh in range(2):
                for st in range(8*hh, 8*hh + 8): pk_bc(k, A_+2*st, c0, tb(st+1), 0, A_+2*st)
                for st in range(8*hh, 8*hh + 8): pk_bc(k, A_+2*st, c1, tb(st+1), 1, A_+2*st, neg=(comp == 0))
                for half in range(2):
                    o = HO + 16*comp + 8*hh + 4*half
                    for i in range(4): k(f"v_cvt_pk_bf16_f32 v{o+i}, {n}v{A_+16*hh+4*i+half}, {n}v{A_+16*hh+4*i+2+half}")
                    k(f"buffer_store_dwordx4 {v(o,4)}, v{29+hh}, s[68:71], s60 offen offset:{1024*comp+256*(2*half+hh)} {sc}")
        level(3)
        g.st("hst")
        if not g.xearly: k.raw("    s_waitcnt vmcnt(8)"); k.vm = k.vm[-8:]
        p2_unpack(g)
        k("s_mov_b64 exec, 1")
        k.raw("    s_waitcnt vmcnt(0)"); k.vm = []
        k(f"global_store_dword v6, v{EO+2}, s[46:47] {sc}\ns_mov_b64 exec, -1")
        g.st("flag")
        if g.gpf: k("global_load_dword v28, v104, s[46:47] sc1\nglobal_load_dword v29, v109, s[46:47] sc1")
        if " z " not in g.p2s: p2_zero(g)
    if g.fast:
        k("s_cbranch_scc1 L_slow")
        g.slow_tail = lambda: tail("sc1")
        tail(g.hst)
    else: tail("sc1")
    k.raw("L_tail_done:"); k.vm = []

XR, DBR, DBF = [200, 202, 204, 206, 124, 126], [102, 110, 98], 64
XB = list(range(76, 96)) + list(range(20, 24))
AR = 32
def p2_loads(g):
    k = g.k
    for jj in range(3):
        k(f"global_load_dwordx2 {v(XR[jj],2)}, v100, s[8:9] offset:{64*jj}\nglobal_load_dwordx2 {v(XR[3+jj],2)}, v101, s[8:9] offset:{64*jj}\nglobal_load_dwordx2 {v(DBR[jj],2)}, v99, s[38:39] offset:{64*jj}")
    k("v_lshlrev_b32 v100, 1, v100\nv_lshlrev_b32 v101, 1, v101")
def p2_unpack(g):
    k = g.k
    for jj in range(3):
        for h in range(2): k(f"v_lshlrev_b32 v{DBF+4*jj+2*h}, 16, v{DBR[jj]+h}\nv_and_b32 v{DBF+4*jj+2*h+1}, 0xffff0000, v{DBR[jj]+h}")
    for q in range(12): k(f"v_lshlrev_b32 v{XB[2*q]}, 16, v{XR[q//2]+q%2}\nv_and_b32 v{XB[2*q+1]}, 0xffff0000, v{XR[q//2]+q%2}")
    for q in range(12): k(f"v_pk_mul_f32 {v(XB[2*q],2)}, {v(XB[2*q],2)}, {v(DBF+2*(q%6),2)}")
def p2_zero(g):
    for q in range(12): g.k(f"v_mov_b64 {v(AR+2*q,2)}, 0")
def p2_srd(g):
    g.k(f"s_mov_b32 s68, s42\ns_mov_b32 s69, s43\ns_mov_b32 s70, 4718592\ns_mov_b32 s71, 0x20000")
def p2_min(g):
    k = g.k
    k(f"""
    s_cmp_lt_u32 s48, 2
    s_cselect_b32 s16, s32, s34
    s_cselect_b32 s17, s33, s35
    s_mov_b32 s18, 663552
    s_mov_b32 s19, 0x20000
    s_getreg_b32 s14, hwreg(HW_REG_XCC_ID, 0, 4)
    s_lshl_b32 s12, s56, 10
    s_add_u32 s12, s12, {WS_XI}
    s_lshl_b32 s23, s52, 7
    s_add_u32 s23, s23, s12
    s_lshl_b32 s4, s48, 2
    s_add_u32 s23, s23, s4
    s_mov_b32 s{UO[0]}, s57
    s_lshr_b32 s4, s56, 1
    s_mul_i32 s4, s4, {36*128}
    s_add_u32 s4, s4, {WS_HF}
    {"v_min_u32 v62, 35, v1" if not g.uflag else f"v_min_u32 v62, 8, v1; v_lshl_add_u32 v62, v62, 7, s57; v_subrev_u32 v63, 1152, v62; v_min_u32 v62, v62, v63; v_lshrrev_b32 v62, 5, v62; v_add_u32 v62, s48, v62".replace("; ", chr(10))}
    v_lshl_add_u32 v62, v62, 7, s4
    s_mul_i32 s4, s56, {HBLK}
    s_lshl_b32 s15, s48, 12
    s_add_u32 s4, s4, s15
    s_add_u32 s4, s4, {0 if g.hout else WS_H}
    v_lshl_add_u32 v63, v1, 4, s4
    """)
    offsets(k, UO)
def p2_setup(g):
    k = g.k
    k(f"""
    s_lshl_b32 s4, s56, 6
    v_lshrrev_b32 v96, 3, v0             ; tl
    v_add_u32 v97, s4, v96
    v_and_b32 v98, 7, v0                 ; dl
    s_mul_i32 s5, s52, 192
    v_lshl_add_u32 v99, v98, 3, s5
    v_mul_u32_u24 v100, 1152, v97
    v_add_u32 v100, v100, v99
    v_add_u32 v101, {32*1152}, v100
    """)
    k(f"""
    s_lshr_b32 s4, s56, 1
    s_mul_i32 s4, s4, {9*512}
    s_lshl_b32 s5, s51, 6
    s_add_u32 s4, s4, s5
    s_lshr_b32 s5, s48, 1
    s_lshl_b32 s5, s5, 2
    s_add_u32 s4, s4, s5
    s_and_b32 s5, s48, 1
    s_lshl_b32 s5, s5, 8
    s_add_u32 s4, s4, s5
    s_add_u32 s4, s4, {WS_G}
    v_lshrrev_b32 v102, 3, v1
    v_and_b32 v109, 3, v102
    v_lshl_add_u32 v109, v109, 3, s4
    v_lshrrev_b32 v104, 5, v1
    v_lshl_add_u32 v109, v104, 7, v109
    v_lshl_add_u32 v104, v98, 9, v109
    v_add_u32 v109, 4096, v109
    s_mul_i32 s4, s52, 43
    s_lshr_b32 s4, s4, 5
    s_mul_i32 s4, s4, {14*128}
    s_add_u32 s4, s4, {WS_AF}
    v_min_u32 v105, 27, v1
    v_lshl_add_u32 v105, v105, 7, s4
    s_mul_i32 s4, s52, 96
    s_mul_i32 s5, s48, 24
    s_add_u32 s4, s4, s5
    s_lshl_b32 s4, s4, 12
    s_lshl_b32 s5, s56, 7
    s_add_u32 s4, s4, s5
    s_add_u32 s4, s4, {WS_A}
    v_lshl_add_u32 v253, v102, 12, s4
    v_lshrrev_b32 v254, 5, v1
    s_mul_i32 s5, s48, 6
    v_add_u32 v254, s5, v254
    """)
    for n in range(3): k(f"v_add_u32 v255, {2*n}, v254\nv_xor_b32 v255, v255, v1\nv_and_b32 v255, 7, v255\nv_lshl_add_u32 v{248+n}, v255, 4, v253")
    k(f"""
    s_mul_i32 s4, s52, 96
    s_and_b32 s5, s48, 1
    s_mul_i32 s5, s5, 48
    s_add_u32 s4, s4, s5
    v_add_u32 v253, s4, v102
    v_mul_u32_u24 v253, 1152, v253
    v_xor_b32 v254, v98, v3
    v_lshl_add_u32 v253, v254, 4, v253   ; vC0
    v_xor_b32 v254, 64, v253
    v_add_u32 v254, 8192, v254           ; vC1
    s_mul_i32 s22, s48, 12288
    s_add_u32 s22, s22, {CST}
    s_mul_i32 s21, s48, 3072
    s_and_b32 s4, s48, 1
    s_lshl_b32 s4, s4, 2
    s_lshr_b32 s5, s48, 1
    s_add_u32 s4, s4, s5
    v_xor_b32 v251, s4, v98
    v_lshlrev_b32 v251, 4, v251
    v_lshl_add_u32 v251, v98, 9, v251
    v_lshl_add_u32 v251, v102, 1, v251
    v_add_u32 v251, {AST}, v251
    v_xor_b32 v252, 32, v251
    v_mul_u32_u24 v96, 400, v96
    v_lshl_add_u32 v96, v98, 4, v96
    v_add_u32 v96, {IMG}, v96
    """)

def loader2(g):
    k = g.k
    k.raw("L_P2:"); k.vm = []; k.lg = []
    GG, OM = 58, 60
    if not g.uflag:
        g.poll("L_pollH", lambda: k("global_load_dword v97, v62, s[46:47] sc1"), lambda: k("v_cmp_ne_u32 vcc, s55, v97\ns_nop 1"))
        g.st("Harr")
    else: k("s_mov_b32 s74, -1")
    def need(u):
        k(f"s_bitcmp0_b32 s74, {u}\ns_cbranch_scc1 L_pollH{u}_done")
        save = list(k.vm)
        g.poll(f"L_pollH{u}", lambda: k("global_load_dword v97, v62, s[46:47] sc1"), lambda: k(f"v_cmp_ne_u32 s[74:75], s55, v97\ns_mov_b32 vcc_hi, 0\ns_and_b32 vcc_lo, s74, {1 << u}"))
        k.vm = save
        if u == 0: g.st("Harr")
    def h_dma(u):
        k(f"s_add_u32 m0, s15, {16384*(u%6)}\ns_lshl_b32 s63, s{UO[u]}, 7")
        for n in range(4): k(f"buffer_load_dwordx4 v63, s[68:71], s63 offen offset:{1024*n} {g.hld} lds", tag=("h", u))
    def c_blk(n):
        k(f"s_add_u32 m0, s22, {2048*(n%6)}\ns_add_u32 s20, s{UO[n//3]}, {18432*(n%3)}\nbuffer_load_dwordx4 v253, s[16:19], s20 offen lds\nbuffer_load_dwordx4 v254, s[16:19], s20 offen offset:1024 lds", tag="C")
    def bar(u, *tags):
        for t in tags: k.wait_vm(t)
        k("s_barrier"); g.st(f"u{u}")
    assert g.cmf == 27
    chk = lambda: k("v_xor_b32 v68, s55, v68\nv_xor_b32 v69, s55, v69\nv_xor_b32 v70, s55, v70\nv_xor_b32 v71, s55, v71\nv_or3_b32 v68, v68, v69, v70\nv_or_b32 v68, v68, v71\nv_cmp_ne_u32 vcc, 0, v68\ns_nop 0")
    lastb = -1
    for tok in g.p2s.split():
        if tok[0] == "h":
            assert int(tok[1:]) - 5 <= max(lastb, 0)
            if g.uflag: assert int(tok[1:]) < 2 or lastb >= 0; need(int(tok[1:]))
            h_dma(int(tok[1:]))
        elif tok[0] == "b":
            u, w = tok[1:].split(":"); lastb = int(u); k.wait_lg(); bar(int(u), ("h", int(w)))
        elif tok == "i":
            k(f"v_lshlrev_b32 v26, 2, v2\nv_add_u32 v26, {ASY}, v26\nv_mov_b32 v28, 0\nds_write_b32 v26, v28\ns_lshl_b32 s4, s48, 2\ns_add_u32 s4, s4, {ASY}\nv_mov_b32 v25, s4\nv_and_b32 v26, 3, v1\nv_lshlrev_b32 v26, 2, v26\nv_add_u32 v26, {ASY}, v26")
            k("v_mov_b32 v64, s55\nv_mov_b32 v31, s23\nv_min_u32 v30, 23, v1\nv_lshrrev_b32 v66, 2, v30\nv_and_b32 v30, 3, v30\nv_lshlrev_b32 v30, 2, v30\nv_lshl_add_u32 v30, v66, 7, v30\nv_add_u32 v30, s12, v30")
        elif tok == "f": k("global_load_dwordx4 v[68:71], v105, s[46:47] sc1", tag="af")
        elif tok == "g":
            for ii in range(2): k(f"global_load_dword v{GG+ii}, v104, s[46:47] offset:{32*ii} sc1\nglobal_load_dword v{56+ii}, v109, s[46:47] offset:{32*ii} sc1")
        elif tok == "a":
            lab = "L_pollA"
            k.wait_vm("af"); chk(); k(f"s_cbranch_vccz {lab}_done" if not g.noaw else f"s_branch {lab}_done")
            save = list(k.vm)
            g.poll(lab, lambda: k(f"s_sleep {g.asleep}\nglobal_load_dwordx4 v[68:71], v105, s[46:47] sc1"), chk)
            k.vm = save
            g.st("Aarr")
            k(f"s_add_u32 m0, s21, {AST}")
            for n in range(3): k(f"s_mov_b32 s4, {32768*n - 1024*n}\nbuffer_load_dwordx4 v{248+n}, s[76:79], s4 offen offset:{1024*n} sc1 lds", tag="a")
        elif tok == "d":
            k.wait_vm(("h", 8))
            k("s_cmp_lg_u64 s[72:73], 0\ns_mov_b64 exec, 1\ns_cbranch_scc1 L_dfs\nglobal_store_dword v31, v64, s[46:47] offset:16\ns_branch L_dfd"); k.vm.pop()
            k.raw("L_dfs:"); k("global_store_dword v31, v64, s[46:47] offset:16 sc1"); k.raw("L_dfd:"); k("s_mov_b64 exec, -1")
        elif tok == "m":
            for ctl in ("quad_perm:[1,0,3,2]", "quad_perm:[2,3,0,1]", "row_half_mirror"):
                for ii in range(2): k(f"v_add_f32_dpp v{GG+ii}, v{GG+ii}, v{GG+ii} {ctl} row_mask:0xf bank_mask:0xf")
            for ii in range(2): k(f"v_add_f32 v{GG+ii}, v{GG+ii}, v{56+ii}\nv_mul_f32 v{GG+ii}, {fl(-LOG2E)}, v{GG+ii}")
            for ii in range(2): k(f"v_exp_f32 v{GG+ii}, v{GG+ii}")
            for ii in range(2): k(f"v_add_f32 v{GG+ii}, 1.0, v{GG+ii}")
            for ii in range(2): k(f"v_rcp_f32 v{GG+ii}, v{GG+ii}")
            for ii in range(2): k(f"v_sub_f32 v{OM+ii}, 1.0, v{GG+ii}")
            for q in range(24): k(f"v_mul_f32 v{XB[q]}, v{XB[q]}, v{OM+q//12}")
        elif tok == "F":
            k("s_cmp_lt_u32 s49, 18\ns_cbranch_scc1 L_noF\ns_mov_b64 exec, 1\nglobal_store_dword v6, v64, s[46:47] sc1\ns_mov_b64 exec, -1"); k.vm.pop()
            k.raw("L_noF:")
        elif tok == "z": p2_zero(g)
        elif tok == "p": k("s_setprio 3")
        else: raise ValueError(tok)
    assert lastb >= 4
    k("global_load_dword v66, v30, s[46:47] offset:16 sc1")
    def spec(lab, off, val, reads):
        vms = list(k.vm); k.vm = []
        k(f"ds_read_b32 v27, v26 offset:{off}"); reads()
        k(f"v_cmp_ne_u32 vcc, {val}, v27\ns_nop 0\ns_cbranch_vccz {lab}_ok")
        lgs = list(k.lg)
        g.poll(lab, lambda: k(f"ds_read_b32 v27, v26 offset:{off}"), lambda: k(f"v_cmp_ne_u32 vcc, {val}, v27\ns_nop 0"))
        reads()
        k.raw(lab + "_ok:"); k.vm = vms
        if len(lgs) > len(k.lg): k.lg = lgs
    def aread(qs):
        for q in qs: k(f"ds_read_u16_d16_hi v{AR+q}, v{251+q//12} offset:{128*(q%4)+4096*((q%12)//4)}")
    E0 = 128
    def iread(ii):
        for jj in range(3):
            q = 3*ii + jj
            k(f"ds_read_b128 {v(E0+8*q,4)}, v96 offset:{12800*ii+128*jj}\nds_read_b128 {v(E0+8*q+4,4)}, v96 offset:{25600+12800*ii+128*jj}")
    k.wait_vm("a")
    k("ds_write_b32 v25, v64")
    k("v_cmp_ne_u32 vcc, s55, v66\ns_nop 0\ns_cbranch_vccz L_pollF_done")
    g.poll("L_pollF", lambda: k("global_load_dword v66, v30, s[46:47] offset:16 sc1"), lambda: k("v_cmp_ne_u32 vcc, s55, v66\ns_nop 0"))
    k.lg = [(set(), None)]
    g.st("Farr")
    spec("L_pollY", 0, "s55", lambda: aread(range(12)))
    g.st("u8")
    aread(range(12, 24))
    for q in range(12): k(f"v_fmac_f32 v{XB[q]}, v{AR+q}, v{GG}")
    for ii in range(2):
        if ii == 0: k.wait_lg()
        spec(f"L_pollI{ii}", 16 + 16*ii, 1, lambda: iread(ii))
        g.st(f"img{ii}")
        if ii == 0:
            for q in range(12, 24): k(f"v_fmac_f32 v{XB[q]}, v{AR+q}, v{GG+1}")
        for jj in range(3):
            q = 3*ii + jj
            if ii == 0 and not g.epk:
                for e_ in range(4): k(f"v_add_f32 v{E0+8*q+e_}, v{E0+8*q+e_}, v{E0+8*q+4+e_}")
                for e_ in range(4): k(f"v_fma_f32 v{E0+8*q+e_}, v{E0+8*q+e_}, v{OM}, v{XB[4*jj+e_]}")
            else:
                for h in range(2): k(f"v_pk_add_f32 {v(E0+8*q+2*h,2)}, {v(E0+8*q+2*h,2)}, {v(E0+8*q+4+2*h,2)}")
                for h in range(2): pk_bc(k, E0+8*q+2*h, E0+8*q+2*h, OM, ii, XB[12*ii+4*jj+2*h])
            k(f"global_store_dwordx4 v{100+ii}, {v(E0+8*q,4)}, s[42:43] offset:{128*jj} {g.ost}")
    g.st("stiss")
    k.out.append("L_fin2:")
    g.fin()
    if g.fast:
        g.enter("L_slow", karg=False); k("s_nop 1"); g.slow_tail(); k("s_branch L_tail_done")

def nonce(g):
    k = g.k
    assert not g.tmode or g.unsafe
    k(f"s_lshl_b32 s4, s49, 3\ns_add_u32 s4, s4, s50\ns_lshl_b32 s4, s4, 3\ns_add_u32 s4, s4, s48\ns_cmp_lg_u32 s4, {(31*8 + 0)*8 + 2}\ns_cbranch_scc1 L_fin3")
    k(f"v_min_u32 v8, 55, v1\nv_lshlrev_b32 v8, 8, v8\nv_add_u32 v8, {WS_AF}, v8")
    def iss():
        k(f"s_sleep {g.wsleep}")
        for i in range(2): k(f"global_load_dwordx4 {v(64+4*i,4)}, v8, s[46:47] offset:{128*i} sc1")
    def chk():
        for i in range(8): k(f"v_xor_b32 v{64+i}, s55, v{64+i}")
        for i in range(1, 8): k(f"v_or_b32 v64, v64, v{64+i}")
        k("v_cmp_ne_u32 vcc, 0, v64\ns_nop 1")
    g.poll("L_pollW", iss, chk)
    k("v_mov_b32 v6, 0\nv_mov_b32 v7, s55\ns_mov_b64 exec, 1\nglobal_store_dword v6, v7, s[46:47] sc1\ns_mov_b64 exec, -1")
    k.out.append("L_fin3:")

def loader1(g):
    k = g.k
    k(f"""
    s_sub_u32 s62, s48, 4                ; lw
    v_lshrrev_b32 v4, 3, v1              ; rl
    v_and_b32 v5, 7, v1
    s_lshl_b32 s4, s54, 1
    v_xor_b32 v5, v5, v3
    s_and_b32 s5, s62, 1
    v_lshlrev_b32 v5, 4, v5
    s_add_u32 s4, s4, s5
    v_mad_u32_u24 v6, v4, s3, v5         ; rl*1152 + swizzled chunk
    s_mul_i32 s4, s4, {32*1152}
    s_mov_b32 s70, {0 if g.dbg_noP1 else 663552}
    s_mov_b32 s71, 0x20000
    v_add_u32 v12, s4, v6
    s_lshl_b32 s6, s62, 12
    v_xor_b32 v13, 64, v12
    v_add_u32 v14, {2*8192}, v12
    v_add_u32 v15, {3*8192}, v13
    v_add_u32 v13, 8192, v13
    v_and_b32 v8, 4, v4
    v_lshlrev_b32 v8, 3, v8
    v_and_b32 v9, 1, v4
    v_lshl_add_u32 v8, v9, 4, v8
    v_bfe_u32 v9, v4, 1, 1
    s_lshl_b32 s4, s53, 7
    s_lshl_b32 s5, s62, 2
    s_add_u32 s4, s4, s5
    v_add3_u32 v8, v8, v9, s4
    v_mad_u32_u24 v8, v8, s3, v5         ; x n=0
    s_mov_b32 s66, {0 if g.dbg_noP1 else 2359296}
    s_mov_b32 s67, 0x20000
    v_xor_b32 v9, 64, v8
    v_add_u32 v10, {2*1152-2048}, v8
    v_add_u32 v11, {66*1152-3072}, v9
    v_add_u32 v9, {64*1152-1024}, v9
    s_cmp_lt_u32 s62, 2
    s_mov_b64 s[64:65], s[8:9]
    s_cselect_b64 s[68:69], s[28:29], s[30:31]
    s_mov_b32 s10, s59
    """.replace("    s_sub_u32 s62", "    s_movk_i32 s3, 1152\n    s_sub_u32 s62"))
    CO = list(range(10, 19))
    def dma(c, parts="wx"):
        if "w" in parts:
            k(f"s_add_u32 m0, s6, {WSL + 16384*(c%3)}")
            for n in range(4): k(f"buffer_load_dwordx4 v{12+n}, s[68:71], s{CO[c]} offen offset:{1024*n} lds", tag=("c", c))
        if "x" in parts:
            k(f"s_add_u32 m0, s6, {XS + 16384*(c%3)}")
            for n in range(4): k(f"buffer_load_dwordx4 v{8+n}, s[64:67], s{CO[c]} offen offset:{1024*n} lds", tag=("c", c))
    def csetup():
        g.ids2()
        k(f"""
        s_mov_b32 s74, {0 if g.dbg_noC else 663552}
        s_mov_b32 s75, 0x20000
        s_mul_i32 s61, s62, 12288
        s_add_u32 s61, s61, {CST}
        s_cmp_lt_u32 s62, 2
        s_cselect_b32 s72, s32, s34
        s_cselect_b32 s73, s33, s35
        s_mov_b32 s{UO[0]}, s57
        s_mul_i32 s4, s52, 96
        s_and_b32 s5, s62, 1
        s_mul_i32 s5, s5, 48
        s_add_u32 s4, s4, s5
        s_mul_i32 s4, s4, 1152
        v_add_u32 v6, s4, v6                 ; vC0
        v_xor_b32 v7, 64, v6
        v_add_u32 v7, 8192, v7               ; vC1
        v_lshrrev_b32 v4, 1, v2
        v_xor_b32 v4, v4, v3
        v_lshlrev_b32 v4, 4, v4
        v_lshl_add_u32 v4, v2, 7, v4
        v_add_u32 v4, s61, v4
        v_xor_b32 v5, 64, v4
        """)
        offsets(k, UO)
    CU = lambda u: 88 + 24*(u % 7)
    def c_dma(n):
        k(f"s_add_u32 m0, s61, {2048*(n%6)}\ns_add_u32 s20, s{UO[n//3]}, {18432*(n%3)}\nbuffer_load_dwordx4 v6, s[72:75], s20 offen lds\nbuffer_load_dwordx4 v7, s[72:75], s20 offen offset:1024 lds", tag=("C", n))
    def c_drain(e, n):
        for ks in range(2): e(f"ds_read_b128 {v(CU(n//3)+12*ks+4*(n%3),4)}, v{4+ks} offset:{2048*(n%6)}", tag=("Cd", n))
    def cstream(n0, depth, sig=None, gates={}):
        drained = 0
        if gates: k(f"s_lshl_b32 s4, s62, 2\ns_add_u32 s4, s4, {EXE}\nv_mov_b32 v8, s4")
        for n in range(n0, g.cmf if not g.dbg_cskip else n0):
            D = depth(n)
            if n in gates:
                while drained < min(n, 21):
                    k.wait_vm(("C", drained)); c_drain(k, drained); drained += 1
                vms = list(k.vm); k.vm = []
                g.poll(f"L_pollG{n}", lambda: k("ds_read_b32 v9, v8"), lambda: k(f"v_cmp_gt_u32 vcc, {gates[n]}, v9\ns_nop 0"))
                k.vm = vms
            while drained <= n - D and drained < 21:
                k.wait_vm(("C", drained)); c_drain(k, drained); drained += 1
            if drained >= 21 and not g.clate: k.wait_vm(("C", n - D))
            if n >= 6: k.wait_lg(("Cd", n - 6))
            c_dma(n)
            g.st(f'cb{n}')
            if n == sig: k(f"s_lshl_b32 s4, s62, 2\ns_add_u32 s4, s4, {EXE}\nv_mov_b32 v8, s4\nv_mov_b32 v9, 1\nds_write_b32 v8, v9")
        while drained < 21 and not g.dbg_cskip:
            k.wait_vm(("C", drained)); c_drain(k, drained); drained += 1
        if not g.clate: k.wait_vm()
    g.st("karg")
    dma(0)
    offsets(k, CO)
    csetup()
    if g.prioL: k(f"s_setprio {g.prioL}")
    dma(1, g.first)
    for c in range(9):
        if g.nob8 and c == 8: break
        k.wait_vm(("c", 8 if (g.nob8 and c == 7) else c)); g.st(f"l{c}"); k("s_barrier")
        if c == 0: dma(1, [p for p in "wx" if p not in g.first])
        if c + 2 < 9: dma(c + 2)
        if c == (6 if g.nob8 else 7):
            for n in range(g.cpre): c_dma(n)
    cstream(g.cpre, lambda n: 5 if n < g.cfast else g.cthr, g.csig, g.gates)
    k("s_branch L_CPF")
    vm_c = list(k.vm)
    g.enter("L_R2G"); k.vm = list(g.pvm); k(g.aids)
    UK0 = 34816
    RP = 28 if g.pure else 21
    HL = 55 if g.pure else 42
    k(f"""
    s_sub_u32 s62, s48, 4                ; lw
    v_lshrrev_b32 v4, 3, v1              ; rl
    s_mul_i32 s3, s62, 14
    v_and_b32 v8, 7, v1
    s_add_u32 s3, s3, s49
    v_mul_u32_u24 v6, 1152, v4
    s_sub_u32 s3, s3, 18
    """)
    if g.tmode:
        k("s_mov_b32 s73, s3" if g.tmode == 1 else "s_sub_u32 s73, s49, 18\ns_lshl_b32 s73, s73, 2\ns_add_u32 s73, s73, s62")
        k(f"""
        s_lshr_b32 s72, s73, 2               ; col
        s_and_b32 s7, s73, 3
        s_lshl_b32 s4, s50, 2
        s_add_u32 s7, s7, s4                 ; tb
        s_mul_i32 s4, s7, {64*1152}
        s_lshl_b32 s5, s72, 7
        s_add_u32 s4, s4, s5
        v_lshl_add_u32 v9, v8, 4, v6
        v_add_u32 v9, s4, v9
        s_mul_i32 s63, s62, 12288
        s_add_u32 s63, s63, {CST}
        s_mov_b32 s78, 2359296
        s_mov_b32 s79, 0x20000
        s_cmp_ge_u32 s73, 36
        s_mov_b32 s76, s8
        s_mov_b32 s77, s9
        s_cbranch_scc1 L_noT1
        """)
        for n in range(8):
            k(f"s_add_u32 m0, s63, {1024*n}\ns_mov_b32 s4, {9216*n}\nv_xor_b32 v11, {16*n}, v9\nbuffer_load_dwordx4 v11, s[76:79], s4 offen lds")
        if g.tmode == 2:
            k("s_branch L_noT1b")
            k.raw("L_noT1:")
            vm1 = list(k.vm); k.vm = []
            k(f"""
            s_sub_u32 s4, s73, 36
            s_bitcmp1_b32 s4, 0
            s_cselect_b32 s76, s30, s28
            s_cselect_b32 s77, s31, s29
            s_mov_b32 s78, 663552
            s_lshr_b32 s4, s4, 1
            s_mul_i32 s4, s4, 58
            v_min_u32 v21, 57, v1
            v_add_u32 v21, s4, v21
            v_lshrrev_b32 v22, 6, v21
            v_add_u32 v22, s50, v22
            v_mul_u32_u24 v21, 1152, v21
            """)
            def touch1(c):
                k(f"v_add_u32 v23, {c}, v22\nv_mul_u32_u24 v24, 7282, v23\nv_lshrrev_b32 v24, 16, v24\nv_mul_u32_u24 v24, 9, v24\nv_sub_u32 v23, v23, v24\nv_lshl_add_u32 v{40+c}, v23, 7, v21")
            for c in range(1, 9): touch1(c)
            for c in g.e1: k(f"buffer_load_dword v{30+c}, v{40+c}, s[76:79], 0 offen")
            k("s_mov_b32 s16, s76\ns_mov_b32 s17, s77\ns_mov_b32 s18, 663552\ns_mov_b32 s19, 0x20000")
            k.raw("L_noT1b:"); k.vm = vm1
        else: k.raw("L_noT1:")
    k(f"""
    v_xor_b32 v5, v8, v3
    v_lshl_add_u32 v6, v5, 4, v6
    v_mov_b32 v60, 0
    v_mov_b32 v61, 0
    s_lshl_b32 s4, s48, 3
    s_add_u32 s4, s4, {EXE}
    v_mov_b32 v10, s4
    ds_write_b64 v10, v[60:61]
    s_mul_i32 s4, s62, {AW}
    s_add_u32 s4, s4, {UK0}
    v_lshl_add_u32 v12, v1, 3, s4
    ds_write_b64 v12, v[60:61]
    s_and_b32 s4, s62, 1
    s_mul_i32 s4, s4, {AW}
    s_add_u32 s4, s4, {UK0 + 4*AW}
    v_lshl_add_u32 v12, v1, 3, s4
    ds_write_b64 v12, v[60:61]
    s_lshr_b32 s4, s3, 1
    s_mul_i32 s4, s4, {RP}
    v_mul_u32_u24 v20, {65536//RP + 1}, v1
    v_lshrrev_b32 v20, 16, v20           ; lane/RP
    v_mul_u32_u24 v21, {RP}, v20
    v_sub_u32 v21, v1, v21
    v_add_u32 v21, s4, v21
    v_lshrrev_b32 v22, 6, v21
    s_mul_i32 s4, s50, {g.rot1x}
    v_add_u32 v22, s4, v22
    v_mul_u32_u24 v25, 683, v21
    v_lshrrev_b32 v25, 16, v25
    v_mul_u32_u24 v25, 3, v25
    v_lshrrev_b32 v25, 1, v25
    v_lshlrev_b32 v20, 2, v20
    v_mul_u32_u24 v21, 1152, v21
    s_mov_b32 s70, 663552
    s_mov_b32 s71, 0x20000
    s_mov_b32 s66, 663552
    s_mov_b32 s67, 0x20000
    v_lshlrev_b32 v16, 4, v1
    """)
    k.raw("    s_getpc_b64 s[4:5]\n    s_add_u32 s4, s4, band_tab@rel32@lo+4\n    s_addc_u32 s5, s5, band_tab@rel32@hi+12")
    k(f"""
    s_lshl_b32 s6, s62, 11
    v_add_u32 v56, s6, v16
    v_mov_b32 v57, s5
    v_add_co_u32 v56, vcc, s4, v56
    s_add_u32 m0, s6, {BND}
    v_addc_co_u32 v57, vcc, 0, v57, vcc
    s_bitcmp1_b32 s3, 0
    s_cselect_b32 s68, s30, s28
    s_cselect_b32 s69, s31, s29
    s_cselect_b32 s64, s34, s32
    s_cselect_b32 s65, s35, s33
    """)
    k.wait_lg(); k("s_barrier")
    npf = [0]
    def touch(pat, rot, srd):
        d = 64 + npf[0]; npf[0] += 1
        k(f"s_mov_b32 s4, {pat}\nv_bfe_u32 v23, s4, v20, 4\nv_add_u32 v23, v23, v{rot}\nv_mul_u32_u24 v24, 7282, v23\nv_lshrrev_b32 v24, 16, v24\nv_mul_u32_u24 v24, 9, v24\nv_sub_u32 v23, v23, v24\nv_lshl_add_u32 v23, v23, 7, v21")
        k._wait(vm=g.pf_depth)
        k(f"buffer_load_dword v{d}, v23, s[{srd}:{srd+3}], 0 offen")
    if not g.wfirst:
        for pat in g.bpf: touch(pat, 22, 68)
    for pat in g.bpf0: touch(pat, 22, 68)
    k("global_load_dword v62, v60, s[46:47]\nglobal_load_lds_dwordx4 v[56:57], off\nglobal_load_lds_dwordx4 v[56:57], off offset:1024")
    k(f"""
    s_mov_b32 s76, s46
    s_mov_b32 s77, s47
    s_mov_b32 s78, {WS_SIZE}
    s_mov_b32 s79, 0x20000
    v_lshrrev_b32 v15, 5, v1
    v_mad_u32_u24 v15, v15, 5, s60
    v_min_u32 v15, 575, v15
    v_lshrrev_b32 v15, {6 if g.tmode else 5}, v15
    v_and_b32 v14, 31, v1
    v_lshl_add_u32 v15, v15, 5, v14
    v_lshlrev_b32 v15, {g.tfs}, v15
    v_add_u32 v15, {WS_TF}, v15
    s_lshl_b32 s12, s60, 12
    s_add_u32 s12, s12, {WS_UT}
    s_mul_i32 s5, s3, {2*HL*128}
    s_mul_i32 s14, s50, {4*HBLK}
    s_add_u32 s4, s14, {4*HBLK - 128}
    s_add_u32 s5, s5, s14
    v_min_u32 v58, {HL-1}, v1
    v_lshl_add_u32 v58, v58, 7, s5
    v_add_u32 v59, {HL*128}, v58
    v_min_u32 v58, s4, v58
    v_min_u32 v59, s4, v59
    v_mov_b32 v19, {EXE+56}
    v_mov_b32 v60, 1
    """)
    if g.tmode:
        k(f"""
        s_mov_b32 s22, 0x05040100
        s_mov_b32 s23, 0x07060302
        s_lshl_b32 s5, s72, 18
        s_lshl_b32 s4, s7, 7
        s_add_u32 s5, s5, s4
        s_add_u32 s5, s5, {WS_UT}
        v_lshl_add_u32 v13, v8, 4, s5
        v_lshl_add_u32 v13, v4, 15, v13
        s_lshl_b32 s5, s72, 5
        s_add_u32 s5, s5, s7
        s_lshl_b32 s5, s5, {g.tfs}
        s_add_u32 s5, s5, {WS_TF}
        v_mov_b32 v14, s5
        v_xor_b32 v12, v4, v8
        v_lshlrev_b32 v12, 4, v12
        v_lshl_add_u32 v12, v8, 10, v12
        v_add_u32 v12, s63, v12
        """)
        k("s_cmp_ge_u32 s73, 36\ns_cbranch_scc1 L_noT")
        k._wait(vm=3); g.st("Tld")
        for i in range(8): k(f"ds_read_b128 {v(96+4*i,4)}, v12 offset:{128*i}")
        for e in range(8):
            for p in range(4): k(f"v_perm_b32 v{128+4*e+p}, v{96+8*p+4+e//2}, v{96+8*p+e//2}, s{22+e%2}")
            k(f"s_mov_b32 s4, {4096*e}\nbuffer_store_dwordx4 {v(128+4*e,4)}, v13, s[76:79], s4 offen sc1")
        k(f"v_readfirstlane_b32 s55, v62\ns_mul_i32 s55, s55, {LCG_A}\ns_add_u32 s55, s55, {LCG_C}\ns_max_u32 s55, s55, 1\nv_mov_b32 v17, s55")
        k("s_mov_b64 exec, 1"); k.wait_vm()
        k("global_store_dword v14, v17, s[46:47] sc1\ns_mov_b64 exec, -1"); g.st("Tst")
        if g.tmode == 2:
            k("s_branch L_noTb")
            k.raw("L_noT:")
            for c in g.e2: k.raw(f"    s_waitcnt vmcnt({g.pf_depth})\n    buffer_load_dword v{30+c}, v{40+c}, s[16:19], 0 offen")
            k.raw("L_noTb:")
        else: k.raw("L_noT:")
        k.vm = [({("v", 62)}, None), (set(), None), (set(), None)]
    if g.ctl:
        jobs = [(WS_HF, 72*128, 36, 0), (WS_HF, 72*128, 36, 36*128), (WS_G, 72*128, 36, 0), (WS_G, 72*128, 36, 36*128), (WS_XI, 32*128, 32, 0), (WS_AF, 14*128, 14, 0)]
        for i, (base, per, cnt, off) in enumerate(jobs):
            k(f"s_cmp_lg_u32 s3, {42+i}\ns_cbranch_scc1 L_ct{i}\ns_mul_i32 s5, s50, {per}\ns_add_u32 s5, s5, {base+off}\nv_min_u32 v30, {cnt-1}, v1\nv_lshl_add_u32 v30, v30, 7, s5\nglobal_load_dword v31, v30, s[46:47]"); k.vm.pop()
            k.raw(f"L_ct{i}:")
        k(f"s_sub_u32 s5, s3, 48\ns_cmp_ge_u32 s5, 3\ns_cbranch_scc1 L_cts\ns_mul_i32 s5, s5, {3*16384}\ns_lshl_b32 s4, s50, 11\ns_add_u32 s5, s5, s4\ns_add_u32 s5, s5, {WS_S}\nv_min_u32 v30, 2, v3\nv_lshlrev_b32 v30, 14, v30\nv_lshl_add_u32 v30, v2, 7, v30\nv_add_u32 v30, s5, v30\nglobal_load_dword v31, v30, s[46:47]"); k.vm.pop()
        k.raw("L_cts:")
    if g.pure:
        k("s_cmp_eq_u32 s62, 3\ns_cbranch_scc1 L_pure3")
        vm0 = list(k.vm)
        k._wait(vm=2); g.st("wl")
        for i, pat in enumerate(g.bpf):
            touch(pat, 22, 68)
            if i == 1: k._wait(vm=2); k("ds_write_b32 v10, v60")
        for pat in g.cpf[:g.cpf_pre]: touch(pat, 25, 64)
        for i in range(2): k._wait(vm=g.pf_depth); k(f"global_load_dword v{80+i}, v{58+i}, s[42:43]")
        for pat in g.cpf[g.cpf_pre:]: touch(pat, 25, 64)
        g.st("pre")
        k("s_branch L_pure_end")
        k.raw("L_pure3:"); k.vm = vm0
    elif g.wfirst:
        if not g.tmode: k._wait(vm=0 if g.wfirst == 1 else 2); g.st("wl")
        for pat in g.bpf: touch(pat, 22, 68)
    g.st("bpfi")
    if g.pure: g.cpf = []; g.hpre = 0; g.uwait = 0; g.r2skip = 1
    if g.hpre == 2:
        for i in range(2): k._wait(vm=g.pf_depth); k(f"global_load_dword v{80+i}, v{58+i}, s[42:43]")
    for pat in g.cpf[:g.cpf_pre]: touch(pat, 25, 64)
    for kind, pat in g.seq: touch(pat, 22 if kind == "B" else 25, 68 if kind == "B" else 64)
    if g.hpre == 3:
        for i in range(2): k._wait(vm=g.pf_depth); k(f"global_load_dword v{80+i}, v{58+i}, s[42:43]")
    k.wait_vm(); g.st("pre")
    k(f"v_readfirstlane_b32 s55, v62\ns_mul_i32 s55, s55, {LCG_A}\ns_add_u32 s55, s55, {LCG_C}\ns_max_u32 s55, s55, 1")
    k(f"s_cmp_lg_u32 s62, 3\ns_cbranch_scc1 L_pollT_skip")
    g.poll("L_pollT", lambda: k(f"s_sleep {g.tsleep}\nglobal_load_dword v18, v15, s[46:47] sc1"), lambda: k("v_cmp_ne_u32 vcc, s55, v18\ns_nop 1"))
    g.st("Tarr")
    def udma(c):
        k(f"s_mov_b32 m0, {UK0 + AW*c + 512}\ns_add_u32 s4, s12, {4096*c}")
        for n in range(4): k(f"buffer_load_dwordx4 v16, s[76:79], s4 offen offset:{1024*n} sc1 lds")
    for c in (2, 3, 0, 1): udma(c)
    k("s_cmp_lt_u32 s49, 24\ns_cbranch_scc1 L_u4")
    udma(4); udma(5)
    k("ds_write_b32 v10, v60 offset:4")
    k._wait(vm=8); k("ds_write_b32 v10, v60")
    k.wait_vm(); k(f"v_mov_b32 v18, {EXE+52}\nds_write_b32 v18, v60")
    k.raw("L_u4:"); k.vm = [(set(), None)]
    k("ds_write_b32 v10, v60 offset:4")
    k.wait_vm(); g.st("gath")
    k.raw("L_pollT_skip:")
    k("ds_write_b32 v10, v60")
    if g.uwait:
        g.poll("L_pollTw", lambda: k("s_sleep 2\nds_read_b32 v18, v19 offset:4"), lambda: k("v_cmp_ne_u32 vcc, 1, v18\ns_nop 1"))
    if g.pure: k.raw("L_pure_end:"); k.vm = [(set(("v", i) for i in range(64, 84)), None)]
    for pat in g.bpf2: touch(pat, 22, 68)
    if g.r2skip: k("s_cmp_lt_u32 s49, 24\ns_cbranch_scc1 L_R2C")
    if g.r3all:
        k(f"""
        s_sub_u32 s4, s49, 24
        s_lshl_b32 s4, s4, 2
        s_add_u32 s4, s4, s62
        s_mul_i32 s4, s4, 18
        v_mul_u32_u24 v20, 3641, v1
        v_lshrrev_b32 v20, 16, v20           ; lane/18
        v_mul_u32_u24 v21, 18, v20
        v_sub_u32 v21, v1, v21
        v_add_u32 v21, s4, v21
        v_mul_u32_u24 v25, 683, v21
        v_lshrrev_b32 v25, 16, v25
        v_mul_u32_u24 v25, 3, v25
        v_lshrrev_b32 v25, 1, v25
        v_lshlrev_b32 v20, 2, v20
        v_mul_u32_u24 v21, 1152, v21
        s_mov_b32 s64, s32
        s_mov_b32 s65, s33
        s_mov_b32 s68, s34
        s_mov_b32 s69, s35
        """)
        for pat in g.cpf[g.cpf_pre:]: touch(pat, 25, 64); touch(pat, 25, 68)
    else:
        for pat in g.cpf[g.cpf_pre:]: touch(pat, 25, 64)
    ho = 42 if g.hout else 46
    if g.hpre == 1 and not g.r2skip:
        for i in range(2): k._wait(vm=g.pf_depth); k(f"global_load_dword v{80+i}, v{58+i}, s[{ho}:{ho+1}]")
    if g.hpre == 1 and g.r2skip:
        k(f"s_sub_u32 s4, s49, 24\ns_lshl_b32 s4, s4, 2\ns_add_u32 s4, s4, s62\ns_mul_i32 s4, s4, {144*128}\ns_add_u32 s4, s4, s14\nv_min_u32 v58, 47, v1\nv_lshl_add_u32 v58, v58, 7, s4")
        for i in range(3): k._wait(vm=g.pf_depth); k(f"global_load_dword v{80+i}, v58, s[{ho}:{ho+1}]\nv_add_u32 v58, {48*128}, v58")
    k("s_cmp_lt_u32 s49, 24\ns_cbranch_scc1 L_R2C")
    save = list(k.vm)
    k.wait_vm(); g.st("pfdone")
    if g.awarm:
        k(f"""
        s_sub_u32 s4, s49, 24
        s_mul_i32 s5, s4, {14*128}
        s_add_u32 s5, s5, {WS_AF}
        v_min_u32 v20, 13, v1
        v_lshl_add_u32 v20, v20, 7, s5
        s_lshl_b32 s4, s4, 2
        s_add_u32 s4, s4, s62
        s_mul_i32 s4, s4, {18*4096}
        s_lshl_b32 s5, s50, 9
        s_add_u32 s4, s4, s5
        s_add_u32 s4, s4, {WS_A}
        v_min_u32 v21, 35, v1
        v_and_b32 v22, 3, v21
        v_lshrrev_b32 v21, 2, v21
        v_lshlrev_b32 v21, 12, v21
        v_lshl_add_u32 v21, v22, 7, v21
        v_add_u32 v21, s4, v21
        v_add_u32 v22, {9*4096}, v21
        """)
        g.poll("L_pollV", lambda: k(f"s_sleep {g.awarm}\nglobal_load_dwordx4 v[24:27], v20, s[46:47] sc1"),
               lambda: k("v_xor_b32 v24, s55, v24\nv_xor_b32 v25, s55, v25\nv_xor_b32 v26, s55, v26\nv_xor_b32 v27, s55, v27\nv_or3_b32 v24, v24, v25, v26\nv_or_b32 v24, v24, v27\nv_cmp_ne_u32 vcc, 0, v24\ns_nop 0"))
        k("global_load_dword v24, v21, s[46:47] sc1\nglobal_load_dword v25, v22, s[46:47] sc1")
        k.wait_vm(); g.st("awd")
    g.fin()
    k.raw("L_R2C:"); k.vm = [(set(("v", i) for i in range(64, 84)), None)] if g.r2skip else save; k.hist = []; k.lg = [(set(), None)]
    csetup()
    cstream(0, lambda n: g.cthr2)
    k.raw("L_CPF:"); k.vm = []; k.lg = [(set(), None)]
    k(f"""
    v_lshrrev_b32 v8, 1, v3
    v_lshlrev_b32 v8, 12, v8
    s_lshr_b32 s4, s62, 1
    s_lshl_b32 s5, s4, 10
    v_add_u32 v8, s5, v8
    v_bfe_u32 v9, v1, 1, 1
    v_lshl_add_u32 v8, v9, 8, v8
    v_and_b32 v10, 1, v3
    v_lshlrev_b32 v10, 3, v10
    v_bfe_u32 v11, v1, 2, 2
    v_add_u32 v10, v10, v11
    v_lshlrev_b32 v9, 2, v9
    v_xor_b32 v10, v10, v9
    v_lshl_add_u32 v8, v10, 4, v8
    v_and_b32 v10, 1, v1
    v_lshl_add_u32 v6, v10, 3, v8
    v_xor_b32 v7, 64, v6
    s_mul_i32 s4, s4, 25600
    s_and_b32 s5, s62, 1
    s_mul_i32 s5, s5, 192
    s_add_u32 s4, s4, s5
    s_add_u32 s4, s4, {IMG}
    v_mul_u32_u24 v0, 400, v2
    v_lshl_add_u32 v0, v3, 4, v0
    v_add_u32 v0, s4, v0
    v_add_u32 v2, 49152, v6
    v_add_u32 v3, 49152, v7
    """)
    k.wait_all(); g.st("cdone")
    A2, HF = 40, 8
    def hreads(e, u, ks):
        sl = u % 6; a0 = 6 if sl < 3 else 2
        for tt in range(4):
            off = 16384*(sl % 3) + 8192*ks + 2048*(tt >> 1) + 512*(tt & 1)
            e(f"ds_read_b64_tr_b16 {v(HF+16*ks+4*tt,2)}, v{a0} offset:{off}\nds_read_b64_tr_b16 {v(HF+16*ks+4*tt+2,2)}, v{a0+1} offset:{off}")
    def mf1(u, ks, tt, dt):
        d = A2 + 16*dt + 4*tt
        cc = "0" if (u == 0 and ks == 0) else v(d, 4)
        return ("i", f"{M16} {v(d,4)}, {v(CU(u)+12*ks+4*dt,4)}, {v(HF+16*ks+4*tt,4)}, {cc}", None)
    mf2 = lambda u, ks: [mf1(u, ks, tt, dt) for tt in range(4) for dt in range(3)]
    if g.prioM: k(f"s_setprio {g.prioM}")
    k("s_barrier")
    hreads(k, 0, 0)
    if g.wb: k.raw("    s_or_b32 s4, s52, s62\n    s_cbranch_scc1 L_nowb\n    buffer_wbl2 sc1\nL_nowb:")
    tail = [[(7,0,tt),(7,1,tt),(8,0,tt),(8,1,tt)] for tt in range(4)]
    def treads(e, st):
        for i, (u, ks, tt) in enumerate(tail[st]):
            off = 16384*(u % 6) + 8192*ks + 2048*(tt >> 1) + 512*(tt & 1); b_ = HF + 16*(st % 2) + 4*i
            e(f"ds_read_b64_tr_b16 {v(b_,2)}, v6 offset:{off}\nds_read_b64_tr_b16 {v(b_+2,2)}, v7 offset:{off}")
    def tmf(st):
        return [("i", f"{M16} {v(A2+16*dt+4*tt,4)}, {v(CU(u)+12*ks+4*dt,4)}, {v(HF+16*(st%2)+4*i,4)}, {v(A2+16*dt+4*tt,4)}", None) for i, (u, ks, tt) in enumerate(tail[st]) for dt in range(3)]
    def wr(tts):
        e = Rec()
        for tt in tts:
            for dt in range(3): e(f"ds_write_b128 v0, {v(A2+16*dt+4*tt,4)} offset:{6400*tt+64*dt}")
        return e.items
    early = g.cmf == 27
    cov = {int(t[1:].split(":")[0]): int(t.split(":")[1]) for t in g.p2s.split() if t[0] == "b"}; bars = set(cov)
    for u in range(9): assert max(cov[b_] for b_ in bars if b_ <= min(u, 7)) >= (u if u < 7 else 8), u
    for u in range(7):
        rd = Rec(); hreads(rd, u, 1)
        ex = Rec()
        if u == 2 and g.cmf >= 24:
            if g.clate: ex.items.append(("raw", "    s_waitcnt vmcnt(0)", None))
            for n in range(21, 24): c_drain(ex, n)
        if early and u == 3:
            for n in range(24, 27): c_drain(ex, n)
        weave(k, mf2(u, 0), [(rd.items, 0, 7), (ex.items, 4, 9)])
        if u + 1 in bars: k.wait_lg(); k("s_barrier")
        g.st(f'm{u+1}')
        rd = Rec(); ex = Rec()
        if u < 6: hreads(rd, u + 1, 0)
        else:
            treads(rd, 0)
            if not early:
                for n in range(g.cmf, 27): c_drain(ex, n)
        weave(k, mf2(u, 1), [(rd.items, 1, 8), (ex.items, 1, 10)])
    for st in range(4):
        rd = Rec()
        if st < 3: treads(rd, st + 1)
        w_ = wr([st - 1]) if st else []
        m_ = tmf(st)
        if st == 0: k(f"s_lshl_b32 s4, s62, 2\ns_add_u32 s4, s4, {ASY}\nv_mov_b32 v4, s4\nv_mov_b32 v5, 1")
        if st == 2: w_ = w_ + [("i", "ds_write_b32 v4, v5 offset:16", None)]
        weave(k, m_, [(rd.items, 0, g.trs), (w_, g.tws, len(m_) - 1)])
        g.st(f'T{st}')
    for it in wr([3]): play(k, it)
    k("ds_write_b32 v4, v5 offset:32"); g.st("p2end")
    g.fin()
```

```python
from g2 import *
kw = dict(stamps=True, bst=['stiss'], amp=8)
make("m1.s", **kw); make("m2.s", cpf_pre=2, **kw); make("m3.s", r3all=1, **kw); make("m4.s", hpre=0, **kw); make("m5.s", bpf0=[0x4432], bpf=[0x7765], cpf_pre=2, bpf2=[0x8888], **kw); make("m6.s", bpf=[], cpf_pre=3, **kw)
```

```python
from g2 import *
ASY = EXE + 1024
BND = 90112
GXL = 157696
def compute1(g):
    k = g.k
    AX, AWr, GX = 8, 10, 12
    GP = g.gpos
    k(f"""
    s_lshl_b32 s4, s54, 7
    s_lshl_b32 s5, s48, 5
    s_add_u32 s4, s4, s5
    v_lshl_add_u32 v16, v2, 1, s4
    s_add_u32 s4, s59, {128*GP}
    s_sub_u32 s5, s4, 1152
    s_min_u32 s4, s4, s5
    v_lshl_add_u32 v17, v3, 4, s4
    global_load_ushort v20, v16, s[36:37]
    global_load_ushort v21, v16, s[24:25]
    global_load_ushort v22, v16, s[26:27]
    s_load_dword s55, s[46:47], 0
    """)
    GF, GXF, GA = 64, 72, 80
    if g.prioC: k(f"s_setprio {g.prioC}")
    for ks in range(2): k(f"global_load_dwordx4 {v(GF+4*ks,4)}, v17, s[40:41] offset:{64*ks}")
    g.st("karg")
    k(f"""
    v_lshrrev_b32 v6, 1, v2
    v_xor_b32 v6, v6, v3
    v_lshlrev_b32 v6, 4, v6
    v_lshl_add_u32 v{AX}, v2, 7, v6
    v_xor_b32 v{AX+1}, 64, v{AX}
    s_lshl_b32 s4, s48, 11
    s_add_u32 s4, s4, {WSL}
    v_add_u32 v{AWr}, s4, v{AX}
    v_xor_b32 v{AWr+1}, 64, v{AWr}
    s_lshl_b32 s4, s48, 12
    v_add_u32 v{GX}, s4, v{AX}
    v_xor_b32 v{GX+1}, 64, v{GX}
    s_mov_b32 s76, s46
    s_mov_b32 s77, s47
    s_mov_b32 s78, {WS_SIZE}
    s_mov_b32 s79, 0x20000
    s_lshl_b32 s13, s53, 11
    s_add_u32 s13, s13, {WS_XI}
    s_lshl_b32 s5, s54, 2
    s_add_u32 s5, s5, s48                ; beta = 4j + w
    s_mul_i32 s6, s53, {2*HBLK}
    s_lshl_b32 s7, s5, 12
    s_add_u32 s60, s6, s7
    s_mul_i32 s4, s53, 36
    s_add_u32 s4, s4, s5
    s_lshl_b32 s4, s4, 7
    s_add_u32 s6, s4, {WS_HF}
    v_mov_b32 v6, s6
    s_add_u32 s4, s4, {WS_G}
    v_and_b32 v106, 7, v1
    v_lshl_add_u32 v106, v106, 2, s4
    v_lshl_add_u32 v106, v3, 5, v106
    s_lshl_b32 s10, s54, 14
    s_lshl_b32 s4, s48, 8
    s_add_u32 s10, s10, s4
    s_add_u32 s10, s10, {WS_S}
    v_lshl_add_u32 v16, v2, 4, s10
    s_lshl_b32 s11, s53, 10
    v_add_u32 v17, s11, v16
    v_lshrrev_b32 v29, 1, v3
    v_mul_u32_u24 v29, {HBLK}, v29
    v_and_b32 v5, 1, v3
    v_lshl_add_u32 v29, v5, 11, v29
    v_lshl_add_u32 v29, v2, 4, v29
    v_xor_b32 v30, 64, v29
    v_cmp_eq_u32 s[64:65], 0, v5
    v_lshlrev_b32 v31, 5, v3
    v_cvt_f32_u32 v31, v31               ; 32g
    v_mul_f32 v32, 4.0, v31              ; 128g
    v_sub_f32 v33, {fl(96.0)}, v31
    s_sub_u32 s4, s53, 1
    v_sub_u32 v28, s4, v3
    v_mov_b32 v4, 0x80000000
    """)
    for q in range(4):
        k(f"v_subrev_u32 v5, {4*q}, v28\nv_cmp_le_i32 s[{24+2*q}:{25+2*q}], 0, v5\nv_lshl_add_u32 v5, v5, 10, v16\nv_cndmask_b32 v{24+q}, v4, v5, s[{24+2*q}:{25+2*q}]")
    def late_setup():
        g.ids2(); p2_srd(g); p2_min(g); p2_setup(g)
        k(f"v_mov_b32 v116, s55\nv_mov_b32 v117, s14\ns_lshl_b32 s4, s52, 7\ns_add_u32 s4, s4, s12\nv_mov_b32 v119, s4")
    EO = 120
    k(f"s_mul_i32 s55, s55, {LCG_A}\ns_add_u32 s55, s55, {LCG_C}\ns_max_u32 s55, s55, 1\ns_not_b32 s62, s55\nv_mov_b32 v{EO+2}, s55\nv_mov_b32 v{EO+3}, s62")
    if g.p2q == 0: late_setup()
    if g.tlb:
        k("s_mov_b64 exec, 1\nbuffer_load_dword v110, v29, s[68:71], s60 offen sc1\nbuffer_load_dword v111, v253, s[16:19], 0 offen\nglobal_load_dword v124, v99, s[38:39]\nglobal_load_dword v125, v6, s[46:47] sc1\ns_mov_b64 exec, -1")
    k("v_and_b32 v118, 7, v1\nv_min_u32 v118, 5, v118\nv_and_b32 v5, 8, v1\nv_add_u32 v118, v118, v5\nv_lshl_add_u32 v118, v118, 7, s13")
    if not g.tmode: k(f"""
    v_lshrrev_b32 v52, 3, v1             ; hc
    v_and_b32 v53, 7, v1                 ; rg
    s_and_b32 s4, s48, 1
    s_lshl_b32 s5, s4, 2
    v_lshrrev_b32 v54, 1, v52
    v_add_u32 v54, s5, v54               ; chunk
    s_and_b32 s5, s48, 2
    v_lshrrev_b32 v55, 2, v53
    v_add_u32 v55, s5, v55
    v_lshlrev_b32 v56, 1, v55
    v_xor_b32 v54, v54, v56
    v_lshlrev_b32 v54, 4, v54
    v_lshl_add_u32 v54, v55, 9, v54
    v_bfe_u32 v55, v53, 1, 1
    v_lshl_add_u32 v54, v55, 7, v54
    v_and_b32 v55, 1, v52
    v_lshl_add_u32 v54, v55, 3, v54
    v_and_b32 v55, 1, v53
    v_lshl_add_u32 v54, v55, 13, v54
    v_xor_b32 v55, 16, v54
    s_lshr_b32 s5, s48, 1
    s_lshr_b32 s6, s59, 6
    s_add_u32 s6, s6, s4
    s_lshl_b32 s7, s53, 1
    s_add_u32 s7, s7, s5                 ; tb
    s_lshl_b32 s4, s6, 17
    s_lshl_b32 s5, s7, 7
    s_add_u32 s4, s4, s5
    s_add_u32 s4, s4, {WS_UT}
    v_lshl_add_u32 v58, v53, 4, s4
    v_lshl_add_u32 v58, v52, 14, v58
    s_lshl_b32 s6, s6, 5
    s_add_u32 s6, s6, s7
    s_lshl_b32 s6, s6, {g.tfs}
    s_add_u32 s6, s6, {WS_TF}
    v_mov_b32 v23, s6
    s_mov_b32 s66, 0x05040100
    s_mov_b32 s67, 0x07060302
    s_mov_b32 s72, 4096
    s_mov_b32 s73, 8192
    s_mov_b32 s74, 12288
    """)
    tr1, tr2 = Rec(), Rec()
    for i in range(8): tr1(f"ds_read_b64 {v(80+2*i,2)}, v{54 + (i & 1)} offset:{2048*(i>>1) + 256*(i&1)}")
    for e in range(4):
        for p in range(4): tr2(f"v_perm_b32 v{36+4*e+p}, v{80+4*p+2+e//2}, v{80+4*p+e//2}, s{66+e%2}")
        tr2(f"buffer_store_dwordx4 {v(36+4*e,4)}, v58, s[76:79], {'0' if e == 0 else 's%d' % (71+e)} offen sc1", tag="T")
    Z, LM, L32, L512, WH, MU, SS, WSr, WSi, MPr, MPi, EX, TB = 14, 18, 34, 36, 38, 40, 42, 44, 46, 48, 50, 52, 64
    tb = lambda j: TB + 2*(j - 1)
    TT = [112, 114, 60]
    cs = Rec()
    cs(f"""
    v_lshlrev_b32 v20, 16, v20
    v_mul_f32 v20, {fl(LOG2E)}, v20
    v_exp_f32 v20, v20
    v_lshlrev_b32 v{LM}, 16, v21
    v_lshlrev_b32 v{LM+1}, 16, v22
    v_cvt_pk_bf16_f32 v20, v20, v20
    v_mul_f32 v21, v{LM}, v{LM}
    v_and_b32 v20, 0xffff0000, v20
    v_fmac_f32 v21, v{LM+1}, v{LM+1}
    v_mul_f32 v{Z}, v20, v{LM}
    v_mul_f32 v{Z+1}, v20, v{LM+1}
    v_rcp_f32 v21, v21
    v_mul_f32 v{Z}, {fl(LOG2E)}, v{Z}
    v_mul_f32 v{Z+1}, {fl(INV2PI)}, v{Z+1}
    v_add_f32 v21, v21, v21
    v_mul_f32 v{LM}, v{LM}, v21
    v_mul_f32 v{LM+1}, -v{LM+1}, v21
    """)
    cpow_multi(cs, [(d0, d1, Z, Z+1, ex, TT[i], TT[i]+1) for i, (d0, d1, ex) in enumerate(((tb(1), tb(1)+1, "1.0"), (WSr+1, WSi+1, "v33"), (L512, L512+1, fl(512.0))))])
    cpow_multi(cs, [(d0, d1, Z, Z+1, ex, TT[i], TT[i]+1) for i, (d0, d1, ex) in enumerate(((WH, WH+1, "v32"), (MU, MU+1, "v31"), (tb(8), tb(8)+1, fl(8.0))))])
    cs(f"v_add_f32 v{TT[0]}, -1.0, v{tb(1)}")
    smul(cs, SS, SS+1, TT[0], tb(1)+1, LM, LM+1)
    sm = lambda d, x, y: smul(cs, d, d+1, x, x+1, y, y+1)
    for j, (x, y) in {2: (1, 1), 16: (8, 8), 3: (2, 1), 4: (2, 2), 9: (8, 1), 10: (8, 2), 5: (4, 1), 6: (4, 2), 7: (4, 3), 11: (8, 3), 12: (8, 4), 13: (8, 5), 14: (8, 6), 15: (8, 7)}.items():
        sm(tb(j), tb(x), tb(y))
    sm(L32, tb(16), tb(16))
    smul(cs, WSr, WSi, tb(16), tb(16)+1, WSr+1, WSi+1)
    smul(cs, MPr, MPi, MU, MU+1, SS, SS+1)
    smul(cs, MPr+1, MPi+1, tb(16), tb(16)+1, MPr, MPi)
    cs(f"v_cndmask_b32 v{MU}, v{L32}, 1.0, s[64:65]\nv_cndmask_b32 v{MU+1}, v{L32+1}, 0, s[64:65]")
    for q in range(4): cs(f"v_cndmask_b32 v{EX+2*q}, 0, v{EO+2}, s[{24+2*q}:{25+2*q}]\nv_cndmask_b32 v{EX+2*q+1}, 0, v{EO+3}, s[{24+2*q}:{25+2*q}]")
    g.st("setup")
    R, I, XF, WF = 128, 160, 208, [240, 192]
    LA = g.xla
    def xread(n):
        q, m = divmod(n, 8); c, ks = divmod(q, 2)
        return f"ds_read_b128 {v(XF+4*m,4)}, v{AX+ks} offset:{16384*(c%3)+2048*m}"
    def wread(q, comp):
        c, ks = divmod(q, 2)
        return f"ds_read_b128 {v(WF[q%2]+4*comp,4)}, v{AWr+ks} offset:{16384*(c%3)+8192*comp}"
    if g.csig or g.gates: k(f"s_lshl_b32 s4, s48, 2\ns_add_u32 s4, s4, {EXE}\nv_mov_b32 v7, s4\nv_mov_b32 v5, 0\nds_write_b32 v7, v5")
    k.wait_lg(); k("s_barrier"); g.st("c0")
    k(wread(0, 0)); k(xread(0)); k(wread(0, 1))
    for n in range(1, LA): k(xread(n))
    fq = []
    sched = {}; barp = {}; BL = g.xbl
    for q in range(1, 18):
        p0 = 8*q - (BL if q % 2 == 0 else 5)
        sched.setdefault(p0, []).append(wread(q, 0)); sched.setdefault(p0 + 1, []).append(wread(q, 1))
        if q % 2 == 0: barp[p0] = q // 2
    for n in range(LA, 144):
        sched.setdefault(max(n - LA, n - n % 16 - BL + (n % 16 + 1)//2), []).append(xread(n))
    q0, q1 = g.cs_span
    per = -(-len(cs.items) // (q1 - q0))
    for q in range(18):
        g.st(f"q{q}")
        if q == 0 and not g.tmode and not g.noT: fq += tr1.items + tr2.items
        if q0 <= q < q1: fq += cs.items[(q-q0)*per:(q-q0+1)*per]
        if q == 2*GP + 2:
            gs = Rec()
            for n_ in (4, 2, 1):
                gs(f"v_and_b32 v107, {n_}, v1\nv_cmp_ne_u32 vcc, 0, v107")
                for i in range(n_): gs(f"v_cndmask_b32 v{108 if n_ == 1 else GA+i}, v{GA+i}, v{GA+i+n_}, vcc")
            fq += [("nop", None, None)]*6 + gs.items
        if q == g.tq and not g.tmode:
            fq.insert(0, ("wv", "T", None)); fq.insert(1, ("g", ["s_mov_b64 exec, 1", f"global_store_dword v23, v{EO+2}, s[46:47] sc1", "s_mov_b64 exec, -1"], None))
        if q == g.xq:
            fq.insert(0, ("raw", "    s_cmp_lg_u32 s48, 0\n    s_cbranch_scc1 L_xp1\n    s_mov_b64 exec, 1\n    global_store_dwordx2 v119, v[116:117], s[46:47] sc1\n    s_mov_b64 exec, -1\nL_xp1:", None))
        for m in range(8):
            pos = 8*q + m
            if pos in barp:
                assert not any(it[0] == "i" and it[1].startswith("ds_read") for it in fq)
                if barp[pos] == g.p2q: late_setup()
                k.wait_lg(); k("s_barrier"); g.st(f"c{barp[pos]}")
            rl_ = list(sched.get(pos, []))
            if q // 2 == GP and m in (0, 1): rl_.append(f"ds_read_b128 {v(GXF+4*m,4)}, v{GX+q%2} offset:{16384*(GP%3)+2048*m}")
            for comp, A_ in enumerate((R, I)):
                k(f"{M16} {v(A_+4*m,4)}, {v(XF+4*m,4)}, {v(WF[q%2]+4*comp,4)}, {'0' if q == 0 else v(A_+4*m,4)}")
                mine = rl_[:(len(rl_) + 1)//2] if comp == 0 else rl_[(len(rl_) + 1)//2:]
                for r_ in mine: k(r_)
                for _ in range((1 if comp == 1 else 2) - len(mine) + (1 if len(fq) > 2*(16 - 2*m) else 0)):
                    if fq: play(k, fq.pop(0))
        if q // 2 == GP:
            for mm in range(2): k(f"{M16} {v(GA+4*mm,4)}, {v(GXF+4*mm,4)}, {v(GF+4*(q%2),4)}, {'0' if q % 2 == 0 else v(GA+4*mm,4)}")
        if q == g.tq: g.st("Tst")
    while fq: play(k, fq.pop(0))
    g.st("gemm1")
    for st in range(1, 16):
        pk_bc(k, R+2*st, R+2*st-2, tb(1), 0, R+2*st)
        pk_bc(k, I+2*st, I+2*st-2, tb(1), 0, I+2*st)
        pk_bc(k, R+2*st, I+2*st-2, tb(1), 1, R+2*st, neg=True)
        pk_bc(k, I+2*st, R+2*st-2, tb(1), 1, I+2*st)
    T = 208
    k(f"v_pk_mul_f32 {v(T,2)}, {v(R+30,2)}, {v(WSr,2)}\nv_pk_mul_f32 {v(T+2,2)}, {v(I+30,2)}, {v(WSr,2)}")
    k(f"v_pk_fma_f32 {v(T,2)}, {v(I+30,2)}, {v(WSi,2)}, {v(T,2)} neg_lo:[1,0,0] neg_hi:[1,0,0]\nv_pk_fma_f32 {v(T+2,2)}, {v(R+30,2)}, {v(WSi,2)}, {v(T+2,2)}")
    k(f"v_add_f32 v{T}, v{T}, v{T+1}\nv_add_f32 v{T+1}, v{T+2}, v{T+3}")
    def allred(x, o):
        k(f"v_permlane32_swap_b32 v{x}, v{x+1}\nv_add_f32 v{x+2}, v{x}, v{x+1}\nv_add_f32 v{x+3}, v{x}, v{x+1}\nv_permlane16_swap_b32 v{x+2}, v{x+3}")
        k(f"v_add_f32 v{o}, v{x+2}, v{x+3}\nv_add_f32 v{o+1}, v{x+2}, v{x+3}\nv_permlane32_swap_b32 v{o}, v{o+1}")
    allred(T, EO)
    k.vm = []
    k(f"s_mov_b64 exec, 0xffff\nglobal_store_dwordx4 v17, {v(EO,4)}, s[46:47] sc1\ns_mov_b64 exec, -1")
    def level(n):
        if g.gates: k(f"v_mov_b32 v5, {n}\nds_write_b32 v7, v5")
    level(1)
    g.st("pub")
    def smalls():
        k("global_load_dwordx2 v[228:229], v118, s[46:47] sc1")
        k("s_mov_b32 exec_lo, 0xff00ff\ns_mov_b32 exec_hi, 0xff00ff\nglobal_store_dword v106, v108, s[46:47] sc1\ns_mov_b64 exec, -1")
    if g.sm_early == 3:
        k("s_mov_b32 exec_lo, 0xff00ff\ns_mov_b32 exec_hi, 0xff00ff\nglobal_store_dword v106, v108, s[46:47] sc1\ns_mov_b64 exec, -1")
        if not g.xearly: p2_loads(g)
    elif g.sm_early: smalls()
    if g.sm_early == 2 and not g.xearly: p2_loads(g)
    for st in range(16):
        a, b = T + 4*(st % 2), T + 4*(st % 2) + 2
        pk_bc(k, a, R+2*st, SS, 0); pk_bc(k, b, R+2*st, SS, 1)
        pk_bc(k, R+2*st, I+2*st, SS, 1, a, neg=True); pk_bc(k, I+2*st, I+2*st, SS, 0, b)
    CPr, CPi = WSr, WSi
    F, Q, Y, U_ = T, T + 2, T + 4, T + 6
    smul(k, F, F+1, tb(16), tb(16)+1, R+30, I+30, R+31, I+31)
    k(f"v_mov_b64 {v(Q,2)}, 0\nv_mov_b64 {v(Y,2)}, {v(F,2)}\nv_mov_b64 {v(U_,2)}, 0\nv_permlane16_swap_b32 v{Q}, v{Y}\nv_permlane16_swap_b32 v{Q+1}, v{Y+1}")
    cmac(k, [(F, Q, L32, F)])
    k(f"v_mov_b64 {v(Y,2)}, {v(F,2)}\nv_permlane16_swap_b32 v{F}, v{Y}\nv_permlane16_swap_b32 v{F+1}, v{Y+1}\nv_permlane32_swap_b32 v{U_}, v{Y}\nv_permlane32_swap_b32 v{U_+1}, v{Y+1}")
    smul(k, CPr, CPi, MU, MU+1, U_, U_+1, Q, Q+1)
    smul(k, CPr+1, CPi+1, tb(16), tb(16)+1, CPr, CPi, R+30, I+30)
    g.st("prep")
    PD = 232
    def issS():
        for q in range(4): k(f"buffer_load_dwordx4 {v(PD+4*q,4)}, v{24+q}, s[76:79], 0 offen sc1")
    def chkS():
        for q in range(4): k(f"v_cmp_ne_u64 s[{24+2*q}:{25+2*q}], {v(PD+4*q+2,2)}, {v(EX+2*q,2)}")
        k("s_or_b64 s[24:25], s[24:25], s[26:27]\ns_or_b64 vcc, s[28:29], s[30:31]\ns_or_b64 vcc, vcc, s[24:25]")
    if g.csig:
        vms = list(k.vm); k.vm = []
        g.poll("L_pollC", lambda: k("ds_read_b32 v5, v7"), lambda: k("v_cmp_ne_u32 vcc, 1, v5\ns_nop 0"))
        k.vm = vms; g.st("Csig")
    if g.sdel: k(f"s_sleep {g.sdel}")
    if g.sm_early == 3: k("global_load_dwordx2 v[228:229], v118, s[46:47] sc1")
    issS()
    if not g.sm_early: smalls()
    if not g.xearly and g.sm_early < 2: p2_loads(g)
    chkS(); k("s_cbranch_vccz L_pollS_done" if not g.nosw else "s_branch L_pollS_done")
    vms = list(k.vm)
    g.poll("L_pollS", issS, chkS)
    k.vm = vms
    level(2)
    g.st("Sarr")
    for q in (2, 1, 0): cmac(k, [(PD+4*q, PD+4*q+4, L512, PD+4*q)])
    cmul_multi(k, [(T, PD, WH, T+2)])
    HH = T + 4
    allred(T, HH)
    k("v_cmp_ne_u64 s[72:73], v[228:229], v[116:117]")
    pk_bc(k, CPr, MPr, HH, 0, CPr); pk_bc(k, CPi, MPi, HH, 0, CPi)
    pk_bc(k, CPr, MPi, HH, 1, CPr, neg=True); pk_bc(k, CPi, MPr, HH, 1, CPi)
    k("s_cmp_lg_u64 s[72:73], 0")
    HO = 216
    def tail(sc):
        for comp in range(2):
            A_, c0, c1 = (R, CPr, CPi) if comp == 0 else (I, CPi, CPr)
            n = "-" if comp else ""
            for hh in range(2):
                for st in range(8*hh, 8*hh + 8): pk_bc(k, A_+2*st, c0, tb(st+1), 0, A_+2*st)
                for st in range(8*hh, 8*hh + 8): pk_bc(k, A_+2*st, c1, tb(st+1), 1, A_+2*st, neg=(comp == 0))
                for half in range(2):
                    o = HO + 16*comp + 8*hh + 4*half
                    for i in range(4): k(f"v_cvt_pk_bf16_f32 v{o+i}, {n}v{A_+16*hh+4*i+half}, {n}v{A_+16*hh+4*i+2+half}")
                    k(f"buffer_store_dwordx4 {v(o,4)}, v{29+hh}, s[68:71], s60 offen offset:{1024*comp+256*(2*half+hh)} {sc}")
        level(3)
        g.st("hst")
        if not g.xearly: k.raw("    s_waitcnt vmcnt(8)"); k.vm = k.vm[-8:]
        p2_unpack(g)
        k("s_mov_b64 exec, 1")
        k.raw("    s_waitcnt vmcnt(0)"); k.vm = []
        k(f"global_store_dword v6, v{EO+2}, s[46:47] {sc}\ns_mov_b64 exec, -1")
        g.st("flag")
        if g.gpf: k("global_load_dword v28, v104, s[46:47] sc1\nglobal_load_dword v29, v109, s[46:47] sc1")
        if " z " not in g.p2s: p2_zero(g)
    if g.fast:
        k("s_cbranch_scc1 L_slow")
        g.slow_tail = lambda: tail("sc1")
        tail(g.hst)
    else: tail("sc1")
    k.raw("L_tail_done:"); k.vm = []

XR, DBR, DBF = [200, 202, 204, 206, 124, 126], [102, 110, 98], 64
XB = list(range(76, 96)) + list(range(20, 24))
AR = 32
def p2_loads(g):
    k = g.k
    for jj in range(3):
        k(f"global_load_dwordx2 {v(XR[jj],2)}, v100, s[8:9] offset:{64*jj}\nglobal_load_dwordx2 {v(XR[3+jj],2)}, v101, s[8:9] offset:{64*jj}\nglobal_load_dwordx2 {v(DBR[jj],2)}, v99, s[38:39] offset:{64*jj}")
    k("v_lshlrev_b32 v100, 1, v100\nv_lshlrev_b32 v101, 1, v101")
def p2_unpack(g):
    k = g.k
    for jj in range(3):
        for h in range(2): k(f"v_lshlrev_b32 v{DBF+4*jj+2*h}, 16, v{DBR[jj]+h}\nv_and_b32 v{DBF+4*jj+2*h+1}, 0xffff0000, v{DBR[jj]+h}")
    for q in range(12): k(f"v_lshlrev_b32 v{XB[2*q]}, 16, v{XR[q//2]+q%2}\nv_and_b32 v{XB[2*q+1]}, 0xffff0000, v{XR[q//2]+q%2}")
    for q in range(12): k(f"v_pk_mul_f32 {v(XB[2*q],2)}, {v(XB[2*q],2)}, {v(DBF+2*(q%6),2)}")
def p2_zero(g):
    for q in range(12): g.k(f"v_mov_b64 {v(AR+2*q,2)}, 0")
def p2_srd(g):
    g.k(f"s_mov_b32 s68, s42\ns_mov_b32 s69, s43\ns_mov_b32 s70, 4718592\ns_mov_b32 s71, 0x20000")
def p2_min(g):
    k = g.k
    k(f"""
    s_cmp_lt_u32 s48, 2
    s_cselect_b32 s16, s32, s34
    s_cselect_b32 s17, s33, s35
    s_mov_b32 s18, 663552
    s_mov_b32 s19, 0x20000
    s_getreg_b32 s14, hwreg(HW_REG_XCC_ID, 0, 4)
    s_lshl_b32 s12, s56, 10
    s_add_u32 s12, s12, {WS_XI}
    s_lshl_b32 s23, s52, 7
    s_add_u32 s23, s23, s12
    s_lshl_b32 s4, s48, 2
    s_add_u32 s23, s23, s4
    s_mov_b32 s{UO[0]}, s57
    s_lshr_b32 s4, s56, 1
    s_mul_i32 s4, s4, {36*128}
    s_add_u32 s4, s4, {WS_HF}
    {"v_min_u32 v62, 35, v1" if not g.uflag else f"v_min_u32 v62, 8, v1; v_lshl_add_u32 v62, v62, 7, s57; v_subrev_u32 v63, 1152, v62; v_min_u32 v62, v62, v63; v_lshrrev_b32 v62, 5, v62; v_add_u32 v62, s48, v62".replace("; ", chr(10))}
    v_lshl_add_u32 v62, v62, 7, s4
    s_mul_i32 s4, s56, {HBLK}
    s_lshl_b32 s15, s48, 12
    s_add_u32 s4, s4, s15
    s_add_u32 s4, s4, {0 if g.hout else WS_H}
    v_lshl_add_u32 v63, v1, 4, s4
    """)
    offsets(k, UO)
def p2_setup(g):
    k = g.k
    k(f"""
    s_lshl_b32 s4, s56, 6
    v_lshrrev_b32 v96, 3, v0             ; tl
    v_add_u32 v97, s4, v96
    v_and_b32 v98, 7, v0                 ; dl
    s_mul_i32 s5, s52, 192
    v_lshl_add_u32 v99, v98, 3, s5
    v_mul_u32_u24 v100, 1152, v97
    v_add_u32 v100, v100, v99
    v_add_u32 v101, {32*1152}, v100
    """)
    k(f"""
    s_lshr_b32 s4, s56, 1
    s_mul_i32 s4, s4, {9*512}
    s_lshl_b32 s5, s51, 6
    s_add_u32 s4, s4, s5
    s_lshr_b32 s5, s48, 1
    s_lshl_b32 s5, s5, 2
    s_add_u32 s4, s4, s5
    s_and_b32 s5, s48, 1
    s_lshl_b32 s5, s5, 8
    s_add_u32 s4, s4, s5
    s_add_u32 s4, s4, {WS_G}
    v_lshrrev_b32 v102, 3, v1
    v_and_b32 v109, 3, v102
    v_lshl_add_u32 v109, v109, 3, s4
    v_lshrrev_b32 v104, 5, v1
    v_lshl_add_u32 v109, v104, 7, v109
    v_lshl_add_u32 v104, v98, 9, v109
    v_add_u32 v109, 4096, v109
    s_mul_i32 s4, s52, 43
    s_lshr_b32 s4, s4, 5
    s_mul_i32 s4, s4, {14*128}
    s_add_u32 s4, s4, {WS_AF}
    v_min_u32 v105, 27, v1
    v_lshl_add_u32 v105, v105, 7, s4
    s_mul_i32 s4, s52, 96
    s_mul_i32 s5, s48, 24
    s_add_u32 s4, s4, s5
    s_lshl_b32 s4, s4, 12
    s_lshl_b32 s5, s56, 7
    s_add_u32 s4, s4, s5
    s_add_u32 s4, s4, {WS_A}
    v_lshl_add_u32 v253, v102, 12, s4
    v_lshrrev_b32 v254, 5, v1
    s_mul_i32 s5, s48, 6
    v_add_u32 v254, s5, v254
    """)
    for n in range(3): k(f"v_add_u32 v255, {2*n}, v254\nv_xor_b32 v255, v255, v1\nv_and_b32 v255, 7, v255\nv_lshl_add_u32 v{248+n}, v255, 4, v253")
    k(f"""
    s_mul_i32 s4, s52, 96
    s_and_b32 s5, s48, 1
    s_mul_i32 s5, s5, 48
    s_add_u32 s4, s4, s5
    v_add_u32 v253, s4, v102
    v_mul_u32_u24 v253, 1152, v253
    v_xor_b32 v254, v98, v3
    v_lshl_add_u32 v253, v254, 4, v253   ; vC0
    v_xor_b32 v254, 64, v253
    v_add_u32 v254, 8192, v254           ; vC1
    s_mul_i32 s22, s48, 12288
    s_add_u32 s22, s22, {CST}
    s_mul_i32 s21, s48, 3072
    s_and_b32 s4, s48, 1
    s_lshl_b32 s4, s4, 2
    s_lshr_b32 s5, s48, 1
    s_add_u32 s4, s4, s5
    v_xor_b32 v251, s4, v98
    v_lshlrev_b32 v251, 4, v251
    v_lshl_add_u32 v251, v98, 9, v251
    v_lshl_add_u32 v251, v102, 1, v251
    v_add_u32 v251, {AST}, v251
    v_xor_b32 v252, 32, v251
    v_mul_u32_u24 v96, 400, v96
    v_lshl_add_u32 v96, v98, 4, v96
    v_add_u32 v96, {IMG}, v96
    """)

def loader2(g):
    k = g.k
    k.raw("L_P2:"); k.vm = []; k.lg = []
    GG, OM = 58, 60
    if not g.uflag:
        g.poll("L_pollH", lambda: k("global_load_dword v97, v62, s[46:47] sc1"), lambda: k("v_cmp_ne_u32 vcc, s55, v97\ns_nop 1"))
        g.st("Harr")
    else: k("s_mov_b32 s74, -1")
    def need(u):
        k(f"s_bitcmp0_b32 s74, {u}\ns_cbranch_scc1 L_pollH{u}_done")
        save = list(k.vm)
        g.poll(f"L_pollH{u}", lambda: k("global_load_dword v97, v62, s[46:47] sc1"), lambda: k(f"v_cmp_ne_u32 s[74:75], s55, v97\ns_mov_b32 vcc_hi, 0\ns_and_b32 vcc_lo, s74, {1 << u}"))
        k.vm = save
        if u == 0: g.st("Harr")
    def h_dma(u):
        k(f"s_add_u32 m0, s15, {16384*(u%6)}\ns_lshl_b32 s63, s{UO[u]}, 7")
        for n in range(4): k(f"buffer_load_dwordx4 v63, s[68:71], s63 offen offset:{1024*n} {g.hld} lds", tag=("h", u))
    def c_blk(n):
        k(f"s_add_u32 m0, s22, {2048*(n%6)}\ns_add_u32 s20, s{UO[n//3]}, {18432*(n%3)}\nbuffer_load_dwordx4 v253, s[16:19], s20 offen lds\nbuffer_load_dwordx4 v254, s[16:19], s20 offen offset:1024 lds", tag="C")
    def bar(u, *tags):
        for t in tags: k.wait_vm(t)
        k("s_barrier"); g.st(f"u{u}")
    assert g.cmf == 27
    chk = lambda: k("v_xor_b32 v68, s55, v68\nv_xor_b32 v69, s55, v69\nv_xor_b32 v70, s55, v70\nv_xor_b32 v71, s55, v71\nv_or3_b32 v68, v68, v69, v70\nv_or_b32 v68, v68, v71\nv_cmp_ne_u32 vcc, 0, v68\ns_nop 0")
    lastb = -1
    for tok in g.p2s.split():
        if tok[0] == "h":
            assert int(tok[1:]) - 5 <= max(lastb, 0)
            if g.uflag: assert int(tok[1:]) < 2 or lastb >= 0; need(int(tok[1:]))
            h_dma(int(tok[1:]))
        elif tok[0] == "b":
            u, w = tok[1:].split(":"); lastb = int(u); k.wait_lg(); bar(int(u), ("h", int(w)))
        elif tok == "i":
            k(f"v_lshlrev_b32 v26, 2, v2\nv_add_u32 v26, {ASY}, v26\nv_mov_b32 v28, 0\nds_write_b32 v26, v28\ns_lshl_b32 s4, s48, 2\ns_add_u32 s4, s4, {ASY}\nv_mov_b32 v25, s4\nv_and_b32 v26, 3, v1\nv_lshlrev_b32 v26, 2, v26\nv_add_u32 v26, {ASY}, v26")
            k("v_mov_b32 v64, s55\nv_mov_b32 v31, s23\nv_min_u32 v30, 23, v1\nv_lshrrev_b32 v66, 2, v30\nv_and_b32 v30, 3, v30\nv_lshlrev_b32 v30, 2, v30\nv_lshl_add_u32 v30, v66, 7, v30\nv_add_u32 v30, s12, v30")
        elif tok == "f": k("global_load_dwordx4 v[68:71], v105, s[46:47] sc1", tag="af")
        elif tok == "g":
            for ii in range(2): k(f"global_load_dword v{GG+ii}, v104, s[46:47] offset:{32*ii} sc1\nglobal_load_dword v{56+ii}, v109, s[46:47] offset:{32*ii} sc1")
        elif tok == "a":
            lab = "L_pollA"
            k.wait_vm("af"); chk(); k(f"s_cbranch_vccz {lab}_done" if not g.noaw else f"s_branch {lab}_done")
            save = list(k.vm)
            g.poll(lab, lambda: k(f"s_sleep {g.asleep}\nglobal_load_dwordx4 v[68:71], v105, s[46:47] sc1"), chk)
            k.vm = save
            g.st("Aarr")
            k(f"s_add_u32 m0, s21, {AST}")
            for n in range(3): k(f"s_mov_b32 s4, {32768*n - 1024*n}\nbuffer_load_dwordx4 v{248+n}, s[76:79], s4 offen offset:{1024*n} sc1 lds", tag="a")
        elif tok == "d":
            k.wait_vm(("h", 8))
            k("s_cmp_lg_u64 s[72:73], 0\ns_mov_b64 exec, 1\ns_cbranch_scc1 L_dfs\nglobal_store_dword v31, v64, s[46:47] offset:16\ns_branch L_dfd"); k.vm.pop()
            k.raw("L_dfs:"); k("global_store_dword v31, v64, s[46:47] offset:16 sc1"); k.raw("L_dfd:"); k("s_mov_b64 exec, -1")
        elif tok == "m":
            for ctl in ("quad_perm:[1,0,3,2]", "quad_perm:[2,3,0,1]", "row_half_mirror"):
                for ii in range(2): k(f"v_add_f32_dpp v{GG+ii}, v{GG+ii}, v{GG+ii} {ctl} row_mask:0xf bank_mask:0xf")
            for ii in range(2): k(f"v_add_f32 v{GG+ii}, v{GG+ii}, v{56+ii}\nv_mul_f32 v{GG+ii}, {fl(-LOG2E)}, v{GG+ii}")
            for ii in range(2): k(f"v_exp_f32 v{GG+ii}, v{GG+ii}")
            for ii in range(2): k(f"v_add_f32 v{GG+ii}, 1.0, v{GG+ii}")
            for ii in range(2): k(f"v_rcp_f32 v{GG+ii}, v{GG+ii}")
            for ii in range(2): k(f"v_sub_f32 v{OM+ii}, 1.0, v{GG+ii}")
            for q in range(24): k(f"v_mul_f32 v{XB[q]}, v{XB[q]}, v{OM+q//12}")
        elif tok == "F":
            k("s_cmp_lt_u32 s49, 18\ns_cbranch_scc1 L_noF\ns_mov_b64 exec, 1\nglobal_store_dword v6, v64, s[46:47] sc1\ns_mov_b64 exec, -1"); k.vm.pop()
            k.raw("L_noF:")
        elif tok == "z": p2_zero(g)
        elif tok == "p": k("s_setprio 3")
        else: raise ValueError(tok)
    assert lastb >= 4
    k("global_load_dword v66, v30, s[46:47] offset:16 sc1")
    def spec(lab, off, val, reads):
        vms = list(k.vm); k.vm = []
        k(f"ds_read_b32 v27, v26 offset:{off}"); reads()
        k(f"v_cmp_ne_u32 vcc, {val}, v27\ns_nop 0\ns_cbranch_vccz {lab}_ok")
        lgs = list(k.lg)
        g.poll(lab, lambda: k(f"ds_read_b32 v27, v26 offset:{off}"), lambda: k(f"v_cmp_ne_u32 vcc, {val}, v27\ns_nop 0"))
        reads()
        k.raw(lab + "_ok:"); k.vm = vms
        if len(lgs) > len(k.lg): k.lg = lgs
    def aread(qs):
        for q in qs: k(f"ds_read_u16_d16_hi v{AR+q}, v{251+q//12} offset:{128*(q%4)+4096*((q%12)//4)}")
    E0 = 128
    def iread(ii):
        for jj in range(3):
            q = 3*ii + jj
            k(f"ds_read_b128 {v(E0+8*q,4)}, v96 offset:{12800*ii+128*jj}\nds_read_b128 {v(E0+8*q+4,4)}, v96 offset:{25600+12800*ii+128*jj}")
    k.wait_vm("a")
    k("ds_write_b32 v25, v64")
    k("v_cmp_ne_u32 vcc, s55, v66\ns_nop 0\ns_cbranch_vccz L_pollF_done")
    g.poll("L_pollF", lambda: k("global_load_dword v66, v30, s[46:47] offset:16 sc1"), lambda: k("v_cmp_ne_u32 vcc, s55, v66\ns_nop 0"))
    k.lg = [(set(), None)]
    g.st("Farr")
    spec("L_pollY", 0, "s55", lambda: aread(range(12)))
    g.st("u8")
    aread(range(12, 24))
    for q in range(12): k(f"v_fmac_f32 v{XB[q]}, v{AR+q}, v{GG}")
    for ii in range(2):
        if ii == 0: k.wait_lg()
        spec(f"L_pollI{ii}", 16 + 16*ii, 1, lambda: iread(ii))
        g.st(f"img{ii}")
        if ii == 0:
            for q in range(12, 24): k(f"v_fmac_f32 v{XB[q]}, v{AR+q}, v{GG+1}")
        for jj in range(3):
            q = 3*ii + jj
            if ii == 0 and not g.epk:
                for e_ in range(4): k(f"v_add_f32 v{E0+8*q+e_}, v{E0+8*q+e_}, v{E0+8*q+4+e_}")
                for e_ in range(4): k(f"v_fma_f32 v{E0+8*q+e_}, v{E0+8*q+e_}, v{OM}, v{XB[4*jj+e_]}")
            else:
                for h in range(2): k(f"v_pk_add_f32 {v(E0+8*q+2*h,2)}, {v(E0+8*q+2*h,2)}, {v(E0+8*q+4+2*h,2)}")
                for h in range(2): pk_bc(k, E0+8*q+2*h, E0+8*q+2*h, OM, ii, XB[12*ii+4*jj+2*h])
            k(f"global_store_dwordx4 v{100+ii}, {v(E0+8*q,4)}, s[42:43] offset:{128*jj} {g.ost}")
    g.st("stiss")
    k.out.append("L_fin2:")
    g.fin()
    if g.fast:
        g.enter("L_slow", karg=False); k("s_nop 1"); g.slow_tail(); k("s_branch L_tail_done")

def nonce(g):
    k = g.k
    assert not g.tmode or g.unsafe
    k(f"s_lshl_b32 s4, s49, 3\ns_add_u32 s4, s4, s50\ns_lshl_b32 s4, s4, 3\ns_add_u32 s4, s4, s48\ns_cmp_lg_u32 s4, {(31*8 + 0)*8 + 2}\ns_cbranch_scc1 L_fin3")
    k(f"v_min_u32 v8, 55, v1\nv_lshlrev_b32 v8, 8, v8\nv_add_u32 v8, {WS_AF}, v8")
    def iss():
        k(f"s_sleep {g.wsleep}")
        for i in range(2): k(f"global_load_dwordx4 {v(64+4*i,4)}, v8, s[46:47] offset:{128*i} sc1")
    def chk():
        for i in range(8): k(f"v_xor_b32 v{64+i}, s55, v{64+i}")
        for i in range(1, 8): k(f"v_or_b32 v64, v64, v{64+i}")
        k("v_cmp_ne_u32 vcc, 0, v64\ns_nop 1")
    g.poll("L_pollW", iss, chk)
    k("v_mov_b32 v6, 0\nv_mov_b32 v7, s55\ns_mov_b64 exec, 1\nglobal_store_dword v6, v7, s[46:47] sc1\ns_mov_b64 exec, -1")
    k.out.append("L_fin3:")

def loader1(g):
    k = g.k
    k(f"""
    s_sub_u32 s62, s48, 4                ; lw
    v_lshrrev_b32 v4, 3, v1              ; rl
    v_and_b32 v5, 7, v1
    s_lshl_b32 s4, s54, 1
    v_xor_b32 v5, v5, v3
    s_and_b32 s5, s62, 1
    v_lshlrev_b32 v5, 4, v5
    s_add_u32 s4, s4, s5
    v_mad_u32_u24 v6, v4, s3, v5         ; rl*1152 + swizzled chunk
    s_mul_i32 s4, s4, {32*1152}
    s_mov_b32 s70, {0 if g.dbg_noP1 else 663552}
    s_mov_b32 s71, 0x20000
    v_add_u32 v12, s4, v6
    s_lshl_b32 s6, s62, 12
    v_xor_b32 v13, 64, v12
    v_add_u32 v14, {2*8192}, v12
    v_add_u32 v15, {3*8192}, v13
    v_add_u32 v13, 8192, v13
    v_and_b32 v8, 4, v4
    v_lshlrev_b32 v8, 3, v8
    v_and_b32 v9, 1, v4
    v_lshl_add_u32 v8, v9, 4, v8
    v_bfe_u32 v9, v4, 1, 1
    s_lshl_b32 s4, s53, 7
    s_lshl_b32 s5, s62, 2
    s_add_u32 s4, s4, s5
    v_add3_u32 v8, v8, v9, s4
    v_mad_u32_u24 v8, v8, s3, v5         ; x n=0
    s_mov_b32 s66, {0 if g.dbg_noP1 else 2359296}
    s_mov_b32 s67, 0x20000
    v_xor_b32 v9, 64, v8
    v_add_u32 v10, {2*1152-2048}, v8
    v_add_u32 v11, {66*1152-3072}, v9
    v_add_u32 v9, {64*1152-1024}, v9
    s_cmp_lt_u32 s62, 2
    s_mov_b64 s[64:65], s[8:9]
    s_cselect_b64 s[68:69], s[28:29], s[30:31]
    s_mov_b32 s10, s59
    """.replace("    s_sub_u32 s62", "    s_movk_i32 s3, 1152\n    s_sub_u32 s62"))
    CO = list(range(10, 19))
    def dma(c, parts="wx"):
        if "w" in parts:
            k(f"s_add_u32 m0, s6, {WSL + 16384*(c%3)}")
            for n in range(4): k(f"buffer_load_dwordx4 v{12+n}, s[68:71], s{CO[c]} offen offset:{1024*n} lds", tag=("c", c))
        if "x" in parts:
            k(f"s_add_u32 m0, s6, {XS + 16384*(c%3)}")
            for n in range(4): k(f"buffer_load_dwordx4 v{8+n}, s[64:67], s{CO[c]} offen offset:{1024*n} lds", tag=("c", c))
    def csetup():
        g.ids2()
        k(f"""
        s_mov_b32 s74, {0 if g.dbg_noC else 663552}
        s_mov_b32 s75, 0x20000
        s_mul_i32 s61, s62, 12288
        s_add_u32 s61, s61, {CST}
        s_cmp_lt_u32 s62, 2
        s_cselect_b32 s72, s32, s34
        s_cselect_b32 s73, s33, s35
        s_mov_b32 s{UO[0]}, s57
        s_mul_i32 s4, s52, 96
        s_and_b32 s5, s62, 1
        s_mul_i32 s5, s5, 48
        s_add_u32 s4, s4, s5
        s_mul_i32 s4, s4, 1152
        v_add_u32 v6, s4, v6                 ; vC0
        v_xor_b32 v7, 64, v6
        v_add_u32 v7, 8192, v7               ; vC1
        v_lshrrev_b32 v4, 1, v2
        v_xor_b32 v4, v4, v3
        v_lshlrev_b32 v4, 4, v4
        v_lshl_add_u32 v4, v2, 7, v4
        v_add_u32 v4, s61, v4
        v_xor_b32 v5, 64, v4
        """)
        offsets(k, UO)
    CU = lambda u: 88 + 24*(u % 7)
    def c_dma(n):
        k(f"s_add_u32 m0, s61, {2048*(n%6)}\ns_add_u32 s20, s{UO[n//3]}, {18432*(n%3)}\nbuffer_load_dwordx4 v6, s[72:75], s20 offen lds\nbuffer_load_dwordx4 v7, s[72:75], s20 offen offset:1024 lds", tag=("C", n))
    def c_drain(e, n):
        for ks in range(2): e(f"ds_read_b128 {v(CU(n//3)+12*ks+4*(n%3),4)}, v{4+ks} offset:{2048*(n%6)}", tag=("Cd", n))
    def cstream(n0, depth, sig=None, gates={}):
        drained = 0
        if gates: k(f"s_lshl_b32 s4, s62, 2\ns_add_u32 s4, s4, {EXE}\nv_mov_b32 v8, s4")
        for n in range(n0, g.cmf if not g.dbg_cskip else n0):
            D = depth(n)
            if n in gates:
                while drained < min(n, 21):
                    k.wait_vm(("C", drained)); c_drain(k, drained); drained += 1
                vms = list(k.vm); k.vm = []
                g.poll(f"L_pollG{n}", lambda: k("ds_read_b32 v9, v8"), lambda: k(f"v_cmp_gt_u32 vcc, {gates[n]}, v9\ns_nop 0"))
                k.vm = vms
            while drained <= n - D and drained < 21:
                k.wait_vm(("C", drained)); c_drain(k, drained); drained += 1
            if drained >= 21 and not g.clate: k.wait_vm(("C", n - D))
            if n >= 6: k.wait_lg(("Cd", n - 6))
            c_dma(n)
            g.st(f'cb{n}')
            if n == sig: k(f"s_lshl_b32 s4, s62, 2\ns_add_u32 s4, s4, {EXE}\nv_mov_b32 v8, s4\nv_mov_b32 v9, 1\nds_write_b32 v8, v9")
        while drained < 21 and not g.dbg_cskip:
            k.wait_vm(("C", drained)); c_drain(k, drained); drained += 1
        if not g.clate: k.wait_vm()
    g.st("karg")
    dma(0)
    offsets(k, CO)
    csetup()
    if g.prioL: k(f"s_setprio {g.prioL}")
    dma(1, g.first)
    for c in range(9):
        if g.nob8 and c == 8: break
        k.wait_vm(("c", 8 if (g.nob8 and c == 7) else c)); g.st(f"l{c}"); k("s_barrier")
        if c == 0: dma(1, [p for p in "wx" if p not in g.first])
        if c + 2 < 9: dma(c + 2)
        if c == (6 if g.nob8 else 7):
            for n in range(g.cpre): c_dma(n)
    cstream(g.cpre, lambda n: 5 if n < g.cfast else g.cthr, g.csig, g.gates)
    k("s_branch L_CPF")
    vm_c = list(k.vm)
    g.enter("L_R2G"); k.vm = list(g.pvm); k(g.aids)
    UK0 = 34816
    RP = 28 if g.pure else 21
    HL = 55 if g.pure else 42
    k(f"""
    s_sub_u32 s62, s48, 4                ; lw
    v_lshrrev_b32 v4, 3, v1              ; rl
    s_mul_i32 s3, s62, 14
    v_and_b32 v8, 7, v1
    s_add_u32 s3, s3, s49
    v_mul_u32_u24 v6, 1152, v4
    s_sub_u32 s3, s3, 18
    """)
    if g.tmode:
        k("s_mov_b32 s73, s3" if g.tmode == 1 else "s_sub_u32 s73, s49, 18\ns_lshl_b32 s73, s73, 2\ns_add_u32 s73, s73, s62")
        k(f"""
        s_lshr_b32 s72, s73, 2               ; col
        s_and_b32 s7, s73, 3
        s_lshl_b32 s4, s50, 2
        s_add_u32 s7, s7, s4                 ; tb
        s_mul_i32 s4, s7, {64*1152}
        s_lshl_b32 s5, s72, 7
        s_add_u32 s4, s4, s5
        v_lshl_add_u32 v9, v8, 4, v6
        v_add_u32 v9, s4, v9
        s_mul_i32 s63, s62, 12288
        s_add_u32 s63, s63, {CST}
        s_mov_b32 s78, 2359296
        s_mov_b32 s79, 0x20000
        s_cmp_ge_u32 s73, 36
        s_mov_b32 s76, s8
        s_mov_b32 s77, s9
        s_cbranch_scc1 L_noT1
        """)
        for n in range(8):
            k(f"s_add_u32 m0, s63, {1024*n}\ns_mov_b32 s4, {9216*n}\nv_xor_b32 v11, {16*n}, v9\nbuffer_load_dwordx4 v11, s[76:79], s4 offen lds")
        if g.tmode == 2:
            k("s_branch L_noT1b")
            k.raw("L_noT1:")
            vm1 = list(k.vm); k.vm = []
            k(f"""
            s_sub_u32 s4, s73, 36
            s_bitcmp1_b32 s4, 0
            s_cselect_b32 s76, s30, s28
            s_cselect_b32 s77, s31, s29
            s_mov_b32 s78, 663552
            s_lshr_b32 s4, s4, 1
            s_mul_i32 s4, s4, 58
            v_min_u32 v21, 57, v1
            v_add_u32 v21, s4, v21
            v_lshrrev_b32 v22, 6, v21
            v_add_u32 v22, s50, v22
            v_mul_u32_u24 v21, 1152, v21
            """)
            def touch1(c):
                k(f"v_add_u32 v23, {c}, v22\nv_mul_u32_u24 v24, 7282, v23\nv_lshrrev_b32 v24, 16, v24\nv_mul_u32_u24 v24, 9, v24\nv_sub_u32 v23, v23, v24\nv_lshl_add_u32 v{40+c}, v23, 7, v21")
            for c in range(1, 9): touch1(c)
            for c in g.e1: k(f"buffer_load_dword v{30+c}, v{40+c}, s[76:79], 0 offen")
            k("s_mov_b32 s16, s76\ns_mov_b32 s17, s77\ns_mov_b32 s18, 663552\ns_mov_b32 s19, 0x20000")
            k.raw("L_noT1b:"); k.vm = vm1
        else: k.raw("L_noT1:")
    k(f"""
    v_xor_b32 v5, v8, v3
    v_lshl_add_u32 v6, v5, 4, v6
    v_mov_b32 v60, 0
    v_mov_b32 v61, 0
    s_lshl_b32 s4, s48, 3
    s_add_u32 s4, s4, {EXE}
    v_mov_b32 v10, s4
    ds_write_b64 v10, v[60:61]
    s_mul_i32 s4, s62, {AW}
    s_add_u32 s4, s4, {UK0}
    v_lshl_add_u32 v12, v1, 3, s4
    ds_write_b64 v12, v[60:61]
    s_and_b32 s4, s62, 1
    s_mul_i32 s4, s4, {AW}
    s_add_u32 s4, s4, {UK0 + 4*AW}
    v_lshl_add_u32 v12, v1, 3, s4
    ds_write_b64 v12, v[60:61]
    s_lshr_b32 s4, s3, 1
    s_mul_i32 s4, s4, {RP}
    v_mul_u32_u24 v20, {65536//RP + 1}, v1
    v_lshrrev_b32 v20, 16, v20           ; lane/RP
    v_mul_u32_u24 v21, {RP}, v20
    v_sub_u32 v21, v1, v21
    v_add_u32 v21, s4, v21
    v_lshrrev_b32 v22, 6, v21
    s_mul_i32 s4, s50, {g.rot1x}
    v_add_u32 v22, s4, v22
    v_mul_u32_u24 v25, 683, v21
    v_lshrrev_b32 v25, 16, v25
    v_mul_u32_u24 v25, 3, v25
    v_lshrrev_b32 v25, 1, v25
    s_mul_i32 s4, s50, {g.rot2x}
    v_add_u32 v25, s4, v25
    v_lshlrev_b32 v20, 2, v20
    v_mul_u32_u24 v21, 1152, v21
    s_mov_b32 s70, 663552
    s_mov_b32 s71, 0x20000
    s_mov_b32 s66, 663552
    s_mov_b32 s67, 0x20000
    v_lshlrev_b32 v16, 4, v1
    """)
    k.raw("    s_getpc_b64 s[4:5]\n    s_add_u32 s4, s4, band_tab@rel32@lo+4\n    s_addc_u32 s5, s5, band_tab@rel32@hi+12")
    k(f"""
    s_lshl_b32 s6, s62, 11
    v_add_u32 v56, s6, v16
    v_mov_b32 v57, s5
    v_add_co_u32 v56, vcc, s4, v56
    s_add_u32 m0, s6, {BND}
    v_addc_co_u32 v57, vcc, 0, v57, vcc
    s_bitcmp1_b32 s3, 0
    s_cselect_b32 s68, s30, s28
    s_cselect_b32 s69, s31, s29
    s_cselect_b32 s64, s34, s32
    s_cselect_b32 s65, s35, s33
    """)
    npf = [0]
    def touch(pat, rot, srd):
        d = 64 + npf[0]; npf[0] += 1
        k(f"s_mov_b32 s4, {pat}\nv_bfe_u32 v23, s4, v20, 4\nv_add_u32 v23, v23, v{rot}\nv_mul_u32_u24 v24, 7282, v23\nv_lshrrev_b32 v24, 16, v24\nv_mul_u32_u24 v24, 9, v24\nv_sub_u32 v23, v23, v24\nv_lshl_add_u32 v23, v23, 7, v21")
        k._wait(vm=g.pf_depth)
        k(f"buffer_load_dword v{d}, v23, s[{srd}:{srd+3}], 0 offen")
    for pat in g.bpf[:g.prebar]: touch(pat, 22, 68)
    k.wait_lg(); k("s_barrier")
    if not g.wfirst:
        for pat in g.bpf[g.prebar:]: touch(pat, 22, 68)
    for pat in g.bpf0: touch(pat, 22, 68)
    k("global_load_dword v62, v60, s[46:47]\nglobal_load_lds_dwordx4 v[56:57], off\nglobal_load_lds_dwordx4 v[56:57], off offset:1024")
    k(f"""
    s_mov_b32 s76, s46
    s_mov_b32 s77, s47
    s_mov_b32 s78, {WS_SIZE}
    s_mov_b32 s79, 0x20000
    v_lshrrev_b32 v15, 5, v1
    v_mad_u32_u24 v15, v15, 5, s60
    v_min_u32 v15, 575, v15
    v_lshrrev_b32 v15, {6 if g.tmode else 5}, v15
    v_and_b32 v14, 31, v1
    v_lshl_add_u32 v15, v15, 5, v14
    v_lshlrev_b32 v15, {g.tfs}, v15
    v_add_u32 v15, {WS_TF}, v15
    s_lshl_b32 s12, s60, 12
    s_add_u32 s12, s12, {WS_UT}
    s_mul_i32 s5, s3, {2*HL*128}
    s_mul_i32 s14, s50, {4*HBLK}
    s_add_u32 s4, s14, {4*HBLK - 128}
    s_add_u32 s5, s5, s14
    v_min_u32 v58, {HL-1}, v1
    v_lshl_add_u32 v58, v58, 7, s5
    v_add_u32 v59, {HL*128}, v58
    v_min_u32 v58, s4, v58
    v_min_u32 v59, s4, v59
    v_mov_b32 v19, {EXE+56}
    v_mov_b32 v60, 1
    """)
    if g.tmode:
        k(f"""
        s_mov_b32 s22, 0x05040100
        s_mov_b32 s23, 0x07060302
        s_lshl_b32 s5, s72, 18
        s_lshl_b32 s4, s7, 7
        s_add_u32 s5, s5, s4
        s_add_u32 s5, s5, {WS_UT}
        v_lshl_add_u32 v13, v8, 4, s5
        v_lshl_add_u32 v13, v4, 15, v13
        s_lshl_b32 s5, s72, 5
        s_add_u32 s5, s5, s7
        s_lshl_b32 s5, s5, {g.tfs}
        s_add_u32 s5, s5, {WS_TF}
        v_mov_b32 v14, s5
        v_xor_b32 v12, v4, v8
        v_lshlrev_b32 v12, 4, v12
        v_lshl_add_u32 v12, v8, 10, v12
        v_add_u32 v12, s63, v12
        """)
        k("s_cmp_ge_u32 s73, 36\ns_cbranch_scc1 L_noT")
        k._wait(vm=3); g.st("Tld")
        for i in range(8): k(f"ds_read_b128 {v(96+4*i,4)}, v12 offset:{128*i}")
        for e in range(8):
            for p in range(4): k(f"v_perm_b32 v{128+4*e+p}, v{96+8*p+4+e//2}, v{96+8*p+e//2}, s{22+e%2}")
            k(f"s_mov_b32 s4, {4096*e}\nbuffer_store_dwordx4 {v(128+4*e,4)}, v13, s[76:79], s4 offen sc1")
        k(f"v_readfirstlane_b32 s55, v62\ns_mul_i32 s55, s55, {LCG_A}\ns_add_u32 s55, s55, {LCG_C}\ns_max_u32 s55, s55, 1\nv_mov_b32 v17, s55")
        k("s_mov_b64 exec, 1"); k.wait_vm()
        k("global_store_dword v14, v17, s[46:47] sc1\ns_mov_b64 exec, -1"); g.st("Tst")
        if g.tmode == 2:
            k("s_branch L_noTb")
            k.raw("L_noT:")
            for c in g.e2: k.raw(f"    s_waitcnt vmcnt({g.pf_depth})\n    buffer_load_dword v{30+c}, v{40+c}, s[16:19], 0 offen")
            k.raw("L_noTb:")
        else: k.raw("L_noT:")
        k.vm = [({("v", 62)}, None), (set(), None), (set(), None)]
    if g.ctl:
        jobs = [(WS_HF, 72*128, 36, 0), (WS_HF, 72*128, 36, 36*128), (WS_G, 72*128, 36, 0), (WS_G, 72*128, 36, 36*128), (WS_XI, 32*128, 32, 0), (WS_AF, 14*128, 14, 0)]
        for i, (base, per, cnt, off) in enumerate(jobs):
            k(f"s_cmp_lg_u32 s3, {42+i}\ns_cbranch_scc1 L_ct{i}\ns_mul_i32 s5, s50, {per}\ns_add_u32 s5, s5, {base+off}\nv_min_u32 v30, {cnt-1}, v1\nv_lshl_add_u32 v30, v30, 7, s5\nglobal_load_dword v31, v30, s[46:47]"); k.vm.pop()
            k.raw(f"L_ct{i}:")
        k(f"s_sub_u32 s5, s3, 48\ns_cmp_ge_u32 s5, 3\ns_cbranch_scc1 L_cts\ns_mul_i32 s5, s5, {3*16384}\ns_lshl_b32 s4, s50, 11\ns_add_u32 s5, s5, s4\ns_add_u32 s5, s5, {WS_S}\nv_min_u32 v30, 2, v3\nv_lshlrev_b32 v30, 14, v30\nv_lshl_add_u32 v30, v2, 7, v30\nv_add_u32 v30, s5, v30\nglobal_load_dword v31, v30, s[46:47]"); k.vm.pop()
        k.raw("L_cts:")
    if g.pure:
        k("s_cmp_eq_u32 s62, 3\ns_cbranch_scc1 L_pure3")
        vm0 = list(k.vm)
        k._wait(vm=2); g.st("wl")
        for i, pat in enumerate(g.bpf):
            touch(pat, 22, 68)
            if i == 1: k._wait(vm=2); k("ds_write_b32 v10, v60")
        for pat in g.cpf[:g.cpf_pre]: touch(pat, 25, 64)
        for i in range(2): k._wait(vm=g.pf_depth); k(f"global_load_dword v{80+i}, v{58+i}, s[42:43]")
        for pat in g.cpf[g.cpf_pre:]: touch(pat, 25, 64)
        g.st("pre")
        k("s_branch L_pure_end")
        k.raw("L_pure3:"); k.vm = vm0
    elif g.wfirst:
        if not g.tmode: k._wait(vm=0 if g.wfirst == 1 else 2); g.st("wl")
        for pat in g.bpf: touch(pat, 22, 68)
    g.st("bpfi")
    if g.pure: g.cpf = []; g.hpre = 0; g.uwait = 0; g.r2skip = 1
    if g.hpre == 2:
        for i in range(2): k._wait(vm=g.pf_depth); k(f"global_load_dword v{80+i}, v{58+i}, s[42:43]")
    for pat in g.cpf[:g.cpf_pre]: touch(pat, 25, 64)
    for kind, pat in g.seq: touch(pat, 22 if kind == "B" else 25, 68 if kind == "B" else 64)
    if g.hpre == 3:
        for i in range(2): k._wait(vm=g.pf_depth); k(f"global_load_dword v{80+i}, v{58+i}, s[42:43]")
    k.wait_vm(); g.st("pre")
    k(f"v_readfirstlane_b32 s55, v62\ns_mul_i32 s55, s55, {LCG_A}\ns_add_u32 s55, s55, {LCG_C}\ns_max_u32 s55, s55, 1")
    k(f"s_cmp_lg_u32 s62, 3\ns_cbranch_scc1 L_pollT_skip")
    g.poll("L_pollT", lambda: k(f"s_sleep {g.tsleep}\nglobal_load_dword v18, v15, s[46:47] sc1"), lambda: k("v_cmp_ne_u32 vcc, s55, v18\ns_nop 1"))
    g.st("Tarr")
    def udma(c):
        k(f"s_mov_b32 m0, {UK0 + AW*c + 512}\ns_add_u32 s4, s12, {4096*c}")
        for n in range(4): k(f"buffer_load_dwordx4 v16, s[76:79], s4 offen offset:{1024*n} sc1 lds")
    for c in (2, 3, 0, 1): udma(c)
    k("s_cmp_lt_u32 s49, 24\ns_cbranch_scc1 L_u4")
    udma(4); udma(5)
    k("ds_write_b32 v10, v60 offset:4")
    k._wait(vm=8); k("ds_write_b32 v10, v60")
    k.wait_vm(); k(f"v_mov_b32 v18, {EXE+52}\nds_write_b32 v18, v60")
    k.raw("L_u4:"); k.vm = [(set(), None)]
    k("ds_write_b32 v10, v60 offset:4")
    k.wait_vm(); g.st("gath")
    k.raw("L_pollT_skip:")
    k("ds_write_b32 v10, v60")
    if g.uwait:
        g.poll("L_pollTw", lambda: k("s_sleep 2\nds_read_b32 v18, v19 offset:4"), lambda: k("v_cmp_ne_u32 vcc, 1, v18\ns_nop 1"))
    if g.pure: k.raw("L_pure_end:"); k.vm = [(set(("v", i) for i in range(64, 84)), None)]
    for pat in g.bpf2: touch(pat, 22, 68)
    if g.hpre == 4:
        for i in range(2): k._wait(vm=g.pf_depth); k(f"global_load_dword v{80+i}, v{58+i}, s[42:43]")
    if g.r2skip: k("s_cmp_lt_u32 s49, 24\ns_cbranch_scc1 L_R2C")
    if g.r3all:
        k(f"""
        s_sub_u32 s4, s49, 24
        s_lshl_b32 s4, s4, 2
        s_add_u32 s4, s4, s62
        s_mul_i32 s4, s4, 18
        v_mul_u32_u24 v20, 3641, v1
        v_lshrrev_b32 v20, 16, v20           ; lane/18
        v_mul_u32_u24 v21, 18, v20
        v_sub_u32 v21, v1, v21
        v_add_u32 v21, s4, v21
        v_mul_u32_u24 v25, 683, v21
        v_lshrrev_b32 v25, 16, v25
        v_mul_u32_u24 v25, 3, v25
        v_lshrrev_b32 v25, 1, v25
        s_mul_i32 s4, s50, {g.rot2x}
        v_add_u32 v25, s4, v25
        v_lshlrev_b32 v20, 2, v20
        v_mul_u32_u24 v21, 1152, v21
        s_mov_b32 s64, s32
        s_mov_b32 s65, s33
        s_mov_b32 s68, s34
        s_mov_b32 s69, s35
        """)
        for pat in g.cpf[g.cpf_pre:]: touch(pat, 25, 64); touch(pat, 25, 68)
    else:
        for pat in g.cpf[g.cpf_pre:]: touch(pat, 25, 64)
    ho = 42 if g.hout else 46
    if g.hpre == 1 and not g.r2skip:
        for i in range(2): k._wait(vm=g.pf_depth); k(f"global_load_dword v{80+i}, v{58+i}, s[{ho}:{ho+1}]")
    if g.hpre == 1 and g.r2skip:
        k(f"s_sub_u32 s4, s49, 24\ns_lshl_b32 s4, s4, 2\ns_add_u32 s4, s4, s62\ns_mul_i32 s4, s4, {144*128}\ns_add_u32 s4, s4, s14\nv_min_u32 v58, 47, v1\nv_lshl_add_u32 v58, v58, 7, s4")
        for i in range(3): k._wait(vm=g.pf_depth); k(f"global_load_dword v{80+i}, v58, s[{ho}:{ho+1}]\nv_add_u32 v58, {48*128}, v58")
    k("s_cmp_lt_u32 s49, 24\ns_cbranch_scc1 L_R2C")
    save = list(k.vm)
    k.wait_vm(); g.st("pfdone")
    if g.awarm:
        k(f"""
        s_sub_u32 s4, s49, 24
        s_mul_i32 s5, s4, {14*128}
        s_add_u32 s5, s5, {WS_AF}
        v_min_u32 v20, 13, v1
        v_lshl_add_u32 v20, v20, 7, s5
        s_lshl_b32 s4, s4, 2
        s_add_u32 s4, s4, s62
        s_mul_i32 s4, s4, {18*4096}
        s_lshl_b32 s5, s50, 9
        s_add_u32 s4, s4, s5
        s_add_u32 s4, s4, {WS_A}
        v_min_u32 v21, 35, v1
        v_and_b32 v22, 3, v21
        v_lshrrev_b32 v21, 2, v21
        v_lshlrev_b32 v21, 12, v21
        v_lshl_add_u32 v21, v22, 7, v21
        v_add_u32 v21, s4, v21
        v_add_u32 v22, {9*4096}, v21
        """)
        g.poll("L_pollV", lambda: k(f"s_sleep {g.awarm}\nglobal_load_dwordx4 v[24:27], v20, s[46:47] sc1"),
               lambda: k("v_xor_b32 v24, s55, v24\nv_xor_b32 v25, s55, v25\nv_xor_b32 v26, s55, v26\nv_xor_b32 v27, s55, v27\nv_or3_b32 v24, v24, v25, v26\nv_or_b32 v24, v24, v27\nv_cmp_ne_u32 vcc, 0, v24\ns_nop 0"))
        k("global_load_dword v24, v21, s[46:47] sc1\nglobal_load_dword v25, v22, s[46:47] sc1")
        k.wait_vm(); g.st("awd")
    g.fin()
    k.raw("L_R2C:"); k.vm = [(set(("v", i) for i in range(64, 84)), None)] if g.r2skip else save; k.hist = []; k.lg = [(set(), None)]
    csetup()
    cstream(0, lambda n: g.cthr2)
    k.raw("L_CPF:"); k.vm = []; k.lg = [(set(), None)]
    k(f"""
    v_lshrrev_b32 v8, 1, v3
    v_lshlrev_b32 v8, 12, v8
    s_lshr_b32 s4, s62, 1
    s_lshl_b32 s5, s4, 10
    v_add_u32 v8, s5, v8
    v_bfe_u32 v9, v1, 1, 1
    v_lshl_add_u32 v8, v9, 8, v8
    v_and_b32 v10, 1, v3
    v_lshlrev_b32 v10, 3, v10
    v_bfe_u32 v11, v1, 2, 2
    v_add_u32 v10, v10, v11
    v_lshlrev_b32 v9, 2, v9
    v_xor_b32 v10, v10, v9
    v_lshl_add_u32 v8, v10, 4, v8
    v_and_b32 v10, 1, v1
    v_lshl_add_u32 v6, v10, 3, v8
    v_xor_b32 v7, 64, v6
    s_mul_i32 s4, s4, 25600
    s_and_b32 s5, s62, 1
    s_mul_i32 s5, s5, 192
    s_add_u32 s4, s4, s5
    s_add_u32 s4, s4, {IMG}
    v_mul_u32_u24 v0, 400, v2
    v_lshl_add_u32 v0, v3, 4, v0
    v_add_u32 v0, s4, v0
    v_add_u32 v2, 49152, v6
    v_add_u32 v3, 49152, v7
    """)
    k.wait_all(); g.st("cdone")
    A2, HF = 40, 8
    def hreads(e, u, ks):
        sl = u % 6; a0 = 6 if sl < 3 else 2
        for tt in range(4):
            off = 16384*(sl % 3) + 8192*ks + 2048*(tt >> 1) + 512*(tt & 1)
            e(f"ds_read_b64_tr_b16 {v(HF+16*ks+4*tt,2)}, v{a0} offset:{off}\nds_read_b64_tr_b16 {v(HF+16*ks+4*tt+2,2)}, v{a0+1} offset:{off}")
    def mf1(u, ks, tt, dt):
        d = A2 + 16*dt + 4*tt
        cc = "0" if (u == 0 and ks == 0) else v(d, 4)
        return ("i", f"{M16} {v(d,4)}, {v(CU(u)+12*ks+4*dt,4)}, {v(HF+16*ks+4*tt,4)}, {cc}", None)
    mf2 = lambda u, ks: [mf1(u, ks, tt, dt) for tt in range(4) for dt in range(3)]
    if g.prioM: k(f"s_setprio {g.prioM}")
    k("s_barrier")
    hreads(k, 0, 0)
    if g.wb: k.raw("    s_or_b32 s4, s52, s62\n    s_cbranch_scc1 L_nowb\n    buffer_wbl2 sc1\nL_nowb:")
    tail = [[(7,0,tt),(7,1,tt),(8,0,tt),(8,1,tt)] for tt in range(4)]
    def treads(e, st):
        for i, (u, ks, tt) in enumerate(tail[st]):
            off = 16384*(u % 6) + 8192*ks + 2048*(tt >> 1) + 512*(tt & 1); b_ = HF + 16*(st % 2) + 4*i
            e(f"ds_read_b64_tr_b16 {v(b_,2)}, v6 offset:{off}\nds_read_b64_tr_b16 {v(b_+2,2)}, v7 offset:{off}")
    def tmf(st):
        return [("i", f"{M16} {v(A2+16*dt+4*tt,4)}, {v(CU(u)+12*ks+4*dt,4)}, {v(HF+16*(st%2)+4*i,4)}, {v(A2+16*dt+4*tt,4)}", None) for i, (u, ks, tt) in enumerate(tail[st]) for dt in range(3)]
    def wr(tts):
        e = Rec()
        for tt in tts:
            for dt in range(3): e(f"ds_write_b128 v0, {v(A2+16*dt+4*tt,4)} offset:{6400*tt+64*dt}")
        return e.items
    early = g.cmf == 27
    cov = {int(t[1:].split(":")[0]): int(t.split(":")[1]) for t in g.p2s.split() if t[0] == "b"}; bars = set(cov)
    for u in range(9): assert max(cov[b_] for b_ in bars if b_ <= min(u, 7)) >= (u if u < 7 else 8), u
    for u in range(7):
        rd = Rec(); hreads(rd, u, 1)
        ex = Rec()
        if u == 2 and g.cmf >= 24:
            if g.clate: ex.items.append(("raw", "    s_waitcnt vmcnt(0)", None))
            for n in range(21, 24): c_drain(ex, n)
        if early and u == 3:
            for n in range(24, 27): c_drain(ex, n)
        weave(k, mf2(u, 0), [(rd.items, 0, 7), (ex.items, 4, 9)])
        if u + 1 in bars: k.wait_lg(); k("s_barrier")
        g.st(f'm{u+1}')
        rd = Rec(); ex = Rec()
        if u < 6: hreads(rd, u + 1, 0)
        else:
            treads(rd, 0)
            if not early:
                for n in range(g.cmf, 27): c_drain(ex, n)
        weave(k, mf2(u, 1), [(rd.items, 1, 8), (ex.items, 1, 10)])
    for st in range(4):
        rd = Rec()
        if st < 3: treads(rd, st + 1)
        w_ = wr([st - 1]) if st else []
        m_ = tmf(st)
        if st == 0: k(f"s_lshl_b32 s4, s62, 2\ns_add_u32 s4, s4, {ASY}\nv_mov_b32 v4, s4\nv_mov_b32 v5, 1")
        if st == 2: w_ = w_ + [("i", "ds_write_b32 v4, v5 offset:16", None)]
        weave(k, m_, [(rd.items, 0, g.trs), (w_, g.tws, len(m_) - 1)])
        g.st(f'T{st}')
    for it in wr([3]): play(k, it)
    k("ds_write_b32 v4, v5 offset:32"); g.st("p2end")
    g.fin()
```

```python
from g2 import *
k = dict(skew=1.0)
make("t1.s", **k)
make("t2.s", bpf=[0x3321, 0x6654, 0x8887], **k)
make("t3.s", prebar=1, **k)
make("t4.s", bpf=[0x3321, 0x6654, 0x8887], prebar=1, **k)
make("t5.s", tq=4, **k)
make("t6.s", tq=2, **k)
make("t7.s", pf_depth=0, **k)
make("t8.s", r3all=0, **k)
make("t9.s", nshift=0, **k)
kw = dict(stamps=True, bst=['stiss'], amp=8)
make("m1.s", wfirst=2, bpf=[0x5543, 0x8876], cpf_pre=1, rot2x=0, r3all=0, **kw); make("m2.s", **kw); make("m3.s", wfirst=2, bpf=[0x5543, 0x8876], **kw); make("m4.s", cpf_pre=3, **kw)
```
